```python
import torch

def _softmax(x, axis=-1):
    return torch.softmax(x, dim=axis)

def _gelu(x):
    return torch.nn.functional.gelu(x, approximate='tanh')

def _silu(x):
    return torch.nn.functional.silu(x)

def _sigmoid(x):
    return torch.sigmoid(x)

def _layernorm(x, axis=-1, eps=1e-05):
    m = x.mean(dim=axis, keepdim=True)
    v = x.var(dim=axis, keepdim=True, unbiased=False)
    return (x - m) / torch.sqrt(v + eps)

def _scatter_add(tgt, idx, src, axis=0):
    return tgt.clone().index_add_(axis, idx, src)

def _segment_sum(src, seg, n):
    out = torch.zeros((n,) + src.shape[1:], dtype=src.dtype)
    return out.index_add_(0, seg, src)

def _pad(x, pw):
    flat = tuple((v for pair in reversed(pw) for v in pair))
    return torch.nn.functional.pad(x, flat)
kernel_name = 'adaLN_cond__memory_aug_recurrent_mem_tr__dense_activation_relu__prompt'

def setup_inputs():

    _w = lambda a: (lambda t: t.to(torch.bfloat16) if t.is_floating_point() else t)(torch.as_tensor(a))

    def _A_setup():
        B, S, Dm = (1, 2048, 512)
        H, Dh = (32, 128)
        M, seg = (8, 32)
        seg = min(seg, S)
        S = S // seg * seg
        return {'x': _w((lambda *s: torch.randn(*s, dtype=torch.bfloat16) * 0.05)(B, S, Dm)), 'mem0': _w((lambda *s: torch.randn(*s, dtype=torch.bfloat16) * 0.4)(B, M, Dm)), 'Wq': _w((lambda *s: torch.randn(*s, dtype=torch.bfloat16) * 3.2)(Dm, H, Dh) * Dm ** (-0.5)), 'Wk': _w((lambda *s: torch.randn(*s, dtype=torch.bfloat16) * 3.2)(Dm, H, Dh) * Dm ** (-0.5)), 'Wv': _w((lambda *s: torch.randn(*s, dtype=torch.bfloat16) * 0.4)(Dm, H, Dh) * Dm ** (-0.5)), 'Wo': _w((lambda *s: torch.randn(*s, dtype=torch.bfloat16) * 0.4)(H, Dh, Dm) * (H * Dh) ** (-0.5)), 'seg_len': seg}
    _A_in = _A_setup()

    def _B_setup():
        B, S, D, Dff = (1, 2048, 512, 1376)
        return {'x': _w((lambda *s: torch.randn(*s, dtype=torch.bfloat16) * 0.05)(B, S, D)), 'w1': _w((lambda *s: torch.randn(*s, dtype=torch.bfloat16) * 0.05)(D, Dff)), 'w2': _w((lambda *s: torch.randn(*s, dtype=torch.bfloat16) * 0.05)(Dff, D))}
    _B_in = _B_setup()
    return {'A_x': _A_in['x'], 'A_mem0': _A_in['mem0'], 'A_Wq': _A_in['Wq'], 'A_Wk': _A_in['Wk'], 'A_Wv': _A_in['Wv'], 'A_Wo': _A_in['Wo'], 'A_seg_len': _A_in['seg_len'], 'B_x': _B_in['x'], 'B_w1': _B_in['w1'], 'B_w2': _B_in['w2'], 'c': _w((lambda *s: torch.randn(*s, dtype=torch.bfloat16) * 0.1)(1, 512) * 8.0), 'w_mod': _w((lambda *s: torch.randn(*s, dtype=torch.bfloat16) * 0.1)(512, 6 * 512) * 512 ** (-0.5) * 8.0)}

def reference(A_x, A_mem0, A_Wq, A_Wk, A_Wv, A_Wo, A_seg_len, B_x, B_w1, B_w2, c, w_mod):

    def _A_ref(x, mem0, Wq, Wk, Wv, Wo, seg_len):
        B, S, Dm = x.shape
        H, Dh = (Wq.shape[1], Wq.shape[2])
        M = mem0.shape[1]
        scale = Dh ** (-0.5)
        n_seg = S // seg_len
        L = M + seg_len
        idx = torch.arange(L)
        mask = (idx[:, None] < M) | (idx[:, None] >= idx[None, :])
        mem = mem0
        outs = []
        for s in range(n_seg):
            xs = x[:, s * seg_len:(s + 1) * seg_len, :].clone()
            h = torch.concatenate([mem, xs], axis=1)
            q = torch.einsum('btd,dhe->bhte', h, Wq)
            k = torch.einsum('btd,dhe->bhte', h, Wk)
            v = torch.einsum('btd,dhe->bhte', h, Wv)
            scores = torch.einsum('bhqe,bhke->bhqk', q, k) * scale
            scores = torch.where(mask[None, None], scores, -1000000000.0)
            p = _softmax(scores, axis=-1)
            o = torch.einsum('bhqk,bhke->bhqe', p, v)
            o = torch.einsum('bhte,hed->btd', o, Wo)
            mem = o[:, :M, :].clone()
            outs.append(o[:, M:, :])
        return torch.concatenate(outs, axis=1)

    def _B_ref(x, w1, w2):
        h = torch.einsum('bsd,df->bsf', x, w1)
        zero = torch.zeros_like(h)
        h = torch.maximum(h, zero)
        return torch.einsum('bsf,fd->bsd', h, w2)
    x = A_x
    mod = (_silu(c) @ w_mod).reshape(c.shape[0], 6, 1, -1)
    sa, ca, ga, sb, cb, gb = (mod[:, 0].clone(), mod[:, 1].clone(), mod[:, 2].clone(), mod[:, 3].clone(), mod[:, 4].clone(), mod[:, 5].clone())
    h = _layernorm(x, axis=-1) * (1 + ca) + sa
    x = x + ga * _A_ref(h, A_mem0, A_Wq, A_Wk, A_Wv, A_Wo, A_seg_len)
    h = _layernorm(x, axis=-1) * (1 + cb) + sb
    x = x + gb * _B_ref(h, B_w1, B_w2)
    return x
```

```python
import re

_REG = re.compile(r"^(-?)(abs\()?([vas])(\d+|\[(\d+):(\d+)\])\)?$")


def regs_of(tok):
    tok = tok.strip()
    if tok in ("vcc", "vcc_lo"):
        return [("s", 106), ("s", 107)] if tok == "vcc" else [("s", 106)]
    if tok == "vcc_hi":
        return [("s", 107)]
    if tok == "exec":
        return [("s", 126), ("s", 127)]
    if tok == "m0":
        return [("s", 124)]
    m = _REG.match(tok)
    if not m:
        return []
    k = m.group(3)
    if m.group(5) is not None:
        return [(k, i) for i in range(int(m.group(5)), int(m.group(6)) + 1)]
    return [(k, int(m.group(4)))]


TRANS = ("v_exp_f32", "v_log_f32", "v_rcp_f32", "v_rsq_f32", "v_sqrt_f32",
         "v_sin_f32", "v_cos_f32", "v_rcp_iflag_f32")


class Inst:
    __slots__ = ("text", "mn", "kind", "wr", "rd", "passes", "srcC", "srcAB",
                 "dpp", "perm", "trans", "ws", "sdata", "lds", "lanesel", "exactC")

    def __init__(self, text):
        self.text = text
        parts = text.split(None, 1)
        self.mn = mn = parts[0]
        rest = parts[1] if len(parts) > 1 else ""
        ops = [o.strip() for o in rest.split(",")] if rest else []
        mods = ""
        if ops:
            last = ops[-1].split()
            if last:
                ops[-1] = last[0]
                mods = " ".join(last[1:])
        clean = []
        depth = 0
        cur = ""
        for ch in rest:
            if ch == "[":
                depth += 1
            if ch == "]":
                depth -= 1
            if ch == "," and depth == 0:
                clean.append(cur.strip())
                cur = ""
            else:
                cur += ch
        if cur.strip():
            clean.append(cur.strip())
        ops = []
        mods = ""
        for i, o in enumerate(clean):
            if i == len(clean) - 1:
                sp = o.split()
                ops.append(sp[0])
                mods = " ".join(sp[1:])
            else:
                ops.append(o)
        self.wr = set()
        self.rd = set()
        self.passes = 0
        self.srcC = set()
        self.srcAB = set()
        self.dpp = False
        self.perm = False
        self.trans = False
        self.ws = 1
        self.sdata = set()
        self.lds = False
        self.lanesel = set()
        self.exactC = None
        R = lambda i: set(regs_of(ops[i])) if i < len(ops) else set()
        if mn.startswith("v_mfma") or mn.startswith("v_smfmac"):
            self.kind = "mfma"
            self.passes = 8 if "32x32" in mn else 4
            self.wr = R(0)
            if mn.startswith("v_smfmac"):
                self.srcC = R(0)
                self.srcAB = R(1) | R(2) | R(3)
                self.exactC = ops[0]
            else:
                self.srcC = R(3)
                self.srcAB = R(1) | R(2)
                self.exactC = ops[3]
            self.rd = self.srcC | self.srcAB
        elif mn.startswith("v_"):
            self.kind = "valu"
            self.trans = any(mn.startswith(t) for t in TRANS)
            self.dpp = ("row_" in mods) or ("quad_perm" in mods) or ("wave_" in mods) or mn.endswith("_dpp")
            if mn.startswith("v_permlane"):
                self.perm = True
                self.wr = R(0) | R(1)
                self.rd = R(0) | R(1)
            elif mn.startswith("v_cmp"):
                self.wr = R(0)
                for i in range(1, len(ops)):
                    self.rd |= R(i)
            elif mn.startswith(("v_add_co", "v_addc_co", "v_sub_co", "v_subb_co")):
                self.wr = R(0) | R(1)
                for i in range(2, len(ops)):
                    self.rd |= R(i)
            elif mn.startswith(("v_readlane", "v_writelane")):
                self.wr = R(0)
                self.rd = R(1) | R(2)
                self.lanesel = R(2)
                if mn.startswith("v_writelane"):
                    self.rd |= R(0)
            else:
                self.wr = R(0)
                for i in range(1, len(ops)):
                    self.rd |= R(i)
                if mn.startswith(("v_fmac", "v_dot2c", "v_pk_fmac")) or self.dpp:
                    self.rd |= R(0)
                if mn.startswith("v_cndmask") and len(ops) == 3:
                    self.rd |= set(regs_of("vcc"))
        elif mn.startswith("ds_"):
            self.kind = "ds"
            if mn.startswith(("ds_read", "ds_bpermute", "ds_permute", "ds_swizzle")):
                self.wr = R(0)
                for i in range(1, len(ops)):
                    self.rd |= R(i)
            else:
                for i in range(len(ops)):
                    self.rd |= R(i)
        elif mn.startswith(("buffer_", "global_")):
            self.kind = "vmem"
            self.lds = " lds" in (" " + mods)
            if mn.startswith(("buffer_wbl2", "buffer_inv")):
                pass
            elif "load" in mn and not self.lds:
                self.wr = R(0)
                for i in range(1, len(ops)):
                    self.rd |= R(i)
            elif "atomic" in mn:
                for i in range(len(ops)):
                    self.rd |= R(i)
                if "sc0" in mods:
                    self.wr = R(0)
            else:
                for i in range(len(ops)):
                    self.rd |= R(i)
                if "store" in mn and ("x4" in mn or "x3" in mn):
                    self.sdata = R(0) if mn.startswith("buffer_") else R(1)
            if self.lds:
                self.rd |= {("s", 124)}
        elif mn.startswith("s_"):
            self.kind = "salu"
            if mn == "s_nop":
                self.ws = int(ops[0], 0) + 1
            elif mn.startswith(("s_waitcnt", "s_barrier", "s_branch", "s_cbranch", "s_endpgm",
                                "s_sleep", "s_setprio", "s_cmp", "s_bitcmp")):
                for i in range(len(ops)):
                    self.rd |= R(i)
            else:
                self.wr = R(0)
                for i in range(1, len(ops)):
                    self.rd |= R(i)
        else:
            raise ValueError("unknown instruction: " + text)


def required(prev, cur):
    need = 0
    pv = prev.kind == "valu"
    if pv:
        wv = {r for r in prev.wr if r[0] in "va"}
        wsg = {r for r in prev.wr if r[0] == "s"}
        if cur.kind == "mfma" and wv & cur.rd:
            need = max(need, 2)
        if cur.kind == "valu":
            if (cur.perm or cur.dpp) and wv & cur.rd:
                need = max(need, 2)
            if prev.trans and wv & cur.rd:
                need = max(need, 1)
            if cur.mn.startswith(("v_readfirstlane", "v_readlane")) and wv & cur.rd:
                need = max(need, 1)
            if wsg & cur.rd:
                need = max(need, 4 if wsg & cur.lanesel else 2)
        if cur.kind in ("vmem",) and wsg & cur.rd:
            need = max(need, 5)
        if prev.trans and cur.kind in ("vmem", "ds") and wv & cur.rd:
            need = max(need, 1)
    if prev.kind == "mfma":
        p = prev.passes
        full = 8 if p == 4 else 12
        ovl = 6 if p == 4 else 10
        if cur.kind == "mfma":
            if prev.wr & cur.srcAB:
                need = max(need, full)
            if prev.wr & cur.srcC:
                if cur.srcC == prev.wr and cur.mn == prev.mn:
                    pass
                else:
                    need = max(need, ovl)
            elif prev.wr & cur.wr:
                need = max(need, ovl)
        elif cur.kind in ("valu", "vmem", "ds"):
            if prev.wr & (cur.rd | cur.wr):
                need = max(need, full)
            if cur.kind == "valu" and prev.srcC & cur.wr:
                need = max(need, 3 if p == 4 else 7)
    if prev.kind == "salu" and ("s", 124) in prev.wr and cur.kind == "vmem" and cur.lds:
        need = max(need, 1)
    if prev.sdata and (prev.sdata & cur.wr):
        need = max(need, 2 if cur.kind == "valu" else 1)
    return need


class Asm:
    def __init__(self):
        self.out = []
        self.hist = []
        self.n_inst = 0
        self.n_nop = 0
        self.uid = 0

    def raw(self, s):
        self.out.append(s)

    def c(self, s):
        self.out.append("    ; " + s)

    def label(self, name, clear=False):
        self.out.append(name + ":")
        if clear:
            self.hist = []

    def newlabel(self, base):
        self.uid += 1
        return "L_%s_%d" % (base, self.uid)

    def I(self, text, comment=None):
        text = text.strip()
        inst = Inst(text)
        need = 0
        dist = 0
        for prev in reversed(self.hist):
            r = required(prev, inst)
            if r - dist > need:
                need = r - dist
            dist += prev.ws
            if dist > 16:
                break
        while need > 0:
            k = min(need, 16)
            nop = Inst("s_nop %d" % (k - 1))
            self.out.append("    " + nop.text)
            self.hist.append(nop)
            self.n_nop += 1
            need -= k
        self.out.append("    " + text + ("    ; " + comment if comment else ""))
        self.hist.append(inst)
        if len(self.hist) > 40:
            self.hist = self.hist[-40:]
        self.n_inst += 1

    def nops(self, n):
        while n > 0:
            k = min(n, 16)
            self.I("s_nop %d" % (k - 1))
            n -= k

    def text(self):
        return "\n".join(self.out) + "\n"


def vr(base, n=1, k="v"):
    if n == 1:
        return "%s%d" % (k, base)
    return "%s[%d:%d]" % (k, base, base + n - 1)


def ar(base, n=1):
    return vr(base, n, "a")


def sr(base, n=1):
    return vr(base, n, "s")
```

```python
from asmlib import Asm, vr, ar, sr

WS_MOD = 0x00000000
WS_FLAGS = 0x00010000
WS_MEM = 0x00100000
WS_PART = 0x00200000
WS_H = 0x00400000
WS_KT = 0x00800000
WS_VT = 0x01800000
WS_QT = 0x02800000
WS_KM = 0x03800000
WS_VM = 0x03C00000
WS_TAIL = 0x04000000
WS_SIZE = 0x10000000
OOB = 0x40000000

L_WO = 0
L_K = 131072
L_M = 147456
L_MB = L_M + 4096
L_O = L_MB + 8192
O_OFF = L_O - L_M
L_SEL = L_O + 512
L_BC = L_O + 2048 + 512

S_WS = 8
S_W = 12
S_DBG = 16
S_WAVE = 20
S_RANK = 21
S_STEP = 22
S_MEM = 23
S_MEMHI = 24
S_PW0 = 25
S_PW1 = 26
S_PR = 27
S_PRHI = 28
S_KT = 29
S_VT = 30
S_KM = 31
S_HI = 32
S_C = 34
S_NC = 35
S_RETRY = 36
S_VM = 37
S_T0 = 38
S_POIS = 46
S_POISHI = 47
S_PWB = 96
S_PRB = 97
S_RING = 98
S_ONE = 100
S_SEL = 99
S_TAG = 96
S_PTR = 48
S_TM = 64

V_VW = 0
V_MEM = 128
V_ACC = 160
V_KT = 184
V_S = 216
V_VT = 228
V_PX = 236
V_IDX = 246
V_L16 = 247
V_L16W = 248
V_K = 249
V_PS = 250
V_MS = 251
V_MW = 252
V_MR = 253
V_KM = 254
V_T = 255

RETRY_MAX = 400000
ROT = True


def wacc(t):
    return V_ACC + 4 * t if t < 6 else V_VT + 4 * (t - 6)


class Timer:
    def __init__(self, a, on, trace=None):
        self.a = a
        self.on = on
        self.trace = trace

    def start(self):
        if not self.on:
            return
        a = self.a
        for i in range(16):
            a.I("s_mov_b32 s%d, 0" % (S_TM + 4 + i))
        a.I("s_memtime s[%d:%d]" % (S_TM, S_TM + 1))
        a.I("s_waitcnt lgkmcnt(0)")

    def stamp(self, idx):
        if self.trace is not None:
            a = self.a
            l = a.newlabel("tr")
            a.I("s_cmp_lg_u32 s%d, %d" % (S_STEP, self.trace + (1 if idx in (14, 13, 7, 8) else 0)))
            a.I("s_cbranch_scc1 %s" % l)
            a.I("s_memrealtime s[%d:%d]" % (S_TM + 2, S_TM + 3))
            a.I("s_waitcnt lgkmcnt(0)")
            a.I("s_mov_b32 s%d, s%d" % (S_TM + 4 + idx, S_TM + 2))
            a.label(l)
            return
        if not self.on:
            return
        a = self.a
        a.I("s_memtime s[%d:%d]" % (S_TM + 2, S_TM + 3))
        a.I("s_waitcnt lgkmcnt(0)")
        a.I("s_sub_u32 s%d, s%d, s%d" % (S_T0 + 7, S_TM + 2, S_TM))
        a.I("s_add_u32 s%d, s%d, s%d" % (S_TM + 4 + idx, S_TM + 4 + idx, S_T0 + 7))
        a.I("s_mov_b32 s%d, s%d" % (S_TM, S_TM + 2))


def lane_consts(a, w):
    T = V_MEM
    lane = V_T
    a.I("v_lshlrev_b32 %s, 4, %s" % (vr(V_L16), vr(lane)))
    a.I("v_add_u32 %s, %d, %s" % (vr(V_L16W), L_WO + w * 32768, vr(V_L16)))
    a.I("v_add_u32 %s, %d, %s" % (vr(V_K), L_K, vr(V_L16)))
    a.I("v_and_b32 %s, 15, %s" % (vr(T), vr(lane)))
    a.I("v_lshrrev_b32 %s, 4, %s" % (vr(T + 1), vr(lane)))
    a.I("v_mov_b32 %s, 0x4444" % vr(V_IDX))
    a.I("v_mov_b32 %s, 0xeeee" % vr(T + 2))
    a.I("v_and_b32 %s, 2, %s" % (vr(T + 3), vr(T)))
    a.I("v_cmp_ne_u32 vcc, 0, %s" % vr(T + 3))
    a.I("v_cndmask_b32 %s, %s, %s, vcc" % (vr(V_IDX), vr(V_IDX), vr(T + 2)))
    a.I("v_lshlrev_b32 %s, 13, %s" % (vr(T + 2), vr(T + 1)))
    a.I("v_lshrrev_b32 %s, 2, %s" % (vr(T + 3), vr(T)))
    a.I("v_lshl_add_u32 %s, %s, 11, %s" % (vr(T + 2), vr(T + 3), vr(T + 2)))
    a.I("v_lshlrev_b32 %s, 1, %s" % (vr(T + 3), vr(T + 3)))
    a.I("v_lshl_add_u32 %s, %s, 3, %s" % (vr(T + 3), vr(T + 1), vr(T + 3)))
    if ROT:
        a.I("v_add_u32 %s, s%d, %s" % (vr(T + 3), S_RANK, vr(T + 3)))
    else:
        a.I("v_mov_b32 %s, s%d" % (vr(T + 3), S_RANK))
    a.I("v_and_b32 %s, 31, %s" % (vr(T + 3), vr(T + 3)))
    a.I("v_lshl_add_u32 %s, %s, 6, %s" % (vr(T + 2), vr(T + 3), vr(T + 2)))
    a.I("v_and_b32 %s, 3, %s" % (vr(T + 3), vr(T)))
    a.I("v_lshl_add_u32 %s, %s, 4, %s" % (vr(V_PS), vr(T + 3), vr(T + 2)))
    a.I("v_lshrrev_b32 %s, 2, %s" % (vr(T + 2), vr(T)))
    a.I("v_xor_b32 %s, %s, %s" % (vr(T + 2), vr(T + 2), vr(T + 1)))
    a.I("v_lshlrev_b32 %s, 3, %s" % (vr(T + 2), vr(T + 2)))
    a.I("v_lshl_add_u32 %s, %s, 5, %s" % (vr(T + 2), vr(T), vr(T + 2)))
    a.I("v_add_u32 %s, %d, %s" % (vr(V_MW), L_M + 1024 * w, vr(T + 2)))
    a.I("v_lshrrev_b32 %s, 2, %s" % (vr(T + 2), vr(T)))
    a.I("v_lshl_add_u32 %s, %s, 2, %s" % (vr(T + 2), vr(T + 1), vr(T + 2)))
    a.I("v_and_b32 %s, 3, %s" % (vr(T + 3), vr(T)))
    a.I("v_xor_b32 %s, %s, %s" % (vr(T + 3), vr(T + 3), vr(T + 1)))
    a.I("v_lshlrev_b32 %s, 3, %s" % (vr(T + 3), vr(T + 3)))
    a.I("v_lshl_add_u32 %s, %s, 5, %s" % (vr(T + 2), vr(T + 2), vr(T + 3)))
    a.I("v_add_u32 %s, %d, %s" % (vr(V_MR), L_M, vr(T + 2)))
    a.I("v_lshrrev_b32 %s, 2, %s" % (vr(T + 2), vr(T)))
    a.I("v_and_b32 %s, 1, %s" % (vr(T + 3), vr(T)))
    a.I("v_lshl_add_u32 %s, %s, 1, %s" % (vr(T + 2), vr(T + 2), vr(T + 3)))
    a.I("v_lshl_add_u32 %s, %s, 3, %s" % (vr(T + 2), vr(T + 1), vr(T + 2)))
    a.I("v_lshlrev_b32 %s, 4, %s" % (vr(T + 2), vr(T + 2)))
    a.I("v_mov_b32 %s, 0x%x" % (vr(T + 4), OOB))
    a.I("v_and_b32 %s, 2, %s" % (vr(T + 3), vr(T)))
    a.I("v_cmp_ne_u32 vcc, 0, %s" % vr(T + 3))
    a.I("v_cndmask_b32 %s, %s, %s, vcc" % (vr(V_KM), vr(T + 2), vr(T + 4)))
    s0, s1, s2 = S_T0, S_T0 + 1, S_T0 + 2
    a.I("s_lshr_b32 s%d, s%d, 3" % (s0, S_RANK))
    a.I("s_bfe_u32 s%d, s%d, 0x10002" % (s1, S_RANK))
    a.I("s_lshl_b32 s%d, s%d, 2" % (s1, s1))
    a.I("s_add_u32 s%d, s%d, s%d" % (s0, s0, s1))
    a.I("s_lshl_b32 s%d, s%d, 10" % (s0, s0))
    a.I("s_and_b32 s%d, s%d, 3" % (s1, S_RANK))
    a.I("s_lshl_b32 s%d, s%d, 6" % (s1, s1))
    a.I("s_add_u32 s%d, s%d, s%d" % (s0, s0, s1))
    a.I("s_add_u32 s%d, s%d, %d" % (s0, s0, w * 256))
    a.I("v_and_b32 %s, 3, %s" % (vr(T + 2), vr(T)))
    a.I("v_lshlrev_b32 %s, 4, %s" % (vr(T + 2), vr(T + 2)))
    a.I("v_lshrrev_b32 %s, 2, %s" % (vr(T + 3), vr(T)))
    a.I("v_lshl_add_u32 %s, %s, 3, %s" % (vr(T + 2), vr(T + 3), vr(T + 2)))
    a.I("v_lshrrev_b32 %s, 1, %s" % (vr(T + 3), vr(T + 1)))
    a.I("v_lshl_add_u32 %s, %s, 2, %s" % (vr(T + 2), vr(T + 3), vr(T + 2)))
    a.I("v_add_u32 %s, s%d, %s" % (vr(T + 2), s0, vr(T + 2)))
    a.I("v_and_b32 %s, 24, %s" % (vr(T + 3), vr(lane)))
    a.I("v_mov_b32 %s, 0x%x" % (vr(V_MS), OOB))
    a.I("v_cmp_eq_u32 vcc, 0, %s" % vr(T + 3))
    a.I("v_cndmask_b32 %s, %s, %s, vcc" % (vr(V_MS), vr(V_MS), vr(T + 2)))


def sel_addr(a, dst, tmp):
    a.I("v_lshrrev_b32 %s, 9, %s" % (vr(tmp), vr(V_L16)))
    a.I("v_mul_u32_u24 %s, 512, %s" % (vr(tmp), vr(tmp)))
    a.I("v_add3_u32 %s, %s, %s, s%d" % (vr(dst), vr(V_L16), vr(tmp), S_SEL))


def init_buffers(a, w, st_flags=""):
    T = V_MEM
    lane = V_T
    P = V_MEM + 8
    a.I("s_mov_b32 s%d, %d" % (S_SEL, L_SEL))
    for i in range(4):
        a.I("v_mov_b32 %s, -1" % vr(P + i))
    if True:
        s0, s1 = S_T0, S_T0 + 1
        a.I("v_and_b32 %s, 15, %s" % (vr(T), vr(lane)))
        a.I("v_lshrrev_b32 %s, 4, %s" % (vr(T + 1), vr(lane)))
        a.I("s_and_b32 s%d, s%d, 3" % (s0, S_RANK))
        a.I("s_lshl_b32 s%d, s%d, 11" % (s0, s0))
        a.I("s_lshr_b32 s%d, s%d, 2" % (s1, S_RANK))
        a.I("s_lshl_b32 s%d, s%d, 7" % (s1, s1))
        a.I("s_add_u32 s%d, s%d, s%d" % (s0, s0, s1))
        a.I("s_add_u32 s%d, s%d, %d" % (s0, s0, w * 8))
        a.I("v_and_b32 %s, 1, %s" % (vr(T + 2), vr(T)))
        a.I("v_lshlrev_b32 %s, 10, %s" % (vr(T + 2), vr(T + 2)))
        a.I("v_bfe_u32 %s, %s, 1, 2" % (vr(T + 3), vr(T)))
        a.I("v_lshl_add_u32 %s, %s, 5, %s" % (vr(T + 2), vr(T + 3), vr(T + 2)))
        a.I("v_lshrrev_b32 %s, 1, %s" % (vr(T + 3), vr(T + 1)))
        a.I("v_lshl_add_u32 %s, %s, 2, %s" % (vr(T + 2), vr(T + 3), vr(T + 2)))
        a.I("v_add_u32 %s, s%d, %s" % (vr(T + 2), s0, vr(T + 2)))
        a.I("s_mov_b32 s%d, s%d" % (S_W, S_PTR + 0))
        a.I("s_mov_b32 s%d, s%d" % (S_W + 1, S_PTR + 1))
        a.I("s_mov_b32 s%d, 8192" % (S_W + 2))
        a.I("buffer_load_dword %s, %s, s[%d:%d], 0 offen" % (vr(T + 4), vr(T + 2), S_W, S_W + 3))
        a.I("s_mov_b32 s%d, 0x%x" % (s0, WS_MEM))
        a.I("s_waitcnt vmcnt(0)")
        a.I("v_min_u32 %s, 0xfffffffe, %s" % (vr(T + 4), vr(T + 4)))
        a.I("buffer_store_dword %s, %s, s[%d:%d], s%d offen %s" % (vr(T + 4), vr(V_MS), S_WS, S_WS + 3, s0, st_flags))
        for i in range(3):
            a.I("s_add_u32 s%d, s%d, 8192" % (s0, s0))
            a.I("buffer_store_dword %s, %s, s[%d:%d], s%d offen %s" % (vr(P), vr(V_MS), S_WS, S_WS + 3, s0, st_flags))
        for ring in range(2):
            a.I("s_lshl_b32 s%d, s%d, 13" % (s0, S_RANK))
            a.I("s_add_u32 s%d, s%d, 0x%x" % (s0, s0, WS_PART + ring * 262144 + w * 2048))
            for m in range(2):
                a.I("buffer_store_dwordx4 %s, %s, s[%d:%d], s%d offen offset:%d %s"
                    % (vr(P, 4), vr(V_L16), S_WS, S_WS + 3, s0, m * 1024, st_flags))
    if w == 0:
        a.I("v_and_b32 %s, 1, %s" % (vr(T + 2), vr(T)))
        a.I("v_lshlrev_b32 %s, 4, %s" % (vr(T + 2), vr(T + 2)))
        a.I("v_mov_b32 %s, 0x3f80" % vr(T + 3))
        a.I("v_lshlrev_b32 %s, %s, %s" % (vr(T + 3), vr(T + 2), vr(T + 3)))
        a.I("v_lshrrev_b32 %s, 1, %s" % (vr(T + 2), vr(T)))
        for m in range(4):
            a.I("v_cmp_eq_u32 vcc, %d, %s" % (m, vr(T + 2)))
            a.I("v_cndmask_b32 %s, 0, %s, vcc" % (vr(T + 4 + m), vr(T + 3)))
        sel_addr(a, T + 2, T + 3)
        a.I("ds_write_b128 %s, %s" % (vr(T + 2), vr(T + 4, 4)))


def load_weights(a, w):
    lane = V_T
    T = V_MEM
    VO = V_MEM + 8
    TA = V_MEM + 12
    base = L_WO + w * 32768
    so = S_T0
    a.I("v_lshrrev_b32 %s, 2, %s" % (vr(T), vr(lane)))
    a.I("v_and_b32 %s, 3, %s" % (vr(T + 1), vr(lane)))
    a.I("s_lshl_b32 s%d, s%d, 8" % (so, S_RANK))
    a.I("s_add_u32 s%d, s%d, %d" % (so, so, w * 64))
    for v in range(4):
        a.I("v_xor_b32 %s, %d, %s" % (vr(T + 2), 2 * ((v >> 1) & 1), vr(T)))
        a.I("v_lshlrev_b32 %s, 13, %s" % (vr(T + 2), vr(T + 2)))
        a.I("v_xor_b32 %s, %d, %s" % (vr(T + 3), 2 * (v & 1), vr(T + 1)))
        a.I("v_lshl_add_u32 %s, %s, 4, %s" % (vr(T + 2), vr(T + 3), vr(T + 2)))
        a.I("v_add_u32 %s, s%d, %s" % (vr(VO + v), so, vr(T + 2)))
    gb, r, c = T, T + 1, T + 2
    a.I("v_lshrrev_b32 %s, 4, %s" % (vr(gb), vr(lane)))
    a.I("v_bfe_u32 %s, %s, 2, 2" % (vr(r), vr(lane)))
    a.I("v_and_b32 %s, 3, %s" % (vr(c), vr(lane)))
    t4, t5, t6, t7 = T + 3, T + 4, T + 5, T + 6
    for qb in range(2):
        for tau in range(2):
            a.I("v_and_b32 %s, 1, %s" % (vr(t4), vr(gb)))
            a.I("v_lshlrev_b32 %s, 5, %s" % (vr(t5), vr(t4)))
            a.I("v_xor_b32 %s, %d, %s" % (vr(t4), qb, vr(t4)))
            a.I("v_lshl_add_u32 %s, %s, 1, %s" % (vr(t5), vr(t4), vr(t5)))
            a.I("v_lshrrev_b32 %s, 1, %s" % (vr(t4), vr(gb)))
            a.I("v_lshl_add_u32 %s, %s, 2, %s" % (vr(t5), vr(t4), vr(t5)))
            a.I("v_and_b32 %s, 1, %s" % (vr(t4), vr(r)))
            a.I("v_add_u32 %s, %s, %s" % (vr(t5), vr(t4), vr(t5)))
            a.I("v_lshrrev_b32 %s, 1, %s" % (vr(t4), vr(r)))
            a.I("v_lshl_add_u32 %s, %s, 4, %s" % (vr(t5), vr(t4), vr(t5)))
            a.I("v_lshlrev_b32 %s, 6, %s" % (vr(t5), vr(t5)))
            a.I("v_xor_b32 %s, %d, %s" % (vr(t4), tau, vr(t4)))
            a.I("v_lshlrev_b32 %s, 1, %s" % (vr(t4), vr(t4)))
            a.I("v_lshrrev_b32 %s, 1, %s" % (vr(t6), vr(c)))
            a.I("v_add_u32 %s, %s, %s" % (vr(t4), vr(t4), vr(t6)))
            a.I("v_lshl_add_u32 %s, %s, 4, %s" % (vr(t5), vr(t4), vr(t5)))
            a.I("v_and_b32 %s, 1, %s" % (vr(t6), vr(c)))
            a.I("v_lshl_add_u32 %s, %s, 3, %s" % (vr(t5), vr(t6), vr(t5)))
            a.I("v_add_u32 %s, %d, %s" % (vr(TA + 2 * qb + tau), base, vr(t5)))

    def set_srd(ptr, nbytes):
        a.I("s_mov_b32 s%d, s%d" % (S_W, ptr))
        a.I("s_mov_b32 s%d, s%d" % (S_W + 1, ptr + 1))
        a.I("s_mov_b32 s%d, 0x%x" % (S_W + 2, nbytes))

    def dma_qkv(half):
        for i in range(16 * half, 16 * half + 16):
            a.I("s_mov_b32 m0, %d" % (base + i * 1024))
            a.I("s_mov_b32 s%d, 0x%x" % (so, i * 131072))
            a.I("buffer_load_dwordx4 %s, s[%d:%d], s%d offen lds" % (vr(VO + (i & 3)), S_W, S_W + 3, so))

    def tr_qkv(half, dst):
        for kappa in range(8):
            B = 128 * (kappa & 3) + 64 * (kappa >> 2)
            if (B >= 256) != (half == 1):
                continue
            for tau in range(2):
                for q in range(4):
                    off = (B + 8 * (q >> 1)) * 64
                    a.I("ds_read_b64_tr_b16 %s, %s offset:%d" % (dst(tau, kappa, q), vr(TA + 2 * (q & 1) + tau), off))

    dsts = [
        lambda tau, kappa, q: ar((0 + tau) * 64 + kappa * 8 + 2 * q, 2),
        lambda tau, kappa, q: ar((2 + tau) * 64 + kappa * 8 + 2 * q, 2),
        lambda tau, kappa, q: vr(V_VW + tau * 64 + kappa * 8 + 2 * q, 2),
    ]
    ptrs = [S_PTR + 2, S_PTR + 4, S_PTR + 6]
    WOV = V_MEM + 16
    a.I("v_lshrrev_b32 %s, 4, %s" % (vr(T), vr(lane)))
    a.I("v_and_b32 %s, 15, %s" % (vr(T + 1), vr(lane)))
    a.I("s_lshl_b32 s%d, s%d, 17" % (so, S_RANK))
    a.I("s_add_u32 s%d, s%d, %d" % (so, so, w * 256))
    for u in range(4):
        a.I("v_and_b32 %s, 1, %s" % (vr(T + 2), vr(T)))
        a.I("v_add_u32 %s, %d, %s" % (vr(T + 2), 2 * u, vr(T + 2)))
        a.I("v_lshlrev_b32 %s, 1, %s" % (vr(T + 2), vr(T + 2)))
        a.I("v_xor_b32 %s, %s, %s" % (vr(T + 2), vr(T + 2), vr(T + 1)))
        a.I("v_lshlrev_b32 %s, 4, %s" % (vr(T + 2), vr(T + 2)))
        a.I("v_lshl_add_u32 %s, %s, 10, %s" % (vr(T + 2), vr(T), vr(T + 2)))
        a.I("v_add_u32 %s, s%d, %s" % (vr(WOV + u), so, vr(T + 2)))

    def dma_wo(half):
        for i in range(16 * half, 16 * half + 16):
            u = ((i >> 2) & 1) + 2 * ((i >> 3) & 1)
            a.I("s_mov_b32 m0, %d" % (base + i * 1024))
            a.I("s_mov_b32 s%d, 0x%x" % (so, i * 4096))
            a.I("buffer_load_dwordx4 %s, s[%d:%d], s%d offen lds" % (vr(WOV + u), S_W, S_W + 3, so))

    set_srd(ptrs[0], 0x400000)
    dma_qkv(0)
    dma_qkv(1)
    for mi in range(3):
        a.I("s_waitcnt vmcnt(16)")
        tr_qkv(0, dsts[mi])
        a.I("s_waitcnt lgkmcnt(0)")
        if mi < 2:
            set_srd(ptrs[mi + 1], 0x400000)
            dma_qkv(0)
        else:
            set_srd(S_PTR + 8, 0x400000)
            dma_wo(0)
        a.I("s_waitcnt vmcnt(16)")
        tr_qkv(1, dsts[mi])
        a.I("s_waitcnt lgkmcnt(0)")
        if mi < 2:
            dma_qkv(1)
        else:
            dma_wo(1)
    WA = V_MEM + 20
    a.I("v_lshrrev_b32 %s, 4, %s" % (vr(gb), vr(lane)))
    a.I("v_bfe_u32 %s, %s, 2, 2" % (vr(r), vr(lane)))
    a.I("v_and_b32 %s, 3, %s" % (vr(c), vr(lane)))
    a.I("v_and_b32 %s, 1, %s" % (vr(t4), vr(gb)))
    a.I("v_lshl_add_u32 %s, %s, 2, %s" % (vr(t7), vr(t4), vr(r)))
    a.I("v_lshlrev_b32 %s, 5, %s" % (vr(t5), vr(t4)))
    a.I("v_lshrrev_b32 %s, 1, %s" % (vr(t4), vr(gb)))
    a.I("v_lshl_add_u32 %s, %s, 2, %s" % (vr(t5), vr(t4), vr(t5)))
    a.I("v_and_b32 %s, 1, %s" % (vr(t4), vr(r)))
    a.I("v_add_u32 %s, %s, %s" % (vr(t5), vr(t4), vr(t5)))
    a.I("v_lshrrev_b32 %s, 1, %s" % (vr(t4), vr(r)))
    a.I("v_lshl_add_u32 %s, %s, 4, %s" % (vr(t5), vr(t4), vr(t5)))
    a.I("v_lshlrev_b32 %s, 8, %s" % (vr(t5), vr(t5)))
    a.I("v_lshrrev_b32 %s, 1, %s" % (vr(t4), vr(c)))
    a.I("v_lshl_add_u32 %s, %s, 4, %s" % (vr(t5), vr(t4), vr(t5)))
    a.I("v_and_b32 %s, 1, %s" % (vr(t4), vr(c)))
    a.I("v_lshl_add_u32 %s, %s, 3, %s" % (vr(t5), vr(t4), vr(t5)))
    a.I("v_add_u32 %s, %d, %s" % (vr(t5), base, vr(t5)))
    for tau in range(8):
        a.I("v_xor_b32 %s, %d, %s" % (vr(t4), tau, vr(t7)))
        a.I("v_lshl_add_u32 %s, %s, 5, %s" % (vr(WA + tau), vr(t4), vr(t5)))
    ST = V_MEM + 32
    for xi in range(2):
        a.I("s_waitcnt vmcnt(%d)" % (16 if xi == 0 else 0))
        for tau in range(8):
            for q in range(4):
                off = (64 * xi + 8 * (q >> 1) + 2 * (q & 1)) * 256
                a.I("ds_read_b64_tr_b16 %s, %s offset:%d" % (vr(ST + tau * 8 + 2 * q, 2), vr(WA + tau), off))
        a.I("s_waitcnt lgkmcnt(0)")
        for tau in range(8):
            for hf in range(2):
                a.I("ds_write_b128 %s, %s offset:%d"
                    % (vr(V_L16W), vr(ST + tau * 8 + 4 * hf, 4), xi * 16384 + tau * 2048 + hf * 1024))
        a.I("s_waitcnt lgkmcnt(0)")


def wo_img_off(tau, xi, hf):
    return xi * 16384 + tau * 2048 + hf * 1024


def weave(a, main, fill, every=1, start=0):
    fill = list(fill)
    for i, m in enumerate(main):
        a.I(m)
        if i >= start:
            for _ in range(every):
                if fill:
                    a.I(fill.pop(0))
    for f in fill:
        a.I(f)


def check_insts(regs, tmp):
    regs = list(regs)
    if len(regs) == 2:
        L = ["v_max_u32 %s, %s, %s" % (vr(tmp), vr(regs[0]), vr(regs[1]))]
        rest = []
    else:
        L = ["v_max3_u32 %s, %s, %s, %s" % (vr(tmp), vr(regs[0]), vr(regs[1]), vr(regs[2]))]
        rest = regs[3:]
    while len(rest) >= 2:
        L.append("v_max3_u32 %s, %s, %s, %s" % (vr(tmp), vr(tmp), vr(rest[0]), vr(rest[1])))
        rest = rest[2:]
    if rest:
        L.append("v_max_u32 %s, %s, %s" % (vr(tmp), vr(tmp), vr(rest[0])))
    L.append("v_cmp_eq_u32 vcc, -1, %s" % vr(tmp))
    return L


def dump(a, w, base, n, slot=0):
    a.nops(12)
    a.I("s_lshl_b32 s%d, s%d, 16" % (S_T0, S_RANK))
    a.I("s_add_u32 s%d, s%d, 0x%x" % (S_T0, S_T0, 0x5000000 + w * 16384 + ((slot * 256) & ~4095)))
    a.I("v_lshrrev_b32 %s, 2, %s" % (vr(V_T), vr(V_L16)))
    for i in range(n):
        a.I("buffer_store_dword %s, %s, s[%d:%d], s%d offen offset:%d" % (vr(base + i), vr(V_T), S_WS, S_WS + 3, S_T0, ((slot + i) * 256) & 4095))
        if ((slot + i + 1) * 256) & 4095 == 0:
            a.I("s_add_u32 s%d, s%d, 4096" % (S_T0, S_T0))
    a.I("s_waitcnt vmcnt(0)")


def retry_block(a, label, target, abort):
    a.label(label)
    a.I("s_sub_u32 s%d, s%d, 1" % (S_RETRY, S_RETRY))
    a.I("s_cmp_lg_u32 s%d, 0" % S_RETRY)
    a.I("s_cbranch_scc1 %s" % target)
    a.I("s_branch %s" % abort)


def chain_loop(a, w, st_flags="", timing=False, abort="L_abort", stop_after=None, dbg=None,
               delay=0, exp="", rdelay=0, hooks=None, kvflags="sc1 nt", gap=24, rgap=24, trace=None, looptime=True):
    tm = Timer(a, timing, trace)
    ws = "s[%d:%d]" % (S_WS, S_WS + 3)
    MEM, ACC, KT, S, VT, PX = V_MEM, V_ACC, V_KT, V_S, V_VT, V_PX
    q = [ACC, ACC + 8]
    k = [ACC + 4, ACC + 12]
    v = [ACC + 16, ACC + 20]
    L_step = "L_step_w%d" % w
    L_done = "L_done_w%d" % w
    ool = []
    cool = []

    def smf(acc, A, B):
        return "v_smfmac_f32_16x16x64_bf16 %s, %s, %s, %s" % (vr(acc, 4), A, B, vr(V_IDX))

    def mem_load(kap):
        return ("buffer_load_dwordx4 %s, %s, %s, s%d offen offset:%d sc1"
                % (vr(MEM + 4 * kap, 4), vr(V_L16), ws, S_MEM if kap < 4 else S_MEMHI, (kap & 3) * 1024))

    def qkw(mat, tau, kap):
        return ar((mat * 2 + tau) * 64 + kap * 8, 8)

    def chunk_check(kap):
        return ["v_max_u32 %s, %s, %s" % (vr(V_T), vr(MEM + 4 * kap), vr(MEM + 4 * kap + 2)),
                "v_cmp_eq_u32 vcc, -1, %s" % vr(V_T)]

    def emit_check(kap):
        lr = a.newlabel("cr%d" % kap)
        lb = a.newlabel("cb%d" % kap)
        a.I("s_waitcnt vmcnt(%d)" % (7 - kap))
        for x in chunk_check(kap):
            a.I(x)
        a.I("s_cbranch_vccnz %s" % lr)
        a.label(lb)
        cool.append((lr, kap, lb))

    def add2(d, x, y):
        return ["v_add_f32 %s, %s, %s" % (vr(d), vr(x), vr(y)),
                "v_add_f32 %s, %s, %s" % (vr(d + 1), vr(x + 1), vr(y + 1))]

    def qk_post(tau):
        return (add2(q[tau], q[tau], q[tau] + 2) + add2(k[tau], k[tau], k[tau] + 2) +
                ["v_cvt_pk_bf16_f32 %s, %s, %s" % (vr(q[tau] + 3), vr(q[tau]), vr(q[tau] + 1)),
                 "v_cvt_pk_bf16_f32 %s, %s, %s" % (vr(q[tau] + 2), vr(k[tau]), vr(k[tau] + 1)),
                 "ds_write_b64 %s, %s offset:%d" % (vr(V_MW), vr(q[tau] + 2, 2), 512 * tau)])

    def kv_dma():
        L = []
        pieces = range(4 * w, 4 * w + 4)
        for p in pieces:
            src, base = (S_KT, p) if p < 8 else (S_VT, p - 8)
            L.append("s_add_u32 s%d, s%d, %d" % (S_T0 + 5, src, base * 1024))
            L.append("s_mov_b32 m0, %d" % (L_K + p * 1024))
            L.append("buffer_load_dwordx4 %s, %s, s%d offen %s lds" % (vr(V_L16), ws, S_T0 + 5, kvflags))
        return L

    pois = ["buffer_store_dword %s, %s, %s, s%d offen %s" % (vr(S + 8), vr(V_MS), ws, S_T0 + 3, st_flags)]
    tm.start()
    if looptime:
        a.I("s_memrealtime s[92:93]")
        a.I("s_waitcnt lgkmcnt(0)")
    a.label(L_step, clear=True)
    own = [2 * w, 2 * w + 1]
    others = [x for x in range(8) if x not in own]
    sets = [KT, KT + 8]
    mbo = L_MB - L_K

    def qk4(kap, A=None):
        A = A or vr(MEM + 4 * kap, 4)
        return [smf(q[0], A, qkw(0, 0, kap)), smf(k[0], A, qkw(1, 0, kap)),
                smf(q[1], A, qkw(0, 1, kap)), smf(k[1], A, qkw(1, 1, kap))]

    def poll2(issue, oks, gap, cnt, check):
        Lp = a.newlabel("pl")
        a.I("s_mov_b32 s%d, %d" % (S_RETRY, RETRY_MAX))
        if gap == 0:
            a.label(Lp)
            issue(sets[0])
            a.I("s_waitcnt vmcnt(0)")
            check(sets[0], oks[0])
            if timing:
                a.I("s_add_u32 s%d, s%d, 1" % (S_TM + 4 + cnt, S_TM + 4 + cnt))
            a.I("s_sub_u32 s%d, s%d, 1" % (S_RETRY, S_RETRY))
            a.I("s_cmp_lg_u32 s%d, 0" % S_RETRY)
            a.I("s_cbranch_scc1 %s" % Lp)
            a.I("s_branch %s" % abort)
            return
        issue(sets[0])
        a.nops(gap)
        a.label(Lp)
        issue(sets[1])
        a.I("s_waitcnt vmcnt(2)")
        check(sets[0], oks[0])
        issue(sets[0])
        a.I("s_waitcnt vmcnt(2)")
        check(sets[1], oks[1])
        if timing:
            a.I("s_add_u32 s%d, s%d, 1" % (S_TM + 4 + cnt, S_TM + 4 + cnt))
        a.I("s_sub_u32 s%d, s%d, 1" % (S_RETRY, S_RETRY))
        a.I("s_cmp_lg_u32 s%d, 0" % S_RETRY)
        a.I("s_waitcnt vmcnt(2)")
        a.I("s_cbranch_scc1 %s" % Lp)
        a.I("s_branch %s" % abort)

    def check_poison(R, ok):
        for x in check_insts([R + i for i in range(8)], V_T):
            a.I(x)
        a.I("s_cbranch_vccz %s" % ok)

    def check_tag(R, ok):
        a.I("v_bitop3_b32 %s, %s, %s, s%d bitop3:0x7e" % (vr(V_T), vr(R), vr(R + 4), S_TAG))
        a.I("v_and_b32 %s, 1, %s" % (vr(V_T), vr(V_T)))
        a.I("v_cmp_ne_u32 vcc, 0, %s" % vr(V_T))
        a.I("s_cbranch_vccz %s" % ok)

    def issue_mem(R):
        for i, kap in enumerate(own):
            a.I("buffer_load_dwordx4 %s, %s, %s, s%d offen offset:%d sc1"
                % (vr(R + 4 * i, 4), vr(V_L16), ws, S_MEM if kap < 4 else S_MEMHI, (kap & 3) * 1024))
    if delay:
        a.nops(delay)
    oks = [a.newlabel("mok0"), a.newlabel("mok1")]
    Lj = a.newlabel("mjoin")
    poll2(issue_mem, oks, gap, 9, check_poison)
    for si in ((1, 0) if gap else (0,)):
        R = sets[si]
        a.label(oks[si], clear=True)
        tm.stamp(11)
        for i, kap in enumerate(own):
            a.I("ds_write_b128 %s, %s offset:%d" % (vr(V_K), vr(R + 4 * i, 4), mbo + kap * 1024))
        m_own = qk4(own[0], vr(R, 4)) + qk4(own[1], vr(R + 4, 4))
        for m in m_own[:3]:
            a.I(m)
        a.I("s_waitcnt lgkmcnt(0)")
        a.I("s_barrier")
        tm.stamp(12)
        for kap in others + own:
            a.I("ds_read_b128 %s, %s offset:%d" % (vr(MEM + 4 * kap, 4), vr(V_K), mbo + kap * 1024))
        for m in m_own[3:]:
            a.I(m)
        if si == 1:
            a.I("s_branch %s" % Lj)
    a.label(Lj, clear=True)
    tm.stamp(0)
    a.I("s_waitcnt vmcnt(0)")
    if "latepois" in exp:
        for x in pois:
            a.I(x)
    if "nocompute" in exp:
        a.I("s_waitcnt lgkmcnt(0)")
        for i in range(0, 24, 2):
            a.I("v_mov_b64 %s, 0" % vr(ACC + i, 2))
        a.I("v_mov_b32 %s, s%d" % (vr(ACC), S_TAG))
        a.I("v_mov_b32 %s, s%d" % (vr(ACC + 16), S_TAG))
        a.I("buffer_store_dwordx4 %s, %s, %s, s%d offen %s" % (vr(ACC, 4), vr(V_PS), ws, S_PW0, st_flags))
        a.I("buffer_store_dwordx4 %s, %s, %s, s%d offen %s" % (vr(ACC + 16, 4), vr(V_PS), ws, S_PW1, st_flags))
        a.I("s_branch L_skip_w%d" % w)
    lds_fill = []
    for T_ in range(2):
        for ks in range(4):
            lds_fill.append("ds_read_b128 %s, %s offset:%d" % (vr(KT + (T_ * 4 + ks) * 4, 4), vr(V_K), (T_ * 4 + ks) * 1024))
    for tau in range(2):
        lds_fill.append("ds_read_b128 %s, %s offset:%d" % (vr(VT + 4 * tau, 4), vr(V_K), 8192 + (2 * w + tau) * 1024))
    nissued = 0
    for j, kap in enumerate(others[:4]):
        a.I("s_waitcnt lgkmcnt(%d)" % min(15, 7 - j + nissued))
        for m in qk4(kap):
            a.I(m)
            if lds_fill and nissued < 10:
                a.I(lds_fill.pop(0))
                nissued += 1
    assert not lds_fill
    k6, k7 = others[4], others[5]
    A6, A7 = vr(MEM + 4 * k6, 4), vr(MEM + 4 * k7, 4)
    a.I("s_waitcnt lgkmcnt(%d)" % min(15, nissued))
    a.I(smf(q[0], A6, qkw(0, 0, k6)))
    a.I(smf(k[0], A6, qkw(1, 0, k6)))
    a.I(smf(q[0], A7, qkw(0, 0, k7)))
    a.I(smf(k[0], A7, qkw(1, 0, k7)))
    tm.stamp(1)
    m1 = [smf(q[1], A6, qkw(0, 1, k6)), smf(k[1], A6, qkw(1, 1, k6)),
          smf(q[1], A7, qkw(0, 1, k7)), smf(k[1], A7, qkw(1, 1, k7))]
    vm = []
    for kap in range(8):
        for tau in range(2):
            vm.append(smf(v[tau], vr(MEM + 4 * kap, 4), vr(V_VW + tau * 64 + kap * 8, 8)))
    for m in m1:
        a.I(m)
    p0, p1 = qk_post(0), qk_post(1)
    weave(a, vm[0:3], p0, every=2)
    weave(a, vm[3:5], p1, every=3)
    a.I("s_waitcnt lgkmcnt(0)")
    a.I("s_barrier")
    for ks in range(4):
        for hh in range(2):
            a.I("ds_read_b64_tr_b16 %s, %s offset:%d" % (vr(ACC + 4 * ks + 2 * hh, 2), vr(V_MR), 1024 * ks + 512 * hh))
    dma = kv_dma() if ("nofar" not in exp) else []
    pre = hooks["after_b1"](a, w) if hooks and "after_b1" in hooks else []
    weave(a, vm[5:12], pre + dma, every=3)
    tm.stamp(2)
    order = [(tau, xi) for tau in range(8) for xi in range(2)]
    slots = [KT + 8 * i for i in range(4)] + [MEM + 8 * i for i in range(4)]

    def stage(n, slot):
        tau, xi = order[n]
        return ["ds_read_b128 %s, %s offset:%d" % (vr(slot + 4 * hf, 4), vr(V_L16W), wo_img_off(tau, xi, hf))
                for hf in range(2)]
    T1, T2, T0 = S, S + 4, S + 8
    sc = []
    for ks in range(4):
        M = vr(ACC + 4 * ks, 4)
        for (D, A) in ((T1, vr(KT + ks * 4, 4)), (T2, vr(KT + (4 + ks) * 4, 4)), (T0, M)):
            sc.append("v_mfma_f32_16x16x32_bf16 %s, %s, %s, %s" % (vr(D, 4), A, M, "0" if ks == 0 else vr(D, 4)))
    a.I("s_waitcnt lgkmcnt(0)")
    P0q, ones = ACC, ACC + 4
    fill = []
    if "nopub" not in exp:
        fill.append("buffer_store_dwordx4 %s, %s, %s, s%d offen offset:%d sc1"
                    % (vr(ACC + 4 * w, 4), vr(V_KM), ws, S_KM, w * 512))
    weave(a, sc, fill, start=1)
    a.I(vm[12])
    a.I("v_mov_b32 %s, 0" % vr(ACC + 1))
    a.I(vm[13])
    a.I("v_mov_b64 %s, 0" % vr(ACC + 2, 2))
    tm.stamp(3)
    if dbg == "S":
        dump(a, w, S, 12)
    mx, tt, nmc = ACC + 8, ACC + 9, ACC + 10
    rs = ACC + 12
    stg = []
    for n in range(0, 4):
        stg += stage(n, slots[n])
    a.I("v_max3_f32 %s, %s, %s, %s" % (vr(mx), vr(S + 0), vr(S + 1), vr(S + 2)))
    a.I("v_max3_f32 %s, %s, %s, %s" % (vr(tt), vr(S + 3), vr(S + 4), vr(S + 5)))
    a.I(vm[14])
    a.I("v_max3_f32 %s, %s, %s, %s" % (vr(mx), vr(mx), vr(S + 6), vr(S + 7)))
    a.I(vm[15])
    a.I("v_max3_f32 %s, %s, %s, %s" % (vr(tt), vr(tt), vr(S + 8), vr(S + 9)))
    a.I("v_max_f32 %s, %s, %s" % (vr(mx), vr(mx), vr(tt)))
    a.I(stg[0])
    a.I("v_mov_b32 %s, %s" % (vr(tt), vr(mx)))
    a.I(stg[1])
    a.I(stg[2])
    a.I("v_permlane32_swap_b32 %s, %s" % (vr(mx), vr(tt)))
    a.I("v_max_f32 %s, %s, %s" % (vr(mx), vr(mx), vr(tt)))
    a.I("v_mov_b32 %s, %s" % (vr(tt), vr(mx)))
    a.I(stg[3])
    a.I(stg[4])
    a.I("v_permlane16_swap_b32 %s, %s" % (vr(mx), vr(tt)))
    a.I("v_max_f32 %s, %s, %s" % (vr(mx), vr(mx), vr(tt)))
    a.I("v_mul_f32 %s, s%d, %s" % (vr(nmc), S_NC, vr(mx)))
    a.I(stg[5])
    for j in range(5):
        a.I("v_pk_fma_f32 %s, %s, s[%d:%d], %s op_sel_hi:[1,0,0]"
            % (vr(S + 2 * j, 2), vr(S + 2 * j, 2), S_C, S_C + 1, vr(nmc, 2)))
    for i in range(10):
        a.I("v_exp_f32 %s, %s" % (vr(S + i), vr(S + i)))
        if i == 1:
            a.I(stg[6])
        if i == 3:
            a.I(stg[7])
    for j in range(4):
        a.I("v_cvt_pk_bf16_f32 %s, %s, %s" % (vr(PX + j), vr(S + 2 * j), vr(S + 1 + 2 * j)))
    a.I("v_cvt_pk_bf16_f32 %s, %s, %s" % (vr(P0q), vr(S + 8), vr(S + 9)))
    a.I("v_mov_b64 %s, s[%d:%d]" % (vr(ones, 2), S_ONE, S_ONE + 1))
    a.I("v_mov_b64 %s, s[%d:%d]" % (vr(ones + 2, 2), S_ONE, S_ONE + 1))
    tm.stamp(4)
    if dbg == "P":
        dump(a, w, PX, 10)
    O0, O1, OS = S, S + 4, S + 8
    P = vr(PX, 4)
    a.I("v_mfma_f32_16x16x32_bf16 %s, %s, %s, 0" % (vr(OS, 4), P, vr(ones, 4)))
    vp = add2(v[0], v[0], v[0] + 2) + add2(v[1], v[1], v[1] + 2)
    a.I(vp[0])
    a.I("v_mfma_f32_16x16x32_bf16 %s, %s, %s, %s" % (vr(OS, 4), vr(P0q, 4), vr(ones, 4), vr(OS, 4)))
    a.I(vp[1])
    a.I("v_mfma_f32_16x16x32_bf16 %s, %s, %s, 0" % (vr(O0, 4), P, vr(VT, 4)))
    a.I(vp[2])
    a.I(vp[3])
    a.I("v_mfma_f32_16x16x32_bf16 %s, %s, %s, 0" % (vr(O1, 4), P, vr(VT + 4, 4)))
    a.I("v_cvt_pk_bf16_f32 %s, %s, %s" % (vr(PX + 4), vr(v[0]), vr(v[0] + 1)))
    a.I("v_cvt_pk_bf16_f32 %s, %s, %s" % (vr(PX + 6), vr(v[1]), vr(v[1] + 1)))
    a.I("v_lshrrev_b32 %s, 2, %s" % (vr(V_T), vr(V_L16)))
    a.I("v_mfma_f32_16x16x32_bf16 %s, %s, %s, %s" % (vr(O0, 4), vr(P0q, 4), vr(PX + 4, 4), vr(O0, 4)))
    a.I("v_rcp_f32 %s, %s" % (vr(rs), vr(OS + 2)))
    a.I("v_mfma_f32_16x16x32_bf16 %s, %s, %s, %s" % (vr(O1, 4), vr(P0q, 4), vr(PX + 6, 4), vr(O1, 4)))
    a.I("v_rcp_f32 %s, %s" % (vr(rs + 1), vr(OS + 3)))
    if "nopub" not in exp:
        a.I("buffer_store_dword %s, %s, %s, s%d offen sc1" % (vr(PX + 4), vr(V_T), ws, S_VM))
        a.I("buffer_store_dword %s, %s, %s, s%d offen offset:256 sc1" % (vr(PX + 6), vr(V_T), ws, S_VM))
    stg2 = []
    for n in range(4, 8):
        stg2 += stage(n, slots[n])
    for x in stg2[:4]:
        a.I(x)
    a.I("v_pk_mul_f32 %s, %s, %s" % (vr(O0 + 2, 2), vr(O0 + 2, 2), vr(rs, 2)))
    a.I("v_pk_mul_f32 %s, %s, %s" % (vr(O1 + 2, 2), vr(O1 + 2, 2), vr(rs, 2)))
    a.I("v_cvt_pk_bf16_f32 %s, %s, %s" % (vr(S), vr(O0 + 2), vr(O0 + 3)))
    a.I("v_cvt_pk_bf16_f32 %s, %s, %s" % (vr(S + 1), vr(O1 + 2), vr(O1 + 3)))
    if dbg == "O":
        dump(a, w, S, 2)
    a.I("ds_write_b64 %s, %s offset:%d" % (vr(V_MW), vr(S, 2), O_OFF))
    for x in stg2[4:]:
        a.I(x)
    zl = []
    for tI in range(8):
        for r in range(0, 4, 2):
            zl.append("v_mov_b64 %s, 0" % vr(wacc(tI) + r, 2))
    for x in zl[4:12]:
        a.I(x)
    a.I("s_waitcnt lgkmcnt(4)")
    a.I("s_barrier")
    for xi in range(2):
        for hh in range(2):
            a.I("ds_read_b64_tr_b16 %s, %s offset:%d" % (vr(PX + 4 * xi + 2 * hh, 2), vr(V_MR), O_OFF + 2048 * xi + 1024 * hh))
    for x in zl[:4] + zl[12:]:
        a.I(x)
    a.I("s_waitcnt lgkmcnt(0)")
    tm.stamp(5)
    def post_tile(t):
        ta = wacc(t)
        dq = wacc(4 * (t >> 2)) + (t & 3)
        L = add2(ta, ta, ta + 2) + ["v_cvt_pk_bf16_f32 %s, %s, %s" % (vr(dq), vr(ta), vr(ta + 1))]
        if (t & 3) == 3:
            d0 = wacc(4 * (t >> 2))
            L.append("v_bfi_b32 %s, 1, s%d, %s" % (vr(d0), S_TAG, vr(d0)))
            L.append("buffer_store_dwordx4 %s, %s, %s, s%d offen %s"
                     % (vr(d0, 4), vr(V_PS), ws, S_PW0 if t == 3 else S_PW1, st_flags))
        return L
    pend = []
    seq = []
    for n in range(16):
        tau, xi = order[n]
        slot = slots[n % 8]
        if n >= 8:
            last = max(i for i, o in enumerate(seq) if o == n)
            a.I("s_waitcnt lgkmcnt(%d)" % (len(seq) - last - 1))
        a.I(smf(wacc(tau), vr(PX + 4 * xi, 4), vr(slot, 8)))
        if n + 8 < 16:
            for s_ in stage(n + 8, slot):
                a.I(s_)
            seq += [n + 8, n + 8]
        if n >= 4 and n % 2 == 0:
            pend += post_tile((n - 4) // 2)
        for _ in range(1 if n < 8 else 2):
            if pend:
                a.I(pend.pop(0))
    for x in pend:
        a.I(x)
    for t_ in (6, 7):
        for x in post_tile(t_):
            a.I(x)
    a.label("L_skip_w%d" % w)
    tm.stamp(6)
    if "ack" in exp:
        a.I("s_waitcnt vmcnt(0)")
        tm.stamp(15)

    SEL = S
    D2 = S + 4
    sel_addr(a, V_T, SEL)
    a.I("ds_read_b128 %s, %s" % (vr(SEL, 4), vr(V_T)))
    for i in range(0, 24, 2):
        a.I("v_mov_b64 %s, 0" % vr(ACC + i, 2))
    a.I("s_add_u32 s%d, s%d, 262144" % (S_KT, S_KT))
    a.I("s_add_u32 s%d, s%d, 262144" % (S_VT, S_VT))
    a.I("s_add_u32 s%d, s%d, 65536" % (S_VM, S_VM))
    a.I("s_add_u32 s%d, s%d, 65536" % (S_KM, S_KM))
    a.I("s_add_u32 s%d, s%d, 1" % (S_STEP, S_STEP))
    if rdelay:
        a.nops(rdelay)

    def issue_in(R):
        for m in range(2):
            a.I("buffer_load_dwordx4 %s, %s, %s, s%d offen offset:%d sc1"
                % (vr(R + 4 * m, 4), vr(V_L16), ws, S_PR, m * 1024))
    oks = [a.newlabel("rok0"), a.newlabel("rok1")]
    Lj = a.newlabel("rjoin")
    a.I("s_waitcnt lgkmcnt(0)")
    tm.stamp(14)
    poll2(issue_in, oks, rgap, 10, check_tag)
    for si in ((1, 0) if rgap else (0,)):
        R = sets[si]
        a.label(oks[si], clear=True)
        tm.stamp(13)
        a.I("v_mfma_f32_16x16x32_bf16 %s, %s, %s, 0" % (vr(D2, 4), vr(R, 4), vr(SEL, 4)))
        a.I("v_mfma_f32_16x16x32_bf16 %s, %s, %s, %s" % (vr(D2, 4), vr(R + 4, 4), vr(SEL, 4), vr(D2, 4)))
        if si == 1:
            a.I("s_branch %s" % Lj)
    a.label(Lj)
    a.I("s_add_u32 s%d, s%d, 8192" % (S_MEM, S_MEM))
    a.I("s_and_b32 s%d, s%d, 0x%x" % (S_MEM, S_MEM, WS_MEM | 0x7fff))
    a.I("s_add_u32 s%d, s%d, 4096" % (S_MEMHI, S_MEM))
    a.I("s_add_u32 s%d, s%d, 2 * 8192" % (S_T0 + 3, S_MEM))
    a.I("s_and_b32 s%d, s%d, 0x%x" % (S_T0 + 3, S_T0 + 3, WS_MEM | 0x7fff))
    a.I("v_mov_b32 %s, -1" % vr(S + 8))
    a.nops(3)
    a.I("v_permlane32_swap_b32 %s, %s" % (vr(D2), vr(D2 + 2)))
    a.I("v_permlane32_swap_b32 %s, %s" % (vr(D2 + 1), vr(D2 + 3)))
    a.I("v_add_f32 %s, %s, %s" % (vr(D2), vr(D2), vr(D2 + 2)))
    a.I("v_add_f32 %s, %s, %s" % (vr(D2 + 1), vr(D2 + 1), vr(D2 + 3)))
    a.I("v_permlane16_swap_b32 %s, %s" % (vr(D2), vr(D2 + 1)))
    a.I("v_add_f32 %s, %s, %s" % (vr(D2), vr(D2), vr(D2 + 1)))
    a.I("v_mov_b32 %s, %s" % (vr(D2 + 1), vr(D2)))
    a.I("v_permlane16_swap_b32 %s, %s" % (vr(D2), vr(D2 + 1)))
    a.I("v_cvt_pk_bf16_f32 %s, %s, %s" % (vr(D2), vr(D2), vr(D2 + 1)))
    a.I("v_min_u32 %s, 0xfffffffe, %s" % (vr(D2), vr(D2)))
    a.I("buffer_store_dword %s, %s, %s, s%d offen %s" % (vr(D2), vr(V_MS), ws, S_MEM, st_flags))
    tm.stamp(7)
    if "latepois" not in exp:
        for x in pois:
            a.I(x)
    for s_ in (S_PW0, S_PW1, S_PR):
        a.I("s_xor_b32 s%d, s%d, 262144" % (s_, s_))
    a.I("s_bfe_u32 s%d, s%d, 0x10001" % (S_TAG, S_STEP))
    if "rtt" not in exp:
        tm.stamp(8)
    if stop_after is not None:
        a.I("s_cmp_eq_u32 s%d, %d" % (S_STEP, stop_after))
        a.I("s_cbranch_scc1 %s" % L_done)
    a.I("s_cmp_lg_u32 s%d, 63" % S_STEP)
    a.I("s_cbranch_scc1 %s" % L_step)
    a.I("s_mov_b32 s%d, %d" % (S_RETRY, RETRY_MAX))
    Lp = a.newlabel("lpoll")
    Lr = a.newlabel("lretry")
    a.label(Lp)
    for kap in range(8):
        a.I(mem_load(kap))
    a.I("s_waitcnt vmcnt(0)")
    for x in check_insts([MEM + i for i in range(32)], V_T):
        a.I(x)
    a.I("s_cbranch_vccnz %s" % Lr)
    ool.append((Lr, Lp))
    for kap in range(8):
        A = vr(MEM + 4 * kap, 4)
        a.I(smf(k[0], A, qkw(1, 0, kap)))
        a.I(smf(k[1], A, qkw(1, 1, kap)))
        a.I(smf(v[0], A, vr(V_VW + kap * 8, 8)))
        a.I(smf(v[1], A, vr(V_VW + 64 + kap * 8, 8)))
    for tau in range(2):
        for x in qk_post(tau):
            a.I(x)
    for x in add2(v[0], v[0], v[0] + 2) + add2(v[1], v[1], v[1] + 2):
        a.I(x)
    a.I("v_cvt_pk_bf16_f32 %s, %s, %s" % (vr(PX + 4), vr(v[0]), vr(v[0] + 1)))
    a.I("v_cvt_pk_bf16_f32 %s, %s, %s" % (vr(PX + 6), vr(v[1]), vr(v[1] + 1)))
    a.I("v_lshrrev_b32 %s, 2, %s" % (vr(V_T), vr(V_L16)))
    a.I("buffer_store_dword %s, %s, %s, s%d offen sc1" % (vr(PX + 4), vr(V_T), ws, S_VM))
    a.I("buffer_store_dword %s, %s, %s, s%d offen offset:256 sc1" % (vr(PX + 6), vr(V_T), ws, S_VM))
    a.I("s_waitcnt lgkmcnt(0)")
    a.I("s_barrier")
    for hh in range(2):
        a.I("ds_read_b64_tr_b16 %s, %s offset:%d" % (vr(KT + 2 * hh, 2), vr(V_MR), 1024 * w + 512 * hh))
    a.I("s_waitcnt lgkmcnt(0)")
    a.I("buffer_store_dwordx4 %s, %s, %s, s%d offen offset:%d sc1" % (vr(KT, 4), vr(V_KM), ws, S_KM, w * 512))
    a.label(L_done, clear=True)
    a.I("s_waitcnt vmcnt(0) lgkmcnt(0)")
    if looptime and w == 0:
        a.I("s_memrealtime s[94:95]")
        a.I("s_waitcnt lgkmcnt(0)")
        a.I("s_sub_u32 s94, s94, s92")
        a.I("v_mov_b32 %s, s94" % vr(V_MEM))
        a.I("v_mov_b32 %s, s92" % vr(V_MEM + 1))
        a.I("s_lshl_b32 s%d, s%d, 3" % (S_T0, S_RANK))
        a.I("v_mov_b32 %s, s%d" % (vr(V_MEM + 2), S_T0))
        a.I("s_mov_b32 s%d, 0x%x" % (S_T0, WS_FLAGS + 0xc000))
        a.I("buffer_store_dwordx2 %s, %s, %s, s%d offen" % (vr(V_MEM, 2), vr(V_MEM + 2), ws, S_T0))
        a.I("s_waitcnt vmcnt(0)")
    if timing:
        Ls = a.newlabel("notm")
        if trace is None:
            a.I("s_cmp_lg_u32 s%d, 0" % S_RANK)
            a.I("s_cbranch_scc1 %s" % Ls)
        for i in range(16):
            a.I("v_mov_b32 %s, s%d" % (vr(V_MEM + i), S_TM + 4 + i))
        a.I("v_mov_b32 %s, 0" % vr(V_MEM + 16))
        a.I("s_lshl_b32 s%d, s%d, 8" % (S_T0, S_RANK))
        a.I("s_add_u32 s%d, s%d, 0x%x" % (S_T0, S_T0, WS_FLAGS + 0x8000 + w * 64))
        for i in range(16):
            a.I("buffer_store_dword %s, %s, %s, s%d offen offset:%d" % (vr(V_MEM + i), vr(V_MEM + 16), ws, S_T0, i * 4))
        a.I("s_waitcnt vmcnt(0)")
        a.label(Ls)
    Lend = a.newlabel("end")
    a.I("s_branch %s" % Lend)
    for (lab, tgt) in ool:
        retry_block(a, lab, tgt, abort)
    for (lr, kap, lb) in cool:
        a.label(lr, clear=True)
        lq = a.newlabel("cq")
        a.I("s_mov_b32 s%d, %d" % (S_RETRY, RETRY_MAX))
        a.label(lq)
        a.I(mem_load(kap))
        a.I("s_waitcnt vmcnt(0)")
        for x in chunk_check(kap):
            a.I(x)
        a.I("s_cbranch_vccz %s" % lb)
        a.I("s_sub_u32 s%d, s%d, 1" % (S_RETRY, S_RETRY))
        a.I("s_cmp_lg_u32 s%d, 0" % S_RETRY)
        a.I("s_cbranch_scc1 %s" % lq)
        a.I("s_branch %s" % abort)
    a.label(Lend, clear=True)


def loop_setup(a, w):
    r = S_RANK
    a.I("s_mov_b32 s%d, 0" % S_STEP)
    a.I("s_mov_b32 s%d, 0" % S_TAG)
    a.I("s_mov_b32 s%d, 0x%x" % (S_MEM, WS_MEM))
    a.I("s_mov_b32 s%d, 0x%x" % (S_MEMHI, WS_MEM + 4096))
    a.I("s_mov_b32 s%d, 0x%x" % (S_PW0, WS_PART + w * 65536))
    a.I("s_add_u32 s%d, s%d, 32768" % (S_PW1, S_PW0))
    a.I("s_lshl_b32 s%d, s%d, 13" % (S_PR, r))
    a.I("s_add_u32 s%d, s%d, 0x%x" % (S_PR, S_PR, WS_PART + w * 2048))
    a.I("s_lshl_b32 s%d, s%d, 13" % (S_KT, r))
    a.I("s_add_u32 s%d, s%d, 0x%x" % (S_VT, S_KT, WS_VT))
    a.I("s_add_u32 s%d, s%d, 0x%x" % (S_KT, S_KT, WS_KT))
    a.I("s_lshl_b32 s%d, s%d, 11" % (S_KM, r))
    a.I("s_add_u32 s%d, s%d, 0x%x" % (S_VM, S_KM, WS_VM + w * 512))
    a.I("s_add_u32 s%d, s%d, 0x%x" % (S_KM, S_KM, WS_KM))
    import struct
    c = struct.unpack("<I", struct.pack("<f", 128 ** -0.5 * 1.4426950408889634))[0]
    a.I("s_mov_b32 s%d, 0x%x" % (S_C, c))
    a.I("s_mov_b32 s%d, 0x%x" % (S_NC, c | 0x80000000))
    a.I("s_mov_b32 s%d, 0x3f803f80" % S_ONE)
    a.I("s_mov_b32 s%d, 0x3f803f80" % (S_ONE + 1))
    for p in range(4 * w, 4 * w + 4):
        src, base = (S_KT, p) if p < 8 else (S_VT, p - 8)
        a.I("s_add_u32 s%d, s%d, %d" % (S_T0 + 5, src, base * 1024))
        a.I("s_mov_b32 m0, %d" % (L_K + p * 1024))
        a.I("buffer_load_dwordx4 %s, s[%d:%d], s%d offen sc1 lds" % (vr(V_L16), S_WS, S_WS + 3, S_T0 + 5))
    a.I("s_add_u32 s%d, s%d, 262144" % (S_KT, S_KT))
    a.I("s_add_u32 s%d, s%d, 262144" % (S_VT, S_VT))
    for i in range(0, 24, 2):
        a.I("v_mov_b64 %s, 0" % vr(V_ACC + i, 2))
    a.I("v_mov_b64 %s, -1" % vr(V_S + 8, 2))
    a.I("v_mov_b64 %s, -1" % vr(V_S + 10, 2))
    a.I("s_mov_b32 s%d, 0x%x" % (S_T0 + 3, WS_MEM + 3 * 8192))
    a.I("v_mov_b64 %s, 0" % vr(V_PX + 8, 2))
    a.I("v_mov_b64 %s, 0" % vr(V_PX + 4, 2))
    a.I("v_mov_b64 %s, 0" % vr(V_PX + 6, 2))
```

```python
from asmlib import Asm, vr, ar, sr

NAME = "adaLN_cond__memory_aug_recurrent_mem_tr__dense_activation_relu__prompt_kernel"

K_X, K_MEM0, K_WQ, K_WK, K_WV, K_WO, K_SEG, K_BX, K_W1, K_W2, K_C, K_WMOD, K_OUT, K_DBG, K_WS = [8 * i for i in range(15)]


def kd(name, vgpr=512, sgpr=102, accum=256):
    return """.section .rodata,"a"
.p2align 6
.amdhsa_kernel %s
  .amdhsa_next_free_vgpr %d
  .amdhsa_next_free_sgpr %d
  .amdhsa_accum_offset %d
  .amdhsa_group_segment_fixed_size 0
  .amdhsa_kernarg_size 120
  .amdhsa_user_sgpr_count 2
  .amdhsa_user_sgpr_kernarg_segment_ptr 1
  .amdhsa_system_sgpr_workgroup_id_x 1
.end_amdhsa_kernel
""" % (name, vgpr, sgpr, accum)


def srd(a, dst, ptr, nbytes):
    a.I("s_mov_b32 s%d, s%d" % (dst, ptr))
    a.I("s_mov_b32 s%d, s%d" % (dst + 1, ptr + 1))
    a.I("s_mov_b32 s%d, 0x%x" % (dst + 2, nbytes))
    a.I("s_mov_b32 s%d, 0x00020000" % (dst + 3))


def rne_bf16(a, d, s, t):
    a.I("v_cvt_pk_bf16_f32 %s, %s, %s" % (vr(d), vr(s), vr(s)))
    a.I("v_and_b32 %s, 0xffff0000, %s" % (vr(d), vr(d)))
```

```python
from common import *
from chain import WS_H, WS_KT, WS_VT, WS_QT, WS_SIZE, OOB

FG_KQ = [0, 1, 4, 5, 2, 3, 6, 7]


def front_role(a, S_WS, S_A, s_mat, s_head, s_par, s_wave, lane, pW, nseg=32, stride=2, st="sc1", hooks=None, tag="f"):
    T = 2
    HB = 16
    ACC = 80
    PK = 96
    V_L16, V_TA, V_OUT, V_WO = 104, 105, 106, 107
    s0, s1, s2, s_seg, s_it, s_out, s_h, s_buf = 70, 71, 72, 73, 74, 75, 76, 77
    ws = "s[%d:%d]" % (S_WS, S_WS + 3)
    srd(a, S_A, pW, 0x400000)
    a.I("v_lshlrev_b32 %s, 4, %s" % (vr(V_L16), vr(lane)))
    a.I("v_lshrrev_b32 %s, 2, %s" % (vr(T), vr(lane)))
    a.I("v_lshlrev_b32 %s, 13, %s" % (vr(T), vr(T)))
    a.I("v_and_b32 %s, 3, %s" % (vr(T + 1), vr(lane)))
    a.I("v_lshl_add_u32 %s, %s, 4, %s" % (vr(T), vr(T + 1), vr(T)))
    a.I("s_lshl_b32 s%d, s%d, 8" % (s0, s_head))
    a.I("s_lshl_b32 s%d, s%d, 6" % (s1, s_wave))
    a.I("s_add_u32 s%d, s%d, s%d" % (s0, s0, s1))
    a.I("v_add_u32 %s, s%d, %s" % (vr(V_WO), s0, vr(T)))
    a.I("s_lshl_b32 s%d, s%d, 15" % (s2, s_wave))
    for i in range(32):
        a.I("s_add_u32 m0, s%d, %d" % (s2, i * 1024))
        a.I("s_mov_b32 s%d, 0x%x" % (s1, i * 131072))
        a.I("buffer_load_dwordx4 %s, s[%d:%d], s%d offen lds" % (vr(V_WO), S_A, S_A + 3, s1))
    a.I("v_lshrrev_b32 %s, 5, %s" % (vr(T), vr(lane)))
    a.I("v_bfe_u32 %s, %s, 2, 2" % (vr(T + 1), vr(lane)))
    a.I("v_lshl_add_u32 %s, %s, 3, %s" % (vr(T), vr(T), vr(T + 1)))
    a.I("v_lshlrev_b32 %s, 6, %s" % (vr(T), vr(T)))
    a.I("v_and_b32 %s, 3, %s" % (vr(T + 1), vr(lane)))
    a.I("v_bfe_u32 %s, %s, 4, 1" % (vr(T + 2), vr(lane)))
    a.I("v_lshl_add_u32 %s, %s, 2, %s" % (vr(T + 1), vr(T + 2), vr(T + 1)))
    a.I("v_and_b32 %s, 1, %s" % (vr(T + 2), vr(T + 1)))
    a.I("v_bfe_u32 %s, %s, 1, 1" % (vr(T + 3), vr(T + 1)))
    a.I("v_lshl_or_b32 %s, %s, 2, %s" % (vr(T + 2), vr(T + 3), vr(T + 2)))
    a.I("v_bfe_u32 %s, %s, 2, 1" % (vr(T + 3), vr(T + 1)))
    a.I("v_lshl_or_b32 %s, %s, 1, %s" % (vr(T + 2), vr(T + 3), vr(T + 2)))
    a.I("s_cmp_eq_u32 s%d, 2" % s_mat)
    a.I("s_cselect_b64 vcc, -1, 0")
    a.I("v_cndmask_b32 %s, %s, %s, vcc" % (vr(T + 1), vr(T + 2), vr(T + 1)))
    a.I("v_lshl_add_u32 %s, %s, 3, %s" % (vr(T), vr(T + 1), vr(T)))
    a.I("v_add_u32 %s, s%d, %s" % (vr(V_TA), s2, vr(T)))
    a.I("v_bfe_u32 %s, %s, 4, 1" % (vr(T), vr(lane)))
    a.I("v_and_b32 %s, 15, %s" % (vr(T + 1), vr(lane)))
    a.I("v_lshrrev_b32 %s, 5, %s" % (vr(T + 2), vr(lane)))
    a.I("v_lshlrev_b32 %s, 4, %s" % (vr(T + 1), vr(T + 1)))
    a.I("v_lshl_add_u32 %s, %s, 8, %s" % (vr(T + 1), vr(T + 2), vr(T + 1)))
    a.I("v_lshlrev_b32 %s, 12, %s" % (vr(T + 2), vr(T)))
    a.I("v_lshlrev_b32 %s, 10, %s" % (vr(T + 3), vr(T)))
    a.I("v_cndmask_b32 %s, %s, %s, vcc" % (vr(T + 2), vr(T + 2), vr(T + 3)))
    a.I("s_lshl_b32 s%d, s%d, 10" % (s0, s_wave))
    a.I("s_lshl_b32 s%d, s%d, 11" % (s1, s_wave))
    a.I("s_cmp_eq_u32 s%d, 2" % s_mat)
    a.I("s_cselect_b32 s%d, s%d, s%d" % (s0, s1, s0))
    a.I("v_add3_u32 %s, %s, %s, s%d" % (vr(V_OUT), vr(T + 1), vr(T + 2), s0))
    a.I("s_mov_b32 s%d, 0x%x" % (s_out, WS_QT))
    a.I("s_cmp_eq_u32 s%d, 1" % s_mat)
    a.I("s_cselect_b32 s%d, 0x%x, s%d" % (s_out, WS_KT, s_out))
    a.I("s_cmp_eq_u32 s%d, 2" % s_mat)
    a.I("s_cselect_b32 s%d, 0x%x, s%d" % (s_out, WS_VT, s_out))
    a.I("s_lshl_b32 s%d, s%d, 13" % (s0, s_head))
    a.I("s_add_u32 s%d, s%d, s%d" % (s_out, s_out, s0))
    a.I("s_lshl_b32 s%d, s%d, 18" % (s0, s_par))
    a.I("s_add_u32 s%d, s%d, s%d" % (s_out, s_out, s0))
    a.I("s_waitcnt vmcnt(0)")
    for ks in range(32):
        for hh in range(2):
            a.I("ds_read_b64_tr_b16 %s, %s offset:%d" % (ar(4 * ks + 2 * hh, 2), vr(V_TA), ks * 1024 + hh * 256))
    a.I("s_waitcnt lgkmcnt(0)")
    if hooks and "before_h" in hooks:
        hooks["before_h"](a)
    a.I("s_barrier")
    a.I("s_lshl_b32 s%d, s%d, 15" % (s_h, s_par))
    a.I("s_lshl_b32 s%d, s%d, 13" % (s0, s_wave))
    a.I("s_add_u32 s%d, s%d, s%d" % (s_h, s_h, s0))
    a.I("s_add_u32 s%d, s%d, 0x%x" % (s_h, s_h, WS_H))
    a.I("s_mov_b32 s%d, s%d" % (s_buf, s0))

    def dma_h():
        for p in range(8):
            a.I("s_add_u32 m0, s%d, %d" % (s_buf, p * 1024))
            a.I("s_add_u32 s%d, s%d, %d" % (s1, s_h, p * 1024))
            a.I("buffer_load_dwordx4 %s, %s, s%d offen sc1 lds" % (vr(V_L16), ws, s1))
        a.I("s_add_u32 s%d, s%d, %d" % (s_h, s_h, stride * 32768))
        a.I("s_xor_b32 s%d, s%d, 32768" % (s_buf, s_buf))
    dma_h()
    a.I("s_mov_b32 s%d, 0" % s_it)
    V_RD = T + 4
    a.I("v_mov_b32 %s, %s" % (vr(V_RD), vr(V_L16)))
    Lp = a.newlabel(tag + "loop")
    a.label(Lp, clear=True)
    a.I("s_waitcnt vmcnt(0)")
    a.I("s_barrier")
    if hooks and "stores_done" in hooks:
        hooks["stores_done"](a, s_it)
    Ls = a.newlabel(tag + "nodma")
    a.I("s_cmp_ge_u32 s%d, %d" % (s_it, nseg - 1))
    a.I("s_cbranch_scc1 %s" % Ls)
    dma_h()
    a.label(Ls)
    for variant in ("kq", "v"):
        if variant == "kq":
            Lv = a.newlabel(tag + "v")
            Le = a.newlabel(tag + "e")
            a.I("s_cmp_eq_u32 s%d, 2" % s_mat)
            a.I("s_cbranch_scc1 %s" % Lv)
        else:
            a.label(Lv, clear=True)
        for ks in range(16):
            a.I("ds_read_b128 %s, %s offset:%d" % (vr(HB + 4 * ks, 4), vr(V_RD), ks * 1024))
        for ks in range(32):
            slot = HB + 4 * (ks & 15)
            issued = 16 + min(ks, 16)
            a.I("s_waitcnt lgkmcnt(%d)" % min(15, issued - ks - 1))
            C = "0" if ks == 0 else vr(ACC, 16)
            if variant == "kq":
                a.I("v_mfma_f32_32x32x16_bf16 %s, %s, %s, %s" % (vr(ACC, 16), ar(4 * ks, 4), vr(slot, 4), C))
            else:
                a.I("v_mfma_f32_32x32x16_bf16 %s, %s, %s, %s" % (vr(ACC, 16), vr(slot, 4), ar(4 * ks, 4), C))
            if ks < 16:
                a.I("ds_read_b128 %s, %s offset:%d" % (vr(slot, 4), vr(V_RD), (ks + 16) * 1024))
        if variant == "kq":
            order = [(0, 1), (2, 3), (4, 5), (6, 7), (8, 9), (10, 11), (12, 13), (14, 15)]
        else:
            order = [(0, 1), (2, 3), (8, 9), (10, 11), (4, 5), (6, 7), (12, 13), (14, 15)]
        for j, (x, y) in enumerate(order):
            a.I("v_cvt_pk_bf16_f32 %s, %s, %s" % (vr(PK + j), vr(ACC + x), vr(ACC + y)))
        if variant == "kq":
            a.I("s_branch %s" % Le)
    a.label(Le, clear=True)
    a.I("buffer_store_dwordx4 %s, %s, %s, s%d offen %s" % (vr(PK, 4), vr(V_OUT), ws, s_out, st))
    a.I("buffer_store_dwordx4 %s, %s, %s, s%d offen offset:512 %s" % (vr(PK + 4, 4), vr(V_OUT), ws, s_out, st))
    a.I("s_add_u32 s%d, s%d, %d" % (s_out, s_out, stride * 262144))
    a.I("v_xor_b32 %s, 32768, %s" % (vr(V_RD), vr(V_RD)))
    a.I("s_add_u32 s%d, s%d, 1" % (s_it, s_it))
    a.I("s_cmp_lt_u32 s%d, %d" % (s_it, nseg))
    a.I("s_cbranch_scc1 %s" % Lp)
    a.I("s_waitcnt vmcnt(0)")
    a.I("s_barrier")
    if hooks and "stores_done" in hooks:
        hooks["stores_done"](a, s_it)


def build_front_kernel(a, name="front_kernel"):
    a.raw(".p2align 8")
    a.raw(".globl %s" % name)
    a.raw(".type %s,@function" % name)
    a.label(name, clear=True)
    a.I("s_cmp_ge_u32 s2, 192")
    a.I("s_cbranch_scc1 L_exit_%s" % name)
    a.I("s_load_dwordx4 s[20:23], s[0:1], %d" % K_WQ)
    a.I("s_load_dwordx2 s[24:25], s[0:1], %d" % K_WV)
    a.I("s_load_dwordx2 s[28:29], s[0:1], %d" % K_WS)
    a.I("v_and_b32 v1, 63, v0")
    a.I("v_lshrrev_b32 v2, 6, v0")
    a.I("s_nop 0")
    a.I("v_readfirstlane_b32 s30, v2")
    a.I("s_and_b32 s31, s2, 1")
    a.I("s_lshr_b32 s32, s2, 1")
    a.I("s_and_b32 s33, s32, 31")
    a.I("s_lshr_b32 s34, s32, 5")
    a.I("s_waitcnt lgkmcnt(0)")
    srd(a, 8, 28, WS_SIZE)
    a.I("s_cmp_eq_u32 s34, 1")
    a.I("s_cselect_b32 s20, s22, s20")
    a.I("s_cselect_b32 s21, s23, s21")
    a.I("s_cmp_eq_u32 s34, 2")
    a.I("s_cselect_b32 s20, s24, s20")
    a.I("s_cselect_b32 s21, s25, s21")
    front_role(a, 8, 12, 34, 33, 31, 30, 1, 20)
    a.label("L_exit_%s" % name)
    a.I("s_endpgm")
```

```python
import sys
from asmlib import Asm, vr, ar, sr
import chain as C
from chain import *

NAME = "adaLN_cond__memory_aug_recurrent_mem_tr__dense_activation_relu__prompt_kernel"

def header(launch_lines):
    return HEADER_TOP + "\n".join(launch_lines) + "\n"

HEADER_TOP = """; generated by gen/*.py (hand-written generator)
"""

def kd(name, vgpr=512, sgpr=102, accum=256):
    return """.section .rodata,"a"
.p2align 6
.amdhsa_kernel %s
  .amdhsa_next_free_vgpr %d
  .amdhsa_next_free_sgpr %d
  .amdhsa_accum_offset %d
  .amdhsa_group_segment_fixed_size 0
  .amdhsa_kernarg_size 120
  .amdhsa_user_sgpr_count 2
  .amdhsa_user_sgpr_kernarg_segment_ptr 1
  .amdhsa_system_sgpr_workgroup_id_x 1
.end_amdhsa_kernel
""" % (name, vgpr, sgpr, accum)

def entry(a):
    a.I("s_cmp_ge_u32 s2, 256")
    a.I("s_cbranch_scc1 L_exit")
    a.I("s_load_dwordx8 s[%d:%d], s[0:1], 8" % (S_PTR, S_PTR + 7))
    a.I("s_load_dwordx2 s[%d:%d], s[0:1], 40" % (S_PTR + 8, S_PTR + 9))
    a.I("s_load_dwordx4 s[%d:%d], s[0:1], 104" % (S_PTR + 12, S_PTR + 15))
    a.I("v_and_b32 %s, 63, v0" % vr(V_T))
    a.I("v_lshrrev_b32 v1, 6, v0")
    a.I("s_nop 0")
    a.I("v_readfirstlane_b32 s%d, v1" % S_WAVE)
    a.I("s_getreg_b32 s%d, hwreg(HW_REG_XCC_ID, 0, 4)" % S_T0)
    a.I("s_waitcnt lgkmcnt(0)")
    for srd, p, n in ((S_DBG, S_PTR + 12, 256), (S_WS, S_PTR + 14, WS_SIZE)):
        a.I("s_mov_b32 s%d, s%d" % (srd, p))
        a.I("s_mov_b32 s%d, s%d" % (srd + 1, p + 1))
        a.I("s_mov_b32 s%d, 0x%x" % (srd + 2, n))
        a.I("s_mov_b32 s%d, 0x00020000" % (srd + 3))
    a.I("s_mov_b32 s%d, 0x00020000" % (S_W + 3))
    a.I("s_cmp_lg_u32 s%d, 0" % S_T0)
    a.I("s_cbranch_scc1 L_exit")
    a.I("s_cmp_lg_u32 s%d, 0" % S_WAVE)
    a.I("s_cbranch_scc1 L_el_wait")
    a.I("s_mov_b64 exec, 1")
    a.I("v_mov_b32 v2, 1")
    a.I("v_mov_b32 v3, 0")
    a.I("buffer_atomic_add v2, v3, s[%d:%d], 0 offen sc0" % (S_DBG, S_DBG + 3))
    a.I("v_mov_b32 v3, %d" % L_BC)
    a.I("s_waitcnt vmcnt(0)")
    a.I("ds_write_b32 v3, v2")
    a.I("s_mov_b64 exec, -1")
    a.label("L_el_wait")
    a.I("s_waitcnt lgkmcnt(0)")
    a.I("s_barrier")
    a.I("v_mov_b32 v3, %d" % L_BC)
    a.I("ds_read_b32 v2, v3")
    a.I("s_waitcnt lgkmcnt(0)")
    a.I("v_readfirstlane_b32 s%d, v2" % S_RANK)
    a.I("s_cmp_ge_u32 s%d, 32" % S_RANK)
    a.I("s_cbranch_scc1 L_exit")
    for w in range(1, 4):
        a.I("s_cmp_eq_u32 s%d, %d" % (S_WAVE, w))
        a.I("s_cbranch_scc1 L_wave%d" % w)

def arrive(a, w):
    a.I("s_waitcnt vmcnt(0) lgkmcnt(0)")
    a.I("s_barrier")
    if w == 2:
        a.I("s_mov_b64 exec, 1")
        a.I("v_mov_b32 v2, 1")
        a.I("v_mov_b32 v3, 64")
        a.I("buffer_atomic_add v2, v3, s[%d:%d], 0 offen" % (S_DBG, S_DBG + 3))
        a.I("s_mov_b64 exec, -1")

def wait_arrival(a, w):
    if w == 0:
        T = V_MEM
        lp = a.newlabel("arr")
        a.I("s_mov_b32 s%d, %d" % (S_RETRY, RETRY_MAX))
        a.I("v_mov_b32 %s, 64" % vr(T))
        a.label(lp)
        a.I("buffer_load_dword %s, %s, s[%d:%d], 0 offen sc1" % (vr(T + 1), vr(T), S_DBG, S_DBG + 3))
        a.I("s_sub_u32 s%d, s%d, 1" % (S_RETRY, S_RETRY))
        a.I("s_cmp_eq_u32 s%d, 0" % S_RETRY)
        a.I("s_cbranch_scc1 L_abort")
        a.I("s_waitcnt vmcnt(0)")
        a.I("v_cmp_ne_u32 vcc, 32, %s" % vr(T + 1))
        a.I("s_cbranch_vccnz %s" % lp)
    a.I("s_waitcnt vmcnt(0)")
    a.I("s_barrier")

def build(timing=True, stop_after=None, dbg=None, exp="", delay=0, rdelay=0, gap=24, rgap=24, trace=None):
    a = Asm()
    a.raw("; @launch grid=(256,1,1) block=(256,1,1) lds=163840")
    a.raw('.amdgcn_target "amdgcn-amd-amdhsa--gfx950"')
    a.raw(".text")
    a.raw(".globl %s" % NAME)
    a.raw(".p2align 8")
    a.raw(".type %s,@function" % NAME)
    a.label(NAME)
    entry(a)
    for w in range(4):
        a.label("L_wave%d" % w, clear=True)
        lane_consts(a, w)
        init_buffers(a, w)
        arrive(a, w)
        load_weights(a, w)
        loop_setup(a, w)
        wait_arrival(a, w)
        chain_loop(a, w, timing=timing, stop_after=stop_after, dbg=dbg, exp=exp, delay=delay, rdelay=rdelay, gap=gap, rgap=rgap, trace=trace)
        a.I("s_endpgm")
    a.label("L_abort", clear=True)
    a.I("s_mov_b64 exec, 1")
    a.I("v_mov_b32 v2, s%d" % S_STEP)
    a.I("v_or_b32 v2, 0x80000000, v2")
    a.I("s_lshl_b32 s%d, s%d, 2" % (S_T0, S_WAVE))
    a.I("s_add_u32 s%d, s%d, 128" % (S_T0, S_T0))
    a.I("v_mov_b32 v3, s%d" % S_T0)
    a.I("buffer_store_dword v2, v3, s[%d:%d], 0 offen" % (S_DBG, S_DBG + 3))
    a.I("s_waitcnt vmcnt(0)")
    a.label("L_exit")
    a.I("s_endpgm")
    return a.text() + kd(NAME), a

if __name__ == "__main__":
    kw = {}
    for arg in sys.argv[2:]:
        k, v = arg.split("=")
        kw[k] = (None if v == "None" else (int(v) if v.isdigit() else v))
    if "timing" in kw: kw["timing"] = bool(kw["timing"])
    txt, a = build(**kw)
    open(sys.argv[1], "w").write(txt)
    print("instructions", a.n_inst, "nops", a.n_nop, "bytes", len(txt))
```

```python
from common import *
from chain import WS_MOD, WS_H, WS_SIZE, OOB


def dpp_add(a, d, s, ctrl):
    a.I("v_add_f32_dpp %s, %s, %s %s row_mask:0xf bank_mask:0xf" % (vr(d), vr(s), vr(d), ctrl))


def mod_role(a, S_WS, S_A, S_B, s_colblk, s_wave, lane, pc, pw, lds_base, st="sc1", V0=16):
    srd(a, S_A, pw, 512 * 6144)
    srd(a, S_B, pc, 1024)
    T = V0
    ACC = V0 + 8
    W = V0 + 16
    CV = V0 + 80
    st0 = 90
    a.I("v_lshrrev_b32 %s, 3, %s" % (vr(T), vr(lane)))
    a.I("v_and_b32 %s, 7, %s" % (vr(T + 1), vr(lane)))
    a.I("s_lshl_b32 s%d, s%d, 7" % (st0, s_wave))
    a.I("v_add_u32 %s, s%d, %s" % (vr(T), st0, vr(T)))
    a.I("v_mul_u32_u24 %s, 6144, %s" % (vr(T + 2), vr(T)))
    a.I("v_lshl_add_u32 %s, %s, 4, %s" % (vr(T + 2), vr(T + 1), vr(T + 2)))
    a.I("s_lshl_b32 s%d, s%d, 7" % (st0 + 1, s_colblk))
    a.I("v_lshlrev_b32 %s, 1, %s" % (vr(T + 3), vr(T)))
    for i in range(16):
        a.I("s_add_u32 s%d, s%d, %d" % (st0 + 2, st0 + 1, i * 8 * 6144))
        a.I("buffer_load_dwordx4 %s, %s, s[%d:%d], s%d offen" % (vr(W + 4 * i, 4), vr(T + 2), S_A, S_A + 3, st0 + 2))
    for i in range(16):
        a.I("buffer_load_ushort %s, %s, s[%d:%d], 0 offen offset:%d" % (vr(CV + i), vr(T + 3), S_B, S_B + 3, i * 16))
    for i in range(8):
        a.I("v_mov_b32 %s, 0" % vr(ACC + i))
    a.I("s_waitcnt vmcnt(0)")
    for i in range(16):
        c = CV + i
        a.I("v_lshlrev_b32 %s, 16, %s" % (vr(c), vr(c)))
        a.I("v_mul_f32 %s, 0xbfb8aa3b, %s" % (vr(T + 4), vr(c)))
        a.I("v_exp_f32 %s, %s" % (vr(T + 4), vr(T + 4)))
        a.I("v_add_f32 %s, 1.0, %s" % (vr(T + 4), vr(T + 4)))
        a.I("v_rcp_f32 %s, %s" % (vr(T + 4), vr(T + 4)))
        a.I("v_mul_f32 %s, %s, %s" % (vr(c), vr(c), vr(T + 4)))
        rne_bf16(a, c, c, T + 4)
    for i in range(16):
        for j in range(4):
            w = W + 4 * i + j
            a.I("v_lshlrev_b32 %s, 16, %s" % (vr(T + 4), vr(w)))
            a.I("v_and_b32 %s, 0xffff0000, %s" % (vr(T + 5), vr(w)))
            a.I("v_fmac_f32 %s, %s, %s" % (vr(ACC + 2 * j), vr(T + 4), vr(CV + i)))
            a.I("v_fmac_f32 %s, %s, %s" % (vr(ACC + 2 * j + 1), vr(T + 5), vr(CV + i)))
    for j in range(8):
        dpp_add(a, ACC + j, ACC + j, "row_ror:8")
    for j in range(8):
        a.I("v_mov_b32 %s, %s" % (vr(T + 4), vr(ACC + j)))
        a.I("v_permlane16_swap_b32 %s, %s" % (vr(ACC + j), vr(T + 4)))
        a.I("v_add_f32 %s, %s, %s" % (vr(ACC + j), vr(ACC + j), vr(T + 4)))
        a.I("v_mov_b32 %s, %s" % (vr(T + 4), vr(ACC + j)))
        a.I("v_permlane32_swap_b32 %s, %s" % (vr(ACC + j), vr(T + 4)))
        a.I("v_add_f32 %s, %s, %s" % (vr(ACC + j), vr(ACC + j), vr(T + 4)))
    a.I("v_lshlrev_b32 %s, 5, %s" % (vr(T + 4), vr(T + 1)))
    a.I("s_lshl_b32 s%d, s%d, 8" % (st0, s_wave))
    a.I("s_add_u32 s%d, s%d, %d" % (st0, st0, lds_base))
    a.I("v_add_u32 %s, s%d, %s" % (vr(T + 4), st0, vr(T + 4)))
    a.I("ds_write_b128 %s, %s" % (vr(T + 4), vr(ACC, 4)))
    a.I("ds_write_b128 %s, %s offset:16" % (vr(T + 4), vr(ACC + 4, 4)))
    a.I("s_waitcnt lgkmcnt(0)")
    a.I("s_barrier")
    a.I("v_lshlrev_b32 %s, 2, %s" % (vr(T + 4), vr(lane)))
    a.I("v_add_u32 %s, %d, %s" % (vr(T + 5), lds_base, vr(T + 4)))
    for w in range(4):
        a.I("ds_read_b32 %s, %s offset:%d" % (vr(ACC + w), vr(T + 5), w * 256))
    a.I("s_waitcnt lgkmcnt(0)")
    a.I("v_add_f32 %s, %s, %s" % (vr(ACC), vr(ACC), vr(ACC + 1)))
    a.I("v_add_f32 %s, %s, %s" % (vr(ACC + 2), vr(ACC + 2), vr(ACC + 3)))
    a.I("v_add_f32 %s, %s, %s" % (vr(ACC), vr(ACC), vr(ACC + 2)))
    rne_bf16(a, ACC, ACC, T + 5)
    a.I("v_add_f32 %s, 1.0, %s" % (vr(ACC + 1), vr(ACC)))
    rne_bf16(a, ACC + 1, ACC + 1, T + 5)
    L = a.newlabel("modp")
    L2 = a.newlabel("modq")
    a.I("s_lshr_b32 s%d, s%d, 3" % (st0, s_colblk))
    a.I("s_cmp_eq_u32 s%d, 1" % st0)
    a.I("s_cbranch_scc1 %s" % L)
    a.I("s_cmp_eq_u32 s%d, 4" % st0)
    a.I("s_cbranch_scc0 %s" % L2)
    a.label(L)
    a.I("v_mov_b32 %s, %s" % (vr(ACC), vr(ACC + 1)))
    a.label(L2)
    a.I("s_lshl_b32 s%d, s%d, 8" % (st0, s_colblk))
    a.I("s_add_u32 s%d, s%d, 0x%x" % (st0, st0, WS_MOD))
    L3 = a.newlabel("modr")
    a.I("s_cmp_lg_u32 s%d, 0" % s_wave)
    a.I("s_cbranch_scc1 %s" % L3)
    a.I("buffer_store_dword %s, %s, s[%d:%d], s%d offen %s" % (vr(ACC), vr(T + 4), S_WS, S_WS + 3, st0, st))
    a.label(L3)
    a.I("s_waitcnt vmcnt(0)")
    a.I("s_barrier")


def ln_role(a, S_WS, S_A, s_tok0, s_wave, lane, px, ntok_per_wave_iter=8, iters=1, st="sc1", V0=16):
    srd(a, S_A, px, 2048 * 1024)
    T = V0
    X = V0 + 16
    F = V0 + 48
    CA = V0 + 112
    st0 = 90
    a.I("v_lshrrev_b32 %s, 3, %s" % (vr(T), vr(lane)))
    a.I("v_and_b32 %s, 7, %s" % (vr(T + 1), vr(lane)))
    for it in range(iters):
        a.I("s_lshl_b32 s%d, s%d, 3" % (st0, s_wave))
        a.I("s_add_u32 s%d, s%d, s%d" % (st0, st0, s_tok0))
        if it:
            a.I("s_add_u32 s%d, s%d, %d" % (st0, st0, 32 * it))
        a.I("v_add_u32 %s, s%d, %s" % (vr(T + 2), st0, vr(T)))
        a.I("v_lshlrev_b32 %s, 10, %s" % (vr(T + 3), vr(T + 2)))
        a.I("v_lshl_add_u32 %s, %s, 4, %s" % (vr(T + 3), vr(T + 1), vr(T + 3)))
        for i in range(8):
            a.I("buffer_load_dwordx4 %s, %s, s[%d:%d], 0 offen offset:%d" % (vr(X + 4 * i, 4), vr(T + 3), S_A, S_A + 3, i * 128))
        a.I("v_lshrrev_b32 %s, 5, %s" % (vr(T + 4), vr(T + 2)))
        a.I("v_lshlrev_b32 %s, 15, %s" % (vr(T + 4), vr(T + 4)))
        a.I("v_and_b32 %s, 31, %s" % (vr(T + 5), vr(T + 2)))
        a.I("v_lshl_add_u32 %s, %s, 4, %s" % (vr(T + 4), vr(T + 5), vr(T + 4)))
        a.I("v_lshrrev_b32 %s, 1, %s" % (vr(T + 5), vr(T + 1)))
        a.I("v_lshl_add_u32 %s, %s, 10, %s" % (vr(T + 4), vr(T + 5), vr(T + 4)))
        a.I("v_and_b32 %s, 1, %s" % (vr(T + 5), vr(T + 1)))
        a.I("v_lshl_add_u32 %s, %s, 9, %s" % (vr(T + 4), vr(T + 5), vr(T + 4)))
        a.I("v_lshlrev_b32 %s, 5, %s" % (vr(T + 5), vr(T + 1)))
        a.I("s_waitcnt vmcnt(0)")
        for i in range(32):
            a.I("v_lshlrev_b32 %s, 16, %s" % (vr(F + 2 * i), vr(X + i)))
            a.I("v_and_b32 %s, 0xffff0000, %s" % (vr(F + 2 * i + 1), vr(X + i)))
        S0, S1 = T + 6, T + 7
        a.I("v_add_f32 %s, %s, %s" % (vr(S0), vr(F), vr(F + 1)))
        a.I("v_add_f32 %s, %s, %s" % (vr(S1), vr(F + 2), vr(F + 3)))
        for i in range(4, 64, 2):
            a.I("v_add_f32 %s, %s, %s" % (vr(S0), vr(S0), vr(F + i)))
            a.I("v_add_f32 %s, %s, %s" % (vr(S1), vr(S1), vr(F + i + 1)))
        a.I("v_add_f32 %s, %s, %s" % (vr(S0), vr(S0), vr(S1)))

        def red8(r):
            dpp_add(a, r, r, "quad_perm:[1,0,3,2]")
            dpp_add(a, r, r, "quad_perm:[2,3,0,1]")
            dpp_add(a, r, r, "row_half_mirror")
        red8(S0)
        a.I("v_mul_f32 %s, 0x3b000000, %s" % (vr(S0), vr(S0)))
        rne_bf16(a, S0, S0, T + 8)
        a.I("v_add_f32 %s, %s, %s" % (vr(S1), vr(F), vr(F + 1)))
        for i in range(2, 64):
            a.I("v_add_f32 %s, %s, %s" % (vr(S1), vr(S1), vr(F + i)))
        red8(S1)
        a.I("v_mul_f32 %s, 0x3b000000, %s" % (vr(S1), vr(S1)))
        V = T + 8
        a.I("v_sub_f32 %s, %s, %s" % (vr(T + 9), vr(F), vr(S1)))
        a.I("v_mul_f32 %s, %s, %s" % (vr(V), vr(T + 9), vr(T + 9)))
        for i in range(1, 64):
            a.I("v_sub_f32 %s, %s, %s" % (vr(T + 9), vr(F + i), vr(S1)))
            a.I("v_fmac_f32 %s, %s, %s" % (vr(V), vr(T + 9), vr(T + 9)))
        red8(V)
        a.I("v_mul_f32 %s, 0x3b000000, %s" % (vr(V), vr(V)))
        rne_bf16(a, V, V, T + 9)
        a.I("v_add_f32 %s, 0x3727c5ac, %s" % (vr(V), vr(V)))
        rne_bf16(a, V, V, T + 9)
        a.I("v_sqrt_f32 %s, %s" % (vr(V), vr(V)))
        rne_bf16(a, V, V, T + 9)
        a.I("v_rcp_f32 %s, %s" % (vr(V), vr(V)))
        a.I("s_mov_b32 s%d, 0x%x" % (st0 + 1, WS_MOD))
        a.I("s_mov_b32 s%d, 0x%x" % (st0 + 2, WS_MOD + 2048))
        a.I("s_mov_b32 s%d, 0x%x" % (st0 + 3, WS_H))
        for i in range(8):
            for hq in range(2):
                a.I("buffer_load_dwordx4 %s, %s, s[%d:%d], s%d offen offset:%d sc1"
                    % (vr(CA + 4 * hq, 4), vr(T + 5), S_WS, S_WS + 3, st0 + 1, i * 256 + 16 * hq))
                a.I("buffer_load_dwordx4 %s, %s, s[%d:%d], s%d offen offset:%d sc1"
                    % (vr(CA + 8 + 4 * hq, 4), vr(T + 5), S_WS, S_WS + 3, st0 + 2, i * 256 + 16 * hq))
            a.I("s_waitcnt vmcnt(0)")
            for j in range(8):
                f = F + 8 * i + j
                a.I("v_sub_f32 %s, %s, %s" % (vr(f), vr(f), vr(S0)))
                a.I("v_mul_f32 %s, %s, %s" % (vr(f), vr(f), vr(V)))
                a.I("v_fma_f32 %s, %s, %s, %s" % (vr(f), vr(f), vr(CA + 8 + j), vr(CA + j)))
            for j in range(4):
                a.I("v_cvt_pk_bf16_f32 %s, %s, %s" % (vr(X + 4 * i + j), vr(F + 8 * i + 2 * j), vr(F + 8 * i + 2 * j + 1)))
            a.I("s_add_u32 s%d, s%d, %d" % (st0 + 4, st0 + 3, i * 4096))
            a.I("buffer_store_dwordx4 %s, %s, s[%d:%d], s%d offen %s" % (vr(X + 4 * i, 4), vr(T + 4), S_WS, S_WS + 3, st0 + 4, st))


def build_pre_kernels(a, zero_tail_flags=False):
    for name in ("mod_kernel", "ln_kernel"):
        a.raw(".p2align 8")
        a.raw(".globl %s" % name)
        a.raw(".type %s,@function" % name)
        a.label(name, clear=True)
        a.I("s_cmp_ge_u32 s2, %d" % (48 if name == "mod_kernel" else 64))
        a.I("s_cbranch_scc1 L_exit_%s" % name)
        a.I("s_load_dwordx2 s[20:21], s[0:1], %d" % K_X)
        a.I("s_load_dwordx4 s[24:27], s[0:1], %d" % K_C)
        a.I("s_load_dwordx2 s[28:29], s[0:1], %d" % K_WS)
        a.I("v_and_b32 v1, 63, v0")
        a.I("v_lshrrev_b32 v2, 6, v0")
        a.I("s_nop 0")
        a.I("v_readfirstlane_b32 s30, v2")
        a.I("s_waitcnt lgkmcnt(0)")
        srd(a, 8, 28, WS_SIZE)
        if name == "mod_kernel":
            if zero_tail_flags:
                from tail import G_STRIDE, G_FLAG
                from chain import WS_TAIL
                Lz = a.newlabel("zf")
                a.I("s_cmp_ge_u32 s2, 8")
                a.I("s_cbranch_scc1 %s" % Lz)
                a.I("s_mul_i32 s31, s2, 0x%x" % G_STRIDE)
                a.I("s_add_u32 s31, s31, 0x%x" % (WS_TAIL + G_FLAG))
                a.I("v_mov_b32 v3, 0")
                a.I("v_lshlrev_b32 v4, 2, v0")
                a.I("buffer_store_dword v3, v4, s[8:11], s31 offen sc1")
                a.label(Lz)
            mod_role(a, 8, 12, 16, 2, 30, 1, 24, 26, 0)
        else:
            a.I("s_lshl_b32 s31, s2, 5")
            ln_role(a, 8, 12, 31, 30, 1, 20)
        a.I("s_waitcnt vmcnt(0)")
        a.label("L_exit_%s" % name)
        a.I("s_endpgm")
```

```python
import struct
from common import *
from chain import WS_MOD, WS_KT, WS_VT, WS_QT, WS_KM, WS_VM, WS_TAIL, WS_SIZE, OOB

G_STRIDE = 0x400000
G_INB1, G_INB2, G_H2, G_FLAG = 0, 0x100000, 0x200000, 0x210000

L_O2 = 0
L_ROW = 8192
L_ST = L_ROW + 2048 + 64
L_F = 12288
L_SELT = 16384
L_H2 = 32768

A_WO, A_W2, A_W1 = 0, 128, 176
S_SEG, S_IT, S_GB, S_T = 36, 37, 38, 40
S_TOK = 48
S_C2, S_NC2 = 64, 65
S_BASE_Q, S_BASE_M = 66, 67
V_L16, V_LANE, V_KMR, V_DELTA, V_O2W, V_P1, V_R1, V_ROWW, V_TID2, V_H2W, V_FW, V_L4 = range(2, 14)
SEL = 16
ZQ = 20
ONES = 36
QO = 40
KO = 56
VO = 104
SS = 120
PP = 132
TT = 140
DO = 160
AO = 40
WA = 0
ACC = 192
MODR = 80
V_GA, V_CB, V_SB, V_GB, V_X1 = 14, 15, 0, 0, 0


def wave_allreduce_add(a, r, t):
    for ctrl in ("quad_perm:[1,0,3,2]", "quad_perm:[2,3,0,1]", "row_half_mirror", "row_mirror"):
        a.I("v_add_f32_dpp %s, %s, %s %s row_mask:0xf bank_mask:0xf" % (vr(r), vr(r), vr(r), ctrl))
    a.I("v_mov_b32 %s, %s" % (vr(t), vr(r)))
    a.I("v_permlane16_swap_b32 %s, %s" % (vr(r), vr(t)))
    a.I("v_add_f32 %s, %s, %s" % (vr(r), vr(r), vr(t)))
    a.I("v_mov_b32 %s, %s" % (vr(t), vr(r)))
    a.I("v_permlane32_swap_b32 %s, %s" % (vr(r), vr(t)))
    a.I("v_add_f32 %s, %s, %s" % (vr(r), vr(r), vr(t)))


def rbf(a, d, s):
    a.I("v_cvt_pk_bf16_f32 %s, %s, %s" % (vr(d), vr(s), vr(s)))
    a.I("v_and_b32 %s, 0xffff0000, %s" % (vr(d), vr(d)))


def tail_setup(a, w, S_WS, S_A, s_rank, s_group, pWo, pW1, pW2):
    ws = "s[%d:%d]" % (S_WS, S_WS + 3)
    T = TT
    lane = V_LANE
    qt, eh = w & 1, w >> 1
    s0, s1, s2 = S_T, S_T + 1, S_T + 2
    a.I("v_lshlrev_b32 %s, 4, %s" % (vr(V_L16), vr(lane)))
    a.I("v_lshlrev_b32 %s, 2, %s" % (vr(V_L4), vr(lane)))
    a.I("v_and_b32 %s, 15, %s" % (vr(T), vr(lane)))
    a.I("v_lshrrev_b32 %s, 4, %s" % (vr(T + 1), vr(lane)))
    a.I("v_lshrrev_b32 %s, 2, %s" % (vr(T + 2), vr(T)))
    a.I("v_and_b32 %s, 1, %s" % (vr(T + 3), vr(T)))
    a.I("v_lshl_add_u32 %s, %s, 1, %s" % (vr(T + 2), vr(T + 2), vr(T + 3)))
    a.I("v_lshl_add_u32 %s, %s, 3, %s" % (vr(T + 2), vr(T + 1), vr(T + 2)))
    a.I("v_lshlrev_b32 %s, 4, %s" % (vr(V_KMR), vr(T + 2)))
    a.I("v_lshlrev_b32 %s, 2, %s" % (vr(T + 2), vr(T + 1)))
    a.I("v_sub_u32 %s, %s, %s" % (vr(V_DELTA), vr(T), vr(T + 2)))
    a.I("v_lshrrev_b32 %s, 1, %s" % (vr(T + 2), vr(T + 1)))
    a.I("v_lshlrev_b32 %s, 6, %s" % (vr(T + 2), vr(T + 2)))
    a.I("v_and_b32 %s, 1, %s" % (vr(T + 3), vr(T + 1)))
    a.I("v_lshl_add_u32 %s, %s, 5, %s" % (vr(T + 2), vr(T + 3), vr(T + 2)))
    a.I("v_add3_u32 %s, %s, %s, %d" % (vr(T + 2), vr(T + 2), vr(T), 16 * qt))
    a.I("v_lshlrev_b32 %s, 4, %s" % (vr(T + 2), vr(T + 2)))
    a.I("v_add_u32 %s, %d, %s" % (vr(V_O2W), L_O2, vr(T + 2)))
    a.I("v_lshrrev_b32 %s, 5, %s" % (vr(T + 2), vr(lane)))
    a.I("v_lshlrev_b32 %s, 17, %s" % (vr(T + 2), vr(T + 2)))
    a.I("v_and_b32 %s, 31, %s" % (vr(T + 3), vr(lane)))
    a.I("v_lshl_add_u32 %s, %s, 2, %s" % (vr(V_P1), vr(T + 3), vr(T + 2)))
    a.I("v_lshlrev_b32 %s, 10, %s" % (vr(T + 2), vr(T + 1)))
    a.I("v_lshl_add_u32 %s, %s, 4, %s" % (vr(V_R1), vr(T), vr(T + 2)))
    a.I("v_lshrrev_b32 %s, 1, %s" % (vr(T + 2), vr(T + 1)))
    a.I("v_lshlrev_b32 %s, 6, %s" % (vr(T + 2), vr(T + 2)))
    a.I("v_and_b32 %s, 1, %s" % (vr(T + 3), vr(T)))
    a.I("v_lshl_add_u32 %s, %s, 5, %s" % (vr(T + 2), vr(T + 3), vr(T + 2)))
    a.I("v_and_b32 %s, 1, %s" % (vr(T + 3), vr(T + 1)))
    a.I("v_lshl_add_u32 %s, %s, 4, %s" % (vr(T + 2), vr(T + 3), vr(T + 2)))
    a.I("v_lshrrev_b32 %s, 1, %s" % (vr(T + 3), vr(T)))
    a.I("v_add3_u32 %s, %s, %s, %d" % (vr(T + 2), vr(T + 2), vr(T + 3), 0))
    a.I("v_add_u32 %s, %d, %s" % (vr(T + 2), 128 * w, vr(T + 2)))
    a.I("v_lshlrev_b32 %s, 2, %s" % (vr(T + 2), vr(T + 2)))
    a.I("v_add_u32 %s, %d, %s" % (vr(T + 2), L_ROW, vr(T + 2)))
    a.I("v_mov_b32 %s, %d" % (vr(V_ROWW), L_ROW + 2048))
    a.I("v_cmp_gt_u32 vcc, 8, %s" % vr(T))
    a.I("v_cndmask_b32 %s, %s, %s, vcc" % (vr(V_ROWW), vr(V_ROWW), vr(T + 2)))
    a.I("v_add_u32 %s, %d, %s" % (vr(T + 2), 64 * w, vr(lane)))
    a.I("v_lshlrev_b32 %s, 2, %s" % (vr(V_TID2), vr(T + 2)))
    a.I("v_lshrrev_b32 %s, 4, %s" % (vr(T + 3), vr(T + 2)))
    a.I("v_lshlrev_b32 %s, 10, %s" % (vr(T + 3), vr(T + 3)))
    a.I("v_bfe_u32 %s, %s, 2, 2" % (vr(T + 4), vr(T + 2)))
    a.I("v_lshl_add_u32 %s, %s, 8, %s" % (vr(T + 3), vr(T + 4), vr(T + 3)))
    a.I("v_and_b32 %s, 3, %s" % (vr(T + 4), vr(T + 2)))
    a.I("v_lshl_add_u32 %s, %s, 2, %s" % (vr(T + 3), vr(T + 4), vr(T + 3)))
    a.I("s_lshr_b32 s%d, s%d, 4" % (s0, s_rank))
    a.I("s_lshl_b32 s%d, s%d, 14" % (s0, s0))
    a.I("s_and_b32 s%d, s%d, 15" % (s1, s_rank))
    a.I("s_lshl_b32 s%d, s%d, 4" % (s1, s1))
    a.I("s_add_u32 s%d, s%d, s%d" % (s0, s0, s1))
    a.I("v_add_u32 %s, s%d, %s" % (vr(V_H2W), s0, vr(T + 3)))
    a.I("v_lshrrev_b32 %s, 1, %s" % (vr(T + 2), vr(T + 1)))
    a.I("v_lshlrev_b32 %s, 5, %s" % (vr(T + 2), vr(T + 2)))
    a.I("v_add_u32 %s, %s, %s" % (vr(T + 2), vr(T + 2), vr(T)))
    a.I("v_lshlrev_b32 %s, 4, %s" % (vr(T + 2), vr(T + 2)))
    a.I("v_and_b32 %s, 1, %s" % (vr(T + 3), vr(T + 1)))
    a.I("v_lshl_add_u32 %s, %s, 3, %s" % (vr(T + 2), vr(T + 3), vr(T + 2)))
    a.I("v_add_u32 %s, %d, %s" % (vr(V_FW), L_F + w * 1024, vr(T + 2)))
    a.I("v_and_b32 %s, 1, %s" % (vr(T + 2), vr(T)))
    a.I("v_lshlrev_b32 %s, 4, %s" % (vr(T + 2), vr(T + 2)))
    a.I("v_mov_b32 %s, 0x3f80" % vr(T + 3))
    a.I("v_lshlrev_b32 %s, %s, %s" % (vr(T + 3), vr(T + 2), vr(T + 3)))
    a.I("v_lshrrev_b32 %s, 1, %s" % (vr(T + 2), vr(T)))
    for m in range(4):
        a.I("v_cmp_eq_u32 vcc, %d, %s" % (m, vr(T + 2)))
        a.I("v_cndmask_b32 %s, 0, %s, vcc" % (vr(SEL + m), vr(T + 3)))
    for i in range(16):
        a.I("v_mov_b32 %s, 0" % vr(ZQ + i))
    for i in range(4):
        a.I("v_mov_b32 %s, 0x3f803f80" % vr(ONES + i))
    for i in range(8):
        a.I("v_mov_b32 %s, 0" % vr(PP + i))
    for r in range(16):
        a.I("s_mov_b32 s%d, %d" % (S_TOK + r, ((r & 3) + 8 * (r >> 2)) * 32768))
    c = struct.unpack("<I", struct.pack("<f", 128 ** -0.5 * 1.4426950408889634))[0]
    a.I("s_mov_b32 s%d, 0x%x" % (S_C2, c))
    a.I("s_mov_b32 s%d, 0x%x" % (S_NC2, c | 0x80000000))
    a.I("s_mul_i32 s%d, s%d, 0x%x" % (S_GB, s_group, G_STRIDE))
    a.I("s_add_u32 s%d, s%d, 0x%x" % (S_GB, S_GB, WS_TAIL))
    base = w * 32768
    VOFF, VTA = T + 6, T + 7
    a.I("v_lshlrev_b32 %s, 10, %s" % (vr(T + 2), vr(T + 1)))
    a.I("v_lshl_add_u32 %s, %s, 4, %s" % (vr(T + 2), vr(T), vr(T + 2)))
    srd(a, S_A, pWo, 0x400000)
    a.I("s_lshl_b32 s%d, s%d, 17" % (s0, s_rank))
    a.I("s_add_u32 s%d, s%d, %d" % (s0, s0, w * 256))
    a.I("v_add_u32 %s, s%d, %s" % (vr(VOFF), s0, vr(T + 2)))
    for i in range(32):
        a.I("s_mov_b32 m0, %d" % (base + i * 1024))
        a.I("s_mov_b32 s%d, %d" % (s1, i * 4096))
        a.I("buffer_load_dwordx4 %s, s[%d:%d], s%d offen lds" % (vr(VOFF), S_A, S_A + 3, s1))
    a.I("v_bfe_u32 %s, %s, 2, 2" % (vr(T + 3), vr(lane)))
    a.I("v_lshrrev_b32 %s, 5, %s" % (vr(T + 4), vr(lane)))
    a.I("v_bfe_u32 %s, %s, 4, 1" % (vr(T + 5), vr(lane)))
    a.I("v_lshlrev_b32 %s, 5, %s" % (vr(T + 5), vr(T + 5)))
    a.I("v_and_b32 %s, 3, %s" % (vr(T + 8), vr(lane)))
    a.I("v_lshl_add_u32 %s, %s, 3, %s" % (vr(T + 5), vr(T + 8), vr(T + 5)))
    a.I("v_lshl_add_u32 %s, %s, 2, %s" % (vr(T + 8), vr(T + 4), vr(T + 3)))
    a.I("v_lshl_add_u32 %s, %s, 8, %s" % (vr(T + 8), vr(T + 8), vr(T + 5)))
    a.I("v_add_u32 %s, %d, %s" % (vr(VTA), base, vr(T + 8)))
    a.I("v_lshl_add_u32 %s, %s, 3, %s" % (vr(T + 8), vr(T + 4), vr(T + 3)))
    a.I("v_lshl_add_u32 %s, %s, 8, %s" % (vr(T + 8), vr(T + 8), vr(T + 5)))
    a.I("v_add_u32 %s, %d, %s" % (vr(T + 9), base, vr(T + 8)))
    a.I("s_waitcnt vmcnt(0)")
    for nu in range(4):
        for ks in range(8):
            for hh in range(2):
                row = 32 * (ks >> 1) + 16 * hh + 8 * (ks & 1)
                a.I("ds_read_b64_tr_b16 %s, %s offset:%d" % (ar(A_WO + (nu * 8 + ks) * 4 + 2 * hh, 2), vr(VTA), row * 256 + nu * 64))
    a.I("s_waitcnt lgkmcnt(0)")
    srd(a, S_A, pW2, 1376 * 1024)
    a.I("s_mul_i32 s%d, s%d, %d" % (s0, s_rank, 48 * 1024))
    a.I("s_add_u32 s%d, s%d, %d" % (s0, s0, w * 256))
    a.I("v_add_u32 %s, s%d, %s" % (vr(VOFF), s0, vr(T + 2)))
    for i in range(12):
        a.I("s_mov_b32 m0, %d" % (base + i * 1024))
        a.I("s_mov_b32 s%d, %d" % (s1, i * 4096))
        a.I("buffer_load_dwordx4 %s, s[%d:%d], s%d offen lds" % (vr(VOFF), S_A, S_A + 3, s1))
    if w < 3:
        a.I("v_lshrrev_b32 %s, 1, %s" % (vr(T + 10), vr(lane)))
        a.I("v_mul_u32_u24 %s, 2752, %s" % (vr(T + 10), vr(T + 10)))
        a.I("v_and_b32 %s, 1, %s" % (vr(T + 11), vr(lane)))
        a.I("s_mul_i32 s%d, s%d, 48" % (s0, s_rank))
        a.I("s_add_u32 s%d, s%d, %d" % (s0, s0, 16 * w))
        a.I("v_lshl_add_u32 %s, %s, 3, s%d" % (vr(T + 11), vr(T + 11), s0))
        a.I("v_lshl_add_u32 %s, %s, 1, %s" % (vr(T + 10), vr(T + 11), vr(T + 10)))
        a.I("v_mov_b32 %s, 0x%x" % (vr(T + 12), OOB))
        a.I("v_cmp_gt_u32 vcc, 1376, %s" % vr(T + 11))
        a.I("v_cndmask_b32 %s, %s, %s, vcc" % (vr(T + 10), vr(T + 12), vr(T + 10)))
    a.I("s_waitcnt vmcnt(0)")
    for nu in range(4):
        for ks in range(3):
            for hh in range(2):
                a.I("ds_read_b64_tr_b16 %s, %s offset:%d" % (ar(A_W2 + (nu * 3 + ks) * 4 + 2 * hh, 2), vr(T + 9), (16 * ks + 4 * hh) * 256 + nu * 64))
    a.I("s_waitcnt lgkmcnt(0)")
    if w < 3:
        srd(a, S_A, pW1, 512 * 2752)
        for i in range(16):
            a.I("s_mov_b32 m0, %d" % (base + i * 1024))
            a.I("s_mov_b32 s%d, %d" % (s1, i * 32 * 2752))
            a.I("buffer_load_dwordx4 %s, s[%d:%d], s%d offen lds" % (vr(T + 10), S_A, S_A + 3, s1))
        a.I("v_lshl_add_u32 %s, %s, 3, %s" % (vr(T + 11), vr(T + 1), vr(T + 3)))
        a.I("v_lshlrev_b32 %s, 5, %s" % (vr(T + 11), vr(T + 11)))
        a.I("v_and_b32 %s, 3, %s" % (vr(T + 12), vr(lane)))
        a.I("v_lshl_add_u32 %s, %s, 3, %s" % (vr(T + 11), vr(T + 12), vr(T + 11)))
        a.I("v_add_u32 %s, %d, %s" % (vr(T + 11), base, vr(T + 11)))
        a.I("s_waitcnt vmcnt(0)")
        for ks in range(16):
            for hh in range(2):
                a.I("ds_read_b64_tr_b16 %s, %s offset:%d" % (ar(A_W1 + ks * 4 + 2 * hh, 2), vr(T + 11), (32 * ks + 4 * hh) * 32))
        a.I("s_waitcnt lgkmcnt(0)")
    a.I("s_barrier")


V_MODS = 240


def signal(a, w, S_WS, s_rank, flag_off, st):
    ws = "s[%d:%d]" % (S_WS, S_WS + 3)
    a.I("s_waitcnt vmcnt(0)")
    a.I("s_barrier")
    if w == 0:
        a.I("s_lshl_b32 s%d, s%d, 2" % (S_T, s_rank))
        a.I("s_add_u32 s%d, s%d, s%d" % (S_T, S_T, S_GB))
        a.I("s_add_u32 s%d, s%d, 0x%x" % (S_T, S_T, G_FLAG + flag_off))
        a.I("s_add_u32 s%d, s%d, 1" % (S_T + 1, S_IT))
        a.I("v_mov_b32 %s, s%d" % (vr(TT), S_T + 1))
        a.I("v_mov_b32 %s, 0" % vr(TT + 1))
        a.I("s_mov_b64 exec, 1")
        a.I("buffer_store_dword %s, %s, %s, s%d offen %s" % (vr(TT), vr(TT + 1), ws, S_T, st))
        a.I("s_mov_b64 exec, -1")


def wait_flags(a, w, S_WS, flag_off, abort, n=32):
    ws = "s[%d:%d]" % (S_WS, S_WS + 3)
    if w == 0:
        L = a.newlabel("wf")
        a.I("s_add_u32 s%d, s%d, 0x%x" % (S_T, S_GB, G_FLAG + flag_off))
        a.I("s_add_u32 s%d, s%d, 1" % (S_T + 1, S_IT))
        a.I("s_mov_b32 s%d, 2000000" % (S_T + 2))
        a.I("v_and_b32 %s, 127, %s" % (vr(TT + 1), vr(V_L4)))
        a.label(L)
        a.I("buffer_load_dword %s, %s, %s, s%d offen sc1" % (vr(TT), vr(TT + 1), ws, S_T))
        a.I("s_sub_u32 s%d, s%d, 1" % (S_T + 2, S_T + 2))
        a.I("s_cmp_eq_u32 s%d, 0" % (S_T + 2))
        a.I("s_cbranch_scc1 %s" % abort)
        a.I("s_waitcnt vmcnt(0)")
        a.I("v_cmp_gt_u32 vcc, s%d, %s" % (S_T + 1, vr(TT)))
        a.I("s_cbranch_vccnz %s" % L)
    a.I("s_barrier")


def reduce_rows(a, w, S_WS, s_rank, inb):
    ws = "s[%d:%d]" % (S_WS, S_WS + 3)
    a.I("s_lshl_b32 s%d, s%d, 15" % (S_T, s_rank))
    a.I("s_add_u32 s%d, s%d, s%d" % (S_T, S_T, S_GB))
    a.I("s_add_u32 s%d, s%d, 0x%x" % (S_T, S_T, inb + w * 256))
    for m in range(8):
        a.I("s_add_u32 s%d, s%d, %d" % (S_T + 1, S_T, m * 4096))
        a.I("buffer_load_dwordx4 %s, %s, %s, s%d offen sc1" % (vr(AO + 4 * m, 4), vr(V_R1), ws, S_T + 1))
    D2 = DO
    for m in range(8):
        a.I("s_waitcnt vmcnt(%d)" % (7 - m))
        a.I("v_mfma_f32_16x16x32_bf16 %s, %s, %s, %s" % (vr(D2, 4), vr(AO + 4 * m, 4), vr(SEL, 4), "0" if m == 0 else vr(D2, 4)))
    for r in range(4):
        a.I("ds_write_b32 %s, %s offset:%d" % (vr(V_ROWW), vr(D2 + r), r * 16))
    a.I("s_waitcnt lgkmcnt(0)")
    a.I("s_barrier")
    a.I("v_lshlrev_b32 %s, 1, %s" % (vr(TT + 7), vr(V_TID2)))
    a.I("ds_read_b64 %s, %s offset:%d" % (vr(TT + 8, 2), vr(TT + 7), L_ROW))
    a.I("s_waitcnt lgkmcnt(0)")


def store_partials(a, w, S_WS, s_rank, inb, st):
    ws = "s[%d:%d]" % (S_WS, S_WS + 3)
    a.I("s_lshl_b32 s%d, s%d, 10" % (S_T, s_rank))
    a.I("s_add_u32 s%d, s%d, s%d" % (S_T, S_T, S_GB))
    a.I("s_add_u32 s%d, s%d, 0x%x" % (S_T, S_T, inb + w * 256))
    for pi in range(2):
        for r in range(16):
            d = AO + (r & 7)
            a.I("v_cvt_pk_bf16_f32 %s, %s, %s" % (vr(d), vr(ACC + 32 * pi + r), vr(ACC + 32 * pi + 16 + r)))
            a.I("s_add_u32 s%d, s%d, s%d" % (S_T + 1 + (r & 1), S_T, S_TOK + r))
            a.I("buffer_store_dword %s, %s, %s, s%d offen offset:%d %s" % (vr(d), vr(V_P1), ws, S_T + 1 + (r & 1), pi * 128, st))


def tail_loop(a, w, S_WS, S_A, S_B, s_rank, pX, pOut, stride, st="", abort="L_abort", hooks=None, tag="t"):
    ws = "s[%d:%d]" % (S_WS, S_WS + 3)
    qt, eh = w & 1, w >> 1
    xs = "s[%d:%d]" % (S_A, S_A + 3)
    os_ = "s[%d:%d]" % (S_B, S_B + 3)
    srd(a, S_A, pX, 2048 * 1024)
    srd(a, S_B, pOut, 2048 * 1024)
    A_GA, A_SB, A_CB, A_GB, A_X1 = 240, 242, 244, 246, 248
    if hooks and "wait_mod" in hooks:
        hooks["wait_mod"](a, w)
    a.I("v_lshlrev_b32 %s, 1, %s" % (vr(TT), vr(V_TID2)))
    for (part, areg) in ((2, A_GA), (3, A_SB), (4, A_CB), (5, A_GB)):
        a.I("s_mov_b32 s%d, 0x%x" % (S_T, WS_MOD + part * 2048))
        a.I("buffer_load_dwordx2 %s, %s, %s, s%d offen sc1" % (ar(areg, 2), vr(TT), ws, S_T))
    a.I("s_waitcnt vmcnt(0)")
    Lp = "L_tail_w%d_%s" % (w, tag)
    Le = "L_tailend_w%d_%s" % (w, tag)
    a.label(Lp, clear=True)
    a.I("s_cmp_ge_u32 s%d, 64" % S_SEG)
    a.I("s_cbranch_scc1 %s" % Le)
    if hooks and "wait_inputs" in hooks:
        hooks["wait_inputs"](a, w)
    a.I("s_lshl_b32 s%d, s%d, 5" % (S_T, S_SEG))
    a.I("s_add_u32 s%d, s%d, s%d" % (S_T, S_T, s_rank))
    a.I("s_lshl_b32 s%d, s%d, 13" % (S_BASE_Q, S_T))
    a.I("s_lshl_b32 s%d, s%d, 11" % (S_BASE_M, S_T))
    t0, t1 = S_T + 1, S_T + 2
    a.I("s_add_u32 s%d, s%d, 0x%x" % (t0, S_BASE_Q, WS_QT + qt * 4096))
    for ks in range(4):
        a.I("buffer_load_dwordx4 %s, %s, %s, s%d offen offset:%d sc1" % (vr(QO + 4 * ks, 4), vr(V_L16), ws, t0, ks * 1024))
    a.I("s_add_u32 s%d, s%d, 0x%x" % (t1, S_BASE_M, WS_KM))
    for ks in range(4):
        a.I("buffer_load_dwordx4 %s, %s, %s, s%d offen offset:%d sc1" % (vr(KO + 4 * ks, 4), vr(V_KMR), ws, t1, ks * 512))
    a.I("s_add_u32 s%d, s%d, 0x%x" % (t0, S_BASE_Q, WS_KT))
    for ks in range(4):
        a.I("buffer_load_dwordx4 %s, %s, %s, s%d offen offset:%d sc1" % (vr(KO + 16 + 4 * ks, 4), vr(V_L16), ws, t0, ks * 1024))
    if qt == 1:
        a.I("s_add_u32 s%d, s%d, 0x%x" % (t0, S_BASE_Q, WS_KT + 4096))
        for ks in range(4):
            a.I("buffer_load_dwordx4 %s, %s, %s, s%d offen offset:%d sc1" % (vr(KO + 32 + 4 * ks, 4), vr(V_L16), ws, t0, ks * 1024))
    a.I("s_add_u32 s%d, s%d, 0x%x" % (t0, S_BASE_Q, WS_VT + eh * 4096))
    for j in range(4):
        a.I("buffer_load_dwordx4 %s, %s, %s, s%d offen offset:%d sc1" % (vr(VO + 4 * j, 4), vr(V_L16), ws, t0, j * 1024))
    a.I("s_add_u32 s%d, s%d, 0x%x" % (t1, S_BASE_M, WS_VM + eh * 1024))
    for j in range(4):
        a.I("buffer_load_dword %s, %s, %s, s%d offen offset:%d sc1" % (vr(ZQ + 4 * j), vr(V_L4), ws, t1, j * 256))
    a.I("s_lshl_b32 s%d, s%d, 10" % (t0, S_T))
    a.I("buffer_load_dword %s, %s, %s, s%d offen" % (vr(TT + 12), vr(V_TID2), xs, t0))
    a.I("s_waitcnt vmcnt(0)")
    Sm, S0, S1 = SS, SS + 4, SS + 8
    for ks in range(4):
        B = vr(QO + 4 * ks, 4)
        a.I("v_mfma_f32_16x16x32_bf16 %s, %s, %s, %s" % (vr(Sm, 4), vr(KO + 4 * ks, 4), B, "0" if ks == 0 else vr(Sm, 4)))
        a.I("v_mfma_f32_16x16x32_bf16 %s, %s, %s, %s" % (vr(S0, 4), vr(KO + 16 + 4 * ks, 4), B, "0" if ks == 0 else vr(S0, 4)))
        if qt == 1:
            a.I("v_mfma_f32_16x16x32_bf16 %s, %s, %s, %s" % (vr(S1, 4), vr(KO + 32 + 4 * ks, 4), B, "0" if ks == 0 else vr(S1, 4)))
    Sd = S0 if qt == 0 else S1
    ninf, mx, tt, nmc = TT, TT + 1, TT + 2, TT + 3
    a.I("v_mov_b32 %s, 0xff800000" % vr(ninf))
    for r in range(4):
        a.I("v_cmp_le_i32 vcc, %d, %s" % (r, vr(V_DELTA)))
        a.I("v_cndmask_b32 %s, %s, %s, vcc" % (vr(Sd + r), vr(ninf), vr(Sd + r)))
    vals = [Sm, Sm + 1] + [S0 + r for r in range(4)] + ([S1 + r for r in range(4)] if qt == 1 else [])
    a.I("v_max3_f32 %s, %s, %s, %s" % (vr(mx), vr(vals[0]), vr(vals[1]), vr(vals[2])))
    rest = vals[3:]
    while len(rest) >= 2:
        a.I("v_max3_f32 %s, %s, %s, %s" % (vr(mx), vr(mx), vr(rest[0]), vr(rest[1])))
        rest = rest[2:]
    if rest:
        a.I("v_max_f32 %s, %s, %s" % (vr(mx), vr(mx), vr(rest[0])))
    a.I("v_mov_b32 %s, %s" % (vr(tt), vr(mx)))
    a.I("v_permlane32_swap_b32 %s, %s" % (vr(mx), vr(tt)))
    a.I("v_max_f32 %s, %s, %s" % (vr(mx), vr(mx), vr(tt)))
    a.I("v_mov_b32 %s, %s" % (vr(tt), vr(mx)))
    a.I("v_permlane16_swap_b32 %s, %s" % (vr(mx), vr(tt)))
    a.I("v_max_f32 %s, %s, %s" % (vr(mx), vr(mx), vr(tt)))
    a.I("v_mul_f32 %s, s%d, %s" % (vr(nmc), S_NC2, vr(mx)))
    for x in vals:
        a.I("v_fma_f32 %s, %s, s%d, %s" % (vr(x), vr(x), S_C2, vr(nmc)))
    for x in vals:
        a.I("v_exp_f32 %s, %s" % (vr(x), vr(x)))
    a.I("v_cvt_pk_bf16_f32 %s, %s, %s" % (vr(PP), vr(S0), vr(S0 + 1)))
    a.I("v_cvt_pk_bf16_f32 %s, %s, %s" % (vr(PP + 1), vr(S0 + 2), vr(S0 + 3)))
    if qt == 1:
        a.I("v_cvt_pk_bf16_f32 %s, %s, %s" % (vr(PP + 2), vr(S1), vr(S1 + 1)))
        a.I("v_cvt_pk_bf16_f32 %s, %s, %s" % (vr(PP + 3), vr(S1 + 2), vr(S1 + 3)))
    a.I("v_cvt_pk_bf16_f32 %s, %s, %s" % (vr(PP + 4), vr(Sm), vr(Sm + 1)))
    P, P0 = vr(PP, 4), vr(PP + 4, 4)
    DS = DO + 16
    a.I("v_mfma_f32_16x16x32_bf16 %s, %s, %s, 0" % (vr(DS, 4), vr(ONES, 4), P))
    a.I("v_mfma_f32_16x16x32_bf16 %s, %s, %s, %s" % (vr(DS, 4), vr(ONES, 4), P0, vr(DS, 4)))
    for j in range(4):
        a.I("v_mfma_f32_16x16x32_bf16 %s, %s, %s, 0" % (vr(DO + 4 * j, 4), vr(VO + 4 * j, 4), P))
    for j in range(4):
        a.I("v_mfma_f32_16x16x32_bf16 %s, %s, %s, %s" % (vr(DO + 4 * j, 4), vr(ZQ + 4 * j, 4), P0, vr(DO + 4 * j, 4)))
    a.I("v_rcp_f32 %s, %s" % (vr(tt), vr(DS)))
    for i in range(16):
        a.I("v_mul_f32 %s, %s, %s" % (vr(DO + i), vr(DO + i), vr(tt)))
    for pp in range(2):
        for i in range(4):
            a.I("v_cvt_pk_bf16_f32 %s, %s, %s" % (vr(AO + 4 * pp + i), vr(DO + 8 * pp + 2 * i), vr(DO + 8 * pp + 2 * i + 1)))
        a.I("ds_write_b128 %s, %s offset:%d" % (vr(V_O2W), vr(AO + 4 * pp, 4), 2 * (2 * eh + pp) * 1024))
    a.I("s_waitcnt lgkmcnt(0)")
    a.I("s_barrier")
    for ks in range(8):
        a.I("ds_read_b128 %s, %s offset:%d" % (vr(AO + 4 * ks, 4), vr(V_L16), L_O2 + ks * 1024))
    for ks in range(8):
        a.I("s_waitcnt lgkmcnt(%d)" % (7 - ks))
        for nu in range(4):
            a.I("v_mfma_f32_32x32x16_bf16 %s, %s, %s, %s"
                % (vr(ACC + 16 * nu, 16), vr(AO + 4 * ks, 4), ar(A_WO + (nu * 8 + ks) * 4, 4), "0" if ks == 0 else vr(ACC + 16 * nu, 16)))
    store_partials(a, w, S_WS, s_rank, G_INB1, st)
    signal(a, w, S_WS, s_rank, 0, st)
    wait_flags(a, w, S_WS, 0, abort)
    reduce_rows(a, w, S_WS, s_rank, G_INB1)
    A0, A1 = TT + 8, TT + 9
    x0, x1 = TT + 10, TT + 11
    g0, g1 = TT + 4, TT + 5
    a.I("v_lshlrev_b32 %s, 16, %s" % (vr(x0), vr(TT + 12)))
    a.I("v_and_b32 %s, 0xffff0000, %s" % (vr(x1), vr(TT + 12)))
    a.I("v_accvgpr_read_b32 %s, %s" % (vr(g0), ar(A_GA)))
    a.I("v_accvgpr_read_b32 %s, %s" % (vr(g1), ar(A_GA + 1)))
    for (A_, g_, x_) in ((A0, g0, x0), (A1, g1, x1)):
        rbf(a, A_, A_)
        a.I("v_mul_f32 %s, %s, %s" % (vr(A_), vr(A_), vr(g_)))
        rbf(a, A_, A_)
        a.I("v_add_f32 %s, %s, %s" % (vr(x_), vr(x_), vr(A_)))
        rbf(a, x_, x_)
    a.I("v_accvgpr_write_b32 %s, %s" % (ar(A_X1), vr(x0)))
    a.I("v_accvgpr_write_b32 %s, %s" % (ar(A_X1 + 1), vr(x1)))
    s1_, s2_ = TT + 16, TT + 17
    a.I("v_add_f32 %s, %s, %s" % (vr(s1_), vr(x0), vr(x1)))
    a.I("v_mul_f32 %s, %s, %s" % (vr(s2_), vr(x0), vr(x0)))
    a.I("v_fmac_f32 %s, %s, %s" % (vr(s2_), vr(x1), vr(x1)))
    wave_allreduce_add(a, s1_, TT + 15)
    wave_allreduce_add(a, s2_, TT + 15)
    a.I("v_mov_b32 %s, %d" % (vr(TT + 15), L_ST + w * 8))
    a.I("ds_write_b64 %s, %s" % (vr(TT + 15), vr(s1_, 2)))
    a.I("s_waitcnt lgkmcnt(0)")
    a.I("s_barrier")
    a.I("v_mov_b32 %s, %d" % (vr(TT + 15), L_ST))
    a.I("ds_read_b128 %s, %s" % (vr(DO, 4), vr(TT + 15)))
    a.I("ds_read_b128 %s, %s offset:16" % (vr(DO + 4, 4), vr(TT + 15)))
    a.I("s_waitcnt lgkmcnt(0)")
    a.I("v_add_f32 %s, %s, %s" % (vr(s1_), vr(DO), vr(DO + 2)))
    a.I("v_add_f32 %s, %s, %s" % (vr(s2_), vr(DO + 1), vr(DO + 3)))
    a.I("v_add_f32 %s, %s, %s" % (vr(s1_), vr(s1_), vr(DO + 4)))
    a.I("v_add_f32 %s, %s, %s" % (vr(s2_), vr(s2_), vr(DO + 5)))
    a.I("v_add_f32 %s, %s, %s" % (vr(s1_), vr(s1_), vr(DO + 6)))
    a.I("v_add_f32 %s, %s, %s" % (vr(s2_), vr(s2_), vr(DO + 7)))
    a.I("v_mul_f32 %s, 0x3b000000, %s" % (vr(s1_), vr(s1_)))
    a.I("v_mul_f32 %s, 0x3b000000, %s" % (vr(s2_), vr(s2_)))
    a.I("v_fma_f32 %s, -%s, %s, %s" % (vr(s2_), vr(s1_), vr(s1_), vr(s2_)))
    a.I("v_max_f32 %s, 0, %s" % (vr(s2_), vr(s2_)))
    rbf(a, s1_, s1_)
    rbf(a, s2_, s2_)
    a.I("v_add_f32 %s, 0x3727c5ac, %s" % (vr(s2_), vr(s2_)))
    rbf(a, s2_, s2_)
    a.I("v_sqrt_f32 %s, %s" % (vr(s2_), vr(s2_)))
    rbf(a, s2_, s2_)
    a.I("v_rcp_f32 %s, %s" % (vr(s2_), vr(s2_)))
    a.I("v_accvgpr_read_b32 %s, %s" % (vr(g0), ar(A_CB)))
    a.I("v_accvgpr_read_b32 %s, %s" % (vr(g1), ar(A_CB + 1)))
    a.I("v_accvgpr_read_b32 %s, %s" % (vr(A0), ar(A_SB)))
    a.I("v_accvgpr_read_b32 %s, %s" % (vr(A1), ar(A_SB + 1)))
    for (x_, g_, A_) in ((x0, g0, A0), (x1, g1, A1)):
        a.I("v_sub_f32 %s, %s, %s" % (vr(x_), vr(x_), vr(s1_)))
        a.I("v_mul_f32 %s, %s, %s" % (vr(x_), vr(x_), vr(s2_)))
        a.I("v_fma_f32 %s, %s, %s, %s" % (vr(x_), vr(x_), vr(g_), vr(A_)))
    a.I("v_cvt_pk_bf16_f32 %s, %s, %s" % (vr(x0), vr(x0), vr(x1)))
    a.I("s_add_u32 s%d, s%d, 0x%x" % (S_T, S_GB, G_H2))
    a.I("buffer_store_dword %s, %s, %s, s%d offen %s" % (vr(x0), vr(V_H2W), ws, S_T, st))
    signal(a, w, S_WS, s_rank, 128, st)
    wait_flags(a, w, S_WS, 128, abort)
    a.I("s_add_u32 s%d, s%d, 0x%x" % (S_T, S_GB, G_H2 + w * 8192))
    for p in range(8):
        a.I("s_mov_b32 m0, %d" % (L_H2 + w * 8192 + p * 1024))
        a.I("s_add_u32 s%d, s%d, %d" % (S_T + 1, S_T, p * 1024))
        a.I("buffer_load_dwordx4 %s, %s, s%d offen sc1 lds" % (vr(V_L16), ws, S_T + 1))
    a.I("s_waitcnt vmcnt(0)")
    a.I("s_barrier")
    if w < 3:
        HB = KO
        for T_ in range(2):
            for ks in range(16):
                a.I("ds_read_b128 %s, %s offset:%d" % (vr(HB + 4 * ks, 4), vr(V_L16), L_H2 + (T_ * 16 + ks) * 1024))
            for ks in range(16):
                a.I("s_waitcnt lgkmcnt(%d)" % (15 - ks))
                a.I("v_mfma_f32_16x16x32_bf16 %s, %s, %s, %s"
                    % (vr(DO + 4 * T_, 4), ar(A_W1 + 4 * ks, 4), vr(HB + 4 * ks, 4), "0" if ks == 0 else vr(DO + 4 * T_, 4)))
        for T_ in range(2):
            for r in range(4):
                a.I("v_max_f32 %s, 0, %s" % (vr(DO + 4 * T_ + r), vr(DO + 4 * T_ + r)))
            a.I("v_cvt_pk_bf16_f32 %s, %s, %s" % (vr(DO + 8 + 2 * T_), vr(DO + 4 * T_), vr(DO + 4 * T_ + 1)))
            a.I("v_cvt_pk_bf16_f32 %s, %s, %s" % (vr(DO + 8 + 2 * T_ + 1), vr(DO + 4 * T_ + 2), vr(DO + 4 * T_ + 3)))
            a.I("ds_write_b64 %s, %s offset:%d" % (vr(V_FW), vr(DO + 8 + 2 * T_, 2), T_ * 256))
        a.I("s_waitcnt lgkmcnt(0)")
    a.I("s_barrier")
    for ks in range(3):
        a.I("ds_read_b128 %s, %s offset:%d" % (vr(AO + 4 * ks, 4), vr(V_L16), L_F + ks * 1024))
    for ks in range(3):
        a.I("s_waitcnt lgkmcnt(%d)" % (2 - ks))
        for nu in range(4):
            a.I("v_mfma_f32_32x32x16_bf16 %s, %s, %s, %s"
                % (vr(ACC + 16 * nu, 16), vr(AO + 4 * ks, 4), ar(A_W2 + (nu * 3 + ks) * 4, 4), "0" if ks == 0 else vr(ACC + 16 * nu, 16)))
    store_partials(a, w, S_WS, s_rank, G_INB2, st)
    signal(a, w, S_WS, s_rank, 256, st)
    wait_flags(a, w, S_WS, 256, abort)
    reduce_rows(a, w, S_WS, s_rank, G_INB2)
    a.I("v_accvgpr_read_b32 %s, %s" % (vr(g0), ar(A_GB)))
    a.I("v_accvgpr_read_b32 %s, %s" % (vr(g1), ar(A_GB + 1)))
    a.I("v_accvgpr_read_b32 %s, %s" % (vr(x0), ar(A_X1)))
    a.I("v_accvgpr_read_b32 %s, %s" % (vr(x1), ar(A_X1 + 1)))
    for (A_, g_, x_) in ((A0, g0, x0), (A1, g1, x1)):
        rbf(a, A_, A_)
        a.I("v_mul_f32 %s, %s, %s" % (vr(A_), vr(A_), vr(g_)))
        rbf(a, A_, A_)
        a.I("v_add_f32 %s, %s, %s" % (vr(x_), vr(x_), vr(A_)))
    a.I("v_cvt_pk_bf16_f32 %s, %s, %s" % (vr(x0), vr(x0), vr(x1)))
    a.I("s_lshl_b32 s%d, s%d, 5" % (S_T, S_SEG))
    a.I("s_add_u32 s%d, s%d, s%d" % (S_T, S_T, s_rank))
    a.I("s_lshl_b32 s%d, s%d, 10" % (S_T, S_T))
    a.I("buffer_store_dword %s, %s, %s, s%d offen" % (vr(x0), vr(V_TID2), os_, S_T))
    a.I("s_add_u32 s%d, s%d, %d" % (S_SEG, S_SEG, stride))
    a.I("s_add_u32 s%d, s%d, 1" % (S_IT, S_IT))
    a.I("s_branch %s" % Lp)
    a.label(Le, clear=True)
    a.I("s_waitcnt vmcnt(0)")


def build_tail_kernel(a, name="tail_kernel"):
    a.raw(".p2align 8")
    a.raw(".globl %s" % name)
    a.raw(".type %s,@function" % name)
    a.label(name, clear=True)
    a.I("s_cmp_ge_u32 s2, 256")
    a.I("s_cbranch_scc1 L_exit_%s" % name)
    a.I("s_load_dwordx2 s[20:21], s[0:1], %d" % K_X)
    a.I("s_load_dwordx2 s[22:23], s[0:1], %d" % K_WO)
    a.I("s_load_dwordx4 s[24:27], s[0:1], %d" % K_W1)
    a.I("s_load_dwordx4 s[28:31], s[0:1], %d" % K_OUT)
    a.I("s_load_dwordx2 s[32:33], s[0:1], %d" % K_WS)
    a.I("v_and_b32 %s, 63, v0" % vr(V_LANE))
    a.I("v_lshrrev_b32 v1, 6, v0")
    a.I("s_nop 0")
    a.I("v_readfirstlane_b32 s34, v1")
    a.I("s_getreg_b32 s35, hwreg(HW_REG_XCC_ID, 0, 4)")
    a.I("s_waitcnt lgkmcnt(0)")
    srd(a, 8, 32, WS_SIZE)
    srd(a, 4, 30, 256)
    a.I("s_cmp_lg_u32 s34, 0")
    a.I("s_cbranch_scc1 L_tel_wait")
    a.I("s_mov_b64 exec, 1")
    a.I("v_mov_b32 v14, 1")
    a.I("s_lshl_b32 s40, s35, 2")
    a.I("v_mov_b32 v15, s40")
    a.I("buffer_atomic_add v14, v15, s[4:7], 0 offen sc0")
    a.I("v_mov_b32 v15, 65536")
    a.I("s_waitcnt vmcnt(0)")
    a.I("ds_write_b32 v15, v14")
    a.I("s_mov_b64 exec, -1")
    a.label("L_tel_wait")
    a.I("s_waitcnt lgkmcnt(0)")
    a.I("s_barrier")
    a.I("v_mov_b32 v15, 65536")
    a.I("ds_read_b32 v14, v15")
    a.I("s_waitcnt lgkmcnt(0)")
    a.I("v_readfirstlane_b32 s68, v14")
    a.I("s_barrier")
    a.I("s_cmp_ge_u32 s68, 32")
    a.I("s_cbranch_scc1 L_exit_%s" % name)
    for w in range(1, 4):
        a.I("s_cmp_eq_u32 s34, %d" % w)
        a.I("s_cbranch_scc1 L_tw%d" % w)
    for w in range(4):
        a.label("L_tw%d" % w, clear=True)
        tail_setup(a, w, 8, 12, 68, 35, 22, 24, 26)
        a.I("s_mov_b32 s%d, s35" % S_SEG)
        a.I("s_mov_b32 s%d, 0" % S_IT)
        tail_loop(a, w, 8, 12, 16, 68, 20, 28, 8, abort="L_tabort")
        a.I("s_endpgm")
    a.label("L_tabort", clear=True)
    a.I("s_mov_b64 exec, 1")
    a.I("v_mov_b32 v14, 0x77")
    a.I("v_mov_b32 v15, 200")
    a.I("buffer_store_dword v14, v15, s[4:7], 0 offen")
    a.I("s_waitcnt vmcnt(0)")
    a.label("L_exit_%s" % name)
    a.I("s_endpgm")
```

```python
import sys
from common import *
import pre, front, tail, chain
import gen_chain_test as G
from chain import *

def zero_flags_kernel_part(a):
    pass

def build(**kw):
    a = Asm()
    a.raw("; @launch kernel=mod_kernel grid=(48,1,1) block=(256,1,1) lds=4096")
    a.raw("; @launch kernel=ln_kernel grid=(64,1,1) block=(256,1,1) lds=0")
    a.raw("; @launch kernel=front_kernel grid=(192,1,1) block=(256,1,1) lds=131072")
    a.raw("; @launch kernel=chain_kernel grid=(256,1,1) block=(256,1,1) lds=163840")
    a.raw("; @launch kernel=tail_kernel grid=(256,1,1) block=(256,1,1) lds=131072")
    a.raw('.amdgcn_target "amdgcn-amd-amdhsa--gfx950"')
    a.raw(".text")
    pre.build_pre_kernels(a, zero_tail_flags=True)
    front.build_front_kernel(a)
    a.raw(".p2align 8")
    a.raw(".globl chain_kernel")
    a.raw(".type chain_kernel,@function")
    a.label("chain_kernel", clear=True)
    G.entry(a)
    for w in range(4):
        a.label("L_wave%d" % w, clear=True)
        lane_consts(a, w)
        init_buffers(a, w)
        G.arrive(a, w)
        load_weights(a, w)
        loop_setup(a, w)
        G.wait_arrival(a, w)
        chain_loop(a, w, timing=False, looptime=False, exp="latepois", **kw)
        a.I("s_endpgm")
    a.label("L_abort", clear=True)
    a.label("L_exit")
    a.I("s_endpgm")
    tail.build_tail_kernel(a)
    txt = a.text() + kd("mod_kernel", 256, 102, 256) + kd("ln_kernel", 256, 102, 256) + kd("front_kernel", 256, 102, 128) + kd("chain_kernel") + kd("tail_kernel")
    return txt

if __name__ == "__main__":
    open(sys.argv[1], "w").write(build(gap=36, rgap=36, delay=24, rdelay=48))
```

```python
from asmlib import Asm, vr, ar, sr

WS_MOD = 0x00000000
WS_FLAGS = 0x00010000
FL_MOD = WS_FLAGS + 0x0000
FL_H = WS_FLAGS + 0x0100
FL_PROG = WS_FLAGS + 0x0400
FL_TAIL = WS_FLAGS + 0x1000
WS_MEM = 0x00100000
WS_PART = 0x00200000
WS_H = 0x00400000
WS_KT = 0x00800000
WS_VT = 0x01800000
WS_QT = 0x02800000
WS_KM = 0x03800000
WS_VM = 0x03C00000
WS_TAIL = 0x04000000
WS_SIZE = 0x10000000
OOB = 0x40000000

L_WO = 0
L_K = 131072
L_M = 147456
L_MB = L_M + 4096
L_O = L_MB + 8192
O_OFF = L_O - L_M
L_SEL = L_O + 512
L_BC = L_O + 2048 + 512

S_WS = 8
S_W = 12
S_DBG = 16
S_WAVE = 20
S_RANK = 21
S_STEP = 22
S_MEM = 23
S_MEMHI = 24
S_PW0 = 25
S_PW1 = 26
S_PR = 27
S_PRHI = 28
S_KT = 29
S_VT = 30
S_KM = 31
S_HI = 32
S_C = 34
S_NC = 35
S_RETRY = 36
S_VM = 37
S_T0 = 38
S_POIS = 46
S_POISHI = 47
S_PWB = 96
S_PRB = 97
S_RING = 98
S_ONE = 100
S_SEL = 99
S_TAG = 96
S_HZ = 97
S_PG = 98
S_CP = 47
S_PTR = 48
S_TM = 64

V_VW = 0
V_MEM = 128
V_ACC = 160
V_KT = 184
V_S = 216
V_VT = 228
V_PX = 236
V_IDX = 246
V_L16 = 247
V_L16W = 248
V_K = 249
V_PS = 250
V_MS = 251
V_MW = 252
V_MR = 253
V_KM = 254
V_T = 255
V_Z = V_PX + 8

RETRY_MAX = 400000
ROT = True


def wacc(t):
    return V_ACC + 4 * t if t < 6 else V_VT + 4 * (t - 6)


class Timer:
    def __init__(self, a, on, trace=None):
        self.a = a
        self.on = on
        self.trace = trace

    def start(self):
        if not self.on:
            return
        a = self.a
        for i in range(16):
            a.I("s_mov_b32 s%d, 0" % (S_TM + 4 + i))
        a.I("s_memtime s[%d:%d]" % (S_TM, S_TM + 1))
        a.I("s_waitcnt lgkmcnt(0)")

    def stamp(self, idx):
        if self.trace is not None:
            a = self.a
            l = a.newlabel("tr")
            a.I("s_cmp_lg_u32 s%d, %d" % (S_STEP, self.trace + (1 if idx in (14, 13, 7, 8) else 0)))
            a.I("s_cbranch_scc1 %s" % l)
            a.I("s_memrealtime s[%d:%d]" % (S_TM + 2, S_TM + 3))
            a.I("s_waitcnt lgkmcnt(0)")
            a.I("s_mov_b32 s%d, s%d" % (S_TM + 4 + idx, S_TM + 2))
            a.label(l)
            return
        if not self.on:
            return
        a = self.a
        a.I("s_memtime s[%d:%d]" % (S_TM + 2, S_TM + 3))
        a.I("s_waitcnt lgkmcnt(0)")
        a.I("s_sub_u32 s%d, s%d, s%d" % (S_T0 + 7, S_TM + 2, S_TM))
        a.I("s_add_u32 s%d, s%d, s%d" % (S_TM + 4 + idx, S_TM + 4 + idx, S_T0 + 7))
        a.I("s_mov_b32 s%d, s%d" % (S_TM, S_TM + 2))


def lane_consts(a, w):
    T = V_MEM
    lane = V_T
    a.I("v_lshlrev_b32 %s, 4, %s" % (vr(V_L16), vr(lane)))
    a.I("v_add_u32 %s, %d, %s" % (vr(V_L16W), L_WO + w * 32768, vr(V_L16)))
    a.I("v_add_u32 %s, %d, %s" % (vr(V_K), L_K, vr(V_L16)))
    a.I("v_and_b32 %s, 15, %s" % (vr(T), vr(lane)))
    a.I("v_lshrrev_b32 %s, 4, %s" % (vr(T + 1), vr(lane)))
    a.I("v_mov_b32 %s, 0x4444" % vr(V_IDX))
    a.I("v_mov_b32 %s, 0xeeee" % vr(T + 2))
    a.I("v_and_b32 %s, 2, %s" % (vr(T + 3), vr(T)))
    a.I("v_cmp_ne_u32 vcc, 0, %s" % vr(T + 3))
    a.I("v_cndmask_b32 %s, %s, %s, vcc" % (vr(V_IDX), vr(V_IDX), vr(T + 2)))
    a.I("v_lshlrev_b32 %s, 13, %s" % (vr(T + 2), vr(T + 1)))
    a.I("v_lshrrev_b32 %s, 2, %s" % (vr(T + 3), vr(T)))
    a.I("v_lshl_add_u32 %s, %s, 11, %s" % (vr(T + 2), vr(T + 3), vr(T + 2)))
    a.I("v_lshlrev_b32 %s, 1, %s" % (vr(T + 3), vr(T + 3)))
    a.I("v_lshl_add_u32 %s, %s, 3, %s" % (vr(T + 3), vr(T + 1), vr(T + 3)))
    if ROT:
        a.I("v_add_u32 %s, s%d, %s" % (vr(T + 3), S_RANK, vr(T + 3)))
    else:
        a.I("v_mov_b32 %s, s%d" % (vr(T + 3), S_RANK))
    a.I("v_and_b32 %s, 31, %s" % (vr(T + 3), vr(T + 3)))
    a.I("v_lshl_add_u32 %s, %s, 6, %s" % (vr(T + 2), vr(T + 3), vr(T + 2)))
    a.I("v_and_b32 %s, 3, %s" % (vr(T + 3), vr(T)))
    a.I("v_lshl_add_u32 %s, %s, 4, %s" % (vr(V_PS), vr(T + 3), vr(T + 2)))
    a.I("v_lshrrev_b32 %s, 2, %s" % (vr(T + 2), vr(T)))
    a.I("v_xor_b32 %s, %s, %s" % (vr(T + 2), vr(T + 2), vr(T + 1)))
    a.I("v_lshlrev_b32 %s, 3, %s" % (vr(T + 2), vr(T + 2)))
    a.I("v_lshl_add_u32 %s, %s, 5, %s" % (vr(T + 2), vr(T), vr(T + 2)))
    a.I("v_add_u32 %s, %d, %s" % (vr(V_MW), L_M + 1024 * w, vr(T + 2)))
    a.I("v_lshrrev_b32 %s, 2, %s" % (vr(T + 2), vr(T)))
    a.I("v_lshl_add_u32 %s, %s, 2, %s" % (vr(T + 2), vr(T + 1), vr(T + 2)))
    a.I("v_and_b32 %s, 3, %s" % (vr(T + 3), vr(T)))
    a.I("v_xor_b32 %s, %s, %s" % (vr(T + 3), vr(T + 3), vr(T + 1)))
    a.I("v_lshlrev_b32 %s, 3, %s" % (vr(T + 3), vr(T + 3)))
    a.I("v_lshl_add_u32 %s, %s, 5, %s" % (vr(T + 2), vr(T + 2), vr(T + 3)))
    a.I("v_add_u32 %s, %d, %s" % (vr(V_MR), L_M, vr(T + 2)))
    a.I("v_lshrrev_b32 %s, 2, %s" % (vr(T + 2), vr(T)))
    a.I("v_and_b32 %s, 1, %s" % (vr(T + 3), vr(T)))
    a.I("v_lshl_add_u32 %s, %s, 1, %s" % (vr(T + 2), vr(T + 2), vr(T + 3)))
    a.I("v_lshl_add_u32 %s, %s, 3, %s" % (vr(T + 2), vr(T + 1), vr(T + 2)))
    a.I("v_lshlrev_b32 %s, 4, %s" % (vr(T + 2), vr(T + 2)))
    a.I("v_mov_b32 %s, 0x%x" % (vr(T + 4), OOB))
    a.I("v_and_b32 %s, 2, %s" % (vr(T + 3), vr(T)))
    a.I("v_cmp_ne_u32 vcc, 0, %s" % vr(T + 3))
    a.I("v_cndmask_b32 %s, %s, %s, vcc" % (vr(V_KM), vr(T + 2), vr(T + 4)))
    s0, s1, s2 = S_T0, S_T0 + 1, S_T0 + 2
    a.I("s_lshr_b32 s%d, s%d, 3" % (s0, S_RANK))
    a.I("s_bfe_u32 s%d, s%d, 0x10002" % (s1, S_RANK))
    a.I("s_lshl_b32 s%d, s%d, 2" % (s1, s1))
    a.I("s_add_u32 s%d, s%d, s%d" % (s0, s0, s1))
    a.I("s_lshl_b32 s%d, s%d, 10" % (s0, s0))
    a.I("s_and_b32 s%d, s%d, 3" % (s1, S_RANK))
    a.I("s_lshl_b32 s%d, s%d, 6" % (s1, s1))
    a.I("s_add_u32 s%d, s%d, s%d" % (s0, s0, s1))
    a.I("s_add_u32 s%d, s%d, %d" % (s0, s0, w * 256))
    a.I("v_and_b32 %s, 3, %s" % (vr(T + 2), vr(T)))
    a.I("v_lshlrev_b32 %s, 4, %s" % (vr(T + 2), vr(T + 2)))
    a.I("v_lshrrev_b32 %s, 2, %s" % (vr(T + 3), vr(T)))
    a.I("v_lshl_add_u32 %s, %s, 3, %s" % (vr(T + 2), vr(T + 3), vr(T + 2)))
    a.I("v_lshrrev_b32 %s, 1, %s" % (vr(T + 3), vr(T + 1)))
    a.I("v_lshl_add_u32 %s, %s, 2, %s" % (vr(T + 2), vr(T + 3), vr(T + 2)))
    a.I("v_add_u32 %s, s%d, %s" % (vr(T + 2), s0, vr(T + 2)))
    a.I("v_and_b32 %s, 24, %s" % (vr(T + 3), vr(lane)))
    a.I("v_mov_b32 %s, 0x%x" % (vr(V_MS), OOB))
    a.I("v_cmp_eq_u32 vcc, 0, %s" % vr(T + 3))
    a.I("v_cndmask_b32 %s, %s, %s, vcc" % (vr(V_MS), vr(V_MS), vr(T + 2)))


def sel_addr(a, dst, tmp):
    a.I("v_lshrrev_b32 %s, 9, %s" % (vr(tmp), vr(V_L16)))
    a.I("v_mul_u32_u24 %s, 512, %s" % (vr(tmp), vr(tmp)))
    a.I("v_add3_u32 %s, %s, %s, s%d" % (vr(dst), vr(V_L16), vr(tmp), S_SEL))


def init_buffers(a, w, st_flags=""):
    T = V_MEM
    lane = V_T
    P = V_MEM + 8
    a.I("s_mov_b32 s%d, %d" % (S_SEL, L_SEL))
    for i in range(4):
        a.I("v_mov_b32 %s, -1" % vr(P + i))
    if True:
        s0, s1 = S_T0, S_T0 + 1
        a.I("v_and_b32 %s, 15, %s" % (vr(T), vr(lane)))
        a.I("v_lshrrev_b32 %s, 4, %s" % (vr(T + 1), vr(lane)))
        a.I("s_and_b32 s%d, s%d, 3" % (s0, S_RANK))
        a.I("s_lshl_b32 s%d, s%d, 11" % (s0, s0))
        a.I("s_lshr_b32 s%d, s%d, 2" % (s1, S_RANK))
        a.I("s_lshl_b32 s%d, s%d, 7" % (s1, s1))
        a.I("s_add_u32 s%d, s%d, s%d" % (s0, s0, s1))
        a.I("s_add_u32 s%d, s%d, %d" % (s0, s0, w * 8))
        a.I("v_and_b32 %s, 1, %s" % (vr(T + 2), vr(T)))
        a.I("v_lshlrev_b32 %s, 10, %s" % (vr(T + 2), vr(T + 2)))
        a.I("v_bfe_u32 %s, %s, 1, 2" % (vr(T + 3), vr(T)))
        a.I("v_lshl_add_u32 %s, %s, 5, %s" % (vr(T + 2), vr(T + 3), vr(T + 2)))
        a.I("v_lshrrev_b32 %s, 1, %s" % (vr(T + 3), vr(T + 1)))
        a.I("v_lshl_add_u32 %s, %s, 2, %s" % (vr(T + 2), vr(T + 3), vr(T + 2)))
        a.I("v_add_u32 %s, s%d, %s" % (vr(T + 2), s0, vr(T + 2)))
        a.I("s_mov_b32 s%d, s%d" % (S_W, S_PTR + 0))
        a.I("s_mov_b32 s%d, s%d" % (S_W + 1, S_PTR + 1))
        a.I("s_mov_b32 s%d, 8192" % (S_W + 2))
        a.I("buffer_load_dword %s, %s, s[%d:%d], 0 offen" % (vr(T + 4), vr(T + 2), S_W, S_W + 3))
        a.I("s_mov_b32 s%d, 0x%x" % (s0, WS_MEM))
        a.I("s_waitcnt vmcnt(0)")
        a.I("v_min_u32 %s, 0xfffffffe, %s" % (vr(T + 4), vr(T + 4)))
        a.I("buffer_store_dword %s, %s, s[%d:%d], s%d offen %s" % (vr(T + 4), vr(V_MS), S_WS, S_WS + 3, s0, st_flags))
        for i in range(3):
            a.I("s_add_u32 s%d, s%d, 8192" % (s0, s0))
            a.I("buffer_store_dword %s, %s, s[%d:%d], s%d offen %s" % (vr(P), vr(V_MS), S_WS, S_WS + 3, s0, st_flags))
        for ring in range(2):
            a.I("s_lshl_b32 s%d, s%d, 13" % (s0, S_RANK))
            a.I("s_add_u32 s%d, s%d, 0x%x" % (s0, s0, WS_PART + ring * 262144 + w * 2048))
            for m in range(2):
                a.I("buffer_store_dwordx4 %s, %s, s[%d:%d], s%d offen offset:%d %s"
                    % (vr(P, 4), vr(V_L16), S_WS, S_WS + 3, s0, m * 1024, st_flags))
    if w == 0:
        a.I("v_and_b32 %s, 1, %s" % (vr(T + 2), vr(T)))
        a.I("v_lshlrev_b32 %s, 4, %s" % (vr(T + 2), vr(T + 2)))
        a.I("v_mov_b32 %s, 0x3f80" % vr(T + 3))
        a.I("v_lshlrev_b32 %s, %s, %s" % (vr(T + 3), vr(T + 2), vr(T + 3)))
        a.I("v_lshrrev_b32 %s, 1, %s" % (vr(T + 2), vr(T)))
        for m in range(4):
            a.I("v_cmp_eq_u32 vcc, %d, %s" % (m, vr(T + 2)))
            a.I("v_cndmask_b32 %s, 0, %s, vcc" % (vr(T + 4 + m), vr(T + 3)))
        sel_addr(a, T + 2, T + 3)
        a.I("ds_write_b128 %s, %s" % (vr(T + 2), vr(T + 4, 4)))


def load_weights(a, w):
    lane = V_T
    T = V_MEM
    VO = V_MEM + 8
    TA = V_MEM + 12
    base = L_WO + w * 32768
    so = S_T0
    a.I("v_lshrrev_b32 %s, 2, %s" % (vr(T), vr(lane)))
    a.I("v_and_b32 %s, 3, %s" % (vr(T + 1), vr(lane)))
    a.I("s_lshl_b32 s%d, s%d, 8" % (so, S_RANK))
    a.I("s_add_u32 s%d, s%d, %d" % (so, so, w * 64))
    for v in range(4):
        a.I("v_xor_b32 %s, %d, %s" % (vr(T + 2), 2 * ((v >> 1) & 1), vr(T)))
        a.I("v_lshlrev_b32 %s, 13, %s" % (vr(T + 2), vr(T + 2)))
        a.I("v_xor_b32 %s, %d, %s" % (vr(T + 3), 2 * (v & 1), vr(T + 1)))
        a.I("v_lshl_add_u32 %s, %s, 4, %s" % (vr(T + 2), vr(T + 3), vr(T + 2)))
        a.I("v_add_u32 %s, s%d, %s" % (vr(VO + v), so, vr(T + 2)))
    gb, r, c = T, T + 1, T + 2
    a.I("v_lshrrev_b32 %s, 4, %s" % (vr(gb), vr(lane)))
    a.I("v_bfe_u32 %s, %s, 2, 2" % (vr(r), vr(lane)))
    a.I("v_and_b32 %s, 3, %s" % (vr(c), vr(lane)))
    t4, t5, t6, t7 = T + 3, T + 4, T + 5, T + 6
    for qb in range(2):
        for tau in range(2):
            a.I("v_and_b32 %s, 1, %s" % (vr(t4), vr(gb)))
            a.I("v_lshlrev_b32 %s, 5, %s" % (vr(t5), vr(t4)))
            a.I("v_xor_b32 %s, %d, %s" % (vr(t4), qb, vr(t4)))
            a.I("v_lshl_add_u32 %s, %s, 1, %s" % (vr(t5), vr(t4), vr(t5)))
            a.I("v_lshrrev_b32 %s, 1, %s" % (vr(t4), vr(gb)))
            a.I("v_lshl_add_u32 %s, %s, 2, %s" % (vr(t5), vr(t4), vr(t5)))
            a.I("v_and_b32 %s, 1, %s" % (vr(t4), vr(r)))
            a.I("v_add_u32 %s, %s, %s" % (vr(t5), vr(t4), vr(t5)))
            a.I("v_lshrrev_b32 %s, 1, %s" % (vr(t4), vr(r)))
            a.I("v_lshl_add_u32 %s, %s, 4, %s" % (vr(t5), vr(t4), vr(t5)))
            a.I("v_lshlrev_b32 %s, 6, %s" % (vr(t5), vr(t5)))
            a.I("v_xor_b32 %s, %d, %s" % (vr(t4), tau, vr(t4)))
            a.I("v_lshlrev_b32 %s, 1, %s" % (vr(t4), vr(t4)))
            a.I("v_lshrrev_b32 %s, 1, %s" % (vr(t6), vr(c)))
            a.I("v_add_u32 %s, %s, %s" % (vr(t4), vr(t4), vr(t6)))
            a.I("v_lshl_add_u32 %s, %s, 4, %s" % (vr(t5), vr(t4), vr(t5)))
            a.I("v_and_b32 %s, 1, %s" % (vr(t6), vr(c)))
            a.I("v_lshl_add_u32 %s, %s, 3, %s" % (vr(t5), vr(t6), vr(t5)))
            a.I("v_add_u32 %s, %d, %s" % (vr(TA + 2 * qb + tau), base, vr(t5)))

    def set_srd(ptr, nbytes):
        a.I("s_mov_b32 s%d, s%d" % (S_W, ptr))
        a.I("s_mov_b32 s%d, s%d" % (S_W + 1, ptr + 1))
        a.I("s_mov_b32 s%d, 0x%x" % (S_W + 2, nbytes))

    def dma_qkv(half):
        for i in range(16 * half, 16 * half + 16):
            a.I("s_mov_b32 m0, %d" % (base + i * 1024))
            a.I("s_mov_b32 s%d, 0x%x" % (so, i * 131072))
            a.I("buffer_load_dwordx4 %s, s[%d:%d], s%d offen lds" % (vr(VO + (i & 3)), S_W, S_W + 3, so))

    def tr_qkv(half, dst):
        for kappa in range(8):
            B = 128 * (kappa & 3) + 64 * (kappa >> 2)
            if (B >= 256) != (half == 1):
                continue
            for tau in range(2):
                for q in range(4):
                    off = (B + 8 * (q >> 1)) * 64
                    a.I("ds_read_b64_tr_b16 %s, %s offset:%d" % (dst(tau, kappa, q), vr(TA + 2 * (q & 1) + tau), off))

    dsts = [
        lambda tau, kappa, q: ar((0 + tau) * 64 + kappa * 8 + 2 * q, 2),
        lambda tau, kappa, q: ar((2 + tau) * 64 + kappa * 8 + 2 * q, 2),
        lambda tau, kappa, q: vr(V_VW + tau * 64 + kappa * 8 + 2 * q, 2),
    ]
    ptrs = [S_PTR + 2, S_PTR + 4, S_PTR + 6]
    WOV = V_MEM + 16
    a.I("v_lshrrev_b32 %s, 4, %s" % (vr(T), vr(lane)))
    a.I("v_and_b32 %s, 15, %s" % (vr(T + 1), vr(lane)))
    a.I("s_lshl_b32 s%d, s%d, 17" % (so, S_RANK))
    a.I("s_add_u32 s%d, s%d, %d" % (so, so, w * 256))
    for u in range(4):
        a.I("v_and_b32 %s, 1, %s" % (vr(T + 2), vr(T)))
        a.I("v_add_u32 %s, %d, %s" % (vr(T + 2), 2 * u, vr(T + 2)))
        a.I("v_lshlrev_b32 %s, 1, %s" % (vr(T + 2), vr(T + 2)))
        a.I("v_xor_b32 %s, %s, %s" % (vr(T + 2), vr(T + 2), vr(T + 1)))
        a.I("v_lshlrev_b32 %s, 4, %s" % (vr(T + 2), vr(T + 2)))
        a.I("v_lshl_add_u32 %s, %s, 10, %s" % (vr(T + 2), vr(T), vr(T + 2)))
        a.I("v_add_u32 %s, s%d, %s" % (vr(WOV + u), so, vr(T + 2)))

    def dma_wo(half):
        for i in range(16 * half, 16 * half + 16):
            u = ((i >> 2) & 1) + 2 * ((i >> 3) & 1)
            a.I("s_mov_b32 m0, %d" % (base + i * 1024))
            a.I("s_mov_b32 s%d, 0x%x" % (so, i * 4096))
            a.I("buffer_load_dwordx4 %s, s[%d:%d], s%d offen lds" % (vr(WOV + u), S_W, S_W + 3, so))

    set_srd(ptrs[0], 0x400000)
    dma_qkv(0)
    dma_qkv(1)
    for mi in range(3):
        a.I("s_waitcnt vmcnt(16)")
        tr_qkv(0, dsts[mi])
        a.I("s_waitcnt lgkmcnt(0)")
        if mi < 2:
            set_srd(ptrs[mi + 1], 0x400000)
            dma_qkv(0)
        else:
            set_srd(S_PTR + 8, 0x400000)
            dma_wo(0)
        a.I("s_waitcnt vmcnt(16)")
        tr_qkv(1, dsts[mi])
        a.I("s_waitcnt lgkmcnt(0)")
        if mi < 2:
            dma_qkv(1)
        else:
            dma_wo(1)
    WA = V_MEM + 20
    a.I("v_lshrrev_b32 %s, 4, %s" % (vr(gb), vr(lane)))
    a.I("v_bfe_u32 %s, %s, 2, 2" % (vr(r), vr(lane)))
    a.I("v_and_b32 %s, 3, %s" % (vr(c), vr(lane)))
    a.I("v_and_b32 %s, 1, %s" % (vr(t4), vr(gb)))
    a.I("v_lshl_add_u32 %s, %s, 2, %s" % (vr(t7), vr(t4), vr(r)))
    a.I("v_lshlrev_b32 %s, 5, %s" % (vr(t5), vr(t4)))
    a.I("v_lshrrev_b32 %s, 1, %s" % (vr(t4), vr(gb)))
    a.I("v_lshl_add_u32 %s, %s, 2, %s" % (vr(t5), vr(t4), vr(t5)))
    a.I("v_and_b32 %s, 1, %s" % (vr(t4), vr(r)))
    a.I("v_add_u32 %s, %s, %s" % (vr(t5), vr(t4), vr(t5)))
    a.I("v_lshrrev_b32 %s, 1, %s" % (vr(t4), vr(r)))
    a.I("v_lshl_add_u32 %s, %s, 4, %s" % (vr(t5), vr(t4), vr(t5)))
    a.I("v_lshlrev_b32 %s, 8, %s" % (vr(t5), vr(t5)))
    a.I("v_lshrrev_b32 %s, 1, %s" % (vr(t4), vr(c)))
    a.I("v_lshl_add_u32 %s, %s, 4, %s" % (vr(t5), vr(t4), vr(t5)))
    a.I("v_and_b32 %s, 1, %s" % (vr(t4), vr(c)))
    a.I("v_lshl_add_u32 %s, %s, 3, %s" % (vr(t5), vr(t4), vr(t5)))
    a.I("v_add_u32 %s, %d, %s" % (vr(t5), base, vr(t5)))
    for tau in range(8):
        a.I("v_xor_b32 %s, %d, %s" % (vr(t4), tau, vr(t7)))
        a.I("v_lshl_add_u32 %s, %s, 5, %s" % (vr(WA + tau), vr(t4), vr(t5)))
    ST = V_MEM + 32
    for xi in range(2):
        a.I("s_waitcnt vmcnt(%d)" % (16 if xi == 0 else 0))
        for tau in range(8):
            for q in range(4):
                off = (64 * xi + 8 * (q >> 1) + 2 * (q & 1)) * 256
                a.I("ds_read_b64_tr_b16 %s, %s offset:%d" % (vr(ST + tau * 8 + 2 * q, 2), vr(WA + tau), off))
        a.I("s_waitcnt lgkmcnt(0)")
        for tau in range(8):
            for hf in range(2):
                a.I("ds_write_b128 %s, %s offset:%d"
                    % (vr(V_L16W), vr(ST + tau * 8 + 4 * hf, 4), xi * 16384 + tau * 2048 + hf * 1024))
        a.I("s_waitcnt lgkmcnt(0)")


def wo_img_off(tau, xi, hf):
    return xi * 16384 + tau * 2048 + hf * 1024


def weave(a, main, fill, every=1, start=0):
    fill = list(fill)
    for i, m in enumerate(main):
        a.I(m)
        if i >= start:
            for _ in range(every):
                if fill:
                    a.I(fill.pop(0))
    for f in fill:
        a.I(f)


def check_insts(regs, tmp):
    regs = list(regs)
    if len(regs) == 2:
        L = ["v_max_u32 %s, %s, %s" % (vr(tmp), vr(regs[0]), vr(regs[1]))]
        rest = []
    else:
        L = ["v_max3_u32 %s, %s, %s, %s" % (vr(tmp), vr(regs[0]), vr(regs[1]), vr(regs[2]))]
        rest = regs[3:]
    while len(rest) >= 2:
        L.append("v_max3_u32 %s, %s, %s, %s" % (vr(tmp), vr(tmp), vr(rest[0]), vr(rest[1])))
        rest = rest[2:]
    if rest:
        L.append("v_max_u32 %s, %s, %s" % (vr(tmp), vr(tmp), vr(rest[0])))
    L.append("v_cmp_eq_u32 vcc, -1, %s" % vr(tmp))
    return L


def dump(a, w, base, n, slot=0):
    a.nops(12)
    a.I("s_lshl_b32 s%d, s%d, 16" % (S_T0, S_RANK))
    a.I("s_add_u32 s%d, s%d, 0x%x" % (S_T0, S_T0, 0x5000000 + w * 16384 + ((slot * 256) & ~4095)))
    a.I("v_lshrrev_b32 %s, 2, %s" % (vr(V_T), vr(V_L16)))
    for i in range(n):
        a.I("buffer_store_dword %s, %s, s[%d:%d], s%d offen offset:%d" % (vr(base + i), vr(V_T), S_WS, S_WS + 3, S_T0, ((slot + i) * 256) & 4095))
        if ((slot + i + 1) * 256) & 4095 == 0:
            a.I("s_add_u32 s%d, s%d, 4096" % (S_T0, S_T0))
    a.I("s_waitcnt vmcnt(0)")


def horizon_refresh(a, s_need, abort):
    ws = "s[%d:%d]" % (S_WS, S_WS + 3)
    Lq = a.newlabel("hq")
    Lx = a.newlabel("hx")
    a.I("s_cmp_ge_u32 s%d, 64" % s_need)
    a.I("s_cbranch_scc1 %s" % Lx)
    a.I("s_mov_b32 s%d, %d" % (S_RETRY, RETRY_MAX * 4))
    a.label(Lq)
    a.I("buffer_load_dwordx4 %s, %s, %s, s%d offen offset:8 sc1" % (vr(V_S, 4), vr(V_Z), ws, S_PG))
    a.I("s_sub_u32 s%d, s%d, 1" % (S_RETRY, S_RETRY))
    a.I("s_cmp_eq_u32 s%d, 0" % S_RETRY)
    a.I("s_cbranch_scc1 %s" % abort)
    a.I("s_waitcnt vmcnt(0)")
    a.I("v_min_u32 %s, %s, %s" % (vr(V_S), vr(V_S), vr(V_S + 2)))
    a.I("v_min_u32 %s, %s, %s" % (vr(V_S + 1), vr(V_S + 1), vr(V_S + 3)))
    a.I("v_lshlrev_b32 %s, 1, %s" % (vr(V_S), vr(V_S)))
    a.I("v_lshl_add_u32 %s, %s, 1, 1" % (vr(V_S + 1), vr(V_S + 1)))
    a.I("v_min_u32 %s, %s, %s" % (vr(V_S), vr(V_S), vr(V_S + 1)))
    a.I("v_readfirstlane_b32 s%d, %s" % (S_HZ, vr(V_S)))
    a.I("s_cmp_lt_u32 s%d, s%d" % (s_need, S_HZ))
    a.I("s_cbranch_scc0 %s" % Lq)
    a.label(Lx)


def retry_block(a, label, target, abort):
    a.label(label)
    a.I("s_sub_u32 s%d, s%d, 1" % (S_RETRY, S_RETRY))
    a.I("s_cmp_lg_u32 s%d, 0" % S_RETRY)
    a.I("s_cbranch_scc1 %s" % target)
    a.I("s_branch %s" % abort)


def chain_loop(a, w, st_flags="", timing=False, abort="L_abort", stop_after=None, dbg=None,
               delay=0, exp="", rdelay=0, hooks=None, kvflags="sc1 nt", gap=24, rgap=24, trace=None, looptime=True, fused=False):
    tm = Timer(a, timing, trace)
    ws = "s[%d:%d]" % (S_WS, S_WS + 3)
    MEM, ACC, KT, S, VT, PX = V_MEM, V_ACC, V_KT, V_S, V_VT, V_PX
    q = [ACC, ACC + 8]
    k = [ACC + 4, ACC + 12]
    v = [ACC + 16, ACC + 20]
    L_step = "L_step_w%d" % w
    L_done = "L_done_w%d" % w
    ool = []
    cool = []
    hzl = []

    def smf(acc, A, B):
        return "v_smfmac_f32_16x16x64_bf16 %s, %s, %s, %s" % (vr(acc, 4), A, B, vr(V_IDX))

    def mem_load(kap):
        return ("buffer_load_dwordx4 %s, %s, %s, s%d offen offset:%d sc1"
                % (vr(MEM + 4 * kap, 4), vr(V_L16), ws, S_MEM if kap < 4 else S_MEMHI, (kap & 3) * 1024))

    def qkw(mat, tau, kap):
        return ar((mat * 2 + tau) * 64 + kap * 8, 8)

    def chunk_check(kap):
        return ["v_max_u32 %s, %s, %s" % (vr(V_T), vr(MEM + 4 * kap), vr(MEM + 4 * kap + 2)),
                "v_cmp_eq_u32 vcc, -1, %s" % vr(V_T)]

    def emit_check(kap):
        lr = a.newlabel("cr%d" % kap)
        lb = a.newlabel("cb%d" % kap)
        a.I("s_waitcnt vmcnt(%d)" % (7 - kap))
        for x in chunk_check(kap):
            a.I(x)
        a.I("s_cbranch_vccnz %s" % lr)
        a.label(lb)
        cool.append((lr, kap, lb))

    def add2(d, x, y):
        return ["v_add_f32 %s, %s, %s" % (vr(d), vr(x), vr(y)),
                "v_add_f32 %s, %s, %s" % (vr(d + 1), vr(x + 1), vr(y + 1))]

    def qk_post(tau):
        return (add2(q[tau], q[tau], q[tau] + 2) + add2(k[tau], k[tau], k[tau] + 2) +
                ["v_cvt_pk_bf16_f32 %s, %s, %s" % (vr(q[tau] + 3), vr(q[tau]), vr(q[tau] + 1)),
                 "v_cvt_pk_bf16_f32 %s, %s, %s" % (vr(q[tau] + 2), vr(k[tau]), vr(k[tau] + 1)),
                 "ds_write_b64 %s, %s offset:%d" % (vr(V_MW), vr(q[tau] + 2, 2), 512 * tau)])

    def kv_dma():
        L = []
        pieces = range(4 * w, 4 * w + 4)
        for p in pieces:
            src, base = (S_KT, p) if p < 8 else (S_VT, p - 8)
            L.append("s_add_u32 s%d, s%d, %d" % (S_T0 + 5, src, base * 1024))
            L.append("s_mov_b32 m0, %d" % (L_K + p * 1024))
            L.append("buffer_load_dwordx4 %s, %s, s%d offen %s lds" % (vr(V_L16), ws, S_T0 + 5, kvflags))
        return L

    pois = ["buffer_store_dword %s, %s, %s, s%d offen %s" % (vr(S + 8), vr(V_MS), ws, S_T0 + 3, st_flags)]
    tm.start()
    if looptime:
        a.I("s_memrealtime s[92:93]")
        a.I("s_waitcnt lgkmcnt(0)")
    a.label(L_step, clear=True)
    own = [2 * w, 2 * w + 1]
    others = [x for x in range(8) if x not in own]
    sets = [KT, KT + 8]
    mbo = L_MB - L_K

    def qk4(kap, A=None):
        A = A or vr(MEM + 4 * kap, 4)
        return [smf(q[0], A, qkw(0, 0, kap)), smf(k[0], A, qkw(1, 0, kap)),
                smf(q[1], A, qkw(0, 1, kap)), smf(k[1], A, qkw(1, 1, kap))]

    def poll2(issue, oks, gap, cnt, check):
        Lp = a.newlabel("pl")
        a.I("s_mov_b32 s%d, %d" % (S_RETRY, RETRY_MAX))
        if gap == 0:
            a.label(Lp)
            issue(sets[0])
            a.I("s_waitcnt vmcnt(0)")
            check(sets[0], oks[0])
            if timing:
                a.I("s_add_u32 s%d, s%d, 1" % (S_TM + 4 + cnt, S_TM + 4 + cnt))
            a.I("s_sub_u32 s%d, s%d, 1" % (S_RETRY, S_RETRY))
            a.I("s_cmp_lg_u32 s%d, 0" % S_RETRY)
            a.I("s_cbranch_scc1 %s" % Lp)
            a.I("s_branch %s" % abort)
            return
        issue(sets[0])
        a.nops(gap)
        a.label(Lp)
        issue(sets[1])
        a.I("s_waitcnt vmcnt(2)")
        check(sets[0], oks[0])
        issue(sets[0])
        a.I("s_waitcnt vmcnt(2)")
        check(sets[1], oks[1])
        if timing:
            a.I("s_add_u32 s%d, s%d, 1" % (S_TM + 4 + cnt, S_TM + 4 + cnt))
        a.I("s_sub_u32 s%d, s%d, 1" % (S_RETRY, S_RETRY))
        a.I("s_cmp_lg_u32 s%d, 0" % S_RETRY)
        a.I("s_waitcnt vmcnt(2)")
        a.I("s_cbranch_scc1 %s" % Lp)
        a.I("s_branch %s" % abort)

    def check_poison(R, ok):
        for x in check_insts([R + i for i in range(8)], V_T):
            a.I(x)
        a.I("s_cbranch_vccz %s" % ok)

    def check_tag(R, ok):
        a.I("v_bitop3_b32 %s, %s, %s, s%d bitop3:0x7e" % (vr(V_T), vr(R), vr(R + 4), S_TAG))
        a.I("v_and_b32 %s, 1, %s" % (vr(V_T), vr(V_T)))
        a.I("v_cmp_ne_u32 vcc, 0, %s" % vr(V_T))
        a.I("s_cbranch_vccz %s" % ok)

    def issue_mem(R):
        for i, kap in enumerate(own):
            a.I("buffer_load_dwordx4 %s, %s, %s, s%d offen offset:%d sc1"
                % (vr(R + 4 * i, 4), vr(V_L16), ws, S_MEM if kap < 4 else S_MEMHI, (kap & 3) * 1024))
    if delay:
        a.nops(delay)
    oks = [a.newlabel("mok0"), a.newlabel("mok1")]
    Lj = a.newlabel("mjoin")
    poll2(issue_mem, oks, gap, 9, check_poison)
    for si in ((1, 0) if gap else (0,)):
        R = sets[si]
        a.label(oks[si], clear=True)
        tm.stamp(11)
        for i, kap in enumerate(own):
            a.I("ds_write_b128 %s, %s offset:%d" % (vr(V_K), vr(R + 4 * i, 4), mbo + kap * 1024))
        m_own = qk4(own[0], vr(R, 4)) + qk4(own[1], vr(R + 4, 4))
        for m in m_own[:3]:
            a.I(m)
        a.I("s_waitcnt lgkmcnt(0)")
        a.I("s_barrier")
        tm.stamp(12)
        for kap in others + own:
            a.I("ds_read_b128 %s, %s offset:%d" % (vr(MEM + 4 * kap, 4), vr(V_K), mbo + kap * 1024))
        for m in m_own[3:]:
            a.I(m)
        if si == 1:
            a.I("s_branch %s" % Lj)
    a.label(Lj, clear=True)
    tm.stamp(0)
    a.I("s_waitcnt vmcnt(0)")
    if "latepois" in exp:
        for x in pois:
            a.I(x)
    if fused and w == 3:
        a.I("v_mov_b32 %s, s%d" % (vr(V_T), S_STEP))
        a.I("buffer_store_dword %s, %s, %s, s%d offen sc1" % (vr(V_T), vr(V_Z), ws, S_CP))
    if "nocompute" in exp:
        a.I("s_waitcnt lgkmcnt(0)")
        for i in range(0, 24, 2):
            a.I("v_mov_b64 %s, 0" % vr(ACC + i, 2))
        a.I("v_mov_b32 %s, s%d" % (vr(ACC), S_TAG))
        a.I("v_mov_b32 %s, s%d" % (vr(ACC + 16), S_TAG))
        a.I("buffer_store_dwordx4 %s, %s, %s, s%d offen %s" % (vr(ACC, 4), vr(V_PS), ws, S_PW0, st_flags))
        a.I("buffer_store_dwordx4 %s, %s, %s, s%d offen %s" % (vr(ACC + 16, 4), vr(V_PS), ws, S_PW1, st_flags))
        a.I("s_branch L_skip_w%d" % w)
    lds_fill = []
    for T_ in range(2):
        for ks in range(4):
            lds_fill.append("ds_read_b128 %s, %s offset:%d" % (vr(KT + (T_ * 4 + ks) * 4, 4), vr(V_K), (T_ * 4 + ks) * 1024))
    for tau in range(2):
        lds_fill.append("ds_read_b128 %s, %s offset:%d" % (vr(VT + 4 * tau, 4), vr(V_K), 8192 + (2 * w + tau) * 1024))
    nissued = 0
    for j, kap in enumerate(others[:4]):
        a.I("s_waitcnt lgkmcnt(%d)" % min(15, 7 - j + nissued))
        for m in qk4(kap):
            a.I(m)
            if lds_fill and nissued < 10:
                a.I(lds_fill.pop(0))
                nissued += 1
    assert not lds_fill
    k6, k7 = others[4], others[5]
    A6, A7 = vr(MEM + 4 * k6, 4), vr(MEM + 4 * k7, 4)
    a.I("s_waitcnt lgkmcnt(%d)" % min(15, nissued))
    a.I(smf(q[0], A6, qkw(0, 0, k6)))
    a.I(smf(k[0], A6, qkw(1, 0, k6)))
    a.I(smf(q[0], A7, qkw(0, 0, k7)))
    a.I(smf(k[0], A7, qkw(1, 0, k7)))
    tm.stamp(1)
    m1 = [smf(q[1], A6, qkw(0, 1, k6)), smf(k[1], A6, qkw(1, 1, k6)),
          smf(q[1], A7, qkw(0, 1, k7)), smf(k[1], A7, qkw(1, 1, k7))]
    vm = []
    for kap in range(8):
        for tau in range(2):
            vm.append(smf(v[tau], vr(MEM + 4 * kap, 4), vr(V_VW + tau * 64 + kap * 8, 8)))
    for m in m1:
        a.I(m)
    p0, p1 = qk_post(0), qk_post(1)
    weave(a, vm[0:3], p0, every=2)
    weave(a, vm[3:5], p1, every=3)
    a.I("s_waitcnt lgkmcnt(0)")
    a.I("s_barrier")
    for ks in range(4):
        for hh in range(2):
            a.I("ds_read_b64_tr_b16 %s, %s offset:%d" % (vr(ACC + 4 * ks + 2 * hh, 2), vr(V_MR), 1024 * ks + 512 * hh))
    dma = kv_dma() if ("nofar" not in exp) else []
    if fused:
        Lh = a.newlabel("hz")
        Lb = a.newlabel("hzb")
        a.I("s_add_u32 s%d, s%d, 1" % (S_T0 + 5, S_STEP))
        a.I("s_cmp_ge_u32 s%d, s%d" % (S_T0 + 5, S_HZ))
        a.I("s_cbranch_scc1 %s" % Lh)
        a.label(Lb)
        hzl.append((Lh, Lb))
    weave(a, vm[5:12], dma, every=3)
    tm.stamp(2)
    order = [(tau, xi) for tau in range(8) for xi in range(2)]
    slots = [KT + 8 * i for i in range(4)] + [MEM + 8 * i for i in range(4)]

    def stage(n, slot):
        tau, xi = order[n]
        return ["ds_read_b128 %s, %s offset:%d" % (vr(slot + 4 * hf, 4), vr(V_L16W), wo_img_off(tau, xi, hf))
                for hf in range(2)]
    T1, T2, T0 = S, S + 4, S + 8
    sc = []
    for ks in range(4):
        M = vr(ACC + 4 * ks, 4)
        for (D, A) in ((T1, vr(KT + ks * 4, 4)), (T2, vr(KT + (4 + ks) * 4, 4)), (T0, M)):
            sc.append("v_mfma_f32_16x16x32_bf16 %s, %s, %s, %s" % (vr(D, 4), A, M, "0" if ks == 0 else vr(D, 4)))
    a.I("s_waitcnt lgkmcnt(0)")
    P0q, ones = ACC, ACC + 4
    fill = []
    if "nopub" not in exp:
        fill.append("buffer_store_dwordx4 %s, %s, %s, s%d offen offset:%d sc1"
                    % (vr(ACC + 4 * w, 4), vr(V_KM), ws, S_KM, w * 512))
    weave(a, sc, fill, start=1)
    a.I(vm[12])
    a.I("v_mov_b32 %s, 0" % vr(ACC + 1))
    a.I(vm[13])
    a.I("v_mov_b64 %s, 0" % vr(ACC + 2, 2))
    tm.stamp(3)
    if dbg == "S":
        dump(a, w, S, 12)
    mx, tt, nmc = ACC + 8, ACC + 9, ACC + 10
    rs = ACC + 12
    stg = []
    for n in range(0, 4):
        stg += stage(n, slots[n])
    a.I("v_max3_f32 %s, %s, %s, %s" % (vr(mx), vr(S + 0), vr(S + 1), vr(S + 2)))
    a.I("v_max3_f32 %s, %s, %s, %s" % (vr(tt), vr(S + 3), vr(S + 4), vr(S + 5)))
    a.I(vm[14])
    a.I("v_max3_f32 %s, %s, %s, %s" % (vr(mx), vr(mx), vr(S + 6), vr(S + 7)))
    a.I(vm[15])
    a.I("v_max3_f32 %s, %s, %s, %s" % (vr(tt), vr(tt), vr(S + 8), vr(S + 9)))
    a.I("v_max_f32 %s, %s, %s" % (vr(mx), vr(mx), vr(tt)))
    a.I(stg[0])
    a.I("v_mov_b32 %s, %s" % (vr(tt), vr(mx)))
    a.I(stg[1])
    a.I(stg[2])
    a.I("v_permlane32_swap_b32 %s, %s" % (vr(mx), vr(tt)))
    a.I("v_max_f32 %s, %s, %s" % (vr(mx), vr(mx), vr(tt)))
    a.I("v_mov_b32 %s, %s" % (vr(tt), vr(mx)))
    a.I(stg[3])
    a.I(stg[4])
    a.I("v_permlane16_swap_b32 %s, %s" % (vr(mx), vr(tt)))
    a.I("v_max_f32 %s, %s, %s" % (vr(mx), vr(mx), vr(tt)))
    a.I("v_mul_f32 %s, s%d, %s" % (vr(nmc), S_NC, vr(mx)))
    a.I(stg[5])
    for j in range(5):
        a.I("v_pk_fma_f32 %s, %s, s[%d:%d], %s op_sel_hi:[1,0,0]"
            % (vr(S + 2 * j, 2), vr(S + 2 * j, 2), S_C, S_C + 1, vr(nmc, 2)))
    for i in range(10):
        a.I("v_exp_f32 %s, %s" % (vr(S + i), vr(S + i)))
        if i == 1:
            a.I(stg[6])
        if i == 3:
            a.I(stg[7])
    for j in range(4):
        a.I("v_cvt_pk_bf16_f32 %s, %s, %s" % (vr(PX + j), vr(S + 2 * j), vr(S + 1 + 2 * j)))
    a.I("v_cvt_pk_bf16_f32 %s, %s, %s" % (vr(P0q), vr(S + 8), vr(S + 9)))
    a.I("v_mov_b64 %s, s[%d:%d]" % (vr(ones, 2), S_ONE, S_ONE + 1))
    a.I("v_mov_b64 %s, s[%d:%d]" % (vr(ones + 2, 2), S_ONE, S_ONE + 1))
    tm.stamp(4)
    if dbg == "P":
        dump(a, w, PX, 10)
    O0, O1, OS = S, S + 4, S + 8
    P = vr(PX, 4)
    a.I("v_mfma_f32_16x16x32_bf16 %s, %s, %s, 0" % (vr(OS, 4), P, vr(ones, 4)))
    vp = add2(v[0], v[0], v[0] + 2) + add2(v[1], v[1], v[1] + 2)
    a.I(vp[0])
    a.I("v_mfma_f32_16x16x32_bf16 %s, %s, %s, %s" % (vr(OS, 4), vr(P0q, 4), vr(ones, 4), vr(OS, 4)))
    a.I(vp[1])
    a.I("v_mfma_f32_16x16x32_bf16 %s, %s, %s, 0" % (vr(O0, 4), P, vr(VT, 4)))
    a.I(vp[2])
    a.I(vp[3])
    a.I("v_mfma_f32_16x16x32_bf16 %s, %s, %s, 0" % (vr(O1, 4), P, vr(VT + 4, 4)))
    a.I("v_cvt_pk_bf16_f32 %s, %s, %s" % (vr(PX + 4), vr(v[0]), vr(v[0] + 1)))
    a.I("v_cvt_pk_bf16_f32 %s, %s, %s" % (vr(PX + 6), vr(v[1]), vr(v[1] + 1)))
    a.I("v_lshrrev_b32 %s, 2, %s" % (vr(V_T), vr(V_L16)))
    a.I("v_mfma_f32_16x16x32_bf16 %s, %s, %s, %s" % (vr(O0, 4), vr(P0q, 4), vr(PX + 4, 4), vr(O0, 4)))
    a.I("v_rcp_f32 %s, %s" % (vr(rs), vr(OS + 2)))
    a.I("v_mfma_f32_16x16x32_bf16 %s, %s, %s, %s" % (vr(O1, 4), vr(P0q, 4), vr(PX + 6, 4), vr(O1, 4)))
    a.I("v_rcp_f32 %s, %s" % (vr(rs + 1), vr(OS + 3)))
    if "nopub" not in exp:
        a.I("buffer_store_dword %s, %s, %s, s%d offen sc1" % (vr(PX + 4), vr(V_T), ws, S_VM))
        a.I("buffer_store_dword %s, %s, %s, s%d offen offset:256 sc1" % (vr(PX + 6), vr(V_T), ws, S_VM))
    stg2 = []
    for n in range(4, 8):
        stg2 += stage(n, slots[n])
    for x in stg2[:4]:
        a.I(x)
    a.I("v_pk_mul_f32 %s, %s, %s" % (vr(O0 + 2, 2), vr(O0 + 2, 2), vr(rs, 2)))
    a.I("v_pk_mul_f32 %s, %s, %s" % (vr(O1 + 2, 2), vr(O1 + 2, 2), vr(rs, 2)))
    a.I("v_cvt_pk_bf16_f32 %s, %s, %s" % (vr(S), vr(O0 + 2), vr(O0 + 3)))
    a.I("v_cvt_pk_bf16_f32 %s, %s, %s" % (vr(S + 1), vr(O1 + 2), vr(O1 + 3)))
    if dbg == "O":
        dump(a, w, S, 2)
    a.I("ds_write_b64 %s, %s offset:%d" % (vr(V_MW), vr(S, 2), O_OFF))
    for x in stg2[4:]:
        a.I(x)
    zl = []
    for tI in range(8):
        for r in range(0, 4, 2):
            zl.append("v_mov_b64 %s, 0" % vr(wacc(tI) + r, 2))
    for x in zl[4:12]:
        a.I(x)
    a.I("s_waitcnt lgkmcnt(4)")
    a.I("s_barrier")
    for xi in range(2):
        for hh in range(2):
            a.I("ds_read_b64_tr_b16 %s, %s offset:%d" % (vr(PX + 4 * xi + 2 * hh, 2), vr(V_MR), O_OFF + 2048 * xi + 1024 * hh))
    for x in zl[:4] + zl[12:]:
        a.I(x)
    a.I("s_waitcnt lgkmcnt(0)")
    tm.stamp(5)
    def post_tile(t):
        ta = wacc(t)
        dq = wacc(4 * (t >> 2)) + (t & 3)
        L = add2(ta, ta, ta + 2) + ["v_cvt_pk_bf16_f32 %s, %s, %s" % (vr(dq), vr(ta), vr(ta + 1))]
        if (t & 3) == 3:
            d0 = wacc(4 * (t >> 2))
            L.append("v_bfi_b32 %s, 1, s%d, %s" % (vr(d0), S_TAG, vr(d0)))
            L.append("buffer_store_dwordx4 %s, %s, %s, s%d offen %s"
                     % (vr(d0, 4), vr(V_PS), ws, S_PW0 if t == 3 else S_PW1, st_flags))
        return L
    pend = []
    seq = []
    for n in range(16):
        tau, xi = order[n]
        slot = slots[n % 8]
        if n >= 8:
            last = max(i for i, o in enumerate(seq) if o == n)
            a.I("s_waitcnt lgkmcnt(%d)" % (len(seq) - last - 1))
        a.I(smf(wacc(tau), vr(PX + 4 * xi, 4), vr(slot, 8)))
        if n + 8 < 16:
            for s_ in stage(n + 8, slot):
                a.I(s_)
            seq += [n + 8, n + 8]
        if n >= 4 and n % 2 == 0:
            pend += post_tile((n - 4) // 2)
        for _ in range(1 if n < 8 else 2):
            if pend:
                a.I(pend.pop(0))
    for x in pend:
        a.I(x)
    for t_ in (6, 7):
        for x in post_tile(t_):
            a.I(x)
    a.label("L_skip_w%d" % w)
    tm.stamp(6)
    if "ack" in exp:
        a.I("s_waitcnt vmcnt(0)")
        tm.stamp(15)

    SEL = S
    D2 = S + 4
    sel_addr(a, V_T, SEL)
    a.I("ds_read_b128 %s, %s" % (vr(SEL, 4), vr(V_T)))
    for i in range(0, 24, 2):
        a.I("v_mov_b64 %s, 0" % vr(ACC + i, 2))
    a.I("s_add_u32 s%d, s%d, 262144" % (S_KT, S_KT))
    a.I("s_add_u32 s%d, s%d, 262144" % (S_VT, S_VT))
    a.I("s_add_u32 s%d, s%d, 65536" % (S_VM, S_VM))
    a.I("s_add_u32 s%d, s%d, 65536" % (S_KM, S_KM))
    a.I("s_add_u32 s%d, s%d, 1" % (S_STEP, S_STEP))
    if rdelay:
        a.nops(rdelay)

    def issue_in(R):
        for m in range(2):
            a.I("buffer_load_dwordx4 %s, %s, %s, s%d offen offset:%d sc1"
                % (vr(R + 4 * m, 4), vr(V_L16), ws, S_PR, m * 1024))
    oks = [a.newlabel("rok0"), a.newlabel("rok1")]
    Lj = a.newlabel("rjoin")
    a.I("s_waitcnt lgkmcnt(0)")
    tm.stamp(14)
    poll2(issue_in, oks, rgap, 10, check_tag)
    for si in ((1, 0) if rgap else (0,)):
        R = sets[si]
        a.label(oks[si], clear=True)
        tm.stamp(13)
        a.I("v_mfma_f32_16x16x32_bf16 %s, %s, %s, 0" % (vr(D2, 4), vr(R, 4), vr(SEL, 4)))
        a.I("v_mfma_f32_16x16x32_bf16 %s, %s, %s, %s" % (vr(D2, 4), vr(R + 4, 4), vr(SEL, 4), vr(D2, 4)))
        if si == 1:
            a.I("s_branch %s" % Lj)
    a.label(Lj)
    a.I("s_add_u32 s%d, s%d, 8192" % (S_MEM, S_MEM))
    a.I("s_and_b32 s%d, s%d, 0x%x" % (S_MEM, S_MEM, WS_MEM | 0x7fff))
    a.I("s_add_u32 s%d, s%d, 4096" % (S_MEMHI, S_MEM))
    a.I("s_add_u32 s%d, s%d, 2 * 8192" % (S_T0 + 3, S_MEM))
    a.I("s_and_b32 s%d, s%d, 0x%x" % (S_T0 + 3, S_T0 + 3, WS_MEM | 0x7fff))
    a.I("v_mov_b32 %s, -1" % vr(S + 8))
    a.nops(3)
    a.I("v_permlane32_swap_b32 %s, %s" % (vr(D2), vr(D2 + 2)))
    a.I("v_permlane32_swap_b32 %s, %s" % (vr(D2 + 1), vr(D2 + 3)))
    a.I("v_add_f32 %s, %s, %s" % (vr(D2), vr(D2), vr(D2 + 2)))
    a.I("v_add_f32 %s, %s, %s" % (vr(D2 + 1), vr(D2 + 1), vr(D2 + 3)))
    a.I("v_permlane16_swap_b32 %s, %s" % (vr(D2), vr(D2 + 1)))
    a.I("v_add_f32 %s, %s, %s" % (vr(D2), vr(D2), vr(D2 + 1)))
    a.I("v_mov_b32 %s, %s" % (vr(D2 + 1), vr(D2)))
    a.I("v_permlane16_swap_b32 %s, %s" % (vr(D2), vr(D2 + 1)))
    a.I("v_cvt_pk_bf16_f32 %s, %s, %s" % (vr(D2), vr(D2), vr(D2 + 1)))
    a.I("v_min_u32 %s, 0xfffffffe, %s" % (vr(D2), vr(D2)))
    a.I("buffer_store_dword %s, %s, %s, s%d offen %s" % (vr(D2), vr(V_MS), ws, S_MEM, st_flags))
    tm.stamp(7)
    if "latepois" not in exp:
        for x in pois:
            a.I(x)
    for s_ in (S_PW0, S_PW1, S_PR):
        a.I("s_xor_b32 s%d, s%d, 262144" % (s_, s_))
    a.I("s_bfe_u32 s%d, s%d, 0x10001" % (S_TAG, S_STEP))
    if "rtt" not in exp:
        tm.stamp(8)
    if stop_after is not None:
        a.I("s_cmp_eq_u32 s%d, %d" % (S_STEP, stop_after))
        a.I("s_cbranch_scc1 %s" % L_done)
    a.I("s_cmp_lg_u32 s%d, 63" % S_STEP)
    a.I("s_cbranch_scc1 %s" % L_step)
    a.I("s_mov_b32 s%d, %d" % (S_RETRY, RETRY_MAX))
    Lp = a.newlabel("lpoll")
    Lr = a.newlabel("lretry")
    a.label(Lp)
    for kap in range(8):
        a.I(mem_load(kap))
    a.I("s_waitcnt vmcnt(0)")
    for x in check_insts([MEM + i for i in range(32)], V_T):
        a.I(x)
    a.I("s_cbranch_vccnz %s" % Lr)
    ool.append((Lr, Lp))
    for kap in range(8):
        A = vr(MEM + 4 * kap, 4)
        a.I(smf(k[0], A, qkw(1, 0, kap)))
        a.I(smf(k[1], A, qkw(1, 1, kap)))
        a.I(smf(v[0], A, vr(V_VW + kap * 8, 8)))
        a.I(smf(v[1], A, vr(V_VW + 64 + kap * 8, 8)))
    for tau in range(2):
        for x in qk_post(tau):
            a.I(x)
    for x in add2(v[0], v[0], v[0] + 2) + add2(v[1], v[1], v[1] + 2):
        a.I(x)
    a.I("v_cvt_pk_bf16_f32 %s, %s, %s" % (vr(PX + 4), vr(v[0]), vr(v[0] + 1)))
    a.I("v_cvt_pk_bf16_f32 %s, %s, %s" % (vr(PX + 6), vr(v[1]), vr(v[1] + 1)))
    a.I("v_lshrrev_b32 %s, 2, %s" % (vr(V_T), vr(V_L16)))
    a.I("buffer_store_dword %s, %s, %s, s%d offen sc1" % (vr(PX + 4), vr(V_T), ws, S_VM))
    a.I("buffer_store_dword %s, %s, %s, s%d offen offset:256 sc1" % (vr(PX + 6), vr(V_T), ws, S_VM))
    a.I("s_waitcnt lgkmcnt(0)")
    a.I("s_barrier")
    if fused and w == 3:
        a.I("v_mov_b32 %s, 63" % vr(V_S))
        a.I("buffer_store_dword %s, %s, %s, s%d offen sc1" % (vr(V_S), vr(V_Z), ws, S_CP))
    for hh in range(2):
        a.I("ds_read_b64_tr_b16 %s, %s offset:%d" % (vr(KT + 2 * hh, 2), vr(V_MR), 1024 * w + 512 * hh))
    a.I("s_waitcnt lgkmcnt(0)")
    a.I("buffer_store_dwordx4 %s, %s, %s, s%d offen offset:%d sc1" % (vr(KT, 4), vr(V_KM), ws, S_KM, w * 512))
    if fused:
        a.I("s_waitcnt vmcnt(0)")
        a.I("s_barrier")
        if w == 3:
            a.I("v_mov_b32 %s, 64" % vr(V_T))
            a.I("buffer_store_dword %s, %s, %s, s%d offen sc1" % (vr(V_T), vr(V_Z), ws, S_CP))
    a.label(L_done, clear=True)
    a.I("s_waitcnt vmcnt(0) lgkmcnt(0)")
    if looptime and w == 0:
        a.I("s_memrealtime s[94:95]")
        a.I("s_waitcnt lgkmcnt(0)")
        a.I("s_sub_u32 s94, s94, s92")
        a.I("v_mov_b32 %s, s94" % vr(V_MEM))
        a.I("v_mov_b32 %s, s92" % vr(V_MEM + 1))
        a.I("s_lshl_b32 s%d, s%d, 3" % (S_T0, S_RANK))
        a.I("v_mov_b32 %s, s%d" % (vr(V_MEM + 2), S_T0))
        a.I("s_mov_b32 s%d, 0x%x" % (S_T0, WS_FLAGS + 0xc000))
        a.I("buffer_store_dwordx2 %s, %s, %s, s%d offen" % (vr(V_MEM, 2), vr(V_MEM + 2), ws, S_T0))
        a.I("s_waitcnt vmcnt(0)")
    if timing:
        Ls = a.newlabel("notm")
        if trace is None:
            a.I("s_cmp_lg_u32 s%d, 0" % S_RANK)
            a.I("s_cbranch_scc1 %s" % Ls)
        for i in range(16):
            a.I("v_mov_b32 %s, s%d" % (vr(V_MEM + i), S_TM + 4 + i))
        a.I("v_mov_b32 %s, 0" % vr(V_MEM + 16))
        a.I("s_lshl_b32 s%d, s%d, 8" % (S_T0, S_RANK))
        a.I("s_add_u32 s%d, s%d, 0x%x" % (S_T0, S_T0, WS_FLAGS + 0x8000 + w * 64))
        for i in range(16):
            a.I("buffer_store_dword %s, %s, %s, s%d offen offset:%d" % (vr(V_MEM + i), vr(V_MEM + 16), ws, S_T0, i * 4))
        a.I("s_waitcnt vmcnt(0)")
        a.label(Ls)
    Lend = a.newlabel("end")
    a.I("s_branch %s" % Lend)
    for (lab, tgt) in ool:
        retry_block(a, lab, tgt, abort)
    for (lh, lb) in hzl:
        a.label(lh, clear=True)
        horizon_refresh(a, S_T0 + 5, abort)
        a.I("s_branch %s" % lb)
    for (lr, kap, lb) in cool:
        a.label(lr, clear=True)
        lq = a.newlabel("cq")
        a.I("s_mov_b32 s%d, %d" % (S_RETRY, RETRY_MAX))
        a.label(lq)
        a.I(mem_load(kap))
        a.I("s_waitcnt vmcnt(0)")
        for x in chunk_check(kap):
            a.I(x)
        a.I("s_cbranch_vccz %s" % lb)
        a.I("s_sub_u32 s%d, s%d, 1" % (S_RETRY, S_RETRY))
        a.I("s_cmp_lg_u32 s%d, 0" % S_RETRY)
        a.I("s_cbranch_scc1 %s" % lq)
        a.I("s_branch %s" % abort)
    a.label(Lend, clear=True)


def loop_setup(a, w, fused=False, abort="L_abort"):
    r = S_RANK
    a.I("s_mov_b32 s%d, 0" % S_STEP)
    a.I("s_mov_b32 s%d, 0" % S_TAG)
    a.I("s_mov_b32 s%d, 0x%x" % (S_MEM, WS_MEM))
    a.I("s_mov_b32 s%d, 0x%x" % (S_MEMHI, WS_MEM + 4096))
    a.I("s_mov_b32 s%d, 0x%x" % (S_PW0, WS_PART + w * 65536))
    a.I("s_add_u32 s%d, s%d, 32768" % (S_PW1, S_PW0))
    a.I("s_lshl_b32 s%d, s%d, 13" % (S_PR, r))
    a.I("s_add_u32 s%d, s%d, 0x%x" % (S_PR, S_PR, WS_PART + w * 2048))
    a.I("s_lshl_b32 s%d, s%d, 13" % (S_KT, r))
    a.I("s_add_u32 s%d, s%d, 0x%x" % (S_VT, S_KT, WS_VT))
    a.I("s_add_u32 s%d, s%d, 0x%x" % (S_KT, S_KT, WS_KT))
    a.I("s_lshl_b32 s%d, s%d, 11" % (S_KM, r))
    a.I("s_add_u32 s%d, s%d, 0x%x" % (S_VM, S_KM, WS_VM + w * 512))
    a.I("s_add_u32 s%d, s%d, 0x%x" % (S_KM, S_KM, WS_KM))
    import struct
    c = struct.unpack("<I", struct.pack("<f", 128 ** -0.5 * 1.4426950408889634))[0]
    a.I("s_mov_b32 s%d, 0x%x" % (S_C, c))
    a.I("s_mov_b32 s%d, 0x%x" % (S_NC, c | 0x80000000))
    a.I("s_mov_b32 s%d, 0x3f803f80" % S_ONE)
    a.I("s_mov_b32 s%d, 0x3f803f80" % (S_ONE + 1))
    a.I("v_mov_b64 %s, 0" % vr(V_PX + 8, 2))
    if fused:
        a.I("s_lshl_b32 s%d, s%d, 5" % (S_PG, r))
        a.I("s_add_u32 s%d, s%d, 0x%x" % (S_PG, S_PG, FL_PROG))
        a.I("s_add_u32 s%d, s%d, 24" % (S_CP, S_PG))
        a.I("s_mov_b32 s%d, 0" % (S_T0 + 5))
        horizon_refresh(a, S_T0 + 5, abort)
    for p in range(4 * w, 4 * w + 4):
        src, base = (S_KT, p) if p < 8 else (S_VT, p - 8)
        a.I("s_add_u32 s%d, s%d, %d" % (S_T0 + 5, src, base * 1024))
        a.I("s_mov_b32 m0, %d" % (L_K + p * 1024))
        a.I("buffer_load_dwordx4 %s, s[%d:%d], s%d offen sc1 lds" % (vr(V_L16), S_WS, S_WS + 3, S_T0 + 5))
    a.I("s_add_u32 s%d, s%d, 262144" % (S_KT, S_KT))
    a.I("s_add_u32 s%d, s%d, 262144" % (S_VT, S_VT))
    for i in range(0, 24, 2):
        a.I("v_mov_b64 %s, 0" % vr(V_ACC + i, 2))
    a.I("v_mov_b64 %s, -1" % vr(V_S + 8, 2))
    a.I("v_mov_b64 %s, -1" % vr(V_S + 10, 2))
    a.I("s_mov_b32 s%d, 0x%x" % (S_T0 + 3, WS_MEM + 3 * 8192))
    a.I("v_mov_b64 %s, 0" % vr(V_PX + 8, 2))
    a.I("v_mov_b64 %s, 0" % vr(V_PX + 4, 2))
    a.I("v_mov_b64 %s, 0" % vr(V_PX + 6, 2))
```

```python
from common import *
from chain import WS_H, WS_KT, WS_VT, WS_QT, WS_SIZE, OOB

FG_KQ = [0, 1, 4, 5, 2, 3, 6, 7]


def front_role(a, S_WS, S_A, s_mat, s_head, s_par, s_wave, lane, pW, nseg=32, stride=2, st="sc1", hooks=None, tag="f"):
    T = 2
    HB = 16
    ACC = 80
    PK = 96
    V_L16, V_TA, V_OUT, V_WO = 104, 105, 106, 107
    s0, s1, s2, s_seg, s_it, s_out, s_h, s_buf = 70, 71, 72, 73, 74, 75, 76, 77
    ws = "s[%d:%d]" % (S_WS, S_WS + 3)
    srd(a, S_A, pW, 0x400000)
    a.I("v_lshlrev_b32 %s, 4, %s" % (vr(V_L16), vr(lane)))
    if hooks and "before_w" in hooks:
        hooks["before_w"](a)
    a.I("v_lshrrev_b32 %s, 2, %s" % (vr(T), vr(lane)))
    a.I("v_lshlrev_b32 %s, 13, %s" % (vr(T), vr(T)))
    a.I("v_and_b32 %s, 3, %s" % (vr(T + 1), vr(lane)))
    a.I("v_lshl_add_u32 %s, %s, 4, %s" % (vr(T), vr(T + 1), vr(T)))
    a.I("s_lshl_b32 s%d, s%d, 8" % (s0, s_head))
    a.I("s_lshl_b32 s%d, s%d, 6" % (s1, s_wave))
    a.I("s_add_u32 s%d, s%d, s%d" % (s0, s0, s1))
    a.I("v_add_u32 %s, s%d, %s" % (vr(V_WO), s0, vr(T)))
    a.I("s_lshl_b32 s%d, s%d, 15" % (s2, s_wave))
    for i in range(32):
        a.I("s_add_u32 m0, s%d, %d" % (s2, i * 1024))
        a.I("s_mov_b32 s%d, 0x%x" % (s1, i * 131072))
        a.I("buffer_load_dwordx4 %s, s[%d:%d], s%d offen lds" % (vr(V_WO), S_A, S_A + 3, s1))
    a.I("v_lshrrev_b32 %s, 5, %s" % (vr(T), vr(lane)))
    a.I("v_bfe_u32 %s, %s, 2, 2" % (vr(T + 1), vr(lane)))
    a.I("v_lshl_add_u32 %s, %s, 3, %s" % (vr(T), vr(T), vr(T + 1)))
    a.I("v_lshlrev_b32 %s, 6, %s" % (vr(T), vr(T)))
    a.I("v_and_b32 %s, 3, %s" % (vr(T + 1), vr(lane)))
    a.I("v_bfe_u32 %s, %s, 4, 1" % (vr(T + 2), vr(lane)))
    a.I("v_lshl_add_u32 %s, %s, 2, %s" % (vr(T + 1), vr(T + 2), vr(T + 1)))
    a.I("v_and_b32 %s, 1, %s" % (vr(T + 2), vr(T + 1)))
    a.I("v_bfe_u32 %s, %s, 1, 1" % (vr(T + 3), vr(T + 1)))
    a.I("v_lshl_or_b32 %s, %s, 2, %s" % (vr(T + 2), vr(T + 3), vr(T + 2)))
    a.I("v_bfe_u32 %s, %s, 2, 1" % (vr(T + 3), vr(T + 1)))
    a.I("v_lshl_or_b32 %s, %s, 1, %s" % (vr(T + 2), vr(T + 3), vr(T + 2)))
    a.I("s_cmp_eq_u32 s%d, 2" % s_mat)
    a.I("s_cselect_b64 vcc, -1, 0")
    a.I("v_cndmask_b32 %s, %s, %s, vcc" % (vr(T + 1), vr(T + 2), vr(T + 1)))
    a.I("v_lshl_add_u32 %s, %s, 3, %s" % (vr(T), vr(T + 1), vr(T)))
    a.I("v_add_u32 %s, s%d, %s" % (vr(V_TA), s2, vr(T)))
    a.I("v_bfe_u32 %s, %s, 4, 1" % (vr(T), vr(lane)))
    a.I("v_and_b32 %s, 15, %s" % (vr(T + 1), vr(lane)))
    a.I("v_lshrrev_b32 %s, 5, %s" % (vr(T + 2), vr(lane)))
    a.I("v_lshlrev_b32 %s, 4, %s" % (vr(T + 1), vr(T + 1)))
    a.I("v_lshl_add_u32 %s, %s, 8, %s" % (vr(T + 1), vr(T + 2), vr(T + 1)))
    a.I("v_lshlrev_b32 %s, 12, %s" % (vr(T + 2), vr(T)))
    a.I("v_lshlrev_b32 %s, 10, %s" % (vr(T + 3), vr(T)))
    a.I("v_cndmask_b32 %s, %s, %s, vcc" % (vr(T + 2), vr(T + 2), vr(T + 3)))
    a.I("s_lshl_b32 s%d, s%d, 10" % (s0, s_wave))
    a.I("s_lshl_b32 s%d, s%d, 11" % (s1, s_wave))
    a.I("s_cmp_eq_u32 s%d, 2" % s_mat)
    a.I("s_cselect_b32 s%d, s%d, s%d" % (s0, s1, s0))
    a.I("v_add3_u32 %s, %s, %s, s%d" % (vr(V_OUT), vr(T + 1), vr(T + 2), s0))
    a.I("s_mov_b32 s%d, 0x%x" % (s_out, WS_QT))
    a.I("s_cmp_eq_u32 s%d, 1" % s_mat)
    a.I("s_cselect_b32 s%d, 0x%x, s%d" % (s_out, WS_KT, s_out))
    a.I("s_cmp_eq_u32 s%d, 2" % s_mat)
    a.I("s_cselect_b32 s%d, 0x%x, s%d" % (s_out, WS_VT, s_out))
    a.I("s_lshl_b32 s%d, s%d, 13" % (s0, s_head))
    a.I("s_add_u32 s%d, s%d, s%d" % (s_out, s_out, s0))
    a.I("s_lshl_b32 s%d, s%d, 18" % (s0, s_par))
    a.I("s_add_u32 s%d, s%d, s%d" % (s_out, s_out, s0))
    a.I("s_waitcnt vmcnt(0)")
    for ks in range(32):
        for hh in range(2):
            a.I("ds_read_b64_tr_b16 %s, %s offset:%d" % (ar(4 * ks + 2 * hh, 2), vr(V_TA), ks * 1024 + hh * 256))
    a.I("s_waitcnt lgkmcnt(0)")
    if hooks and "before_h" in hooks:
        hooks["before_h"](a)
    a.I("s_barrier")
    a.I("s_lshl_b32 s%d, s%d, 15" % (s_h, s_par))
    a.I("s_lshl_b32 s%d, s%d, 13" % (s0, s_wave))
    a.I("s_add_u32 s%d, s%d, s%d" % (s_h, s_h, s0))
    a.I("s_add_u32 s%d, s%d, 0x%x" % (s_h, s_h, WS_H))
    a.I("s_mov_b32 s%d, s%d" % (s_buf, s0))
    a.I("s_add_u32 s%d, s%d, %d" % (s2, s0, 3 * 32768))

    def dma_h():
        for p in range(8):
            a.I("s_add_u32 m0, s%d, %d" % (s_buf, p * 1024))
            a.I("s_add_u32 s%d, s%d, %d" % (s1, s_h, p * 1024))
            a.I("buffer_load_dwordx4 %s, %s, s%d offen sc1 lds" % (vr(V_L16), ws, s1))
        a.I("s_add_u32 s%d, s%d, %d" % (s_h, s_h, stride * 32768))
        a.I("s_add_u32 s%d, s%d, 32768" % (s_buf, s_buf))
        a.I("s_cmp_eq_u32 s%d, s%d" % (s_buf, s2))
        a.I("s_cselect_b32 s%d, s%d, s%d" % (s_buf, s0, s_buf))
    dma_h()
    dma_h()
    a.I("s_mov_b32 s%d, 0" % s_it)
    V_RD = T + 4
    a.I("v_mov_b32 %s, %s" % (vr(V_RD), vr(V_L16)))
    a.I("s_mov_b32 s%d, 0" % s_seg)
    a.I("s_waitcnt vmcnt(8)")
    Lp = a.newlabel(tag + "loop")
    Lf = a.newlabel(tag + "first")
    a.I("s_branch %s" % Lf)
    a.label(Lp, clear=True)
    a.I("s_waitcnt vmcnt(10)")
    a.label(Lf)
    a.I("s_barrier")
    if hooks and "stores_done" in hooks:
        a.I("s_max_u32 s%d, s%d, 1" % (s1, s_it))
        a.I("s_sub_u32 s%d, s%d, 1" % (s1, s1))
        hooks["stores_done"](a, s1)
    if hooks and "mid" in hooks:
        hooks["mid"](a, s_it)
    Ls = a.newlabel(tag + "nodma")
    Ls2 = a.newlabel(tag + "dmad")
    a.I("s_cmp_ge_u32 s%d, %d" % (s_it, nseg - 2))
    a.I("s_cbranch_scc1 %s" % Ls)
    dma_h()
    a.I("s_branch %s" % Ls2)
    a.label(Ls)
    a.I("s_waitcnt vmcnt(0)")
    a.I("s_barrier")
    a.label(Ls2)
    for variant in ("kq", "v"):
        if variant == "kq":
            Lv = a.newlabel(tag + "v")
            Le = a.newlabel(tag + "e")
            a.I("s_cmp_eq_u32 s%d, 2" % s_mat)
            a.I("s_cbranch_scc1 %s" % Lv)
        else:
            a.label(Lv, clear=True)
        for ks in range(16):
            a.I("ds_read_b128 %s, %s offset:%d" % (vr(HB + 4 * ks, 4), vr(V_RD), ks * 1024))
        for ks in range(32):
            slot = HB + 4 * (ks & 15)
            issued = 16 + min(ks, 16)
            a.I("s_waitcnt lgkmcnt(%d)" % min(15, issued - ks - 1))
            C = "0" if ks == 0 else vr(ACC, 16)
            if variant == "kq":
                a.I("v_mfma_f32_32x32x16_bf16 %s, %s, %s, %s" % (vr(ACC, 16), ar(4 * ks, 4), vr(slot, 4), C))
            else:
                a.I("v_mfma_f32_32x32x16_bf16 %s, %s, %s, %s" % (vr(ACC, 16), vr(slot, 4), ar(4 * ks, 4), C))
            if ks < 16:
                a.I("ds_read_b128 %s, %s offset:%d" % (vr(slot, 4), vr(V_RD), (ks + 16) * 1024))
        if variant == "kq":
            order = [(0, 1), (2, 3), (4, 5), (6, 7), (8, 9), (10, 11), (12, 13), (14, 15)]
        else:
            order = [(0, 1), (2, 3), (8, 9), (10, 11), (4, 5), (6, 7), (12, 13), (14, 15)]
        for j, (x, y) in enumerate(order):
            a.I("v_cvt_pk_bf16_f32 %s, %s, %s" % (vr(PK + j), vr(ACC + x), vr(ACC + y)))
        if variant == "kq":
            a.I("s_branch %s" % Le)
    a.label(Le, clear=True)
    a.I("buffer_store_dwordx4 %s, %s, %s, s%d offen %s" % (vr(PK, 4), vr(V_OUT), ws, s_out, st))
    a.I("buffer_store_dwordx4 %s, %s, %s, s%d offen offset:512 %s" % (vr(PK + 4, 4), vr(V_OUT), ws, s_out, st))
    a.I("s_add_u32 s%d, s%d, %d" % (s_out, s_out, stride * 262144))
    a.I("s_add_u32 s%d, s%d, 32768" % (s_seg, s_seg))
    a.I("s_cmp_eq_u32 s%d, %d" % (s_seg, 3 * 32768))
    a.I("s_cselect_b32 s%d, 0, s%d" % (s_seg, s_seg))
    a.I("v_add_u32 %s, s%d, %s" % (vr(V_RD), s_seg, vr(V_L16)))
    a.I("s_add_u32 s%d, s%d, 1" % (s_it, s_it))
    a.I("s_cmp_lt_u32 s%d, %d" % (s_it, nseg))
    a.I("s_cbranch_scc1 %s" % Lp)
    a.I("s_waitcnt vmcnt(0)")
    a.I("s_barrier")
    if hooks and "stores_done" in hooks:
        hooks["stores_done"](a, s_it)


def build_front_kernel(a, name="front_kernel"):
    a.raw(".p2align 8")
    a.raw(".globl %s" % name)
    a.raw(".type %s,@function" % name)
    a.label(name, clear=True)
    a.I("s_cmp_ge_u32 s2, 192")
    a.I("s_cbranch_scc1 L_exit_%s" % name)
    a.I("s_load_dwordx4 s[20:23], s[0:1], %d" % K_WQ)
    a.I("s_load_dwordx2 s[24:25], s[0:1], %d" % K_WV)
    a.I("s_load_dwordx2 s[28:29], s[0:1], %d" % K_WS)
    a.I("v_and_b32 v1, 63, v0")
    a.I("v_lshrrev_b32 v2, 6, v0")
    a.I("s_nop 0")
    a.I("v_readfirstlane_b32 s30, v2")
    a.I("s_and_b32 s31, s2, 1")
    a.I("s_lshr_b32 s32, s2, 1")
    a.I("s_and_b32 s33, s32, 31")
    a.I("s_lshr_b32 s34, s32, 5")
    a.I("s_waitcnt lgkmcnt(0)")
    srd(a, 8, 28, WS_SIZE)
    a.I("s_cmp_eq_u32 s34, 1")
    a.I("s_cselect_b32 s20, s22, s20")
    a.I("s_cselect_b32 s21, s23, s21")
    a.I("s_cmp_eq_u32 s34, 2")
    a.I("s_cselect_b32 s20, s24, s20")
    a.I("s_cselect_b32 s21, s25, s21")
    front_role(a, 8, 12, 34, 33, 31, 30, 1, 20)
    a.label("L_exit_%s" % name)
    a.I("s_endpgm")
```

```python
import struct
from common import *
from chain import WS_MOD, WS_KT, WS_VT, WS_QT, WS_KM, WS_VM, WS_TAIL, WS_SIZE, OOB, FL_TAIL, FL_PROG, FL_MOD

G_STRIDE = 0x400000
G_INB1, G_INB2, G_H2, G_FLAG = 0, 0x100000, 0x200000, 0x210000

L_O2 = 0
L_ROW = 8192
L_ST = L_ROW + 2048 + 64
L_F = 12288
L_SELT = 16384
L_H2 = 32768

A_WO, A_W2, A_W1 = 0, 128, 176
S_SEG, S_IT, S_GB, S_T = 36, 37, 38, 40
S_TOK = 48
S_C2, S_NC2 = 64, 65
S_BASE_Q, S_BASE_M = 66, 67
S_GF = 39
V_L16, V_LANE, V_KMR, V_DELTA, V_O2W, V_P1, V_R1, V_ROWW, V_TID2, V_H2W, V_FW, V_L4 = range(2, 14)
SEL = 16
ZQ = 20
ONES = 36
QO = 40
KO = 56
VO = 104
SS = 120
PP = 132
TT = 140
DO = 160
AO = 40
WA = 0
ACC = 192
MODR = 80
V_GA, V_CB, V_SB, V_GB, V_X1 = 14, 15, 0, 0, 0


def wave_allreduce_add(a, r, t):
    for ctrl in ("quad_perm:[1,0,3,2]", "quad_perm:[2,3,0,1]", "row_half_mirror", "row_mirror"):
        a.I("v_add_f32_dpp %s, %s, %s %s row_mask:0xf bank_mask:0xf" % (vr(r), vr(r), vr(r), ctrl))
    a.I("v_mov_b32 %s, %s" % (vr(t), vr(r)))
    a.I("v_permlane16_swap_b32 %s, %s" % (vr(r), vr(t)))
    a.I("v_add_f32 %s, %s, %s" % (vr(r), vr(r), vr(t)))
    a.I("v_mov_b32 %s, %s" % (vr(t), vr(r)))
    a.I("v_permlane32_swap_b32 %s, %s" % (vr(r), vr(t)))
    a.I("v_add_f32 %s, %s, %s" % (vr(r), vr(r), vr(t)))


def rbf(a, d, s):
    a.I("v_cvt_pk_bf16_f32 %s, %s, %s" % (vr(d), vr(s), vr(s)))
    a.I("v_and_b32 %s, 0xffff0000, %s" % (vr(d), vr(d)))


def tail_setup(a, w, S_WS, S_A, s_rank, s_group, pWo, pW1, pW2):
    ws = "s[%d:%d]" % (S_WS, S_WS + 3)
    T = TT
    lane = V_LANE
    qt, eh = w & 1, w >> 1
    s0, s1, s2 = S_T, S_T + 1, S_T + 2
    a.I("v_lshlrev_b32 %s, 4, %s" % (vr(V_L16), vr(lane)))
    a.I("v_lshlrev_b32 %s, 2, %s" % (vr(V_L4), vr(lane)))
    a.I("v_and_b32 %s, 15, %s" % (vr(T), vr(lane)))
    a.I("v_lshrrev_b32 %s, 4, %s" % (vr(T + 1), vr(lane)))
    a.I("v_lshrrev_b32 %s, 2, %s" % (vr(T + 2), vr(T)))
    a.I("v_and_b32 %s, 1, %s" % (vr(T + 3), vr(T)))
    a.I("v_lshl_add_u32 %s, %s, 1, %s" % (vr(T + 2), vr(T + 2), vr(T + 3)))
    a.I("v_lshl_add_u32 %s, %s, 3, %s" % (vr(T + 2), vr(T + 1), vr(T + 2)))
    a.I("v_lshlrev_b32 %s, 4, %s" % (vr(V_KMR), vr(T + 2)))
    a.I("v_lshlrev_b32 %s, 2, %s" % (vr(T + 2), vr(T + 1)))
    a.I("v_sub_u32 %s, %s, %s" % (vr(V_DELTA), vr(T), vr(T + 2)))
    a.I("v_lshrrev_b32 %s, 1, %s" % (vr(T + 2), vr(T + 1)))
    a.I("v_lshlrev_b32 %s, 6, %s" % (vr(T + 2), vr(T + 2)))
    a.I("v_and_b32 %s, 1, %s" % (vr(T + 3), vr(T + 1)))
    a.I("v_lshl_add_u32 %s, %s, 5, %s" % (vr(T + 2), vr(T + 3), vr(T + 2)))
    a.I("v_add3_u32 %s, %s, %s, %d" % (vr(T + 2), vr(T + 2), vr(T), 16 * qt))
    a.I("v_lshlrev_b32 %s, 4, %s" % (vr(T + 2), vr(T + 2)))
    a.I("v_add_u32 %s, %d, %s" % (vr(V_O2W), L_O2, vr(T + 2)))
    a.I("v_lshrrev_b32 %s, 5, %s" % (vr(T + 2), vr(lane)))
    a.I("v_lshlrev_b32 %s, 17, %s" % (vr(T + 2), vr(T + 2)))
    a.I("v_and_b32 %s, 31, %s" % (vr(T + 3), vr(lane)))
    a.I("v_lshl_add_u32 %s, %s, 2, %s" % (vr(V_P1), vr(T + 3), vr(T + 2)))
    a.I("v_lshlrev_b32 %s, 10, %s" % (vr(T + 2), vr(T + 1)))
    a.I("v_lshl_add_u32 %s, %s, 4, %s" % (vr(V_R1), vr(T), vr(T + 2)))
    a.I("v_lshrrev_b32 %s, 1, %s" % (vr(T + 2), vr(T + 1)))
    a.I("v_lshlrev_b32 %s, 6, %s" % (vr(T + 2), vr(T + 2)))
    a.I("v_and_b32 %s, 1, %s" % (vr(T + 3), vr(T)))
    a.I("v_lshl_add_u32 %s, %s, 5, %s" % (vr(T + 2), vr(T + 3), vr(T + 2)))
    a.I("v_and_b32 %s, 1, %s" % (vr(T + 3), vr(T + 1)))
    a.I("v_lshl_add_u32 %s, %s, 4, %s" % (vr(T + 2), vr(T + 3), vr(T + 2)))
    a.I("v_lshrrev_b32 %s, 1, %s" % (vr(T + 3), vr(T)))
    a.I("v_add3_u32 %s, %s, %s, %d" % (vr(T + 2), vr(T + 2), vr(T + 3), 0))
    a.I("v_add_u32 %s, %d, %s" % (vr(T + 2), 128 * w, vr(T + 2)))
    a.I("v_lshlrev_b32 %s, 2, %s" % (vr(T + 2), vr(T + 2)))
    a.I("v_add_u32 %s, %d, %s" % (vr(T + 2), L_ROW, vr(T + 2)))
    a.I("v_mov_b32 %s, %d" % (vr(V_ROWW), L_ROW + 2048))
    a.I("v_cmp_gt_u32 vcc, 8, %s" % vr(T))
    a.I("v_cndmask_b32 %s, %s, %s, vcc" % (vr(V_ROWW), vr(V_ROWW), vr(T + 2)))
    a.I("v_add_u32 %s, %d, %s" % (vr(T + 2), 64 * w, vr(lane)))
    a.I("v_lshlrev_b32 %s, 2, %s" % (vr(V_TID2), vr(T + 2)))
    a.I("v_lshrrev_b32 %s, 4, %s" % (vr(T + 3), vr(T + 2)))
    a.I("v_lshlrev_b32 %s, 10, %s" % (vr(T + 3), vr(T + 3)))
    a.I("v_bfe_u32 %s, %s, 2, 2" % (vr(T + 4), vr(T + 2)))
    a.I("v_lshl_add_u32 %s, %s, 8, %s" % (vr(T + 3), vr(T + 4), vr(T + 3)))
    a.I("v_and_b32 %s, 3, %s" % (vr(T + 4), vr(T + 2)))
    a.I("v_lshl_add_u32 %s, %s, 2, %s" % (vr(T + 3), vr(T + 4), vr(T + 3)))
    a.I("s_lshr_b32 s%d, s%d, 4" % (s0, s_rank))
    a.I("s_lshl_b32 s%d, s%d, 14" % (s0, s0))
    a.I("s_and_b32 s%d, s%d, 15" % (s1, s_rank))
    a.I("s_lshl_b32 s%d, s%d, 4" % (s1, s1))
    a.I("s_add_u32 s%d, s%d, s%d" % (s0, s0, s1))
    a.I("v_add_u32 %s, s%d, %s" % (vr(V_H2W), s0, vr(T + 3)))
    a.I("v_lshrrev_b32 %s, 1, %s" % (vr(T + 2), vr(T + 1)))
    a.I("v_lshlrev_b32 %s, 5, %s" % (vr(T + 2), vr(T + 2)))
    a.I("v_add_u32 %s, %s, %s" % (vr(T + 2), vr(T + 2), vr(T)))
    a.I("v_lshlrev_b32 %s, 4, %s" % (vr(T + 2), vr(T + 2)))
    a.I("v_and_b32 %s, 1, %s" % (vr(T + 3), vr(T + 1)))
    a.I("v_lshl_add_u32 %s, %s, 3, %s" % (vr(T + 2), vr(T + 3), vr(T + 2)))
    a.I("v_add_u32 %s, %d, %s" % (vr(V_FW), L_F + w * 1024, vr(T + 2)))
    a.I("v_and_b32 %s, 1, %s" % (vr(T + 2), vr(T)))
    a.I("v_lshlrev_b32 %s, 4, %s" % (vr(T + 2), vr(T + 2)))
    a.I("v_mov_b32 %s, 0x3f80" % vr(T + 3))
    a.I("v_lshlrev_b32 %s, %s, %s" % (vr(T + 3), vr(T + 2), vr(T + 3)))
    a.I("v_lshrrev_b32 %s, 1, %s" % (vr(T + 2), vr(T)))
    for m in range(4):
        a.I("v_cmp_eq_u32 vcc, %d, %s" % (m, vr(T + 2)))
        a.I("v_cndmask_b32 %s, 0, %s, vcc" % (vr(SEL + m), vr(T + 3)))
    for i in range(16):
        a.I("v_mov_b32 %s, 0" % vr(ZQ + i))
    for i in range(4):
        a.I("v_mov_b32 %s, 0x3f803f80" % vr(ONES + i))
    for i in range(8):
        a.I("v_mov_b32 %s, 0" % vr(PP + i))
    for r in range(16):
        a.I("s_mov_b32 s%d, %d" % (S_TOK + r, ((r & 3) + 8 * (r >> 2)) * 32768))
    c = struct.unpack("<I", struct.pack("<f", 128 ** -0.5 * 1.4426950408889634))[0]
    a.I("s_mov_b32 s%d, 0x%x" % (S_C2, c))
    a.I("s_mov_b32 s%d, 0x%x" % (S_NC2, c | 0x80000000))
    a.I("s_mul_i32 s%d, s%d, 0x%x" % (S_GB, s_group, G_STRIDE))
    a.I("s_add_u32 s%d, s%d, 0x%x" % (S_GB, S_GB, WS_TAIL))
    a.I("s_lshl_b32 s%d, s%d, 9" % (S_GF, s_group))
    a.I("s_add_u32 s%d, s%d, 0x%x" % (S_GF, S_GF, FL_TAIL))
    base = w * 32768
    VOFF, VTA = T + 6, T + 7
    a.I("v_lshlrev_b32 %s, 10, %s" % (vr(T + 2), vr(T + 1)))
    a.I("v_lshl_add_u32 %s, %s, 4, %s" % (vr(T + 2), vr(T), vr(T + 2)))
    srd(a, S_A, pWo, 0x400000)
    a.I("s_lshl_b32 s%d, s%d, 17" % (s0, s_rank))
    a.I("s_add_u32 s%d, s%d, %d" % (s0, s0, w * 256))
    a.I("v_add_u32 %s, s%d, %s" % (vr(VOFF), s0, vr(T + 2)))
    for i in range(32):
        a.I("s_mov_b32 m0, %d" % (base + i * 1024))
        a.I("s_mov_b32 s%d, %d" % (s1, i * 4096))
        a.I("buffer_load_dwordx4 %s, s[%d:%d], s%d offen lds" % (vr(VOFF), S_A, S_A + 3, s1))
    a.I("v_bfe_u32 %s, %s, 2, 2" % (vr(T + 3), vr(lane)))
    a.I("v_lshrrev_b32 %s, 5, %s" % (vr(T + 4), vr(lane)))
    a.I("v_bfe_u32 %s, %s, 4, 1" % (vr(T + 5), vr(lane)))
    a.I("v_lshlrev_b32 %s, 5, %s" % (vr(T + 5), vr(T + 5)))
    a.I("v_and_b32 %s, 3, %s" % (vr(T + 8), vr(lane)))
    a.I("v_lshl_add_u32 %s, %s, 3, %s" % (vr(T + 5), vr(T + 8), vr(T + 5)))
    a.I("v_lshl_add_u32 %s, %s, 2, %s" % (vr(T + 8), vr(T + 4), vr(T + 3)))
    a.I("v_lshl_add_u32 %s, %s, 8, %s" % (vr(T + 8), vr(T + 8), vr(T + 5)))
    a.I("v_add_u32 %s, %d, %s" % (vr(VTA), base, vr(T + 8)))
    a.I("v_lshl_add_u32 %s, %s, 3, %s" % (vr(T + 8), vr(T + 4), vr(T + 3)))
    a.I("v_lshl_add_u32 %s, %s, 8, %s" % (vr(T + 8), vr(T + 8), vr(T + 5)))
    a.I("v_add_u32 %s, %d, %s" % (vr(T + 9), base, vr(T + 8)))
    a.I("s_waitcnt vmcnt(0)")
    for nu in range(4):
        for ks in range(8):
            for hh in range(2):
                row = 32 * (ks >> 1) + 16 * hh + 8 * (ks & 1)
                a.I("ds_read_b64_tr_b16 %s, %s offset:%d" % (ar(A_WO + (nu * 8 + ks) * 4 + 2 * hh, 2), vr(VTA), row * 256 + nu * 64))
    a.I("s_waitcnt lgkmcnt(0)")
    srd(a, S_A, pW2, 1376 * 1024)
    a.I("s_mul_i32 s%d, s%d, %d" % (s0, s_rank, 48 * 1024))
    a.I("s_add_u32 s%d, s%d, %d" % (s0, s0, w * 256))
    a.I("v_add_u32 %s, s%d, %s" % (vr(VOFF), s0, vr(T + 2)))
    for i in range(12):
        a.I("s_mov_b32 m0, %d" % (base + i * 1024))
        a.I("s_mov_b32 s%d, %d" % (s1, i * 4096))
        a.I("buffer_load_dwordx4 %s, s[%d:%d], s%d offen lds" % (vr(VOFF), S_A, S_A + 3, s1))
    if w < 3:
        a.I("v_lshrrev_b32 %s, 1, %s" % (vr(T + 10), vr(lane)))
        a.I("v_mul_u32_u24 %s, 2752, %s" % (vr(T + 10), vr(T + 10)))
        a.I("v_and_b32 %s, 1, %s" % (vr(T + 11), vr(lane)))
        a.I("s_mul_i32 s%d, s%d, 48" % (s0, s_rank))
        a.I("s_add_u32 s%d, s%d, %d" % (s0, s0, 16 * w))
        a.I("v_lshl_add_u32 %s, %s, 3, s%d" % (vr(T + 11), vr(T + 11), s0))
        a.I("v_lshl_add_u32 %s, %s, 1, %s" % (vr(T + 10), vr(T + 11), vr(T + 10)))
        a.I("v_mov_b32 %s, 0x%x" % (vr(T + 12), OOB))
        a.I("v_cmp_gt_u32 vcc, 1376, %s" % vr(T + 11))
        a.I("v_cndmask_b32 %s, %s, %s, vcc" % (vr(T + 10), vr(T + 12), vr(T + 10)))
    a.I("s_waitcnt vmcnt(0)")
    for nu in range(4):
        for ks in range(3):
            for hh in range(2):
                a.I("ds_read_b64_tr_b16 %s, %s offset:%d" % (ar(A_W2 + (nu * 3 + ks) * 4 + 2 * hh, 2), vr(T + 9), (16 * ks + 4 * hh) * 256 + nu * 64))
    a.I("s_waitcnt lgkmcnt(0)")
    if w < 3:
        srd(a, S_A, pW1, 512 * 2752)
        for i in range(16):
            a.I("s_mov_b32 m0, %d" % (base + i * 1024))
            a.I("s_mov_b32 s%d, %d" % (s1, i * 32 * 2752))
            a.I("buffer_load_dwordx4 %s, s[%d:%d], s%d offen lds" % (vr(T + 10), S_A, S_A + 3, s1))
        a.I("v_lshl_add_u32 %s, %s, 3, %s" % (vr(T + 11), vr(T + 1), vr(T + 3)))
        a.I("v_lshlrev_b32 %s, 5, %s" % (vr(T + 11), vr(T + 11)))
        a.I("v_and_b32 %s, 3, %s" % (vr(T + 12), vr(lane)))
        a.I("v_lshl_add_u32 %s, %s, 3, %s" % (vr(T + 11), vr(T + 12), vr(T + 11)))
        a.I("v_add_u32 %s, %d, %s" % (vr(T + 11), base, vr(T + 11)))
        a.I("s_waitcnt vmcnt(0)")
        for ks in range(16):
            for hh in range(2):
                a.I("ds_read_b64_tr_b16 %s, %s offset:%d" % (ar(A_W1 + ks * 4 + 2 * hh, 2), vr(T + 11), (32 * ks + 4 * hh) * 32))
        a.I("s_waitcnt lgkmcnt(0)")
    a.I("s_barrier")


V_MODS = 240


def signal(a, w, S_WS, s_rank, flag_off, st):
    ws = "s[%d:%d]" % (S_WS, S_WS + 3)
    a.I("s_waitcnt vmcnt(0)")
    a.I("s_barrier")
    if w == 0:
        a.I("s_lshl_b32 s%d, s%d, 2" % (S_T, s_rank))
        a.I("s_add_u32 s%d, s%d, s%d" % (S_T, S_T, S_GF))
        a.I("s_add_u32 s%d, s%d, 0x%x" % (S_T, S_T, flag_off))
        a.I("s_add_u32 s%d, s%d, 1" % (S_T + 1, S_IT))
        a.I("v_mov_b32 %s, s%d" % (vr(TT), S_T + 1))
        a.I("v_mov_b32 %s, 0" % vr(TT + 1))
        a.I("s_mov_b64 exec, 1")
        a.I("buffer_store_dword %s, %s, %s, s%d offen %s" % (vr(TT), vr(TT + 1), ws, S_T, st))
        a.I("s_mov_b64 exec, -1")


def wait_flags(a, w, S_WS, flag_off, abort, n=32):
    ws = "s[%d:%d]" % (S_WS, S_WS + 3)
    if w == 0:
        L = a.newlabel("wf")
        a.I("s_add_u32 s%d, s%d, 0x%x" % (S_T, S_GF, flag_off))
        a.I("s_add_u32 s%d, s%d, 1" % (S_T + 1, S_IT))
        a.I("s_mov_b32 s%d, 2000000" % (S_T + 2))
        a.I("v_and_b32 %s, 127, %s" % (vr(TT + 1), vr(V_L4)))
        a.label(L)
        a.I("buffer_load_dword %s, %s, %s, s%d offen sc1" % (vr(TT), vr(TT + 1), ws, S_T))
        a.I("s_sub_u32 s%d, s%d, 1" % (S_T + 2, S_T + 2))
        a.I("s_cmp_eq_u32 s%d, 0" % (S_T + 2))
        a.I("s_cbranch_scc1 %s" % abort)
        a.I("s_waitcnt vmcnt(0)")
        a.I("v_cmp_gt_u32 vcc, s%d, %s" % (S_T + 1, vr(TT)))
        a.I("s_cbranch_vccnz %s" % L)
    a.I("s_barrier")


def reduce_rows(a, w, S_WS, s_rank, inb):
    ws = "s[%d:%d]" % (S_WS, S_WS + 3)
    a.I("s_lshl_b32 s%d, s%d, 15" % (S_T, s_rank))
    a.I("s_add_u32 s%d, s%d, s%d" % (S_T, S_T, S_GB))
    a.I("s_add_u32 s%d, s%d, 0x%x" % (S_T, S_T, inb + w * 256))
    for m in range(8):
        a.I("s_add_u32 s%d, s%d, %d" % (S_T + 1, S_T, m * 4096))
        a.I("buffer_load_dwordx4 %s, %s, %s, s%d offen sc1" % (vr(AO + 4 * m, 4), vr(V_R1), ws, S_T + 1))
    D2 = DO
    for m in range(8):
        a.I("s_waitcnt vmcnt(%d)" % (7 - m))
        a.I("v_mfma_f32_16x16x32_bf16 %s, %s, %s, %s" % (vr(D2, 4), vr(AO + 4 * m, 4), vr(SEL, 4), "0" if m == 0 else vr(D2, 4)))
    for r in range(4):
        a.I("ds_write_b32 %s, %s offset:%d" % (vr(V_ROWW), vr(D2 + r), r * 16))
    a.I("s_waitcnt lgkmcnt(0)")
    a.I("s_barrier")
    a.I("v_lshlrev_b32 %s, 1, %s" % (vr(TT + 7), vr(V_TID2)))
    a.I("ds_read_b64 %s, %s offset:%d" % (vr(TT + 8, 2), vr(TT + 7), L_ROW))
    a.I("s_waitcnt lgkmcnt(0)")


def store_partials(a, w, S_WS, s_rank, inb, st):
    ws = "s[%d:%d]" % (S_WS, S_WS + 3)
    a.I("s_lshl_b32 s%d, s%d, 10" % (S_T, s_rank))
    a.I("s_add_u32 s%d, s%d, s%d" % (S_T, S_T, S_GB))
    a.I("s_add_u32 s%d, s%d, 0x%x" % (S_T, S_T, inb + w * 256))
    for pi in range(2):
        for r in range(16):
            d = AO + (r & 7)
            a.I("v_cvt_pk_bf16_f32 %s, %s, %s" % (vr(d), vr(ACC + 32 * pi + r), vr(ACC + 32 * pi + 16 + r)))
            a.I("s_add_u32 s%d, s%d, s%d" % (S_T + 1 + (r & 1), S_T, S_TOK + r))
            a.I("buffer_store_dword %s, %s, %s, s%d offen offset:%d %s" % (vr(d), vr(V_P1), ws, S_T + 1 + (r & 1), pi * 128, st))


def tail_loop(a, w, S_WS, S_A, S_B, s_rank, pX, pOut, stride, st="", abort="L_abort", hooks=None, tag="t"):
    ws = "s[%d:%d]" % (S_WS, S_WS + 3)
    qt, eh = w & 1, w >> 1
    xs = "s[%d:%d]" % (S_A, S_A + 3)
    os_ = "s[%d:%d]" % (S_B, S_B + 3)
    srd(a, S_A, pX, 2048 * 1024)
    srd(a, S_B, pOut, 2048 * 1024)
    A_GA, A_SB, A_CB, A_GB, A_X1 = 240, 242, 244, 246, 248
    if hooks and "wait_mod" in hooks:
        hooks["wait_mod"](a, w)
    a.I("v_lshlrev_b32 %s, 1, %s" % (vr(TT), vr(V_TID2)))
    for (part, areg) in ((2, A_GA), (3, A_SB), (4, A_CB), (5, A_GB)):
        a.I("s_mov_b32 s%d, 0x%x" % (S_T, WS_MOD + part * 2048))
        a.I("buffer_load_dwordx2 %s, %s, %s, s%d offen sc1" % (ar(areg, 2), vr(TT), ws, S_T))
    a.I("s_waitcnt vmcnt(0)")
    Lp = "L_tail_w%d_%s" % (w, tag)
    Le = "L_tailend_w%d_%s" % (w, tag)
    a.label(Lp, clear=True)
    a.I("s_cmp_ge_u32 s%d, 64" % S_SEG)
    a.I("s_cbranch_scc1 %s" % Le)
    if hooks and "wait_inputs" in hooks:
        hooks["wait_inputs"](a, w)
    a.I("s_lshl_b32 s%d, s%d, 5" % (S_T, S_SEG))
    a.I("s_add_u32 s%d, s%d, s%d" % (S_T, S_T, s_rank))
    a.I("s_lshl_b32 s%d, s%d, 13" % (S_BASE_Q, S_T))
    a.I("s_lshl_b32 s%d, s%d, 11" % (S_BASE_M, S_T))
    t0, t1 = S_T + 1, S_T + 2
    a.I("s_add_u32 s%d, s%d, 0x%x" % (t0, S_BASE_Q, WS_QT + qt * 4096))
    for ks in range(4):
        a.I("buffer_load_dwordx4 %s, %s, %s, s%d offen offset:%d sc1" % (vr(QO + 4 * ks, 4), vr(V_L16), ws, t0, ks * 1024))
    a.I("s_add_u32 s%d, s%d, 0x%x" % (t1, S_BASE_M, WS_KM))
    for ks in range(4):
        a.I("buffer_load_dwordx4 %s, %s, %s, s%d offen offset:%d sc1" % (vr(KO + 4 * ks, 4), vr(V_KMR), ws, t1, ks * 512))
    a.I("s_add_u32 s%d, s%d, 0x%x" % (t0, S_BASE_Q, WS_KT))
    for ks in range(4):
        a.I("buffer_load_dwordx4 %s, %s, %s, s%d offen offset:%d sc1" % (vr(KO + 16 + 4 * ks, 4), vr(V_L16), ws, t0, ks * 1024))
    if qt == 1:
        a.I("s_add_u32 s%d, s%d, 0x%x" % (t0, S_BASE_Q, WS_KT + 4096))
        for ks in range(4):
            a.I("buffer_load_dwordx4 %s, %s, %s, s%d offen offset:%d sc1" % (vr(KO + 32 + 4 * ks, 4), vr(V_L16), ws, t0, ks * 1024))
    a.I("s_add_u32 s%d, s%d, 0x%x" % (t0, S_BASE_Q, WS_VT + eh * 4096))
    for j in range(4):
        a.I("buffer_load_dwordx4 %s, %s, %s, s%d offen offset:%d sc1" % (vr(VO + 4 * j, 4), vr(V_L16), ws, t0, j * 1024))
    a.I("s_add_u32 s%d, s%d, 0x%x" % (t1, S_BASE_M, WS_VM + eh * 1024))
    for j in range(4):
        a.I("buffer_load_dword %s, %s, %s, s%d offen offset:%d sc1" % (vr(ZQ + 4 * j), vr(V_L4), ws, t1, j * 256))
    a.I("s_lshl_b32 s%d, s%d, 10" % (t0, S_T))
    a.I("buffer_load_dword %s, %s, %s, s%d offen" % (vr(TT + 12), vr(V_TID2), xs, t0))
    a.I("s_waitcnt vmcnt(0)")
    Sm, S0, S1 = SS, SS + 4, SS + 8
    for ks in range(4):
        B = vr(QO + 4 * ks, 4)
        a.I("v_mfma_f32_16x16x32_bf16 %s, %s, %s, %s" % (vr(Sm, 4), vr(KO + 4 * ks, 4), B, "0" if ks == 0 else vr(Sm, 4)))
        a.I("v_mfma_f32_16x16x32_bf16 %s, %s, %s, %s" % (vr(S0, 4), vr(KO + 16 + 4 * ks, 4), B, "0" if ks == 0 else vr(S0, 4)))
        if qt == 1:
            a.I("v_mfma_f32_16x16x32_bf16 %s, %s, %s, %s" % (vr(S1, 4), vr(KO + 32 + 4 * ks, 4), B, "0" if ks == 0 else vr(S1, 4)))
    Sd = S0 if qt == 0 else S1
    ninf, mx, tt, nmc = TT, TT + 1, TT + 2, TT + 3
    a.I("v_mov_b32 %s, 0xff800000" % vr(ninf))
    for r in range(4):
        a.I("v_cmp_le_i32 vcc, %d, %s" % (r, vr(V_DELTA)))
        a.I("v_cndmask_b32 %s, %s, %s, vcc" % (vr(Sd + r), vr(ninf), vr(Sd + r)))
    vals = [Sm, Sm + 1] + [S0 + r for r in range(4)] + ([S1 + r for r in range(4)] if qt == 1 else [])
    a.I("v_max3_f32 %s, %s, %s, %s" % (vr(mx), vr(vals[0]), vr(vals[1]), vr(vals[2])))
    rest = vals[3:]
    while len(rest) >= 2:
        a.I("v_max3_f32 %s, %s, %s, %s" % (vr(mx), vr(mx), vr(rest[0]), vr(rest[1])))
        rest = rest[2:]
    if rest:
        a.I("v_max_f32 %s, %s, %s" % (vr(mx), vr(mx), vr(rest[0])))
    a.I("v_mov_b32 %s, %s" % (vr(tt), vr(mx)))
    a.I("v_permlane32_swap_b32 %s, %s" % (vr(mx), vr(tt)))
    a.I("v_max_f32 %s, %s, %s" % (vr(mx), vr(mx), vr(tt)))
    a.I("v_mov_b32 %s, %s" % (vr(tt), vr(mx)))
    a.I("v_permlane16_swap_b32 %s, %s" % (vr(mx), vr(tt)))
    a.I("v_max_f32 %s, %s, %s" % (vr(mx), vr(mx), vr(tt)))
    a.I("v_mul_f32 %s, s%d, %s" % (vr(nmc), S_NC2, vr(mx)))
    for x in vals:
        a.I("v_fma_f32 %s, %s, s%d, %s" % (vr(x), vr(x), S_C2, vr(nmc)))
    for x in vals:
        a.I("v_exp_f32 %s, %s" % (vr(x), vr(x)))
    a.I("v_cvt_pk_bf16_f32 %s, %s, %s" % (vr(PP), vr(S0), vr(S0 + 1)))
    a.I("v_cvt_pk_bf16_f32 %s, %s, %s" % (vr(PP + 1), vr(S0 + 2), vr(S0 + 3)))
    if qt == 1:
        a.I("v_cvt_pk_bf16_f32 %s, %s, %s" % (vr(PP + 2), vr(S1), vr(S1 + 1)))
        a.I("v_cvt_pk_bf16_f32 %s, %s, %s" % (vr(PP + 3), vr(S1 + 2), vr(S1 + 3)))
    a.I("v_cvt_pk_bf16_f32 %s, %s, %s" % (vr(PP + 4), vr(Sm), vr(Sm + 1)))
    P, P0 = vr(PP, 4), vr(PP + 4, 4)
    DS = DO + 16
    a.I("v_mfma_f32_16x16x32_bf16 %s, %s, %s, 0" % (vr(DS, 4), vr(ONES, 4), P))
    a.I("v_mfma_f32_16x16x32_bf16 %s, %s, %s, %s" % (vr(DS, 4), vr(ONES, 4), P0, vr(DS, 4)))
    for j in range(4):
        a.I("v_mfma_f32_16x16x32_bf16 %s, %s, %s, 0" % (vr(DO + 4 * j, 4), vr(VO + 4 * j, 4), P))
    for j in range(4):
        a.I("v_mfma_f32_16x16x32_bf16 %s, %s, %s, %s" % (vr(DO + 4 * j, 4), vr(ZQ + 4 * j, 4), P0, vr(DO + 4 * j, 4)))
    a.I("v_rcp_f32 %s, %s" % (vr(tt), vr(DS)))
    for i in range(16):
        a.I("v_mul_f32 %s, %s, %s" % (vr(DO + i), vr(DO + i), vr(tt)))
    for pp in range(2):
        for i in range(4):
            a.I("v_cvt_pk_bf16_f32 %s, %s, %s" % (vr(AO + 4 * pp + i), vr(DO + 8 * pp + 2 * i), vr(DO + 8 * pp + 2 * i + 1)))
        a.I("ds_write_b128 %s, %s offset:%d" % (vr(V_O2W), vr(AO + 4 * pp, 4), 2 * (2 * eh + pp) * 1024))
    a.I("s_waitcnt lgkmcnt(0)")
    a.I("s_barrier")
    for ks in range(8):
        a.I("ds_read_b128 %s, %s offset:%d" % (vr(AO + 4 * ks, 4), vr(V_L16), L_O2 + ks * 1024))
    for ks in range(8):
        a.I("s_waitcnt lgkmcnt(%d)" % (7 - ks))
        for nu in range(4):
            a.I("v_mfma_f32_32x32x16_bf16 %s, %s, %s, %s"
                % (vr(ACC + 16 * nu, 16), vr(AO + 4 * ks, 4), ar(A_WO + (nu * 8 + ks) * 4, 4), "0" if ks == 0 else vr(ACC + 16 * nu, 16)))
    store_partials(a, w, S_WS, s_rank, G_INB1, st)
    signal(a, w, S_WS, s_rank, 0, st)
    wait_flags(a, w, S_WS, 0, abort)
    reduce_rows(a, w, S_WS, s_rank, G_INB1)
    A0, A1 = TT + 8, TT + 9
    x0, x1 = TT + 10, TT + 11
    g0, g1 = TT + 4, TT + 5
    a.I("v_lshlrev_b32 %s, 16, %s" % (vr(x0), vr(TT + 12)))
    a.I("v_and_b32 %s, 0xffff0000, %s" % (vr(x1), vr(TT + 12)))
    a.I("v_accvgpr_read_b32 %s, %s" % (vr(g0), ar(A_GA)))
    a.I("v_accvgpr_read_b32 %s, %s" % (vr(g1), ar(A_GA + 1)))
    for (A_, g_, x_) in ((A0, g0, x0), (A1, g1, x1)):
        rbf(a, A_, A_)
        a.I("v_mul_f32 %s, %s, %s" % (vr(A_), vr(A_), vr(g_)))
        rbf(a, A_, A_)
        a.I("v_add_f32 %s, %s, %s" % (vr(x_), vr(x_), vr(A_)))
        rbf(a, x_, x_)
    a.I("v_accvgpr_write_b32 %s, %s" % (ar(A_X1), vr(x0)))
    a.I("v_accvgpr_write_b32 %s, %s" % (ar(A_X1 + 1), vr(x1)))
    s1_, s2_ = TT + 16, TT + 17
    a.I("v_add_f32 %s, %s, %s" % (vr(s1_), vr(x0), vr(x1)))
    a.I("v_mul_f32 %s, %s, %s" % (vr(s2_), vr(x0), vr(x0)))
    a.I("v_fmac_f32 %s, %s, %s" % (vr(s2_), vr(x1), vr(x1)))
    wave_allreduce_add(a, s1_, TT + 15)
    wave_allreduce_add(a, s2_, TT + 15)
    a.I("v_mov_b32 %s, %d" % (vr(TT + 15), L_ST + w * 8))
    a.I("ds_write_b64 %s, %s" % (vr(TT + 15), vr(s1_, 2)))
    a.I("s_waitcnt lgkmcnt(0)")
    a.I("s_barrier")
    a.I("v_mov_b32 %s, %d" % (vr(TT + 15), L_ST))
    a.I("ds_read_b128 %s, %s" % (vr(DO, 4), vr(TT + 15)))
    a.I("ds_read_b128 %s, %s offset:16" % (vr(DO + 4, 4), vr(TT + 15)))
    a.I("s_waitcnt lgkmcnt(0)")
    a.I("v_add_f32 %s, %s, %s" % (vr(s1_), vr(DO), vr(DO + 2)))
    a.I("v_add_f32 %s, %s, %s" % (vr(s2_), vr(DO + 1), vr(DO + 3)))
    a.I("v_add_f32 %s, %s, %s" % (vr(s1_), vr(s1_), vr(DO + 4)))
    a.I("v_add_f32 %s, %s, %s" % (vr(s2_), vr(s2_), vr(DO + 5)))
    a.I("v_add_f32 %s, %s, %s" % (vr(s1_), vr(s1_), vr(DO + 6)))
    a.I("v_add_f32 %s, %s, %s" % (vr(s2_), vr(s2_), vr(DO + 7)))
    a.I("v_mul_f32 %s, 0x3b000000, %s" % (vr(s1_), vr(s1_)))
    a.I("v_mul_f32 %s, 0x3b000000, %s" % (vr(s2_), vr(s2_)))
    a.I("v_fma_f32 %s, -%s, %s, %s" % (vr(s2_), vr(s1_), vr(s1_), vr(s2_)))
    a.I("v_max_f32 %s, 0, %s" % (vr(s2_), vr(s2_)))
    rbf(a, s1_, s1_)
    rbf(a, s2_, s2_)
    a.I("v_add_f32 %s, 0x3727c5ac, %s" % (vr(s2_), vr(s2_)))
    rbf(a, s2_, s2_)
    a.I("v_sqrt_f32 %s, %s" % (vr(s2_), vr(s2_)))
    rbf(a, s2_, s2_)
    a.I("v_rcp_f32 %s, %s" % (vr(s2_), vr(s2_)))
    a.I("v_accvgpr_read_b32 %s, %s" % (vr(g0), ar(A_CB)))
    a.I("v_accvgpr_read_b32 %s, %s" % (vr(g1), ar(A_CB + 1)))
    a.I("v_accvgpr_read_b32 %s, %s" % (vr(A0), ar(A_SB)))
    a.I("v_accvgpr_read_b32 %s, %s" % (vr(A1), ar(A_SB + 1)))
    for (x_, g_, A_) in ((x0, g0, A0), (x1, g1, A1)):
        a.I("v_sub_f32 %s, %s, %s" % (vr(x_), vr(x_), vr(s1_)))
        a.I("v_mul_f32 %s, %s, %s" % (vr(x_), vr(x_), vr(s2_)))
        a.I("v_fma_f32 %s, %s, %s, %s" % (vr(x_), vr(x_), vr(g_), vr(A_)))
    a.I("v_cvt_pk_bf16_f32 %s, %s, %s" % (vr(x0), vr(x0), vr(x1)))
    a.I("s_add_u32 s%d, s%d, 0x%x" % (S_T, S_GB, G_H2))
    a.I("buffer_store_dword %s, %s, %s, s%d offen %s" % (vr(x0), vr(V_H2W), ws, S_T, st))
    signal(a, w, S_WS, s_rank, 128, st)
    wait_flags(a, w, S_WS, 128, abort)
    a.I("s_add_u32 s%d, s%d, 0x%x" % (S_T, S_GB, G_H2 + w * 8192))
    for p in range(8):
        a.I("s_mov_b32 m0, %d" % (L_H2 + w * 8192 + p * 1024))
        a.I("s_add_u32 s%d, s%d, %d" % (S_T + 1, S_T, p * 1024))
        a.I("buffer_load_dwordx4 %s, %s, s%d offen sc1 lds" % (vr(V_L16), ws, S_T + 1))
    a.I("s_waitcnt vmcnt(0)")
    a.I("s_barrier")
    if w < 3:
        HB = KO
        for T_ in range(2):
            for ks in range(16):
                a.I("ds_read_b128 %s, %s offset:%d" % (vr(HB + 4 * ks, 4), vr(V_L16), L_H2 + (T_ * 16 + ks) * 1024))
            for ks in range(16):
                a.I("s_waitcnt lgkmcnt(%d)" % (15 - ks))
                a.I("v_mfma_f32_16x16x32_bf16 %s, %s, %s, %s"
                    % (vr(DO + 4 * T_, 4), ar(A_W1 + 4 * ks, 4), vr(HB + 4 * ks, 4), "0" if ks == 0 else vr(DO + 4 * T_, 4)))
        for T_ in range(2):
            for r in range(4):
                a.I("v_max_f32 %s, 0, %s" % (vr(DO + 4 * T_ + r), vr(DO + 4 * T_ + r)))
            a.I("v_cvt_pk_bf16_f32 %s, %s, %s" % (vr(DO + 8 + 2 * T_), vr(DO + 4 * T_), vr(DO + 4 * T_ + 1)))
            a.I("v_cvt_pk_bf16_f32 %s, %s, %s" % (vr(DO + 8 + 2 * T_ + 1), vr(DO + 4 * T_ + 2), vr(DO + 4 * T_ + 3)))
            a.I("ds_write_b64 %s, %s offset:%d" % (vr(V_FW), vr(DO + 8 + 2 * T_, 2), T_ * 256))
        a.I("s_waitcnt lgkmcnt(0)")
    a.I("s_barrier")
    for ks in range(3):
        a.I("ds_read_b128 %s, %s offset:%d" % (vr(AO + 4 * ks, 4), vr(V_L16), L_F + ks * 1024))
    for ks in range(3):
        a.I("s_waitcnt lgkmcnt(%d)" % (2 - ks))
        for nu in range(4):
            a.I("v_mfma_f32_32x32x16_bf16 %s, %s, %s, %s"
                % (vr(ACC + 16 * nu, 16), vr(AO + 4 * ks, 4), ar(A_W2 + (nu * 3 + ks) * 4, 4), "0" if ks == 0 else vr(ACC + 16 * nu, 16)))
    store_partials(a, w, S_WS, s_rank, G_INB2, st)
    signal(a, w, S_WS, s_rank, 256, st)
    wait_flags(a, w, S_WS, 256, abort)
    reduce_rows(a, w, S_WS, s_rank, G_INB2)
    a.I("v_accvgpr_read_b32 %s, %s" % (vr(g0), ar(A_GB)))
    a.I("v_accvgpr_read_b32 %s, %s" % (vr(g1), ar(A_GB + 1)))
    a.I("v_accvgpr_read_b32 %s, %s" % (vr(x0), ar(A_X1)))
    a.I("v_accvgpr_read_b32 %s, %s" % (vr(x1), ar(A_X1 + 1)))
    for (A_, g_, x_) in ((A0, g0, x0), (A1, g1, x1)):
        rbf(a, A_, A_)
        a.I("v_mul_f32 %s, %s, %s" % (vr(A_), vr(A_), vr(g_)))
        rbf(a, A_, A_)
        a.I("v_add_f32 %s, %s, %s" % (vr(x_), vr(x_), vr(A_)))
    a.I("v_cvt_pk_bf16_f32 %s, %s, %s" % (vr(x0), vr(x0), vr(x1)))
    a.I("s_lshl_b32 s%d, s%d, 5" % (S_T, S_SEG))
    a.I("s_add_u32 s%d, s%d, s%d" % (S_T, S_T, s_rank))
    a.I("s_lshl_b32 s%d, s%d, 10" % (S_T, S_T))
    a.I("buffer_store_dword %s, %s, %s, s%d offen" % (vr(x0), vr(V_TID2), os_, S_T))
    a.I("s_add_u32 s%d, s%d, %d" % (S_SEG, S_SEG, stride))
    a.I("s_add_u32 s%d, s%d, 1" % (S_IT, S_IT))
    a.I("s_branch %s" % Lp)
    a.label(Le, clear=True)
    a.I("s_waitcnt vmcnt(0)")


def build_tail_kernel(a, name="tail_kernel"):
    a.raw(".p2align 8")
    a.raw(".globl %s" % name)
    a.raw(".type %s,@function" % name)
    a.label(name, clear=True)
    a.I("s_cmp_ge_u32 s2, 256")
    a.I("s_cbranch_scc1 L_exit_%s" % name)
    a.I("s_load_dwordx2 s[20:21], s[0:1], %d" % K_X)
    a.I("s_load_dwordx2 s[22:23], s[0:1], %d" % K_WO)
    a.I("s_load_dwordx4 s[24:27], s[0:1], %d" % K_W1)
    a.I("s_load_dwordx4 s[28:31], s[0:1], %d" % K_OUT)
    a.I("s_load_dwordx2 s[32:33], s[0:1], %d" % K_WS)
    a.I("v_and_b32 %s, 63, v0" % vr(V_LANE))
    a.I("v_lshrrev_b32 v1, 6, v0")
    a.I("s_nop 0")
    a.I("v_readfirstlane_b32 s34, v1")
    a.I("s_getreg_b32 s35, hwreg(HW_REG_XCC_ID, 0, 4)")
    a.I("s_waitcnt lgkmcnt(0)")
    srd(a, 8, 32, WS_SIZE)
    srd(a, 4, 30, 256)
    a.I("s_cmp_lg_u32 s34, 0")
    a.I("s_cbranch_scc1 L_tel_wait")
    a.I("s_mov_b64 exec, 1")
    a.I("v_mov_b32 v14, 1")
    a.I("s_lshl_b32 s40, s35, 2")
    a.I("v_mov_b32 v15, s40")
    a.I("buffer_atomic_add v14, v15, s[4:7], 0 offen sc0")
    a.I("v_mov_b32 v15, 65536")
    a.I("s_waitcnt vmcnt(0)")
    a.I("ds_write_b32 v15, v14")
    a.I("s_mov_b64 exec, -1")
    a.label("L_tel_wait")
    a.I("s_waitcnt lgkmcnt(0)")
    a.I("s_barrier")
    a.I("v_mov_b32 v15, 65536")
    a.I("ds_read_b32 v14, v15")
    a.I("s_waitcnt lgkmcnt(0)")
    a.I("v_readfirstlane_b32 s68, v14")
    a.I("s_barrier")
    a.I("s_cmp_ge_u32 s68, 32")
    a.I("s_cbranch_scc1 L_exit_%s" % name)
    for w in range(1, 4):
        a.I("s_cmp_eq_u32 s34, %d" % w)
        a.I("s_cbranch_scc1 L_tw%d" % w)
    for w in range(4):
        a.label("L_tw%d" % w, clear=True)
        tail_setup(a, w, 8, 12, 68, 35, 22, 24, 26)
        a.I("s_mov_b32 s%d, s35" % S_SEG)
        a.I("s_mov_b32 s%d, 0" % S_IT)
        tail_loop(a, w, 8, 12, 16, 68, 20, 28, 8, abort="L_tabort")
        a.I("s_endpgm")
    a.label("L_tabort", clear=True)
    a.I("s_mov_b64 exec, 1")
    a.I("v_mov_b32 v14, 0x77")
    a.I("v_mov_b32 v15, 200")
    a.I("buffer_store_dword v14, v15, s[4:7], 0 offen")
    a.I("s_waitcnt vmcnt(0)")
    a.label("L_exit_%s" % name)
    a.I("s_endpgm")


def poll_lanes(a, S_WS, s_off, v_addr, v_thr, v_tmp, s_cnt, abort, sleep=0, limit=4000000):
    ws = "s[%d:%d]" % (S_WS, S_WS + 3)
    L = a.newlabel("pl")
    a.I("s_mov_b32 s%d, %d" % (s_cnt, limit))
    a.label(L)
    a.I("buffer_load_dword %s, %s, %s, s%d offen sc1" % (vr(v_tmp), vr(v_addr), ws, s_off))
    a.I("s_sub_u32 s%d, s%d, 1" % (s_cnt, s_cnt))
    a.I("s_cmp_eq_u32 s%d, 0" % s_cnt)
    a.I("s_cbranch_scc1 %s" % abort)
    a.I("s_waitcnt vmcnt(0)")
    a.I("v_cmp_gt_u32 vcc, %s, %s" % (vr(v_thr), vr(v_tmp)))
    if sleep:
        L2 = a.newlabel("plx")
        a.I("s_cbranch_vccz %s" % L2)
        a.I("s_sleep %d" % sleep)
        a.I("s_branch %s" % L)
        a.label(L2)
    else:
        a.I("s_cbranch_vccnz %s" % L)


def fused_hooks(S_WS, s_rank, abort):
    def wait_mod(a, w):
        if w == 0:
            a.I("s_mov_b32 s%d, 0x%x" % (S_T, FL_MOD))
            a.I("v_mov_b32 %s, 1" % vr(TT + 1))
            a.I("v_cmp_gt_u32 vcc, 48, %s" % vr(V_LANE))
            a.I("v_cndmask_b32 %s, 0, %s, vcc" % (vr(TT + 1), vr(TT + 1)))
            poll_lanes(a, S_WS, S_T, V_L4, TT + 1, TT, S_T + 2, abort, sleep=2)
        a.I("s_barrier")

    def wait_inputs(a, w):
        if w == 0:
            a.I("s_lshl_b32 s%d, s%d, 5" % (S_T, s_rank))
            a.I("s_add_u32 s%d, s%d, 0x%x" % (S_T, S_T, FL_PROG))
            a.I("s_lshr_b32 s%d, s%d, 1" % (S_T + 1, S_SEG))
            a.I("s_add_u32 s%d, s%d, 1" % (S_T + 1, S_T + 1))
            a.I("s_and_b32 s%d, s%d, 1" % (S_T + 3, S_SEG))
            a.I("s_add_u32 s%d, s%d, 1" % (S_T + 4, S_SEG))
            a.I("v_and_b32 %s, 1, %s" % (vr(TT + 2), vr(V_LANE)))
            a.I("v_mov_b32 %s, s%d" % (vr(TT + 1), S_T + 1))
            a.I("v_cmp_eq_u32 vcc, s%d, %s" % (S_T + 3, vr(TT + 2)))
            a.I("v_cndmask_b32 %s, 0, %s, vcc" % (vr(TT + 1), vr(TT + 1)))
            a.I("v_cmp_gt_u32 vcc, 6, %s" % vr(V_LANE))
            a.I("v_cndmask_b32 %s, 0, %s, vcc" % (vr(TT + 1), vr(TT + 1)))
            a.I("v_mov_b32 %s, s%d" % (vr(TT + 2), S_T + 4))
            a.I("v_cmp_eq_u32 vcc, 6, %s" % vr(V_LANE))
            a.I("v_cndmask_b32 %s, %s, %s, vcc" % (vr(TT + 1), vr(TT + 1), vr(TT + 2)))
            a.I("v_and_b32 %s, 31, %s" % (vr(TT + 3), vr(V_L4)))
            poll_lanes(a, S_WS, S_T, TT + 3, TT + 1, TT, S_T + 2, abort, sleep=4)
        a.I("s_barrier")
    return {"wait_mod": wait_mod, "wait_inputs": wait_inputs}
```

```python
import sys
from common import *
import pre, front, tail, chain
from chain import *
from tail import poll_lanes

D_TICKET, D_ARR, D_CHAIN = 0, 32, 64
L_BCAST = 163840 - 64

S_XCC, S_TK, S_FI = 33, 21, 35


def entry(a):
    a.I("s_cmp_ge_u32 s2, 256")
    a.I("s_cbranch_scc1 L_exit")
    a.I("s_load_dwordx4 s[%d:%d], s[0:1], %d" % (S_PTR + 12, S_PTR + 15, K_DBG))
    a.I("v_and_b32 %s, 63, v0" % vr(V_T))
    a.I("v_lshrrev_b32 v1, 6, v0")
    a.I("s_getreg_b32 s%d, hwreg(HW_REG_XCC_ID, 0, 4)" % S_XCC)
    a.I("v_readfirstlane_b32 s%d, v1" % S_WAVE)
    a.I("s_waitcnt lgkmcnt(0)")
    srd(a, S_DBG, S_PTR + 12, 256)
    srd(a, S_WS, S_PTR + 14, WS_SIZE)
    a.I("s_mov_b32 s%d, 0x00020000" % (S_W + 3))
    a.I("s_cmp_lg_u32 s%d, 0" % S_WAVE)
    a.I("s_cbranch_scc1 L_el_wait")
    a.I("s_and_b32 s%d, s%d, 7" % (S_T0, S_XCC))
    a.I("s_lshl_b32 s%d, s%d, 2" % (S_T0, S_T0))
    a.I("v_mov_b32 v2, 1")
    a.I("v_mov_b32 v3, s%d" % S_T0)
    a.I("s_mov_b64 exec, 1")
    a.I("buffer_atomic_add v2, v3, s[%d:%d], 0 offen sc0" % (S_DBG, S_DBG + 3))
    a.I("s_mov_b64 exec, 0xffff")
    a.I("v_mov_b32 v4, 0")
    a.I("v_lshlrev_b32 v5, 2, v0")
    a.I("s_lshl_b32 s%d, s2, 6" % (S_T0 + 1))
    a.I("s_add_u32 s%d, s%d, 0x%x" % (S_T0 + 1, S_T0 + 1, WS_FLAGS))
    a.I("buffer_store_dword v4, v5, s[%d:%d], s%d offen sc1" % (S_WS, S_WS + 3, S_T0 + 1))
    a.I("s_mov_b64 exec, 1")
    a.I("s_waitcnt vmcnt(0)")
    a.I("v_mov_b32 v6, 1")
    a.I("buffer_atomic_add v6, v3, s[%d:%d], 0 offen offset:%d" % (S_DBG, S_DBG + 3, D_ARR))
    a.I("v_mov_b32 v3, %d" % L_BCAST)
    a.I("ds_write_b32 v3, v2")
    a.I("s_mov_b64 exec, -1")
    a.label("L_el_wait")
    a.I("s_waitcnt lgkmcnt(0)")
    a.I("s_barrier")
    a.I("v_mov_b32 v3, %d" % L_BCAST)
    a.I("ds_read_b32 v2, v3")
    a.I("s_waitcnt lgkmcnt(0)")
    a.I("v_readfirstlane_b32 s%d, v2" % S_TK)
    a.I("s_barrier")


def wait_init(a, vt, st, abort, s_wave=None, w=None):
    L = a.newlabel("wi")
    Lx = a.newlabel("wix")
    if w is None:
        a.I("s_cmp_lg_u32 s%d, 0" % s_wave)
        a.I("s_cbranch_scc1 %s" % Lx)
    if w is None or w == 0:
        a.I("s_mov_b32 s%d, 4000000" % st)
        a.I("v_mov_b32 %s, 0" % vr(vt + 8))
        a.label(L)
        a.I("buffer_load_dwordx4 %s, %s, s[%d:%d], 0 offen offset:%d sc1" % (vr(vt, 4), vr(vt + 8), S_DBG, S_DBG + 3, D_ARR))
        a.I("buffer_load_dwordx4 %s, %s, s[%d:%d], 0 offen offset:%d sc1" % (vr(vt + 4, 4), vr(vt + 8), S_DBG, S_DBG + 3, D_ARR + 16))
        a.I("s_sub_u32 s%d, s%d, 1" % (st, st))
        a.I("s_cmp_eq_u32 s%d, 0" % st)
        a.I("s_cbranch_scc1 %s" % abort)
        a.I("s_waitcnt vmcnt(0)")
        a.I("v_add3_u32 %s, %s, %s, %s" % (vr(vt), vr(vt), vr(vt + 1), vr(vt + 2)))
        a.I("v_add3_u32 %s, %s, %s, %s" % (vr(vt), vr(vt), vr(vt + 3), vr(vt + 4)))
        a.I("v_add3_u32 %s, %s, %s, %s" % (vr(vt), vr(vt), vr(vt + 5), vr(vt + 6)))
        a.I("v_add_u32 %s, %s, %s" % (vr(vt), vr(vt), vr(vt + 7)))
        a.I("v_cmp_ne_u32 vcc, 0x100, %s" % vr(vt))
        a.I("s_cbranch_vccnz %s" % L)
    a.label(Lx)
    a.I("s_barrier")


def set_flag(a, S_WSq, s_off, s_val, vt, s_wave):
    L = a.newlabel("sf")
    a.I("s_cmp_lg_u32 s%d, 0" % s_wave)
    a.I("s_cbranch_scc1 %s" % L)
    a.I("v_mov_b32 %s, %s" % (vr(vt), s_val))
    a.I("v_mov_b32 %s, 0" % vr(vt + 1))
    a.I("s_mov_b64 exec, 1")
    a.I("buffer_store_dword %s, %s, s[%d:%d], s%d offen sc1" % (vr(vt), vr(vt + 1), S_WSq, S_WSq + 3, s_off))
    a.I("s_mov_b64 exec, -1")
    a.label(L)


def chain_part(a, timing, kw):
    a.label("L_chain", clear=True)
    a.I("s_load_dwordx8 s[%d:%d], s[0:1], 8" % (S_PTR, S_PTR + 7))
    a.I("s_load_dwordx2 s[%d:%d], s[0:1], 40" % (S_PTR + 8, S_PTR + 9))
    a.I("s_waitcnt lgkmcnt(0)")
    for w in range(1, 4):
        a.I("s_cmp_eq_u32 s%d, %d" % (S_WAVE, w))
        a.I("s_cbranch_scc1 L_wave%d" % w)
    for w in range(4):
        a.label("L_wave%d" % w, clear=True)
        lane_consts(a, w)
        init_buffers(a, w)
        a.I("s_waitcnt vmcnt(0) lgkmcnt(0)")
        a.I("s_barrier")
        if w == 2:
            a.I("s_mov_b64 exec, 1")
            a.I("v_mov_b32 v2, 1")
            a.I("v_mov_b32 v3, %d" % D_CHAIN)
            a.I("buffer_atomic_add v2, v3, s[%d:%d], 0 offen" % (S_DBG, S_DBG + 3))
            a.I("s_mov_b64 exec, -1")
        load_weights(a, w)
        wait_init(a, V_MEM, S_RETRY, "L_abort", w=w)
        loop_setup(a, w, fused=True)
        if w == 0:
            T = V_MEM
            lp = a.newlabel("arr")
            a.I("s_mov_b32 s%d, %d" % (S_RETRY, RETRY_MAX))
            a.I("v_mov_b32 %s, %d" % (vr(T), D_CHAIN))
            a.label(lp)
            a.I("buffer_load_dword %s, %s, s[%d:%d], 0 offen sc1" % (vr(T + 1), vr(T), S_DBG, S_DBG + 3))
            a.I("s_sub_u32 s%d, s%d, 1" % (S_RETRY, S_RETRY))
            a.I("s_cmp_eq_u32 s%d, 0" % S_RETRY)
            a.I("s_cbranch_scc1 L_abort")
            a.I("s_waitcnt vmcnt(0)")
            a.I("v_cmp_ne_u32 vcc, 32, %s" % vr(T + 1))
            a.I("s_cbranch_vccnz %s" % lp)
        a.I("s_waitcnt vmcnt(0)")
        a.I("s_barrier")
        chain_loop(a, w, timing=timing, exp="latepois", fused=True, **kw)
        a.I("s_endpgm")


def worker_part(a):
    a.label("L_worker", clear=True)
    lane = 1
    sW = S_WAVE
    a.I("s_sub_u32 s%d, s%d, 1" % (S_FI, S_XCC))
    a.I("s_lshl_b32 s%d, s%d, 5" % (S_FI, S_FI))
    a.I("s_add_u32 s%d, s%d, s%d" % (S_FI, S_FI, S_TK))
    a.I("v_and_b32 v%d, 63, v0" % lane)
    a.I("s_load_dwordx2 s[22:23], s[0:1], %d" % K_X)
    a.I("s_load_dwordx4 s[24:27], s[0:1], %d" % K_C)
    a.I("s_load_dwordx4 s[28:31], s[0:1], %d" % K_WQ)
    a.I("s_load_dwordx2 s[36:37], s[0:1], %d" % K_WV)
    a.I("s_waitcnt lgkmcnt(0)")
    a.I("s_cmp_ge_u32 s%d, 48" % S_FI)
    a.I("s_cbranch_scc1 L_nomod")
    pre.mod_role(a, S_WS, 12, 40, S_FI, sW, lane, 24, 26, 140000)
    wait_init(a, 16, 90, "L_abort", s_wave=sW)
    a.I("s_lshl_b32 s90, s%d, 2" % S_FI)
    a.I("s_add_u32 s90, s90, 0x%x" % FL_MOD)
    set_flag(a, S_WS, 90, "1", 16, sW)
    a.I("s_branch L_moddone")
    a.label("L_nomod", clear=True)
    wait_init(a, 16, 90, "L_abort", s_wave=sW)
    a.label("L_moddone", clear=True)
    a.I("s_sub_u32 s38, s%d, 64" % S_FI)
    a.I("s_cmp_ge_u32 s38, 64")
    a.I("s_cbranch_scc1 L_noln")
    Lx = a.newlabel("lnw")
    a.I("s_cmp_lg_u32 s%d, 0" % sW)
    a.I("s_cbranch_scc1 %s" % Lx)
    a.I("s_mov_b32 s90, 0x%x" % FL_MOD)
    a.I("v_lshlrev_b32 v16, 2, v%d" % lane)
    a.I("v_mov_b32 v17, 1")
    a.I("v_cmp_gt_u32 vcc, 16, v%d" % lane)
    a.I("v_cndmask_b32 v17, 0, v17, vcc")
    poll_lanes(a, S_WS, 90, 16, 17, 18, 91, "L_abort", sleep=1)
    a.label(Lx)
    a.I("s_barrier")
    a.I("s_lshl_b32 s39, s38, 5")
    pre.ln_role(a, S_WS, 12, 39, sW, lane, 22)
    a.I("s_waitcnt vmcnt(0)")
    a.I("s_barrier")
    a.I("s_lshl_b32 s90, s38, 2")
    a.I("s_add_u32 s90, s90, 0x%x" % FL_H)
    set_flag(a, S_WS, 90, "1", 16, sW)
    a.label("L_noln", clear=True)
    a.I("s_cmp_ge_u32 s%d, 192" % S_FI)
    a.I("s_cbranch_scc1 L_nofront")
    a.I("s_and_b32 s38, s%d, 1" % S_FI)
    a.I("s_lshr_b32 s39, s%d, 1" % S_FI)
    a.I("s_and_b32 s40, s39, 31")
    a.I("s_lshr_b32 s41, s39, 5")
    a.I("s_add_u32 s41, s41, 1")
    a.I("s_cmp_eq_u32 s41, 3")
    a.I("s_cselect_b32 s41, 0, s41")
    a.I("s_cmp_eq_u32 s41, 1")
    a.I("s_cselect_b32 s28, s30, s28")
    a.I("s_cselect_b32 s29, s31, s29")
    a.I("s_cmp_eq_u32 s41, 2")
    a.I("s_cselect_b32 s28, s36, s28")
    a.I("s_cselect_b32 s29, s37, s29")
    a.I("s_lshl_b32 s42, s40, 5")
    a.I("s_lshl_b32 s43, s41, 1")
    a.I("s_add_u32 s43, s43, s38")
    a.I("s_lshl_b32 s43, s43, 2")
    a.I("s_add_u32 s42, s42, s43")
    a.I("s_add_u32 s42, s42, 0x%x" % FL_PROG)

    def before_h(a):
        Lh = a.newlabel("bh")
        a.I("s_cmp_lg_u32 s%d, 0" % sW)
        a.I("s_cbranch_scc1 %s" % Lh)
        a.I("s_mov_b32 s90, 0x%x" % FL_H)
        a.I("v_lshlrev_b32 v2, 2, v%d" % lane)
        a.I("v_mov_b32 v3, 1")
        poll_lanes(a, S_WS, 90, 2, 3, 4, 91, "L_abort", sleep=1)
        a.label(Lh)

    def stores_done(a, s_it):
        set_flag(a, S_WS, 42, "s%d" % s_it, 2, sW)
    front.front_role(a, S_WS, 12, 41, 40, 38, sW, lane, 28, hooks={"before_h": before_h, "stores_done": stores_done})
    a.label("L_nofront", clear=True)
    a.I("s_barrier")
    a.I("s_load_dwordx2 s[22:23], s[0:1], %d" % K_X)
    a.I("s_load_dwordx2 s[24:25], s[0:1], %d" % K_WO)
    a.I("s_load_dwordx4 s[28:31], s[0:1], %d" % K_W1)
    a.I("s_load_dwordx2 s[26:27], s[0:1], %d" % K_OUT)
    a.I("v_and_b32 %s, 63, v0" % vr(tail.V_LANE))
    a.I("s_mov_b32 s68, s%d" % S_TK)
    a.I("s_waitcnt lgkmcnt(0)")
    for w in range(1, 4):
        a.I("s_cmp_eq_u32 s%d, %d" % (sW, w))
        a.I("s_cbranch_scc1 L_tw%d" % w)
    hk = tail.fused_hooks(S_WS, 68, "L_abort")
    for w in range(4):
        a.label("L_tw%d" % w, clear=True)
        tail.tail_setup(a, w, S_WS, 12, 68, S_XCC, 24, 28, 30)
        a.I("s_sub_u32 s%d, s%d, 1" % (tail.S_SEG, S_XCC))
        a.I("s_mov_b32 s%d, 0" % tail.S_IT)
        tail.tail_loop(a, w, S_WS, 12, 4, 68, 22, 26, 7, abort="L_abort", hooks=hk)
        a.I("s_endpgm")


def build(timing=False, **kw):
    a = Asm()
    a.raw("; @launch grid=(256,1,1) block=(256,1,1) lds=163840")
    a.raw('.amdgcn_target "amdgcn-amd-amdhsa--gfx950"')
    a.raw(".text")
    a.raw(".globl %s" % NAME)
    a.raw(".p2align 8")
    a.raw(".type %s,@function" % NAME)
    a.label(NAME)
    entry(a)
    a.I("s_cmp_ge_u32 s%d, 32" % S_TK)
    a.I("s_cbranch_scc1 L_abort")
    a.I("s_cmp_lg_u32 s%d, 0" % S_XCC)
    a.I("s_cbranch_scc1 L_worker")
    a.I("s_branch L_chain")
    a.label("L_exit")
    a.I("s_endpgm")
    a.label("L_abort0", clear=True)
    chain_part(a, timing, kw)
    a.label("L_abort", clear=True)
    a.I("s_mov_b64 exec, 1")
    a.I("v_mov_b32 v2, 0x7777")
    a.I("v_mov_b32 v3, 252")
    a.I("buffer_store_dword v2, v3, s[%d:%d], 0 offen" % (S_DBG, S_DBG + 3))
    a.I("s_waitcnt vmcnt(0)")
    a.I("s_endpgm")
    worker_part(a)
    return a.text() + kd(NAME), a


if __name__ == "__main__":
    kw = dict(gap=36, rgap=36, delay=24, rdelay=48)
    timing = False
    for arg in sys.argv[2:]:
        k, v = arg.split("=")
        if k == "timing":
            timing = bool(int(v))
        else:
            kw[k] = int(v) if v.lstrip("-").isdigit() else v
    txt, a = build(timing=timing, **kw)
    open(sys.argv[1], "w").write(txt)
    print("instructions", a.n_inst, "bytes", len(txt))
```

```python
from asmlib import Asm, vr, ar, sr

WS_MOD = 0x00000000
WS_FLAGS = 0x00010000
FL_MOD = WS_FLAGS + 0x0000
FL_H = WS_FLAGS + 0x0200
FL_PROG = WS_FLAGS + 0x0400
FL_TAIL = WS_FLAGS + 0x1000
S_NONCE = 46
WS_MEM = 0x00100000
WS_PART = 0x00200000
WS_H = 0x00400000
WS_KT = 0x00800000
WS_VT = 0x01800000
WS_QT = 0x02800000
WS_KM = 0x03800000
WS_VM = 0x03C00000
WS_TAIL = 0x04000000
WS_SIZE = 0x10000000
OOB = 0x40000000

L_WO = 0
L_K = 131072
L_M = 147456
L_MB = L_M + 4096
L_O = L_MB + 8192
O_OFF = L_O - L_M
L_SEL = L_O + 512
L_BC = L_O + 2048 + 512

S_WS = 8
S_W = 12
S_DBG = 16
S_WAVE = 20
S_RANK = 21
S_STEP = 22
S_MEM = 23
S_MEMHI = 24
S_PW0 = 25
S_PW1 = 26
S_PR = 27
S_PRHI = 28
S_KT = 29
S_VT = 30
S_KM = 31
S_HI = 32
S_C = 34
S_NC = 35
S_RETRY = 36
S_VM = 37
S_T0 = 38
S_POIS = 46
S_POISHI = 47
S_PWB = 96
S_PRB = 97
S_RING = 98
S_ONE = 100
S_SEL = 99
S_TAG = 96
S_HZ = 97
S_PG = 98
S_CP = 47
S_KB = 44
S_PTR = 48
S_TM = 64

V_VW = 0
V_MEM = 128
V_ACC = 160
V_KT = 184
V_S = 216
V_VT = 228
V_PX = 236
V_IDX = 246
V_L16 = 247
V_L16W = 248
V_K = 249
V_PS = 250
V_MS = 251
V_MW = 252
V_MR = 253
V_KM = 254
V_T = 255
V_Z = V_PX + 8
V_MB = V_PX + 9

RETRY_MAX = 200000
ROT = True


def wacc(t):
    return V_ACC + 4 * t if t < 6 else V_VT + 4 * (t - 6)


class Timer:
    def __init__(self, a, on, trace=None):
        self.a = a
        self.on = on
        self.trace = trace

    def start(self):
        if not self.on:
            return
        a = self.a
        for i in range(16):
            a.I("s_mov_b32 s%d, 0" % (S_TM + 4 + i))
        a.I("s_memtime s[%d:%d]" % (S_TM, S_TM + 1))
        a.I("s_waitcnt lgkmcnt(0)")

    def stamp(self, idx):
        if self.trace is not None:
            a = self.a
            l = a.newlabel("tr")
            a.I("s_cmp_lg_u32 s%d, %d" % (S_STEP, self.trace + (1 if idx in (14, 13, 7, 8) else 0)))
            a.I("s_cbranch_scc1 %s" % l)
            a.I("s_memrealtime s[%d:%d]" % (S_TM + 2, S_TM + 3))
            a.I("s_waitcnt lgkmcnt(0)")
            a.I("s_mov_b32 s%d, s%d" % (S_TM + 4 + idx, S_TM + 2))
            a.label(l)
            return
        if not self.on:
            return
        a = self.a
        a.I("s_memtime s[%d:%d]" % (S_TM + 2, S_TM + 3))
        a.I("s_waitcnt lgkmcnt(0)")
        a.I("s_sub_u32 s%d, s%d, s%d" % (S_T0 + 7, S_TM + 2, S_TM))
        a.I("s_add_u32 s%d, s%d, s%d" % (S_TM + 4 + idx, S_TM + 4 + idx, S_T0 + 7))
        a.I("s_mov_b32 s%d, s%d" % (S_TM, S_TM + 2))


def lane_consts(a, w):
    T = V_MEM
    lane = V_T
    a.I("v_lshlrev_b32 %s, 4, %s" % (vr(V_L16), vr(lane)))
    a.I("v_add_u32 %s, %d, %s" % (vr(V_L16W), L_WO + w * 32768, vr(V_L16)))
    a.I("v_add_u32 %s, %d, %s" % (vr(V_K), L_K, vr(V_L16)))
    a.I("v_and_b32 %s, 15, %s" % (vr(T), vr(lane)))
    a.I("v_lshrrev_b32 %s, 4, %s" % (vr(T + 1), vr(lane)))
    a.I("v_mov_b32 %s, 0x4444" % vr(V_IDX))
    a.I("v_mov_b32 %s, 0xeeee" % vr(T + 2))
    a.I("v_and_b32 %s, 2, %s" % (vr(T + 3), vr(T)))
    a.I("v_cmp_ne_u32 vcc, 0, %s" % vr(T + 3))
    a.I("v_cndmask_b32 %s, %s, %s, vcc" % (vr(V_IDX), vr(V_IDX), vr(T + 2)))
    a.I("v_lshlrev_b32 %s, 13, %s" % (vr(T + 2), vr(T + 1)))
    a.I("v_lshrrev_b32 %s, 2, %s" % (vr(T + 3), vr(T)))
    a.I("v_lshl_add_u32 %s, %s, 11, %s" % (vr(T + 2), vr(T + 3), vr(T + 2)))
    a.I("v_mov_b32 %s, s%d" % (vr(T + 3), S_RANK))
    a.I("v_lshl_add_u32 %s, %s, 6, %s" % (vr(T + 2), vr(T + 3), vr(T + 2)))
    a.I("v_and_b32 %s, 3, %s" % (vr(T + 3), vr(T)))
    a.I("v_lshl_add_u32 %s, %s, 4, %s" % (vr(V_PS), vr(T + 3), vr(T + 2)))
    a.I("v_lshrrev_b32 %s, 2, %s" % (vr(T + 2), vr(T)))
    a.I("v_xor_b32 %s, %s, %s" % (vr(T + 2), vr(T + 2), vr(T + 1)))
    a.I("v_lshlrev_b32 %s, 3, %s" % (vr(T + 2), vr(T + 2)))
    a.I("v_lshl_add_u32 %s, %s, 5, %s" % (vr(T + 2), vr(T), vr(T + 2)))
    a.I("v_add_u32 %s, %d, %s" % (vr(V_MW), L_M + 1024 * w, vr(T + 2)))
    a.I("v_lshrrev_b32 %s, 2, %s" % (vr(T + 2), vr(T)))
    a.I("v_lshl_add_u32 %s, %s, 2, %s" % (vr(T + 2), vr(T + 1), vr(T + 2)))
    a.I("v_and_b32 %s, 3, %s" % (vr(T + 3), vr(T)))
    a.I("v_xor_b32 %s, %s, %s" % (vr(T + 3), vr(T + 3), vr(T + 1)))
    a.I("v_lshlrev_b32 %s, 3, %s" % (vr(T + 3), vr(T + 3)))
    a.I("v_lshl_add_u32 %s, %s, 5, %s" % (vr(T + 2), vr(T + 2), vr(T + 3)))
    a.I("v_add_u32 %s, %d, %s" % (vr(V_MR), L_M, vr(T + 2)))
    a.I("v_lshrrev_b32 %s, 2, %s" % (vr(T + 2), vr(T)))
    a.I("v_and_b32 %s, 1, %s" % (vr(T + 3), vr(T)))
    a.I("v_lshl_add_u32 %s, %s, 1, %s" % (vr(T + 2), vr(T + 2), vr(T + 3)))
    a.I("v_lshl_add_u32 %s, %s, 3, %s" % (vr(T + 2), vr(T + 1), vr(T + 2)))
    a.I("v_lshlrev_b32 %s, 4, %s" % (vr(T + 2), vr(T + 2)))
    a.I("v_mov_b32 %s, 0x%x" % (vr(T + 4), OOB))
    a.I("v_and_b32 %s, 2, %s" % (vr(T + 3), vr(T)))
    a.I("v_cmp_ne_u32 vcc, 0, %s" % vr(T + 3))
    a.I("v_cndmask_b32 %s, %s, %s, vcc" % (vr(V_KM), vr(T + 2), vr(T + 4)))
    s0, s1, s2 = S_T0, S_T0 + 1, S_T0 + 2
    a.I("s_lshr_b32 s%d, s%d, 3" % (s0, S_RANK))
    a.I("s_bfe_u32 s%d, s%d, 0x10002" % (s1, S_RANK))
    a.I("s_lshl_b32 s%d, s%d, 2" % (s1, s1))
    a.I("s_add_u32 s%d, s%d, s%d" % (s0, s0, s1))
    a.I("s_lshl_b32 s%d, s%d, 10" % (s0, s0))
    a.I("s_and_b32 s%d, s%d, 3" % (s1, S_RANK))
    a.I("s_lshl_b32 s%d, s%d, 6" % (s1, s1))
    a.I("s_add_u32 s%d, s%d, s%d" % (s0, s0, s1))
    a.I("s_add_u32 s%d, s%d, %d" % (s0, s0, w * 256))
    a.I("v_and_b32 %s, 3, %s" % (vr(T + 2), vr(T)))
    a.I("v_lshlrev_b32 %s, 4, %s" % (vr(T + 2), vr(T + 2)))
    a.I("v_lshrrev_b32 %s, 2, %s" % (vr(T + 3), vr(T)))
    a.I("v_lshl_add_u32 %s, %s, 3, %s" % (vr(T + 2), vr(T + 3), vr(T + 2)))
    a.I("v_lshrrev_b32 %s, 1, %s" % (vr(T + 3), vr(T + 1)))
    a.I("v_lshl_add_u32 %s, %s, 2, %s" % (vr(T + 2), vr(T + 3), vr(T + 2)))
    a.I("v_add_u32 %s, s%d, %s" % (vr(T + 2), s0, vr(T + 2)))
    a.I("v_and_b32 %s, 24, %s" % (vr(T + 3), vr(lane)))
    a.I("v_mov_b32 %s, 0x%x" % (vr(V_MS), OOB))
    a.I("v_cmp_eq_u32 vcc, 0, %s" % vr(T + 3))
    a.I("v_cndmask_b32 %s, %s, %s, vcc" % (vr(V_MS), vr(V_MS), vr(T + 2)))


def sel_addr(a, dst, tmp):
    a.I("v_lshrrev_b32 %s, 9, %s" % (vr(tmp), vr(V_L16)))
    a.I("v_mul_u32_u24 %s, 512, %s" % (vr(tmp), vr(tmp)))
    a.I("v_add3_u32 %s, %s, %s, s%d" % (vr(dst), vr(V_L16), vr(tmp), S_SEL))


def init_buffers(a, w, st_flags=""):
    T = V_MEM
    lane = V_T
    P = V_MEM + 8
    a.I("s_mov_b32 s%d, %d" % (S_SEL, L_SEL))
    for i in range(4):
        a.I("v_mov_b32 %s, -1" % vr(P + i))
    if True:
        s0, s1 = S_T0, S_T0 + 1
        a.I("v_and_b32 %s, 15, %s" % (vr(T), vr(lane)))
        a.I("v_lshrrev_b32 %s, 4, %s" % (vr(T + 1), vr(lane)))
        a.I("s_and_b32 s%d, s%d, 3" % (s0, S_RANK))
        a.I("s_lshl_b32 s%d, s%d, 11" % (s0, s0))
        a.I("s_lshr_b32 s%d, s%d, 2" % (s1, S_RANK))
        a.I("s_lshl_b32 s%d, s%d, 7" % (s1, s1))
        a.I("s_add_u32 s%d, s%d, s%d" % (s0, s0, s1))
        a.I("s_add_u32 s%d, s%d, %d" % (s0, s0, w * 8))
        a.I("v_and_b32 %s, 1, %s" % (vr(T + 2), vr(T)))
        a.I("v_lshlrev_b32 %s, 10, %s" % (vr(T + 2), vr(T + 2)))
        a.I("v_bfe_u32 %s, %s, 1, 2" % (vr(T + 3), vr(T)))
        a.I("v_lshl_add_u32 %s, %s, 5, %s" % (vr(T + 2), vr(T + 3), vr(T + 2)))
        a.I("v_lshrrev_b32 %s, 1, %s" % (vr(T + 3), vr(T + 1)))
        a.I("v_lshl_add_u32 %s, %s, 2, %s" % (vr(T + 2), vr(T + 3), vr(T + 2)))
        a.I("v_add_u32 %s, s%d, %s" % (vr(T + 2), s0, vr(T + 2)))
        a.I("s_mov_b32 s%d, s%d" % (S_W, S_PTR + 0))
        a.I("s_mov_b32 s%d, s%d" % (S_W + 1, S_PTR + 1))
        a.I("s_mov_b32 s%d, 8192" % (S_W + 2))
        a.I("buffer_load_dword %s, %s, s[%d:%d], 0 offen" % (vr(T + 4), vr(T + 2), S_W, S_W + 3))
        a.I("s_mov_b32 s%d, 0x%x" % (s0, WS_MEM))
        a.I("s_waitcnt vmcnt(0)")
        a.I("v_min_u32 %s, 0xfffffffe, %s" % (vr(T + 4), vr(T + 4)))
        a.I("buffer_store_dword %s, %s, s[%d:%d], s%d offen %s" % (vr(T + 4), vr(V_MS), S_WS, S_WS + 3, s0, st_flags))
        for i in range(3):
            a.I("s_add_u32 s%d, s%d, 8192" % (s0, s0))
            a.I("buffer_store_dword %s, %s, s[%d:%d], s%d offen %s" % (vr(P), vr(V_MS), S_WS, S_WS + 3, s0, st_flags))
        for ring in range(2):
            a.I("s_lshl_b32 s%d, s%d, 13" % (s0, S_RANK))
            a.I("s_add_u32 s%d, s%d, 0x%x" % (s0, s0, WS_PART + ring * 262144 + w * 2048))
            for m in range(2):
                a.I("buffer_store_dwordx4 %s, %s, s[%d:%d], s%d offen offset:%d %s"
                    % (vr(P, 4), vr(V_L16), S_WS, S_WS + 3, s0, m * 1024, st_flags))
    if w == 0:
        a.I("v_and_b32 %s, 1, %s" % (vr(T + 2), vr(T)))
        a.I("v_lshlrev_b32 %s, 4, %s" % (vr(T + 2), vr(T + 2)))
        a.I("v_mov_b32 %s, 0x3f80" % vr(T + 3))
        a.I("v_lshlrev_b32 %s, %s, %s" % (vr(T + 3), vr(T + 2), vr(T + 3)))
        a.I("v_lshrrev_b32 %s, 1, %s" % (vr(T + 2), vr(T)))
        for m in range(4):
            a.I("v_cmp_eq_u32 vcc, %d, %s" % (m, vr(T + 2)))
            a.I("v_cndmask_b32 %s, 0, %s, vcc" % (vr(T + 4 + m), vr(T + 3)))
        sel_addr(a, T + 2, T + 3)
        a.I("ds_write_b128 %s, %s" % (vr(T + 2), vr(T + 4, 4)))


def load_weights(a, w, wflags=""):
    lane = V_T
    T = V_MEM
    VO = V_MEM + 8
    TA = V_MEM + 12
    base = L_WO + w * 32768
    so = S_T0
    a.I("v_lshrrev_b32 %s, 2, %s" % (vr(T), vr(lane)))
    a.I("v_and_b32 %s, 3, %s" % (vr(T + 1), vr(lane)))
    a.I("s_lshl_b32 s%d, s%d, 8" % (so, S_RANK))
    a.I("s_add_u32 s%d, s%d, %d" % (so, so, w * 64))
    for v in range(4):
        a.I("v_xor_b32 %s, %d, %s" % (vr(T + 2), 2 * ((v >> 1) & 1), vr(T)))
        a.I("v_lshlrev_b32 %s, 13, %s" % (vr(T + 2), vr(T + 2)))
        a.I("v_xor_b32 %s, %d, %s" % (vr(T + 3), 2 * (v & 1), vr(T + 1)))
        a.I("v_lshl_add_u32 %s, %s, 4, %s" % (vr(T + 2), vr(T + 3), vr(T + 2)))
        a.I("v_add_u32 %s, s%d, %s" % (vr(VO + v), so, vr(T + 2)))
    gb, r, c = T, T + 1, T + 2
    a.I("v_lshrrev_b32 %s, 4, %s" % (vr(gb), vr(lane)))
    a.I("v_bfe_u32 %s, %s, 2, 2" % (vr(r), vr(lane)))
    a.I("v_and_b32 %s, 3, %s" % (vr(c), vr(lane)))
    t4, t5, t6, t7 = T + 3, T + 4, T + 5, T + 6
    for qb in range(2):
        for tau in range(2):
            a.I("v_and_b32 %s, 1, %s" % (vr(t4), vr(gb)))
            a.I("v_lshlrev_b32 %s, 5, %s" % (vr(t5), vr(t4)))
            a.I("v_xor_b32 %s, %d, %s" % (vr(t4), qb, vr(t4)))
            a.I("v_lshl_add_u32 %s, %s, 1, %s" % (vr(t5), vr(t4), vr(t5)))
            a.I("v_lshrrev_b32 %s, 1, %s" % (vr(t4), vr(gb)))
            a.I("v_lshl_add_u32 %s, %s, 2, %s" % (vr(t5), vr(t4), vr(t5)))
            a.I("v_and_b32 %s, 1, %s" % (vr(t4), vr(r)))
            a.I("v_add_u32 %s, %s, %s" % (vr(t5), vr(t4), vr(t5)))
            a.I("v_lshrrev_b32 %s, 1, %s" % (vr(t4), vr(r)))
            a.I("v_lshl_add_u32 %s, %s, 4, %s" % (vr(t5), vr(t4), vr(t5)))
            a.I("v_lshlrev_b32 %s, 6, %s" % (vr(t5), vr(t5)))
            a.I("v_xor_b32 %s, %d, %s" % (vr(t4), tau, vr(t4)))
            a.I("v_lshlrev_b32 %s, 1, %s" % (vr(t4), vr(t4)))
            a.I("v_lshrrev_b32 %s, 1, %s" % (vr(t6), vr(c)))
            a.I("v_add_u32 %s, %s, %s" % (vr(t4), vr(t4), vr(t6)))
            a.I("v_lshl_add_u32 %s, %s, 4, %s" % (vr(t5), vr(t4), vr(t5)))
            a.I("v_and_b32 %s, 1, %s" % (vr(t6), vr(c)))
            a.I("v_lshl_add_u32 %s, %s, 3, %s" % (vr(t5), vr(t6), vr(t5)))
            a.I("v_add_u32 %s, %d, %s" % (vr(TA + 2 * qb + tau), base, vr(t5)))

    def set_srd(ptr, nbytes):
        a.I("s_mov_b32 s%d, s%d" % (S_W, ptr))
        a.I("s_mov_b32 s%d, s%d" % (S_W + 1, ptr + 1))
        a.I("s_mov_b32 s%d, 0x%x" % (S_W + 2, nbytes))

    def dma_qkv(half):
        for i in range(16 * half, 16 * half + 16):
            a.I("s_mov_b32 m0, %d" % (base + i * 1024))
            a.I("s_mov_b32 s%d, 0x%x" % (so, i * 131072))
            a.I("buffer_load_dwordx4 %s, s[%d:%d], s%d offen %s lds" % (vr(VO + (i & 3)), S_W, S_W + 3, so, wflags))

    def tr_qkv(half, dst):
        for kappa in range(8):
            B = 128 * (kappa & 3) + 64 * (kappa >> 2)
            if (B >= 256) != (half == 1):
                continue
            for tau in range(2):
                for q in range(4):
                    off = (B + 8 * (q >> 1)) * 64
                    a.I("ds_read_b64_tr_b16 %s, %s offset:%d" % (dst(tau, kappa, q), vr(TA + 2 * (q & 1) + tau), off))

    dsts = [
        lambda tau, kappa, q: ar((0 + tau) * 64 + kappa * 8 + 2 * q, 2),
        lambda tau, kappa, q: ar((2 + tau) * 64 + kappa * 8 + 2 * q, 2),
        lambda tau, kappa, q: vr(V_VW + tau * 64 + kappa * 8 + 2 * q, 2),
    ]
    ptrs = [S_PTR + 2, S_PTR + 4, S_PTR + 6]
    WOV = V_MEM + 16
    a.I("v_lshrrev_b32 %s, 4, %s" % (vr(T), vr(lane)))
    a.I("v_and_b32 %s, 15, %s" % (vr(T + 1), vr(lane)))
    a.I("s_lshl_b32 s%d, s%d, 17" % (so, S_RANK))
    a.I("s_add_u32 s%d, s%d, %d" % (so, so, w * 256))
    for u in range(4):
        a.I("v_and_b32 %s, 1, %s" % (vr(T + 2), vr(T)))
        a.I("v_add_u32 %s, %d, %s" % (vr(T + 2), 2 * u, vr(T + 2)))
        a.I("v_lshlrev_b32 %s, 1, %s" % (vr(T + 2), vr(T + 2)))
        a.I("v_xor_b32 %s, %s, %s" % (vr(T + 2), vr(T + 2), vr(T + 1)))
        a.I("v_lshlrev_b32 %s, 4, %s" % (vr(T + 2), vr(T + 2)))
        a.I("v_lshl_add_u32 %s, %s, 10, %s" % (vr(T + 2), vr(T), vr(T + 2)))
        a.I("v_add_u32 %s, s%d, %s" % (vr(WOV + u), so, vr(T + 2)))

    def dma_wo(half):
        for i in range(16 * half, 16 * half + 16):
            u = ((i >> 2) & 1) + 2 * ((i >> 3) & 1)
            a.I("s_mov_b32 m0, %d" % (base + i * 1024))
            a.I("s_mov_b32 s%d, 0x%x" % (so, i * 4096))
            a.I("buffer_load_dwordx4 %s, s[%d:%d], s%d offen %s lds" % (vr(WOV + u), S_W, S_W + 3, so, wflags))

    set_srd(ptrs[0], 0x400000)
    dma_qkv(0)
    dma_qkv(1)
    for mi in range(3):
        a.I("s_waitcnt vmcnt(16)")
        tr_qkv(0, dsts[mi])
        a.I("s_waitcnt lgkmcnt(0)")
        if mi < 2:
            set_srd(ptrs[mi + 1], 0x400000)
            dma_qkv(0)
        else:
            set_srd(S_PTR + 8, 0x400000)
            dma_wo(0)
        a.I("s_waitcnt vmcnt(16)")
        tr_qkv(1, dsts[mi])
        a.I("s_waitcnt lgkmcnt(0)")
        if mi < 2:
            dma_qkv(1)
        else:
            dma_wo(1)
    WA = V_MEM + 20
    a.I("v_lshrrev_b32 %s, 4, %s" % (vr(gb), vr(lane)))
    a.I("v_bfe_u32 %s, %s, 2, 2" % (vr(r), vr(lane)))
    a.I("v_and_b32 %s, 3, %s" % (vr(c), vr(lane)))
    a.I("v_and_b32 %s, 1, %s" % (vr(t4), vr(gb)))
    a.I("v_lshl_add_u32 %s, %s, 2, %s" % (vr(t7), vr(t4), vr(r)))
    a.I("v_lshlrev_b32 %s, 5, %s" % (vr(t5), vr(t4)))
    a.I("v_lshrrev_b32 %s, 1, %s" % (vr(t4), vr(gb)))
    a.I("v_lshl_add_u32 %s, %s, 2, %s" % (vr(t5), vr(t4), vr(t5)))
    a.I("v_and_b32 %s, 1, %s" % (vr(t4), vr(r)))
    a.I("v_add_u32 %s, %s, %s" % (vr(t5), vr(t4), vr(t5)))
    a.I("v_lshrrev_b32 %s, 1, %s" % (vr(t4), vr(r)))
    a.I("v_lshl_add_u32 %s, %s, 4, %s" % (vr(t5), vr(t4), vr(t5)))
    a.I("v_lshlrev_b32 %s, 8, %s" % (vr(t5), vr(t5)))
    a.I("v_lshrrev_b32 %s, 1, %s" % (vr(t4), vr(c)))
    a.I("v_lshl_add_u32 %s, %s, 4, %s" % (vr(t5), vr(t4), vr(t5)))
    a.I("v_and_b32 %s, 1, %s" % (vr(t4), vr(c)))
    a.I("v_lshl_add_u32 %s, %s, 3, %s" % (vr(t5), vr(t4), vr(t5)))
    a.I("v_add_u32 %s, %d, %s" % (vr(t5), base, vr(t5)))
    for tau in range(8):
        a.I("v_xor_b32 %s, %d, %s" % (vr(t4), tau, vr(t7)))
        a.I("v_lshl_add_u32 %s, %s, 5, %s" % (vr(WA + tau), vr(t4), vr(t5)))
    ST = V_MEM + 32
    for xi in range(2):
        a.I("s_waitcnt vmcnt(%d)" % (16 if xi == 0 else 0))
        for tau in range(8):
            for q in range(4):
                off = (64 * xi + 8 * (q >> 1) + 2 * (q & 1)) * 256
                a.I("ds_read_b64_tr_b16 %s, %s offset:%d" % (vr(ST + tau * 8 + 2 * q, 2), vr(WA + tau), off))
        a.I("s_waitcnt lgkmcnt(0)")
        for tau in range(8):
            for hf in range(2):
                a.I("ds_write_b128 %s, %s offset:%d"
                    % (vr(V_L16W), vr(ST + tau * 8 + 4 * hf, 4), xi * 16384 + tau * 2048 + hf * 1024))
        a.I("s_waitcnt lgkmcnt(0)")


def wo_img_off(tau, xi, hf):
    return xi * 16384 + tau * 2048 + hf * 1024


def weave(a, main, fill, every=1, start=0):
    fill = list(fill)
    for i, m in enumerate(main):
        a.I(m)
        if i >= start:
            for _ in range(every):
                if fill:
                    a.I(fill.pop(0))
    for f in fill:
        a.I(f)


def check_insts(regs, tmp):
    regs = list(regs)
    if len(regs) == 2:
        L = ["v_max_u32 %s, %s, %s" % (vr(tmp), vr(regs[0]), vr(regs[1]))]
        rest = []
    else:
        L = ["v_max3_u32 %s, %s, %s, %s" % (vr(tmp), vr(regs[0]), vr(regs[1]), vr(regs[2]))]
        rest = regs[3:]
    while len(rest) >= 2:
        L.append("v_max3_u32 %s, %s, %s, %s" % (vr(tmp), vr(tmp), vr(rest[0]), vr(rest[1])))
        rest = rest[2:]
    if rest:
        L.append("v_max_u32 %s, %s, %s" % (vr(tmp), vr(tmp), vr(rest[0])))
    L.append("v_cmp_eq_u32 vcc, -1, %s" % vr(tmp))
    return L


def dump(a, w, base, n, slot=0):
    a.nops(12)
    a.I("s_lshl_b32 s%d, s%d, 16" % (S_T0, S_RANK))
    a.I("s_add_u32 s%d, s%d, 0x%x" % (S_T0, S_T0, 0x5000000 + w * 16384 + ((slot * 256) & ~4095)))
    a.I("v_lshrrev_b32 %s, 2, %s" % (vr(V_T), vr(V_L16)))
    for i in range(n):
        a.I("buffer_store_dword %s, %s, s[%d:%d], s%d offen offset:%d" % (vr(base + i), vr(V_T), S_WS, S_WS + 3, S_T0, ((slot + i) * 256) & 4095))
        if ((slot + i + 1) * 256) & 4095 == 0:
            a.I("s_add_u32 s%d, s%d, 4096" % (S_T0, S_T0))
    a.I("s_waitcnt vmcnt(0)")


def horizon_refresh(a, s_need, abort):
    ws = "s[%d:%d]" % (S_WS, S_WS + 3)
    Lq = a.newlabel("hq")
    Lx = a.newlabel("hx")
    a.I("s_cmp_ge_u32 s%d, 64" % s_need)
    a.I("s_cbranch_scc1 %s" % Lx)
    a.I("s_mov_b32 s%d, %d" % (S_RETRY, RETRY_MAX))
    a.label(Lq)
    a.I("buffer_load_dwordx4 %s, %s, %s, s%d offen offset:16 sc1" % (vr(V_S, 4), vr(V_Z), ws, S_PG))
    a.I("buffer_load_dwordx4 %s, %s, %s, s%d offen offset:32 sc1" % (vr(V_S + 4, 4), vr(V_Z), ws, S_PG))
    a.I("s_sub_u32 s%d, s%d, 1" % (S_RETRY, S_RETRY))
    a.I("s_cmp_eq_u32 s%d, 0" % S_RETRY)
    a.I("s_cbranch_scc1 %s" % abort)
    a.I("s_waitcnt vmcnt(0)")
    for i in range(4):
        a.I("v_cmp_eq_u32 vcc, s%d, %s" % (S_NONCE, vr(V_S + 2 * i + 1)))
        a.I("v_cndmask_b32 %s, 0, %s, vcc" % (vr(V_S + 2 * i), vr(V_S + 2 * i)))
    a.I("v_min_u32 %s, %s, %s" % (vr(V_S), vr(V_S), vr(V_S + 4)))
    a.I("v_min_u32 %s, %s, %s" % (vr(V_S + 1), vr(V_S + 2), vr(V_S + 6)))
    a.I("v_lshlrev_b32 %s, 1, %s" % (vr(V_S), vr(V_S)))
    a.I("v_lshl_add_u32 %s, %s, 1, 1" % (vr(V_S + 1), vr(V_S + 1)))
    a.I("v_min_u32 %s, %s, %s" % (vr(V_S), vr(V_S), vr(V_S + 1)))
    a.I("v_readfirstlane_b32 s%d, %s" % (S_HZ, vr(V_S)))
    a.I("s_cmp_lt_u32 s%d, s%d" % (s_need, S_HZ))
    a.I("s_cbranch_scc0 %s" % Lq)
    a.label(Lx)


def retry_block(a, label, target, abort):
    a.label(label)
    a.I("s_sub_u32 s%d, s%d, 1" % (S_RETRY, S_RETRY))
    a.I("s_cmp_lg_u32 s%d, 0" % S_RETRY)
    a.I("s_cbranch_scc1 %s" % target)
    a.I("s_branch %s" % abort)


def chain_loop(a, w, st_flags="", timing=False, abort="L_abort", stop_after=None, dbg=None,
               delay=0, exp="", rdelay=0, hooks=None, kvflags="sc1 nt", gap=24, rgap=24, trace=None, looptime=True, fused=False, nsets=2, rsets=2, tag=""):
    tm = Timer(a, timing, trace)
    ws = "s[%d:%d]" % (S_WS, S_WS + 3)
    MEM, ACC, KT, S, VT, PX = V_MEM, V_ACC, V_KT, V_S, V_VT, V_PX
    q = [ACC, ACC + 8]
    k = [ACC + 4, ACC + 12]
    v = [ACC + 16, ACC + 20]
    L_step = "L_step_w%d%s" % (w, tag)
    L_done = "L_done_w%d%s" % (w, tag)
    ool = []
    cool = []
    hzl = []

    def smf(acc, A, B):
        return "v_smfmac_f32_16x16x64_bf16 %s, %s, %s, %s" % (vr(acc, 4), A, B, vr(V_IDX))

    def mem_load(kap):
        return ("buffer_load_dwordx4 %s, %s, %s, s%d offen offset:%d sc1"
                % (vr(MEM + 4 * kap, 4), vr(V_L16), ws, S_MEM if kap < 4 else S_MEMHI, (kap & 3) * 1024))

    def qkw(mat, tau, kap):
        return ar((mat * 2 + tau) * 64 + kap * 8, 8)

    def chunk_check(kap):
        return ["v_max_u32 %s, %s, %s" % (vr(V_T), vr(MEM + 4 * kap), vr(MEM + 4 * kap + 2)),
                "v_cmp_eq_u32 vcc, -1, %s" % vr(V_T)]

    def emit_check(kap):
        lr = a.newlabel("cr%d" % kap)
        lb = a.newlabel("cb%d" % kap)
        a.I("s_waitcnt vmcnt(%d)" % (7 - kap))
        for x in chunk_check(kap):
            a.I(x)
        a.I("s_cbranch_vccnz %s" % lr)
        a.label(lb)
        cool.append((lr, kap, lb))

    def add2(d, x, y):
        return ["v_add_f32 %s, %s, %s" % (vr(d), vr(x), vr(y)),
                "v_add_f32 %s, %s, %s" % (vr(d + 1), vr(x + 1), vr(y + 1))]

    def qk_post(tau):
        return (add2(q[tau], q[tau], q[tau] + 2) + add2(k[tau], k[tau], k[tau] + 2) +
                ["v_cvt_pk_bf16_f32 %s, %s, %s" % (vr(q[tau] + 3), vr(q[tau]), vr(q[tau] + 1)),
                 "v_cvt_pk_bf16_f32 %s, %s, %s" % (vr(q[tau] + 2), vr(k[tau]), vr(k[tau] + 1)),
                 "ds_write_b64 %s, %s offset:%d" % (vr(V_MW), vr(q[tau] + 2, 2), 512 * tau)])

    def far_ops():
        L = []
        for tau in range(2):
            L.append(["buffer_load_dwordx4 %s, %s, %s, s%d offen offset:%d %s"
                      % (vr(VT + 4 * tau, 4), vr(V_L16), ws, S_VT, (tau) * 1024, kvflags)])
        L.append(["s_mov_b32 m0, s%d" % S_KB,
                  "buffer_load_dwordx4 %s, %s, s%d offen %s lds" % (vr(V_L16), ws, S_KT, kvflags)])
        L.append(["buffer_load_dwordx4 %s, %s, s%d offen offset:1024 %s lds" % (vr(V_L16), ws, S_KT, kvflags)])
        return L

    pois = ["buffer_store_dword %s, %s, %s, s%d offen %s" % (vr(S + 8), vr(V_MS), ws, S_T0 + 3, st_flags)]
    tm.start()
    if looptime:
        a.I("s_memrealtime s[92:93]")
        a.I("s_waitcnt lgkmcnt(0)")
    a.label(L_step, clear=True)
    own = [2 * w, 2 * w + 1]
    others = [x for x in range(8) if x not in own]
    sets = [KT, KT + 8, KT + 16, KT + 24]
    mbo = L_MB - L_M

    def qk4(kap, A=None):
        A = A or vr(MEM + 4 * kap, 4)
        return [smf(q[0], A, qkw(0, 0, kap)), smf(k[0], A, qkw(1, 0, kap)),
                smf(q[1], A, qkw(0, 1, kap)), smf(k[1], A, qkw(1, 1, kap))]

    def poll2(issue, oks, gap, cnt, check):
        n = len(oks)
        Lp = a.newlabel("pl")
        a.I("s_mov_b32 s%d, %d" % (S_RETRY, RETRY_MAX))
        for i in range(n - 1):
            issue(sets[i])
            if gap:
                a.nops(gap)
        a.label(Lp)
        for i in range(n):
            issue(sets[(i + n - 1) % n])
            a.I("s_waitcnt vmcnt(%d)" % (2 * (n - 1)))
            check(sets[i], oks[i])
        if timing:
            a.I("s_add_u32 s%d, s%d, 1" % (S_TM + 4 + cnt, S_TM + 4 + cnt))
        a.I("s_sub_u32 s%d, s%d, 1" % (S_RETRY, S_RETRY))
        a.I("s_cmp_lg_u32 s%d, 0" % S_RETRY)
        a.I("s_cbranch_scc1 %s" % Lp)
        a.I("s_branch %s" % abort)

    def check_poison(R, ok):
        for x in check_insts([R + i for i in range(8)], V_T):
            a.I(x)
        a.I("s_cbranch_vccz %s" % ok)

    def check_tag(R, ok):
        a.I("v_bitop3_b32 %s, %s, %s, s%d bitop3:0x7e" % (vr(V_T), vr(R), vr(R + 4), S_TAG))
        a.I("v_and_b32 %s, 1, %s" % (vr(V_T), vr(V_T)))
        a.I("v_cmp_ne_u32 vcc, 0, %s" % vr(V_T))
        a.I("s_cbranch_vccz %s" % ok)

    def issue_mem(R):
        for i, kap in enumerate(own):
            a.I("buffer_load_dwordx4 %s, %s, %s, s%d offen offset:%d sc1"
                % (vr(R + 4 * i, 4), vr(V_L16), ws, S_MEM if kap < 4 else S_MEMHI, (kap & 3) * 1024))
    if delay:
        a.nops(delay)
    oks = [a.newlabel("mok%d" % i) for i in range(nsets)]
    Lj = a.newlabel("mjoin")
    poll2(issue_mem, oks, gap, 9, check_poison)
    for si in range(nsets - 1, -1, -1):
        R = sets[si]
        a.label(oks[si], clear=True)
        tm.stamp(11)
        for i, kap in enumerate(own):
            a.I("ds_write_b128 %s, %s offset:%d" % (vr(V_MB), vr(R + 4 * i, 4), kap * 1024))
        m_own = qk4(own[0], vr(R, 4)) + qk4(own[1], vr(R + 4, 4))
        for m in m_own[:3]:
            a.I(m)
        a.I("s_waitcnt lgkmcnt(0)")
        a.I("s_barrier")
        tm.stamp(12)
        rd = ["ds_read_b128 %s, %s offset:%d" % (vr(MEM + 4 * kap, 4), vr(V_MB), kap * 1024) for kap in others + own]
        a.I(rd[0])
        a.I(rd[1])
        for j, m in enumerate(m_own[3:]):
            a.I(m)
            a.I(rd[2 + j])
        a.I(rd[7])
        if si != 0:
            a.I("s_branch %s" % Lj)
    a.label(Lj, clear=True)
    tm.stamp(0)
    a.I("s_waitcnt vmcnt(0)")
    if "latepois" in exp:
        for x in pois:
            a.I(x)
    if fused and w == 3:
        a.I("v_mov_b32 %s, s%d" % (vr(V_S), S_STEP))
        a.I("v_mov_b32 %s, s%d" % (vr(V_S + 1), S_NONCE))
        a.I("buffer_store_dwordx2 %s, %s, %s, s%d offen sc1" % (vr(V_S, 2), vr(V_Z), ws, S_CP))
    if "nocompute" in exp:
        a.I("s_waitcnt lgkmcnt(0)")
        for i in range(0, 24, 2):
            a.I("v_mov_b64 %s, 0" % vr(ACC + i, 2))
        a.I("v_mov_b32 %s, s%d" % (vr(ACC), S_TAG))
        a.I("v_mov_b32 %s, s%d" % (vr(ACC + 16), S_TAG))
        a.I("buffer_store_dwordx4 %s, %s, %s, s%d offen %s" % (vr(ACC, 4), vr(V_PS), ws, S_PW0, st_flags))
        a.I("buffer_store_dwordx4 %s, %s, %s, s%d offen %s" % (vr(ACC + 16, 4), vr(V_PS), ws, S_PW1, st_flags))
        a.I("s_branch L_skip_w%d%s" % (w, tag))
    lds_fill = []
    for T_ in range(2):
        for ks in range(4):
            lds_fill.append("ds_read_b128 %s, %s offset:%d" % (vr(KT + (T_ * 4 + ks) * 4, 4), vr(V_K), (T_ * 4 + ks) * 1024))
    if fused:
        Lh = a.newlabel("hz")
        Lb = a.newlabel("hzb")
        a.I("s_add_u32 s%d, s%d, 1" % (S_T0 + 5, S_STEP))
        a.I("s_cmp_ge_u32 s%d, s%d" % (S_T0 + 5, S_HZ))
        a.I("s_cbranch_scc1 %s" % Lh)
        a.label(Lb)
        hzl.append((Lh, Lb))
    far = far_ops() if "nofar" not in exp else []
    nissued = 0
    cnt = 0
    for j, kap in enumerate(others[:4]):
        a.I("s_waitcnt lgkmcnt(%d)" % min(15, 7 - j + nissued))
        for m in qk4(kap):
            a.I(m)
            if cnt % 2 == 0 and lds_fill:
                a.I(lds_fill.pop(0))
                nissued += 1
            elif cnt % 4 == 1 and far:
                for x in far.pop(0):
                    a.I(x)
            cnt += 1
    assert not lds_fill and not far
    k6, k7 = others[4], others[5]
    A6, A7 = vr(MEM + 4 * k6, 4), vr(MEM + 4 * k7, 4)
    a.I("s_waitcnt lgkmcnt(%d)" % min(15, nissued))
    a.I(smf(q[0], A6, qkw(0, 0, k6)))
    a.I(smf(k[0], A6, qkw(1, 0, k6)))
    a.I(smf(q[0], A7, qkw(0, 0, k7)))
    a.I(smf(k[0], A7, qkw(1, 0, k7)))
    tm.stamp(1)
    m1 = [smf(q[1], A6, qkw(0, 1, k6)), smf(k[1], A6, qkw(1, 1, k6)),
          smf(q[1], A7, qkw(0, 1, k7)), smf(k[1], A7, qkw(1, 1, k7))]
    vm = []
    for kap in range(8):
        for tau in range(2):
            vm.append(smf(v[tau], vr(MEM + 4 * kap, 4), vr(V_VW + tau * 64 + kap * 8, 8)))
    p0, p1 = qk_post(0), qk_post(1)
    a.I(m1[0])
    a.I(m1[1])
    a.I(m1[2])
    a.I(m1[3])
    a.I(vm[0])
    for x in p0[0:2]:
        a.I(x)
    a.I(vm[1])
    for x in p0[2:4]:
        a.I(x)
    a.I(vm[2])
    for x in p0[4:7]:
        a.I(x)
    for x in p1:
        a.I(x)
    a.I(vm[3])
    a.I(vm[4])
    a.I(vm[5])
    a.I("s_waitcnt lgkmcnt(0)")
    a.I("s_barrier")
    trs = ["ds_read_b64_tr_b16 %s, %s offset:%d" % (vr(ACC + 4 * ks + 2 * hh, 2), vr(V_MR), 1024 * ks + 512 * hh)
           for ks in range(4) for hh in range(2)]
    a.I(trs[0])
    a.I(trs[1])
    for i, m in enumerate(vm[6:16]):
        a.I(m)
        if 2 + i < 8:
            a.I(trs[2 + i])
    tm.stamp(2)
    order = [(tau, xi) for tau in range(8) for xi in range(2)]
    slots = [KT + 8 * i for i in range(4)] + [MEM + 8 * i for i in range(4)]

    def stage(n, slot):
        tau, xi = order[n]
        return ["ds_read_b128 %s, %s offset:%d" % (vr(slot + 4 * hf, 4), vr(V_L16W), wo_img_off(tau, xi, hf))
                for hf in range(2)]

    T1, T2, T0 = S, S + 4, S + 8
    sc = []
    for ks in range(4):
        M = vr(ACC + 4 * ks, 4)
        for (D, A) in ((T1, vr(KT + ks * 4, 4)), (T2, vr(KT + (4 + ks) * 4, 4)), (T0, M)):
            sc.append("v_mfma_f32_16x16x32_bf16 %s, %s, %s, %s" % (vr(D, 4), A, M, "0" if ks == 0 else vr(D, 4)))
    P0q, ones = ACC, ACC + 4
    stgM = []
    for n in range(4, 8):
        stgM += stage(n, slots[n])
    a.I("s_waitcnt lgkmcnt(0)")
    for j, m in enumerate(sc):
        a.I(m)
        if j < 8:
            a.I(stgM[j])
        if j == 9 and "nopub" not in exp:
            a.I("buffer_store_dwordx4 %s, %s, %s, s%d offen offset:%d sc1"
                % (vr(ACC + 4 * w, 4), vr(V_KM), ws, S_KM, w * 512))
    tm.stamp(3)
    if dbg == "S":
        dump(a, w, S, 12)
    mx, tt, nmc = ACC + 8, ACC + 9, ACC + 10
    rs = ACC + 12
    stg = []
    for n in range(0, 4):
        stg += stage(n, slots[n])
    sm = []
    sm.append("v_max3_f32 %s, %s, %s, %s" % (vr(mx), vr(S + 0), vr(S + 1), vr(S + 2)))
    sm.append("v_max3_f32 %s, %s, %s, %s" % (vr(tt), vr(S + 3), vr(S + 4), vr(S + 5)))
    sm.append("v_max3_f32 %s, %s, %s, %s" % (vr(mx), vr(mx), vr(S + 6), vr(S + 7)))
    sm.append("v_max3_f32 %s, %s, %s, %s" % (vr(tt), vr(tt), vr(S + 8), vr(S + 9)))
    sm.append("v_max_f32 %s, %s, %s" % (vr(mx), vr(mx), vr(tt)))
    sm.append("v_mov_b32 %s, %s" % (vr(tt), vr(mx)))
    sm.append(None)
    sm.append("v_permlane32_swap_b32 %s, %s" % (vr(mx), vr(tt)))
    sm.append("v_max_f32 %s, %s, %s" % (vr(mx), vr(mx), vr(tt)))
    sm.append("v_mov_b32 %s, %s" % (vr(tt), vr(mx)))
    sm.append(None)
    sm.append("v_permlane16_swap_b32 %s, %s" % (vr(mx), vr(tt)))
    sm.append("v_max_f32 %s, %s, %s" % (vr(mx), vr(mx), vr(tt)))
    sm.append("v_mul_f32 %s, s%d, %s" % (vr(nmc), S_NC, vr(mx)))
    for j in range(5):
        sm.append("v_pk_fma_f32 %s, %s, s[%d:%d], %s op_sel_hi:[1,0,0]"
                  % (vr(S + 2 * j, 2), vr(S + 2 * j, 2), S_C, S_C + 1, vr(nmc, 2)))
    for i in range(10):
        sm.append("v_exp_f32 %s, %s" % (vr(S + i), vr(S + i)))
    si = 0
    consts = ["v_mov_b64 %s, s[%d:%d]" % (vr(ones, 2), S_ONE, S_ONE + 1),
              "v_mov_b64 %s, s[%d:%d]" % (vr(ones + 2, 2), S_ONE, S_ONE + 1),
              "v_mov_b32 %s, 0" % vr(ACC + 1), "v_mov_b64 %s, 0" % vr(ACC + 2, 2)]
    for j, x in enumerate(sm):
        if x is None:
            a.I(stg[si])
            si += 1
            a.I(consts.pop(0))
            continue
        a.I(x)
        if j >= 14 and si < len(stg) and j % 3 == 0:
            a.I(stg[si])
            si += 1
    while si < len(stg):
        a.I(stg[si])
        si += 1
    for x in consts:
        a.I(x)
    for j in range(4):
        a.I("v_cvt_pk_bf16_f32 %s, %s, %s" % (vr(PX + j), vr(S + 2 * j), vr(S + 1 + 2 * j)))
    a.I("v_cvt_pk_bf16_f32 %s, %s, %s" % (vr(P0q), vr(S + 8), vr(S + 9)))
    tm.stamp(4)
    if dbg == "P":
        dump(a, w, PX, 10)
    O0, O1, OS = S, S + 4, S + 8
    P = vr(PX, 4)
    vp = add2(v[0], v[0], v[0] + 2) + add2(v[1], v[1], v[1] + 2)
    a.I(vp[0])
    a.I("v_mfma_f32_16x16x32_bf16 %s, %s, %s, 0" % (vr(OS, 4), P, vr(ones, 4)))
    a.I("s_waitcnt vmcnt(%d)" % (2 + (0 if "nopub" in exp else 1)))
    a.I(vp[1])
    a.I("v_mfma_f32_16x16x32_bf16 %s, %s, %s, 0" % (vr(O0, 4), P, vr(VT, 4)))
    a.I(vp[2])
    a.I("v_mfma_f32_16x16x32_bf16 %s, %s, %s, 0" % (vr(O1, 4), P, vr(VT + 4, 4)))
    a.I(vp[3])
    a.I("v_mfma_f32_16x16x32_bf16 %s, %s, %s, %s" % (vr(OS, 4), vr(P0q, 4), vr(ones, 4), vr(OS, 4)))
    a.I("v_cvt_pk_bf16_f32 %s, %s, %s" % (vr(PX + 4), vr(v[0]), vr(v[0] + 1)))
    a.I("v_cvt_pk_bf16_f32 %s, %s, %s" % (vr(PX + 6), vr(v[1]), vr(v[1] + 1)))
    a.I("v_lshrrev_b32 %s, 2, %s" % (vr(V_T), vr(V_L16)))
    a.I("v_mfma_f32_16x16x32_bf16 %s, %s, %s, %s" % (vr(O0, 4), vr(P0q, 4), vr(PX + 4, 4), vr(O0, 4)))
    a.I("v_mfma_f32_16x16x32_bf16 %s, %s, %s, %s" % (vr(O1, 4), vr(P0q, 4), vr(PX + 6, 4), vr(O1, 4)))
    if "nopub" not in exp:
        a.I("buffer_store_dword %s, %s, %s, s%d offen sc1" % (vr(PX + 4), vr(V_T), ws, S_VM))
        a.I("buffer_store_dword %s, %s, %s, s%d offen offset:256 sc1" % (vr(PX + 6), vr(V_T), ws, S_VM))
    a.I("v_rcp_f32 %s, %s" % (vr(rs), vr(OS + 2)))
    a.I("v_rcp_f32 %s, %s" % (vr(rs + 1), vr(OS + 3)))
    zl = []
    for tI in range(8):
        for r in range(0, 4, 2):
            zl.append("v_mov_b64 %s, 0" % vr(wacc(tI) + r, 2))
    a.I("v_mul_f32 %s, %s, %s" % (vr(O0 + 2), vr(O0 + 2), vr(rs)))
    a.I("v_mul_f32 %s, %s, %s" % (vr(O0 + 3), vr(O0 + 3), vr(rs + 1)))
    a.I("v_mul_f32 %s, %s, %s" % (vr(O1 + 2), vr(O1 + 2), vr(rs)))
    a.I("v_mul_f32 %s, %s, %s" % (vr(O1 + 3), vr(O1 + 3), vr(rs + 1)))
    a.I("v_cvt_pk_bf16_f32 %s, %s, %s" % (vr(S), vr(O0 + 2), vr(O0 + 3)))
    a.I("v_cvt_pk_bf16_f32 %s, %s, %s" % (vr(S + 1), vr(O1 + 2), vr(O1 + 3)))
    if dbg == "O":
        dump(a, w, S, 2)
    a.I("ds_write_b64 %s, %s offset:%d" % (vr(V_MW), vr(S, 2), O_OFF))
    for x in zl[4:12]:
        a.I(x)
    a.I("s_waitcnt lgkmcnt(0)")
    a.I("s_barrier")
    for xi in range(2):
        for hh in range(2):
            a.I("ds_read_b64_tr_b16 %s, %s offset:%d" % (vr(PX + 4 * xi + 2 * hh, 2), vr(V_MR), O_OFF + 2048 * xi + 1024 * hh))
    for x in zl[:4] + zl[12:]:
        a.I(x)
    a.I("s_waitcnt lgkmcnt(0)")
    tm.stamp(5)
    def post_tile(t):
        ta = wacc(t)
        dq = wacc(4 * (t >> 2)) + (t & 3)
        L = add2(ta, ta, ta + 2) + ["v_cvt_pk_bf16_f32 %s, %s, %s" % (vr(dq), vr(ta), vr(ta + 1))]
        if (t & 3) == 3:
            d0 = wacc(4 * (t >> 2))
            L.append("v_bfi_b32 %s, 1, s%d, %s" % (vr(d0), S_TAG, vr(d0)))
            L.append("buffer_store_dwordx4 %s, %s, %s, s%d offen %s"
                     % (vr(d0, 4), vr(V_PS), ws, S_PW0 if t == 3 else S_PW1, st_flags))
        return L
    pend = []
    seq = []
    todo = []
    for n8 in range(8, 16):
        todo += [(n8, x) for x in stage(n8, slots[n8 % 8])]
    for n in range(16):
        tau, xi = order[n]
        slot = slots[n % 8]
        if n >= 8:
            last = max(i for i, o in enumerate(seq) if o == n)
            a.I("s_waitcnt lgkmcnt(%d)" % (len(seq) - last - 1))
        a.I(smf(wacc(tau), vr(PX + 4 * xi, 4), vr(slot, 8)))
        target = min(16, 2 * (n + 1), (3 * (n + 1) + 1) // 2)
        while len(seq) < target:
            o, x = todo.pop(0)
            a.I(x)
            seq.append(o)
        if n >= 4 and n % 2 == 0:
            pend += post_tile((n - 4) // 2)
        for _ in range(1 if n < 10 else 2):
            if pend:
                a.I(pend.pop(0))
    for x in pend:
        a.I(x)
    for t_ in (6, 7):
        for x in post_tile(t_):
            a.I(x)
    a.label("L_skip_w%d%s" % (w, tag))
    tm.stamp(6)
    if "ack" in exp:
        a.I("s_waitcnt vmcnt(0)")
        tm.stamp(15)

    SEL = S
    D2 = S + 4
    sel_addr(a, V_T, SEL)
    a.I("ds_read_b128 %s, %s" % (vr(SEL, 4), vr(V_T)))
    for i in range(0, 24, 2):
        a.I("v_mov_b64 %s, 0" % vr(ACC + i, 2))
    a.I("s_add_u32 s%d, s%d, 262144" % (S_KT, S_KT))
    a.I("s_add_u32 s%d, s%d, 262144" % (S_VT, S_VT))
    a.I("s_add_u32 s%d, s%d, 65536" % (S_VM, S_VM))
    a.I("s_add_u32 s%d, s%d, 65536" % (S_KM, S_KM))
    a.I("s_add_u32 s%d, s%d, 1" % (S_STEP, S_STEP))
    a.I("s_xor_b32 s%d, s%d, 8192" % (S_KB, S_KB))
    a.I("v_xor_b32 %s, 8192, %s" % (vr(V_K), vr(V_K)))
    if rdelay:
        a.nops(rdelay)

    def issue_in(R):
        for m in range(2):
            a.I("buffer_load_dwordx4 %s, %s, %s, s%d offen offset:%d sc1"
                % (vr(R + 4 * m, 4), vr(V_L16), ws, S_PR, m * 1024))
    oks = [a.newlabel("rok%d" % i) for i in range(rsets)]
    Lj = a.newlabel("rjoin")
    a.I("s_waitcnt lgkmcnt(0)")
    tm.stamp(14)
    poll2(issue_in, oks, rgap, 10, check_tag)
    for si in range(rsets - 1, -1, -1):
        R = sets[si]
        a.label(oks[si], clear=True)
        tm.stamp(13)
        a.I("v_mfma_f32_16x16x32_bf16 %s, %s, %s, 0" % (vr(D2, 4), vr(R, 4), vr(SEL, 4)))
        a.I("v_mfma_f32_16x16x32_bf16 %s, %s, %s, %s" % (vr(D2, 4), vr(R + 4, 4), vr(SEL, 4), vr(D2, 4)))
        if si != 0:
            a.I("s_branch %s" % Lj)
    a.label(Lj)
    a.I("s_add_u32 s%d, s%d, 8192" % (S_MEM, S_MEM))
    a.I("s_and_b32 s%d, s%d, 0x%x" % (S_MEM, S_MEM, WS_MEM | 0x7fff))
    a.I("s_add_u32 s%d, s%d, 4096" % (S_MEMHI, S_MEM))
    a.I("s_add_u32 s%d, s%d, 2 * 8192" % (S_T0 + 3, S_MEM))
    a.I("s_and_b32 s%d, s%d, 0x%x" % (S_T0 + 3, S_T0 + 3, WS_MEM | 0x7fff))
    a.I("v_mov_b32 %s, -1" % vr(S + 8))
    a.nops(3)
    a.I("v_permlane32_swap_b32 %s, %s" % (vr(D2), vr(D2 + 2)))
    a.I("v_permlane32_swap_b32 %s, %s" % (vr(D2 + 1), vr(D2 + 3)))
    a.I("v_add_f32 %s, %s, %s" % (vr(D2), vr(D2), vr(D2 + 2)))
    a.I("v_add_f32 %s, %s, %s" % (vr(D2 + 1), vr(D2 + 1), vr(D2 + 3)))
    a.I("v_permlane16_swap_b32 %s, %s" % (vr(D2), vr(D2 + 1)))
    a.I("v_add_f32 %s, %s, %s" % (vr(D2), vr(D2), vr(D2 + 1)))
    a.I("v_mov_b32 %s, %s" % (vr(D2 + 1), vr(D2)))
    a.I("v_permlane16_swap_b32 %s, %s" % (vr(D2), vr(D2 + 1)))
    a.I("v_cvt_pk_bf16_f32 %s, %s, %s" % (vr(D2), vr(D2), vr(D2 + 1)))
    a.I("v_min_u32 %s, 0xfffffffe, %s" % (vr(D2), vr(D2)))
    a.I("buffer_store_dword %s, %s, %s, s%d offen %s" % (vr(D2), vr(V_MS), ws, S_MEM, st_flags))
    tm.stamp(7)
    if "latepois" not in exp:
        for x in pois:
            a.I(x)
    for s_ in (S_PW0, S_PW1, S_PR):
        a.I("s_xor_b32 s%d, s%d, 262144" % (s_, s_))
    a.I("s_bfe_u32 s%d, s%d, 0x10001" % (S_TAG, S_STEP))
    if "rtt" not in exp:
        tm.stamp(8)
    if stop_after is not None:
        a.I("s_cmp_eq_u32 s%d, %d" % (S_STEP, stop_after))
        a.I("s_cbranch_scc1 %s" % L_done)
    a.I("s_cmp_lg_u32 s%d, 63" % S_STEP)
    a.I("s_cbranch_scc1 %s" % L_step)
    a.I("s_mov_b32 s%d, %d" % (S_RETRY, RETRY_MAX))
    Lp = a.newlabel("lpoll")
    Lr = a.newlabel("lretry")
    a.label(Lp)
    for kap in range(8):
        a.I(mem_load(kap))
    a.I("s_waitcnt vmcnt(0)")
    for x in check_insts([MEM + i for i in range(32)], V_T):
        a.I(x)
    a.I("s_cbranch_vccnz %s" % Lr)
    ool.append((Lr, Lp))
    for kap in range(8):
        A = vr(MEM + 4 * kap, 4)
        a.I(smf(k[0], A, qkw(1, 0, kap)))
        a.I(smf(k[1], A, qkw(1, 1, kap)))
        a.I(smf(v[0], A, vr(V_VW + kap * 8, 8)))
        a.I(smf(v[1], A, vr(V_VW + 64 + kap * 8, 8)))
    for tau in range(2):
        for x in qk_post(tau):
            a.I(x)
    for x in add2(v[0], v[0], v[0] + 2) + add2(v[1], v[1], v[1] + 2):
        a.I(x)
    a.I("v_cvt_pk_bf16_f32 %s, %s, %s" % (vr(PX + 4), vr(v[0]), vr(v[0] + 1)))
    a.I("v_cvt_pk_bf16_f32 %s, %s, %s" % (vr(PX + 6), vr(v[1]), vr(v[1] + 1)))
    a.I("v_lshrrev_b32 %s, 2, %s" % (vr(V_T), vr(V_L16)))
    a.I("buffer_store_dword %s, %s, %s, s%d offen sc1" % (vr(PX + 4), vr(V_T), ws, S_VM))
    a.I("buffer_store_dword %s, %s, %s, s%d offen offset:256 sc1" % (vr(PX + 6), vr(V_T), ws, S_VM))
    a.I("s_waitcnt lgkmcnt(0)")
    a.I("s_barrier")
    if fused and w == 3:
        a.I("v_mov_b32 %s, 63" % vr(V_S))
        a.I("v_mov_b32 %s, s%d" % (vr(V_S + 1), S_NONCE))
        a.I("buffer_store_dwordx2 %s, %s, %s, s%d offen sc1" % (vr(V_S, 2), vr(V_Z), ws, S_CP))
    for hh in range(2):
        a.I("ds_read_b64_tr_b16 %s, %s offset:%d" % (vr(KT + 2 * hh, 2), vr(V_MR), 1024 * w + 512 * hh))
    a.I("s_waitcnt lgkmcnt(0)")
    a.I("buffer_store_dwordx4 %s, %s, %s, s%d offen offset:%d sc1" % (vr(KT, 4), vr(V_KM), ws, S_KM, w * 512))
    if fused:
        a.I("s_waitcnt vmcnt(0)")
        a.I("s_barrier")
        if w == 3:
            a.I("v_mov_b32 %s, 64" % vr(V_S))
            a.I("v_mov_b32 %s, s%d" % (vr(V_S + 1), S_NONCE))
            a.I("buffer_store_dwordx2 %s, %s, %s, s%d offen sc1" % (vr(V_S, 2), vr(V_Z), ws, S_CP))
    a.label(L_done, clear=True)
    a.I("s_waitcnt vmcnt(0) lgkmcnt(0)")
    if looptime and w == 0:
        a.I("s_memrealtime s[94:95]")
        a.I("s_waitcnt lgkmcnt(0)")
        a.I("s_sub_u32 s94, s94, s92")
        a.I("v_mov_b32 %s, s94" % vr(V_MEM))
        a.I("v_mov_b32 %s, s92" % vr(V_MEM + 1))
        a.I("s_lshl_b32 s%d, s%d, 3" % (S_T0, S_RANK))
        a.I("v_mov_b32 %s, s%d" % (vr(V_MEM + 2), S_T0))
        a.I("s_mov_b32 s%d, 0x%x" % (S_T0, WS_FLAGS + 0xc000))
        a.I("buffer_store_dwordx2 %s, %s, %s, s%d offen" % (vr(V_MEM, 2), vr(V_MEM + 2), ws, S_T0))
        a.I("s_waitcnt vmcnt(0)")
    if timing:
        Ls = a.newlabel("notm")
        if trace is None:
            a.I("s_cmp_lg_u32 s%d, 0" % S_RANK)
            a.I("s_cbranch_scc1 %s" % Ls)
        for i in range(16):
            a.I("v_mov_b32 %s, s%d" % (vr(V_MEM + i), S_TM + 4 + i))
        a.I("v_mov_b32 %s, 0" % vr(V_MEM + 16))
        a.I("s_lshl_b32 s%d, s%d, 8" % (S_T0, S_RANK))
        a.I("s_add_u32 s%d, s%d, 0x%x" % (S_T0, S_T0, WS_FLAGS + 0x8000 + w * 64))
        for i in range(16):
            a.I("buffer_store_dword %s, %s, %s, s%d offen offset:%d" % (vr(V_MEM + i), vr(V_MEM + 16), ws, S_T0, i * 4))
        a.I("s_waitcnt vmcnt(0)")
        a.label(Ls)
    Lend = a.newlabel("end")
    a.I("s_branch %s" % Lend)
    for (lab, tgt) in ool:
        retry_block(a, lab, tgt, abort)
    for (lh, lb) in hzl:
        a.label(lh, clear=True)
        horizon_refresh(a, S_T0 + 5, abort)
        a.I("s_branch %s" % lb)
    for (lr, kap, lb) in cool:
        a.label(lr, clear=True)
        lq = a.newlabel("cq")
        a.I("s_mov_b32 s%d, %d" % (S_RETRY, RETRY_MAX))
        a.label(lq)
        a.I(mem_load(kap))
        a.I("s_waitcnt vmcnt(0)")
        for x in chunk_check(kap):
            a.I(x)
        a.I("s_cbranch_vccz %s" % lb)
        a.I("s_sub_u32 s%d, s%d, 1" % (S_RETRY, S_RETRY))
        a.I("s_cmp_lg_u32 s%d, 0" % S_RETRY)
        a.I("s_cbranch_scc1 %s" % lq)
        a.I("s_branch %s" % abort)
    a.label(Lend, clear=True)


def loop_setup(a, w, fused=False, abort="L_abort"):
    r = S_RANK
    a.I("s_mov_b32 s%d, 0" % S_STEP)
    a.I("s_mov_b32 s%d, 0" % S_TAG)
    a.I("s_mov_b32 s%d, 0x%x" % (S_MEM, WS_MEM))
    a.I("s_mov_b32 s%d, 0x%x" % (S_MEMHI, WS_MEM + 4096))
    a.I("s_mov_b32 s%d, 0x%x" % (S_PW0, WS_PART + w * 65536))
    a.I("s_add_u32 s%d, s%d, 32768" % (S_PW1, S_PW0))
    a.I("s_lshl_b32 s%d, s%d, 13" % (S_PR, r))
    a.I("s_add_u32 s%d, s%d, 0x%x" % (S_PR, S_PR, WS_PART + w * 2048))
    a.I("s_lshl_b32 s%d, s%d, 13" % (S_KT, r))
    a.I("s_add_u32 s%d, s%d, 0x%x" % (S_VT, S_KT, WS_VT))
    a.I("s_add_u32 s%d, s%d, 0x%x" % (S_KT, S_KT, WS_KT))
    a.I("s_lshl_b32 s%d, s%d, 11" % (S_KM, r))
    a.I("s_add_u32 s%d, s%d, 0x%x" % (S_VM, S_KM, WS_VM + w * 512))
    a.I("s_add_u32 s%d, s%d, 0x%x" % (S_KM, S_KM, WS_KM))
    import struct
    c = struct.unpack("<I", struct.pack("<f", 128 ** -0.5 * 1.4426950408889634))[0]
    a.I("s_mov_b32 s%d, 0x%x" % (S_C, c))
    a.I("s_mov_b32 s%d, 0x%x" % (S_NC, c | 0x80000000))
    a.I("s_mov_b32 s%d, 0x3f803f80" % S_ONE)
    a.I("s_mov_b32 s%d, 0x3f803f80" % (S_ONE + 1))
    a.I("v_mov_b64 %s, 0" % vr(V_PX + 8, 2))
    if fused:
        a.I("s_lshl_b32 s%d, s%d, 6" % (S_PG, r))
        a.I("s_add_u32 s%d, s%d, 0x%x" % (S_PG, S_PG, FL_PROG))
        a.I("s_add_u32 s%d, s%d, 48" % (S_CP, S_PG))
        a.I("s_mov_b32 s%d, 0" % (S_T0 + 5))
        horizon_refresh(a, S_T0 + 5, abort)
    a.I("s_add_u32 s%d, s%d, %d" % (S_KT, S_KT, 2 * w * 1024))
    a.I("s_add_u32 s%d, s%d, %d" % (S_VT, S_VT, 2 * w * 1024))
    a.I("s_mov_b32 m0, %d" % (L_K + 2 * w * 1024))
    for p in range(2):
        a.I("buffer_load_dwordx4 %s, s[%d:%d], s%d offen offset:%d sc1 lds" % (vr(V_L16), S_WS, S_WS + 3, S_KT, p * 1024))
    a.I("s_add_u32 s%d, s%d, 262144" % (S_KT, S_KT))
    a.I("s_mov_b32 s%d, %d" % (S_KB, L_K + 8192 + 2 * w * 1024))
    for i in range(0, 24, 2):
        a.I("v_mov_b64 %s, 0" % vr(V_ACC + i, 2))
    a.I("v_mov_b64 %s, -1" % vr(V_S + 8, 2))
    a.I("v_mov_b64 %s, -1" % vr(V_S + 10, 2))
    a.I("s_mov_b32 s%d, 0x%x" % (S_T0 + 3, WS_MEM + 3 * 8192))
    a.I("v_mov_b64 %s, 0" % vr(V_PX + 8, 2))
    a.I("v_mov_b64 %s, 0" % vr(V_PX + 4, 2))
    a.I("v_mov_b64 %s, 0" % vr(V_PX + 6, 2))
    a.I("v_add_u32 %s, %d, %s" % (vr(V_MB), L_MB, vr(V_L16)))
```

```python
from common import *
from chain import WS_MOD, WS_H, WS_SIZE, OOB


def dpp_add(a, d, s, ctrl):
    a.I("v_add_f32_dpp %s, %s, %s %s row_mask:0xf bank_mask:0xf" % (vr(d), vr(s), vr(d), ctrl))


def mod_role(a, S_WS, S_A, S_B, s_colblk, s_wave, lane, pc, pw, lds_base, st="sc1", V0=16):
    srd(a, S_A, pw, 512 * 6144)
    srd(a, S_B, pc, 1024)
    T = V0
    ACC = V0 + 8
    W = V0 + 16
    CV = V0 + 80
    st0 = 90
    a.I("v_lshrrev_b32 %s, 3, %s" % (vr(T), vr(lane)))
    a.I("v_and_b32 %s, 7, %s" % (vr(T + 1), vr(lane)))
    a.I("s_lshl_b32 s%d, s%d, 7" % (st0, s_wave))
    a.I("v_add_u32 %s, s%d, %s" % (vr(T), st0, vr(T)))
    a.I("v_mul_u32_u24 %s, 6144, %s" % (vr(T + 2), vr(T)))
    a.I("v_lshl_add_u32 %s, %s, 4, %s" % (vr(T + 2), vr(T + 1), vr(T + 2)))
    a.I("s_lshl_b32 s%d, s%d, 7" % (st0 + 1, s_colblk))
    a.I("v_lshlrev_b32 %s, 1, %s" % (vr(T + 3), vr(T)))
    for i in range(16):
        a.I("s_add_u32 s%d, s%d, %d" % (st0 + 2, st0 + 1, i * 8 * 6144))
        a.I("buffer_load_dwordx4 %s, %s, s[%d:%d], s%d offen" % (vr(W + 4 * i, 4), vr(T + 2), S_A, S_A + 3, st0 + 2))
    for i in range(16):
        a.I("buffer_load_ushort %s, %s, s[%d:%d], 0 offen offset:%d" % (vr(CV + i), vr(T + 3), S_B, S_B + 3, i * 16))
    for i in range(8):
        a.I("v_mov_b32 %s, 0" % vr(ACC + i))
    a.I("s_waitcnt vmcnt(0)")
    for i in range(16):
        c = CV + i
        a.I("v_lshlrev_b32 %s, 16, %s" % (vr(c), vr(c)))
        a.I("v_mul_f32 %s, 0xbfb8aa3b, %s" % (vr(T + 4), vr(c)))
        a.I("v_exp_f32 %s, %s" % (vr(T + 4), vr(T + 4)))
        a.I("v_add_f32 %s, 1.0, %s" % (vr(T + 4), vr(T + 4)))
        a.I("v_rcp_f32 %s, %s" % (vr(T + 4), vr(T + 4)))
        a.I("v_mul_f32 %s, %s, %s" % (vr(c), vr(c), vr(T + 4)))
        rne_bf16(a, c, c, T + 4)
    for i in range(16):
        for j in range(4):
            w = W + 4 * i + j
            a.I("v_lshlrev_b32 %s, 16, %s" % (vr(T + 4), vr(w)))
            a.I("v_and_b32 %s, 0xffff0000, %s" % (vr(T + 5), vr(w)))
            a.I("v_fmac_f32 %s, %s, %s" % (vr(ACC + 2 * j), vr(T + 4), vr(CV + i)))
            a.I("v_fmac_f32 %s, %s, %s" % (vr(ACC + 2 * j + 1), vr(T + 5), vr(CV + i)))
    for j in range(8):
        dpp_add(a, ACC + j, ACC + j, "row_ror:8")
    for j in range(8):
        a.I("v_mov_b32 %s, %s" % (vr(T + 4), vr(ACC + j)))
        a.I("v_permlane16_swap_b32 %s, %s" % (vr(ACC + j), vr(T + 4)))
        a.I("v_add_f32 %s, %s, %s" % (vr(ACC + j), vr(ACC + j), vr(T + 4)))
        a.I("v_mov_b32 %s, %s" % (vr(T + 4), vr(ACC + j)))
        a.I("v_permlane32_swap_b32 %s, %s" % (vr(ACC + j), vr(T + 4)))
        a.I("v_add_f32 %s, %s, %s" % (vr(ACC + j), vr(ACC + j), vr(T + 4)))
    a.I("v_lshlrev_b32 %s, 5, %s" % (vr(T + 4), vr(T + 1)))
    a.I("s_lshl_b32 s%d, s%d, 8" % (st0, s_wave))
    a.I("s_add_u32 s%d, s%d, %d" % (st0, st0, lds_base))
    a.I("v_add_u32 %s, s%d, %s" % (vr(T + 4), st0, vr(T + 4)))
    a.I("ds_write_b128 %s, %s" % (vr(T + 4), vr(ACC, 4)))
    a.I("ds_write_b128 %s, %s offset:16" % (vr(T + 4), vr(ACC + 4, 4)))
    a.I("s_waitcnt lgkmcnt(0)")
    a.I("s_barrier")
    a.I("v_lshlrev_b32 %s, 2, %s" % (vr(T + 4), vr(lane)))
    a.I("v_add_u32 %s, %d, %s" % (vr(T + 5), lds_base, vr(T + 4)))
    for w in range(4):
        a.I("ds_read_b32 %s, %s offset:%d" % (vr(ACC + w), vr(T + 5), w * 256))
    a.I("s_waitcnt lgkmcnt(0)")
    a.I("v_add_f32 %s, %s, %s" % (vr(ACC), vr(ACC), vr(ACC + 1)))
    a.I("v_add_f32 %s, %s, %s" % (vr(ACC + 2), vr(ACC + 2), vr(ACC + 3)))
    a.I("v_add_f32 %s, %s, %s" % (vr(ACC), vr(ACC), vr(ACC + 2)))
    rne_bf16(a, ACC, ACC, T + 5)
    a.I("v_add_f32 %s, 1.0, %s" % (vr(ACC + 1), vr(ACC)))
    rne_bf16(a, ACC + 1, ACC + 1, T + 5)
    L = a.newlabel("modp")
    L2 = a.newlabel("modq")
    a.I("s_lshr_b32 s%d, s%d, 3" % (st0, s_colblk))
    a.I("s_cmp_eq_u32 s%d, 1" % st0)
    a.I("s_cbranch_scc1 %s" % L)
    a.I("s_cmp_eq_u32 s%d, 4" % st0)
    a.I("s_cbranch_scc0 %s" % L2)
    a.label(L)
    a.I("v_mov_b32 %s, %s" % (vr(ACC), vr(ACC + 1)))
    a.label(L2)
    a.I("s_lshl_b32 s%d, s%d, 8" % (st0, s_colblk))
    a.I("s_add_u32 s%d, s%d, 0x%x" % (st0, st0, WS_MOD))
    L3 = a.newlabel("modr")
    a.I("s_cmp_lg_u32 s%d, 0" % s_wave)
    a.I("s_cbranch_scc1 %s" % L3)
    a.I("buffer_store_dword %s, %s, s[%d:%d], s%d offen %s" % (vr(ACC), vr(T + 4), S_WS, S_WS + 3, st0, st))
    a.label(L3)
    a.I("s_waitcnt vmcnt(0)")
    a.I("s_barrier")


def ln_regs(V0, it):
    base = V0 + it * 96
    return base, base + 16, base + 32


def ln_stats(a, S_A, s_tok0, s_wave, lane, V0, it):
    T = V0 + it * 112
    X = T + 16
    F = T + 48
    st0 = 90
    a.I("v_lshrrev_b32 %s, 3, %s" % (vr(T), vr(lane)))
    a.I("v_and_b32 %s, 7, %s" % (vr(T + 1), vr(lane)))
    a.I("s_lshl_b32 s%d, s%d, 3" % (st0, s_wave))
    a.I("s_add_u32 s%d, s%d, s%d" % (st0, st0, s_tok0))
    a.I("v_add_u32 %s, s%d, %s" % (vr(T + 2), st0, vr(T)))
    a.I("v_lshlrev_b32 %s, 10, %s" % (vr(T + 3), vr(T + 2)))
    a.I("v_lshl_add_u32 %s, %s, 4, %s" % (vr(T + 3), vr(T + 1), vr(T + 3)))
    for i in range(8):
        a.I("buffer_load_dwordx4 %s, %s, s[%d:%d], 0 offen offset:%d" % (vr(X + 4 * i, 4), vr(T + 3), S_A, S_A + 3, i * 128))
    a.I("v_lshrrev_b32 %s, 5, %s" % (vr(T + 4), vr(T + 2)))
    a.I("v_lshlrev_b32 %s, 15, %s" % (vr(T + 4), vr(T + 4)))
    a.I("v_and_b32 %s, 31, %s" % (vr(T + 5), vr(T + 2)))
    a.I("v_lshl_add_u32 %s, %s, 4, %s" % (vr(T + 4), vr(T + 5), vr(T + 4)))
    a.I("v_lshrrev_b32 %s, 1, %s" % (vr(T + 5), vr(T + 1)))
    a.I("v_lshl_add_u32 %s, %s, 10, %s" % (vr(T + 4), vr(T + 5), vr(T + 4)))
    a.I("v_and_b32 %s, 1, %s" % (vr(T + 5), vr(T + 1)))
    a.I("v_lshl_add_u32 %s, %s, 9, %s" % (vr(T + 4), vr(T + 5), vr(T + 4)))
    a.I("v_lshlrev_b32 %s, 5, %s" % (vr(T + 5), vr(T + 1)))
    return T, X, F


def ln_stats2(a, T, X, F):
    for i in range(32):
        a.I("v_lshlrev_b32 %s, 16, %s" % (vr(F + 2 * i), vr(X + i)))
        a.I("v_and_b32 %s, 0xffff0000, %s" % (vr(F + 2 * i + 1), vr(X + i)))
    S0, S1 = T + 6, T + 7
    a.I("v_add_f32 %s, %s, %s" % (vr(S1), vr(F), vr(F + 1)))
    a.I("v_add_f32 %s, %s, %s" % (vr(S0), vr(F + 2), vr(F + 3)))
    for i in range(4, 64, 2):
        a.I("v_add_f32 %s, %s, %s" % (vr(S1), vr(S1), vr(F + i)))
        a.I("v_add_f32 %s, %s, %s" % (vr(S0), vr(S0), vr(F + i + 1)))
    a.I("v_add_f32 %s, %s, %s" % (vr(S1), vr(S1), vr(S0)))

    def red8(r):
        dpp_add(a, r, r, "quad_perm:[1,0,3,2]")
        dpp_add(a, r, r, "quad_perm:[2,3,0,1]")
        dpp_add(a, r, r, "row_half_mirror")
    red8(S1)
    a.I("v_mul_f32 %s, 0x3b000000, %s" % (vr(S1), vr(S1)))
    rne_bf16(a, S0, S1, T + 8)
    V = T + 8
    a.I("v_sub_f32 %s, %s, %s" % (vr(T + 9), vr(F), vr(S1)))
    a.I("v_mul_f32 %s, %s, %s" % (vr(V), vr(T + 9), vr(T + 9)))
    a.I("v_sub_f32 %s, %s, %s" % (vr(T + 10), vr(F + 1), vr(S1)))
    a.I("v_mul_f32 %s, %s, %s" % (vr(T + 11), vr(T + 10), vr(T + 10)))
    for i in range(2, 64, 2):
        a.I("v_sub_f32 %s, %s, %s" % (vr(T + 9), vr(F + i), vr(S1)))
        a.I("v_sub_f32 %s, %s, %s" % (vr(T + 10), vr(F + i + 1), vr(S1)))
        a.I("v_fmac_f32 %s, %s, %s" % (vr(V), vr(T + 9), vr(T + 9)))
        a.I("v_fmac_f32 %s, %s, %s" % (vr(T + 11), vr(T + 10), vr(T + 10)))
    a.I("v_add_f32 %s, %s, %s" % (vr(V), vr(V), vr(T + 11)))
    red8(V)
    a.I("v_mul_f32 %s, 0x3b000000, %s" % (vr(V), vr(V)))
    rne_bf16(a, V, V, T + 9)
    a.I("v_add_f32 %s, 0x3727c5ac, %s" % (vr(V), vr(V)))
    rne_bf16(a, V, V, T + 9)
    a.I("v_sqrt_f32 %s, %s" % (vr(V), vr(V)))
    rne_bf16(a, V, V, T + 9)
    a.I("v_rcp_f32 %s, %s" % (vr(V), vr(V)))


def ln_apply(a, S_WS, T, X, F, lds_mod, CA, st="sc1"):
    S0, V = T + 6, T + 8
    st0 = 90
    a.I("v_add_u32 %s, %d, %s" % (vr(T + 12), lds_mod, vr(T + 5)))
    a.I("s_mov_b32 s%d, 0x%x" % (st0 + 3, WS_H))
    for i in range(8):
        c = CA + 16 * (i & 1)
        for hq in range(2):
            a.I("ds_read_b128 %s, %s offset:%d" % (vr(c + 4 * hq, 4), vr(T + 12), i * 256 + 16 * hq))
            a.I("ds_read_b128 %s, %s offset:%d" % (vr(c + 8 + 4 * hq, 4), vr(T + 12), 2048 + i * 256 + 16 * hq))
        for j in range(8):
            f = F + 8 * i + j
            a.I("v_sub_f32 %s, %s, %s" % (vr(f), vr(f), vr(S0)))
            a.I("v_mul_f32 %s, %s, %s" % (vr(f), vr(f), vr(V)))
        a.I("s_waitcnt lgkmcnt(0)")
        for j in range(8):
            f = F + 8 * i + j
            a.I("v_fma_f32 %s, %s, %s, %s" % (vr(f), vr(f), vr(c + 8 + j), vr(c + j)))
        for j in range(4):
            a.I("v_cvt_pk_bf16_f32 %s, %s, %s" % (vr(X + 4 * i + j), vr(F + 8 * i + 2 * j), vr(F + 8 * i + 2 * j + 1)))
        a.I("s_add_u32 s%d, s%d, %d" % (st0 + 4, st0 + 3, i * 4096))
        a.I("buffer_store_dwordx4 %s, %s, s[%d:%d], s%d offen %s" % (vr(X + 4 * i, 4), vr(T + 4), S_WS, S_WS + 3, st0 + 4, st))


def mod_to_lds(a, S_WS, s_wave, lane, lds_mod, vt):
    a.I("v_lshlrev_b32 %s, 4, %s" % (vr(vt), vr(lane)))
    a.I("s_lshl_b32 s90, s%d, 10" % s_wave)
    a.I("s_add_u32 m0, s90, %d" % lds_mod)
    a.I("s_add_u32 s90, s90, 0x%x" % WS_MOD)
    a.I("buffer_load_dwordx4 %s, s[%d:%d], s90 offen sc1 lds" % (vr(vt), S_WS, S_WS + 3))
    a.I("s_waitcnt vmcnt(0)")
    a.I("s_barrier")
```

```python
import struct
from common import *
from chain import WS_MOD, WS_KT, WS_VT, WS_QT, WS_KM, WS_VM, WS_TAIL, WS_SIZE, OOB, FL_TAIL, FL_PROG, FL_MOD, S_NONCE

G_STRIDE = 0x400000
G_INB1, G_INB2, G_H2, G_FLAG = 0, 0x100000, 0x200000, 0x210000

L_O2 = 0
L_ROW = 8192
L_ST = L_ROW + 2048 + 64
L_F = 12288
L_SELT = 16384
L_H2 = 32768

A_WO, A_W2, A_W1 = 0, 128, 176
S_SEG, S_IT, S_GB, S_T = 36, 37, 38, 40
S_TOK = 48
S_C2, S_NC2 = 64, 65
S_BASE_Q, S_BASE_M = 66, 67
S_GF = 39
V_L16, V_LANE, V_KMR, V_DELTA, V_O2W, V_P1, V_R1, V_ROWW, V_TID2, V_H2W, V_FW, V_L4 = range(2, 14)
SEL = 16
ZQ = 20
ONES = 36
QO = 40
KO = 56
VO = 104
SS = 120
PP = 132
TT = 140
DO = 160
AO = 40
WA = 0
ACC = 192
MODR = 80
V_GA, V_CB, V_SB, V_GB, V_X1 = 14, 15, 0, 0, 0


def wave_allreduce_add(a, r, t):
    for ctrl in ("quad_perm:[1,0,3,2]", "quad_perm:[2,3,0,1]", "row_half_mirror", "row_mirror"):
        a.I("v_add_f32_dpp %s, %s, %s %s row_mask:0xf bank_mask:0xf" % (vr(r), vr(r), vr(r), ctrl))
    a.I("v_mov_b32 %s, %s" % (vr(t), vr(r)))
    a.I("v_permlane16_swap_b32 %s, %s" % (vr(r), vr(t)))
    a.I("v_add_f32 %s, %s, %s" % (vr(r), vr(r), vr(t)))
    a.I("v_mov_b32 %s, %s" % (vr(t), vr(r)))
    a.I("v_permlane32_swap_b32 %s, %s" % (vr(r), vr(t)))
    a.I("v_add_f32 %s, %s, %s" % (vr(r), vr(r), vr(t)))


def rbf(a, d, s):
    a.I("v_cvt_pk_bf16_f32 %s, %s, %s" % (vr(d), vr(s), vr(s)))
    a.I("v_and_b32 %s, 0xffff0000, %s" % (vr(d), vr(d)))


def tail_setup(a, w, S_WS, S_A, s_rank, s_group, pWo, pW1, pW2):
    ws = "s[%d:%d]" % (S_WS, S_WS + 3)
    T = TT
    lane = V_LANE
    qt, eh = w & 1, w >> 1
    s0, s1, s2 = S_T, S_T + 1, S_T + 2
    a.I("v_lshlrev_b32 %s, 4, %s" % (vr(V_L16), vr(lane)))
    a.I("v_lshlrev_b32 %s, 2, %s" % (vr(V_L4), vr(lane)))
    a.I("v_and_b32 %s, 15, %s" % (vr(T), vr(lane)))
    a.I("v_lshrrev_b32 %s, 4, %s" % (vr(T + 1), vr(lane)))
    a.I("v_lshrrev_b32 %s, 2, %s" % (vr(T + 2), vr(T)))
    a.I("v_and_b32 %s, 1, %s" % (vr(T + 3), vr(T)))
    a.I("v_lshl_add_u32 %s, %s, 1, %s" % (vr(T + 2), vr(T + 2), vr(T + 3)))
    a.I("v_lshl_add_u32 %s, %s, 3, %s" % (vr(T + 2), vr(T + 1), vr(T + 2)))
    a.I("v_lshlrev_b32 %s, 4, %s" % (vr(V_KMR), vr(T + 2)))
    a.I("v_lshlrev_b32 %s, 2, %s" % (vr(T + 2), vr(T + 1)))
    a.I("v_sub_u32 %s, %s, %s" % (vr(V_DELTA), vr(T), vr(T + 2)))
    a.I("v_lshrrev_b32 %s, 1, %s" % (vr(T + 2), vr(T + 1)))
    a.I("v_lshlrev_b32 %s, 6, %s" % (vr(T + 2), vr(T + 2)))
    a.I("v_and_b32 %s, 1, %s" % (vr(T + 3), vr(T + 1)))
    a.I("v_lshl_add_u32 %s, %s, 5, %s" % (vr(T + 2), vr(T + 3), vr(T + 2)))
    a.I("v_add3_u32 %s, %s, %s, %d" % (vr(T + 2), vr(T + 2), vr(T), 16 * qt))
    a.I("v_lshlrev_b32 %s, 4, %s" % (vr(T + 2), vr(T + 2)))
    a.I("v_add_u32 %s, %d, %s" % (vr(V_O2W), L_O2, vr(T + 2)))
    a.I("v_lshrrev_b32 %s, 5, %s" % (vr(T + 2), vr(lane)))
    a.I("v_lshlrev_b32 %s, 17, %s" % (vr(T + 2), vr(T + 2)))
    a.I("v_and_b32 %s, 31, %s" % (vr(T + 3), vr(lane)))
    a.I("v_lshl_add_u32 %s, %s, 2, %s" % (vr(V_P1), vr(T + 3), vr(T + 2)))
    a.I("v_lshlrev_b32 %s, 10, %s" % (vr(T + 2), vr(T + 1)))
    a.I("v_lshl_add_u32 %s, %s, 4, %s" % (vr(V_R1), vr(T), vr(T + 2)))
    a.I("v_lshrrev_b32 %s, 1, %s" % (vr(T + 2), vr(T + 1)))
    a.I("v_lshlrev_b32 %s, 6, %s" % (vr(T + 2), vr(T + 2)))
    a.I("v_and_b32 %s, 1, %s" % (vr(T + 3), vr(T)))
    a.I("v_lshl_add_u32 %s, %s, 5, %s" % (vr(T + 2), vr(T + 3), vr(T + 2)))
    a.I("v_and_b32 %s, 1, %s" % (vr(T + 3), vr(T + 1)))
    a.I("v_lshl_add_u32 %s, %s, 4, %s" % (vr(T + 2), vr(T + 3), vr(T + 2)))
    a.I("v_lshrrev_b32 %s, 1, %s" % (vr(T + 3), vr(T)))
    a.I("v_add3_u32 %s, %s, %s, %d" % (vr(T + 2), vr(T + 2), vr(T + 3), 0))
    a.I("v_add_u32 %s, %d, %s" % (vr(T + 2), 128 * w, vr(T + 2)))
    a.I("v_lshlrev_b32 %s, 2, %s" % (vr(T + 2), vr(T + 2)))
    a.I("v_add_u32 %s, %d, %s" % (vr(T + 2), L_ROW, vr(T + 2)))
    a.I("v_mov_b32 %s, %d" % (vr(V_ROWW), L_ROW + 2048))
    a.I("v_cmp_gt_u32 vcc, 8, %s" % vr(T))
    a.I("v_cndmask_b32 %s, %s, %s, vcc" % (vr(V_ROWW), vr(V_ROWW), vr(T + 2)))
    a.I("v_add_u32 %s, %d, %s" % (vr(T + 2), 64 * w, vr(lane)))
    a.I("v_lshlrev_b32 %s, 2, %s" % (vr(V_TID2), vr(T + 2)))
    a.I("v_lshrrev_b32 %s, 4, %s" % (vr(T + 3), vr(T + 2)))
    a.I("v_lshlrev_b32 %s, 10, %s" % (vr(T + 3), vr(T + 3)))
    a.I("v_bfe_u32 %s, %s, 2, 2" % (vr(T + 4), vr(T + 2)))
    a.I("v_lshl_add_u32 %s, %s, 8, %s" % (vr(T + 3), vr(T + 4), vr(T + 3)))
    a.I("v_and_b32 %s, 3, %s" % (vr(T + 4), vr(T + 2)))
    a.I("v_lshl_add_u32 %s, %s, 2, %s" % (vr(T + 3), vr(T + 4), vr(T + 3)))
    a.I("s_lshr_b32 s%d, s%d, 4" % (s0, s_rank))
    a.I("s_lshl_b32 s%d, s%d, 14" % (s0, s0))
    a.I("s_and_b32 s%d, s%d, 15" % (s1, s_rank))
    a.I("s_lshl_b32 s%d, s%d, 4" % (s1, s1))
    a.I("s_add_u32 s%d, s%d, s%d" % (s0, s0, s1))
    a.I("v_add_u32 %s, s%d, %s" % (vr(V_H2W), s0, vr(T + 3)))
    a.I("v_lshrrev_b32 %s, 1, %s" % (vr(T + 2), vr(T + 1)))
    a.I("v_lshlrev_b32 %s, 5, %s" % (vr(T + 2), vr(T + 2)))
    a.I("v_add_u32 %s, %s, %s" % (vr(T + 2), vr(T + 2), vr(T)))
    a.I("v_lshlrev_b32 %s, 4, %s" % (vr(T + 2), vr(T + 2)))
    a.I("v_and_b32 %s, 1, %s" % (vr(T + 3), vr(T + 1)))
    a.I("v_lshl_add_u32 %s, %s, 3, %s" % (vr(T + 2), vr(T + 3), vr(T + 2)))
    a.I("v_add_u32 %s, %d, %s" % (vr(V_FW), L_F + w * 1024, vr(T + 2)))
    a.I("v_and_b32 %s, 1, %s" % (vr(T + 2), vr(T)))
    a.I("v_lshlrev_b32 %s, 4, %s" % (vr(T + 2), vr(T + 2)))
    a.I("v_mov_b32 %s, 0x3f80" % vr(T + 3))
    a.I("v_lshlrev_b32 %s, %s, %s" % (vr(T + 3), vr(T + 2), vr(T + 3)))
    a.I("v_lshrrev_b32 %s, 1, %s" % (vr(T + 2), vr(T)))
    for m in range(4):
        a.I("v_cmp_eq_u32 vcc, %d, %s" % (m, vr(T + 2)))
        a.I("v_cndmask_b32 %s, 0, %s, vcc" % (vr(SEL + m), vr(T + 3)))
    for i in range(16):
        a.I("v_mov_b32 %s, 0" % vr(ZQ + i))
    for i in range(4):
        a.I("v_mov_b32 %s, 0x3f803f80" % vr(ONES + i))
    for i in range(8):
        a.I("v_mov_b32 %s, 0" % vr(PP + i))
    for r in range(16):
        a.I("s_mov_b32 s%d, %d" % (S_TOK + r, ((r & 3) + 8 * (r >> 2)) * 32768))
    c = struct.unpack("<I", struct.pack("<f", 128 ** -0.5 * 1.4426950408889634))[0]
    a.I("s_mov_b32 s%d, 0x%x" % (S_C2, c))
    a.I("s_mov_b32 s%d, 0x%x" % (S_NC2, c | 0x80000000))
    a.I("s_mul_i32 s%d, s%d, 0x%x" % (S_GB, s_group, G_STRIDE))
    a.I("s_add_u32 s%d, s%d, 0x%x" % (S_GB, S_GB, WS_TAIL))
    a.I("s_lshl_b32 s%d, s%d, 10" % (S_GF, s_group))
    a.I("s_add_u32 s%d, s%d, 0x%x" % (S_GF, S_GF, FL_TAIL))
    base = w * 32768
    VOFF, VTA = T + 6, T + 7
    a.I("v_lshlrev_b32 %s, 10, %s" % (vr(T + 2), vr(T + 1)))
    a.I("v_lshl_add_u32 %s, %s, 4, %s" % (vr(T + 2), vr(T), vr(T + 2)))
    srd(a, S_A, pWo, 0x400000)
    a.I("s_lshl_b32 s%d, s%d, 17" % (s0, s_rank))
    a.I("s_add_u32 s%d, s%d, %d" % (s0, s0, w * 256))
    a.I("v_add_u32 %s, s%d, %s" % (vr(VOFF), s0, vr(T + 2)))
    for i in range(32):
        a.I("s_mov_b32 m0, %d" % (base + i * 1024))
        a.I("s_mov_b32 s%d, %d" % (s1, i * 4096))
        a.I("buffer_load_dwordx4 %s, s[%d:%d], s%d offen lds" % (vr(VOFF), S_A, S_A + 3, s1))
    a.I("v_bfe_u32 %s, %s, 2, 2" % (vr(T + 3), vr(lane)))
    a.I("v_lshrrev_b32 %s, 5, %s" % (vr(T + 4), vr(lane)))
    a.I("v_bfe_u32 %s, %s, 4, 1" % (vr(T + 5), vr(lane)))
    a.I("v_lshlrev_b32 %s, 5, %s" % (vr(T + 5), vr(T + 5)))
    a.I("v_and_b32 %s, 3, %s" % (vr(T + 8), vr(lane)))
    a.I("v_lshl_add_u32 %s, %s, 3, %s" % (vr(T + 5), vr(T + 8), vr(T + 5)))
    a.I("v_lshl_add_u32 %s, %s, 2, %s" % (vr(T + 8), vr(T + 4), vr(T + 3)))
    a.I("v_lshl_add_u32 %s, %s, 8, %s" % (vr(T + 8), vr(T + 8), vr(T + 5)))
    a.I("v_add_u32 %s, %d, %s" % (vr(VTA), base, vr(T + 8)))
    a.I("v_lshl_add_u32 %s, %s, 3, %s" % (vr(T + 8), vr(T + 4), vr(T + 3)))
    a.I("v_lshl_add_u32 %s, %s, 8, %s" % (vr(T + 8), vr(T + 8), vr(T + 5)))
    a.I("v_add_u32 %s, %d, %s" % (vr(T + 9), base, vr(T + 8)))
    a.I("s_waitcnt vmcnt(0)")
    for nu in range(4):
        for ks in range(8):
            for hh in range(2):
                row = 32 * (ks >> 1) + 16 * hh + 8 * (ks & 1)
                a.I("ds_read_b64_tr_b16 %s, %s offset:%d" % (ar(A_WO + (nu * 8 + ks) * 4 + 2 * hh, 2), vr(VTA), row * 256 + nu * 64))
    a.I("s_waitcnt lgkmcnt(0)")
    srd(a, S_A, pW2, 1376 * 1024)
    a.I("s_mul_i32 s%d, s%d, %d" % (s0, s_rank, 48 * 1024))
    a.I("s_add_u32 s%d, s%d, %d" % (s0, s0, w * 256))
    a.I("v_add_u32 %s, s%d, %s" % (vr(VOFF), s0, vr(T + 2)))
    for i in range(12):
        a.I("s_mov_b32 m0, %d" % (base + i * 1024))
        a.I("s_mov_b32 s%d, %d" % (s1, i * 4096))
        a.I("buffer_load_dwordx4 %s, s[%d:%d], s%d offen lds" % (vr(VOFF), S_A, S_A + 3, s1))
    if w < 3:
        a.I("v_lshrrev_b32 %s, 1, %s" % (vr(T + 10), vr(lane)))
        a.I("v_mul_u32_u24 %s, 2752, %s" % (vr(T + 10), vr(T + 10)))
        a.I("v_and_b32 %s, 1, %s" % (vr(T + 11), vr(lane)))
        a.I("s_mul_i32 s%d, s%d, 48" % (s0, s_rank))
        a.I("s_add_u32 s%d, s%d, %d" % (s0, s0, 16 * w))
        a.I("v_lshl_add_u32 %s, %s, 3, s%d" % (vr(T + 11), vr(T + 11), s0))
        a.I("v_lshl_add_u32 %s, %s, 1, %s" % (vr(T + 10), vr(T + 11), vr(T + 10)))
        a.I("v_mov_b32 %s, 0x%x" % (vr(T + 12), OOB))
        a.I("v_cmp_gt_u32 vcc, 1376, %s" % vr(T + 11))
        a.I("v_cndmask_b32 %s, %s, %s, vcc" % (vr(T + 10), vr(T + 12), vr(T + 10)))
    a.I("s_waitcnt vmcnt(0)")
    for nu in range(4):
        for ks in range(3):
            for hh in range(2):
                a.I("ds_read_b64_tr_b16 %s, %s offset:%d" % (ar(A_W2 + (nu * 3 + ks) * 4 + 2 * hh, 2), vr(T + 9), (16 * ks + 4 * hh) * 256 + nu * 64))
    a.I("s_waitcnt lgkmcnt(0)")
    if w < 3:
        srd(a, S_A, pW1, 512 * 2752)
        for i in range(16):
            a.I("s_mov_b32 m0, %d" % (base + i * 1024))
            a.I("s_mov_b32 s%d, %d" % (s1, i * 32 * 2752))
            a.I("buffer_load_dwordx4 %s, s[%d:%d], s%d offen lds" % (vr(T + 10), S_A, S_A + 3, s1))
        a.I("v_lshl_add_u32 %s, %s, 3, %s" % (vr(T + 11), vr(T + 1), vr(T + 3)))
        a.I("v_lshlrev_b32 %s, 5, %s" % (vr(T + 11), vr(T + 11)))
        a.I("v_and_b32 %s, 3, %s" % (vr(T + 12), vr(lane)))
        a.I("v_lshl_add_u32 %s, %s, 3, %s" % (vr(T + 11), vr(T + 12), vr(T + 11)))
        a.I("v_add_u32 %s, %d, %s" % (vr(T + 11), base, vr(T + 11)))
        a.I("s_waitcnt vmcnt(0)")
        for ks in range(16):
            for hh in range(2):
                a.I("ds_read_b64_tr_b16 %s, %s offset:%d" % (ar(A_W1 + ks * 4 + 2 * hh, 2), vr(T + 11), (32 * ks + 4 * hh) * 32))
        a.I("s_waitcnt lgkmcnt(0)")
    a.I("s_barrier")


V_MODS = 240


def signal(a, w, S_WS, s_rank, flag_off, st):
    ws = "s[%d:%d]" % (S_WS, S_WS + 3)
    a.I("s_waitcnt vmcnt(0)")
    a.I("s_barrier")
    if w == 0:
        a.I("s_lshl_b32 s%d, s%d, 3" % (S_T, s_rank))
        a.I("s_add_u32 s%d, s%d, s%d" % (S_T, S_T, S_GF))
        a.I("s_add_u32 s%d, s%d, 0x%x" % (S_T, S_T, flag_off))
        a.I("s_add_u32 s%d, s%d, 1" % (S_T + 1, S_IT))
        a.I("v_mov_b32 %s, s%d" % (vr(TT), S_T + 1))
        a.I("v_mov_b32 %s, s%d" % (vr(TT + 1), S_NONCE))
        a.I("v_mov_b32 %s, 0" % vr(TT + 2))
        a.I("s_mov_b64 exec, 1")
        a.I("buffer_store_dwordx2 %s, %s, %s, s%d offen %s" % (vr(TT, 2), vr(TT + 2), ws, S_T, st))
        a.I("s_mov_b64 exec, -1")


def wait_flags(a, w, S_WS, flag_off, abort, n=32):
    if w == 0:
        a.I("s_add_u32 s%d, s%d, 0x%x" % (S_T, S_GF, flag_off))
        a.I("s_add_u32 s%d, s%d, 1" % (S_T + 1, S_IT))
        a.I("v_lshlrev_b32 %s, 1, %s" % (vr(TT + 3), vr(V_L4)))
        a.I("v_and_b32 %s, 255, %s" % (vr(TT + 3), vr(TT + 3)))
        a.I("v_mov_b32 %s, s%d" % (vr(TT + 2), S_T + 1))
        poll_lanes(a, S_WS, S_T, TT + 3, TT + 2, TT, S_T + 2, abort)
    a.I("s_barrier")


def reduce_rows(a, w, S_WS, s_rank, inb):
    ws = "s[%d:%d]" % (S_WS, S_WS + 3)
    a.I("s_lshl_b32 s%d, s%d, 15" % (S_T, s_rank))
    a.I("s_add_u32 s%d, s%d, s%d" % (S_T, S_T, S_GB))
    a.I("s_add_u32 s%d, s%d, 0x%x" % (S_T, S_T, inb + w * 256))
    for m in range(8):
        a.I("s_add_u32 s%d, s%d, %d" % (S_T + 1, S_T, m * 4096))
        a.I("buffer_load_dwordx4 %s, %s, %s, s%d offen sc1" % (vr(AO + 4 * m, 4), vr(V_R1), ws, S_T + 1))
    D2 = DO
    for m in range(8):
        a.I("s_waitcnt vmcnt(%d)" % (7 - m))
        a.I("v_mfma_f32_16x16x32_bf16 %s, %s, %s, %s" % (vr(D2, 4), vr(AO + 4 * m, 4), vr(SEL, 4), "0" if m == 0 else vr(D2, 4)))
    for r in range(4):
        a.I("ds_write_b32 %s, %s offset:%d" % (vr(V_ROWW), vr(D2 + r), r * 16))
    a.I("s_waitcnt lgkmcnt(0)")
    a.I("s_barrier")
    a.I("v_lshlrev_b32 %s, 1, %s" % (vr(TT + 7), vr(V_TID2)))
    a.I("ds_read_b64 %s, %s offset:%d" % (vr(TT + 8, 2), vr(TT + 7), L_ROW))
    a.I("s_waitcnt lgkmcnt(0)")


def store_partials(a, w, S_WS, s_rank, inb, st):
    ws = "s[%d:%d]" % (S_WS, S_WS + 3)
    a.I("s_lshl_b32 s%d, s%d, 10" % (S_T, s_rank))
    a.I("s_add_u32 s%d, s%d, s%d" % (S_T, S_T, S_GB))
    a.I("s_add_u32 s%d, s%d, 0x%x" % (S_T, S_T, inb + w * 256))
    for pi in range(2):
        for r in range(16):
            d = AO + (r & 7)
            a.I("v_cvt_pk_bf16_f32 %s, %s, %s" % (vr(d), vr(ACC + 32 * pi + r), vr(ACC + 32 * pi + 16 + r)))
            a.I("s_add_u32 s%d, s%d, s%d" % (S_T + 1 + (r & 1), S_T, S_TOK + r))
            a.I("buffer_store_dword %s, %s, %s, s%d offen offset:%d %s" % (vr(d), vr(V_P1), ws, S_T + 1 + (r & 1), pi * 128, st))


def tail_loop(a, w, S_WS, S_A, S_B, s_rank, pX, pOut, stride, st="", abort="L_abort", hooks=None, tag="t"):
    ws = "s[%d:%d]" % (S_WS, S_WS + 3)
    qt, eh = w & 1, w >> 1
    xs = "s[%d:%d]" % (S_A, S_A + 3)
    os_ = "s[%d:%d]" % (S_B, S_B + 3)
    srd(a, S_A, pX, 2048 * 1024)
    srd(a, S_B, pOut, 2048 * 1024)
    A_GA, A_SB, A_CB, A_GB, A_X1 = 240, 242, 244, 246, 248
    if hooks and "wait_mod" in hooks:
        hooks["wait_mod"](a, w)
    a.I("v_lshlrev_b32 %s, 1, %s" % (vr(TT), vr(V_TID2)))
    for (part, areg) in ((2, A_GA), (3, A_SB), (4, A_CB), (5, A_GB)):
        a.I("s_mov_b32 s%d, 0x%x" % (S_T, WS_MOD + part * 2048))
        a.I("buffer_load_dwordx2 %s, %s, %s, s%d offen sc1" % (ar(areg, 2), vr(TT), ws, S_T))
    a.I("s_waitcnt vmcnt(0)")
    Lp = "L_tail_w%d_%s" % (w, tag)
    Le = "L_tailend_w%d_%s" % (w, tag)
    a.label(Lp, clear=True)
    a.I("s_cmp_ge_u32 s%d, 64" % S_SEG)
    a.I("s_cbranch_scc1 %s" % Le)
    if hooks and "wait_inputs" in hooks:
        hooks["wait_inputs"](a, w)
    a.I("s_lshl_b32 s%d, s%d, 5" % (S_T, S_SEG))
    a.I("s_add_u32 s%d, s%d, s%d" % (S_T, S_T, s_rank))
    a.I("s_lshl_b32 s%d, s%d, 13" % (S_BASE_Q, S_T))
    a.I("s_lshl_b32 s%d, s%d, 11" % (S_BASE_M, S_T))
    t0, t1 = S_T + 1, S_T + 2
    a.I("s_add_u32 s%d, s%d, 0x%x" % (t0, S_BASE_Q, WS_QT + qt * 4096))
    for ks in range(4):
        a.I("buffer_load_dwordx4 %s, %s, %s, s%d offen offset:%d sc1" % (vr(QO + 4 * ks, 4), vr(V_L16), ws, t0, ks * 1024))
    a.I("s_add_u32 s%d, s%d, 0x%x" % (t0, S_BASE_Q, WS_KT))
    for ks in range(4):
        a.I("buffer_load_dwordx4 %s, %s, %s, s%d offen offset:%d sc1" % (vr(KO + 16 + 4 * ks, 4), vr(V_L16), ws, t0, ks * 1024))
    if qt == 1:
        a.I("s_add_u32 s%d, s%d, 0x%x" % (t0, S_BASE_Q, WS_KT + 4096))
        for ks in range(4):
            a.I("buffer_load_dwordx4 %s, %s, %s, s%d offen offset:%d sc1" % (vr(KO + 32 + 4 * ks, 4), vr(V_L16), ws, t0, ks * 1024))
    a.I("s_add_u32 s%d, s%d, 0x%x" % (t0, S_BASE_Q, WS_VT + eh * 4096))
    for j in range(4):
        a.I("buffer_load_dwordx4 %s, %s, %s, s%d offen offset:%d sc1" % (vr(VO + 4 * j, 4), vr(V_L16), ws, t0, j * 1024))
    a.I("s_lshl_b32 s%d, s%d, 10" % (t0, S_T))
    a.I("buffer_load_dword %s, %s, %s, s%d offen" % (vr(TT + 12), vr(V_TID2), xs, t0))
    if hooks and "wait_chain" in hooks:
        hooks["wait_chain"](a, w)
    a.I("s_add_u32 s%d, s%d, 0x%x" % (t1, S_BASE_M, WS_KM))
    for ks in range(4):
        a.I("buffer_load_dwordx4 %s, %s, %s, s%d offen offset:%d sc1" % (vr(KO + 4 * ks, 4), vr(V_KMR), ws, t1, ks * 512))
    a.I("s_add_u32 s%d, s%d, 0x%x" % (t1, S_BASE_M, WS_VM + eh * 1024))
    for j in range(4):
        a.I("buffer_load_dword %s, %s, %s, s%d offen offset:%d sc1" % (vr(ZQ + 4 * j), vr(V_L4), ws, t1, j * 256))
    a.I("s_waitcnt vmcnt(0)")
    Sm, S0, S1 = SS, SS + 4, SS + 8
    for ks in range(4):
        B = vr(QO + 4 * ks, 4)
        a.I("v_mfma_f32_16x16x32_bf16 %s, %s, %s, %s" % (vr(Sm, 4), vr(KO + 4 * ks, 4), B, "0" if ks == 0 else vr(Sm, 4)))
        a.I("v_mfma_f32_16x16x32_bf16 %s, %s, %s, %s" % (vr(S0, 4), vr(KO + 16 + 4 * ks, 4), B, "0" if ks == 0 else vr(S0, 4)))
        if qt == 1:
            a.I("v_mfma_f32_16x16x32_bf16 %s, %s, %s, %s" % (vr(S1, 4), vr(KO + 32 + 4 * ks, 4), B, "0" if ks == 0 else vr(S1, 4)))
    Sd = S0 if qt == 0 else S1
    ninf, mx, tt, nmc = TT, TT + 1, TT + 2, TT + 3
    a.I("v_mov_b32 %s, 0xff800000" % vr(ninf))
    for r in range(4):
        a.I("v_cmp_le_i32 vcc, %d, %s" % (r, vr(V_DELTA)))
        a.I("v_cndmask_b32 %s, %s, %s, vcc" % (vr(Sd + r), vr(ninf), vr(Sd + r)))
    vals = [Sm, Sm + 1] + [S0 + r for r in range(4)] + ([S1 + r for r in range(4)] if qt == 1 else [])
    a.I("v_max3_f32 %s, %s, %s, %s" % (vr(mx), vr(vals[0]), vr(vals[1]), vr(vals[2])))
    rest = vals[3:]
    while len(rest) >= 2:
        a.I("v_max3_f32 %s, %s, %s, %s" % (vr(mx), vr(mx), vr(rest[0]), vr(rest[1])))
        rest = rest[2:]
    if rest:
        a.I("v_max_f32 %s, %s, %s" % (vr(mx), vr(mx), vr(rest[0])))
    a.I("v_mov_b32 %s, %s" % (vr(tt), vr(mx)))
    a.I("v_permlane32_swap_b32 %s, %s" % (vr(mx), vr(tt)))
    a.I("v_max_f32 %s, %s, %s" % (vr(mx), vr(mx), vr(tt)))
    a.I("v_mov_b32 %s, %s" % (vr(tt), vr(mx)))
    a.I("v_permlane16_swap_b32 %s, %s" % (vr(mx), vr(tt)))
    a.I("v_max_f32 %s, %s, %s" % (vr(mx), vr(mx), vr(tt)))
    a.I("v_mul_f32 %s, s%d, %s" % (vr(nmc), S_NC2, vr(mx)))
    for x in vals:
        a.I("v_fma_f32 %s, %s, s%d, %s" % (vr(x), vr(x), S_C2, vr(nmc)))
    for x in vals:
        a.I("v_exp_f32 %s, %s" % (vr(x), vr(x)))
    a.I("v_cvt_pk_bf16_f32 %s, %s, %s" % (vr(PP), vr(S0), vr(S0 + 1)))
    a.I("v_cvt_pk_bf16_f32 %s, %s, %s" % (vr(PP + 1), vr(S0 + 2), vr(S0 + 3)))
    if qt == 1:
        a.I("v_cvt_pk_bf16_f32 %s, %s, %s" % (vr(PP + 2), vr(S1), vr(S1 + 1)))
        a.I("v_cvt_pk_bf16_f32 %s, %s, %s" % (vr(PP + 3), vr(S1 + 2), vr(S1 + 3)))
    a.I("v_cvt_pk_bf16_f32 %s, %s, %s" % (vr(PP + 4), vr(Sm), vr(Sm + 1)))
    P, P0 = vr(PP, 4), vr(PP + 4, 4)
    DS = DO + 16
    a.I("v_mfma_f32_16x16x32_bf16 %s, %s, %s, 0" % (vr(DS, 4), vr(ONES, 4), P))
    a.I("v_mfma_f32_16x16x32_bf16 %s, %s, %s, %s" % (vr(DS, 4), vr(ONES, 4), P0, vr(DS, 4)))
    for j in range(4):
        a.I("v_mfma_f32_16x16x32_bf16 %s, %s, %s, 0" % (vr(DO + 4 * j, 4), vr(VO + 4 * j, 4), P))
    for j in range(4):
        a.I("v_mfma_f32_16x16x32_bf16 %s, %s, %s, %s" % (vr(DO + 4 * j, 4), vr(ZQ + 4 * j, 4), P0, vr(DO + 4 * j, 4)))
    a.I("v_rcp_f32 %s, %s" % (vr(tt), vr(DS)))
    for i in range(16):
        a.I("v_mul_f32 %s, %s, %s" % (vr(DO + i), vr(DO + i), vr(tt)))
    for pp in range(2):
        for i in range(4):
            a.I("v_cvt_pk_bf16_f32 %s, %s, %s" % (vr(AO + 4 * pp + i), vr(DO + 8 * pp + 2 * i), vr(DO + 8 * pp + 2 * i + 1)))
        a.I("ds_write_b128 %s, %s offset:%d" % (vr(V_O2W), vr(AO + 4 * pp, 4), 2 * (2 * eh + pp) * 1024))
    a.I("s_waitcnt lgkmcnt(0)")
    a.I("s_barrier")
    for ks in range(8):
        a.I("ds_read_b128 %s, %s offset:%d" % (vr(AO + 4 * ks, 4), vr(V_L16), L_O2 + ks * 1024))
    for ks in range(8):
        a.I("s_waitcnt lgkmcnt(%d)" % (7 - ks))
        for nu in range(4):
            a.I("v_mfma_f32_32x32x16_bf16 %s, %s, %s, %s"
                % (vr(ACC + 16 * nu, 16), vr(AO + 4 * ks, 4), ar(A_WO + (nu * 8 + ks) * 4, 4), "0" if ks == 0 else vr(ACC + 16 * nu, 16)))
    store_partials(a, w, S_WS, s_rank, G_INB1, st)
    signal(a, w, S_WS, s_rank, 0, st)
    wait_flags(a, w, S_WS, 0, abort)
    reduce_rows(a, w, S_WS, s_rank, G_INB1)
    A0, A1 = TT + 8, TT + 9
    x0, x1 = TT + 10, TT + 11
    g0, g1 = TT + 4, TT + 5
    a.I("v_lshlrev_b32 %s, 16, %s" % (vr(x0), vr(TT + 12)))
    a.I("v_and_b32 %s, 0xffff0000, %s" % (vr(x1), vr(TT + 12)))
    a.I("v_accvgpr_read_b32 %s, %s" % (vr(g0), ar(A_GA)))
    a.I("v_accvgpr_read_b32 %s, %s" % (vr(g1), ar(A_GA + 1)))
    for (A_, g_, x_) in ((A0, g0, x0), (A1, g1, x1)):
        rbf(a, A_, A_)
        a.I("v_mul_f32 %s, %s, %s" % (vr(A_), vr(A_), vr(g_)))
        rbf(a, A_, A_)
        a.I("v_add_f32 %s, %s, %s" % (vr(x_), vr(x_), vr(A_)))
        rbf(a, x_, x_)
    a.I("v_accvgpr_write_b32 %s, %s" % (ar(A_X1), vr(x0)))
    a.I("v_accvgpr_write_b32 %s, %s" % (ar(A_X1 + 1), vr(x1)))
    s1_, s2_ = TT + 16, TT + 17
    a.I("v_add_f32 %s, %s, %s" % (vr(s1_), vr(x0), vr(x1)))
    a.I("v_mul_f32 %s, %s, %s" % (vr(s2_), vr(x0), vr(x0)))
    a.I("v_fmac_f32 %s, %s, %s" % (vr(s2_), vr(x1), vr(x1)))
    wave_allreduce_add(a, s1_, TT + 15)
    wave_allreduce_add(a, s2_, TT + 15)
    a.I("v_mov_b32 %s, %d" % (vr(TT + 15), L_ST + w * 8))
    a.I("ds_write_b64 %s, %s" % (vr(TT + 15), vr(s1_, 2)))
    a.I("s_waitcnt lgkmcnt(0)")
    a.I("s_barrier")
    a.I("v_mov_b32 %s, %d" % (vr(TT + 15), L_ST))
    a.I("ds_read_b128 %s, %s" % (vr(DO, 4), vr(TT + 15)))
    a.I("ds_read_b128 %s, %s offset:16" % (vr(DO + 4, 4), vr(TT + 15)))
    a.I("s_waitcnt lgkmcnt(0)")
    a.I("v_add_f32 %s, %s, %s" % (vr(s1_), vr(DO), vr(DO + 2)))
    a.I("v_add_f32 %s, %s, %s" % (vr(s2_), vr(DO + 1), vr(DO + 3)))
    a.I("v_add_f32 %s, %s, %s" % (vr(s1_), vr(s1_), vr(DO + 4)))
    a.I("v_add_f32 %s, %s, %s" % (vr(s2_), vr(s2_), vr(DO + 5)))
    a.I("v_add_f32 %s, %s, %s" % (vr(s1_), vr(s1_), vr(DO + 6)))
    a.I("v_add_f32 %s, %s, %s" % (vr(s2_), vr(s2_), vr(DO + 7)))
    a.I("v_mul_f32 %s, 0x3b000000, %s" % (vr(s1_), vr(s1_)))
    a.I("v_mul_f32 %s, 0x3b000000, %s" % (vr(s2_), vr(s2_)))
    a.I("v_fma_f32 %s, -%s, %s, %s" % (vr(s2_), vr(s1_), vr(s1_), vr(s2_)))
    a.I("v_max_f32 %s, 0, %s" % (vr(s2_), vr(s2_)))
    rbf(a, s1_, s1_)
    rbf(a, s2_, s2_)
    a.I("v_add_f32 %s, 0x3727c5ac, %s" % (vr(s2_), vr(s2_)))
    rbf(a, s2_, s2_)
    a.I("v_sqrt_f32 %s, %s" % (vr(s2_), vr(s2_)))
    rbf(a, s2_, s2_)
    a.I("v_rcp_f32 %s, %s" % (vr(s2_), vr(s2_)))
    a.I("v_accvgpr_read_b32 %s, %s" % (vr(g0), ar(A_CB)))
    a.I("v_accvgpr_read_b32 %s, %s" % (vr(g1), ar(A_CB + 1)))
    a.I("v_accvgpr_read_b32 %s, %s" % (vr(A0), ar(A_SB)))
    a.I("v_accvgpr_read_b32 %s, %s" % (vr(A1), ar(A_SB + 1)))
    for (x_, g_, A_) in ((x0, g0, A0), (x1, g1, A1)):
        a.I("v_sub_f32 %s, %s, %s" % (vr(x_), vr(x_), vr(s1_)))
        a.I("v_mul_f32 %s, %s, %s" % (vr(x_), vr(x_), vr(s2_)))
        a.I("v_fma_f32 %s, %s, %s, %s" % (vr(x_), vr(x_), vr(g_), vr(A_)))
    a.I("v_cvt_pk_bf16_f32 %s, %s, %s" % (vr(x0), vr(x0), vr(x1)))
    a.I("s_add_u32 s%d, s%d, 0x%x" % (S_T, S_GB, G_H2))
    a.I("buffer_store_dword %s, %s, %s, s%d offen %s" % (vr(x0), vr(V_H2W), ws, S_T, st))
    signal(a, w, S_WS, s_rank, 256, st)
    wait_flags(a, w, S_WS, 256, abort)
    a.I("s_add_u32 s%d, s%d, 0x%x" % (S_T, S_GB, G_H2 + w * 8192))
    for p in range(8):
        a.I("s_mov_b32 m0, %d" % (L_H2 + w * 8192 + p * 1024))
        a.I("s_add_u32 s%d, s%d, %d" % (S_T + 1, S_T, p * 1024))
        a.I("buffer_load_dwordx4 %s, %s, s%d offen sc1 lds" % (vr(V_L16), ws, S_T + 1))
    a.I("s_waitcnt vmcnt(0)")
    a.I("s_barrier")
    if w < 3:
        HB = KO
        for T_ in range(2):
            for ks in range(16):
                a.I("ds_read_b128 %s, %s offset:%d" % (vr(HB + 4 * ks, 4), vr(V_L16), L_H2 + (T_ * 16 + ks) * 1024))
            for ks in range(16):
                a.I("s_waitcnt lgkmcnt(%d)" % (15 - ks))
                a.I("v_mfma_f32_16x16x32_bf16 %s, %s, %s, %s"
                    % (vr(DO + 4 * T_, 4), ar(A_W1 + 4 * ks, 4), vr(HB + 4 * ks, 4), "0" if ks == 0 else vr(DO + 4 * T_, 4)))
        for T_ in range(2):
            for r in range(4):
                a.I("v_max_f32 %s, 0, %s" % (vr(DO + 4 * T_ + r), vr(DO + 4 * T_ + r)))
            a.I("v_cvt_pk_bf16_f32 %s, %s, %s" % (vr(DO + 8 + 2 * T_), vr(DO + 4 * T_), vr(DO + 4 * T_ + 1)))
            a.I("v_cvt_pk_bf16_f32 %s, %s, %s" % (vr(DO + 8 + 2 * T_ + 1), vr(DO + 4 * T_ + 2), vr(DO + 4 * T_ + 3)))
            a.I("ds_write_b64 %s, %s offset:%d" % (vr(V_FW), vr(DO + 8 + 2 * T_, 2), T_ * 256))
        a.I("s_waitcnt lgkmcnt(0)")
    a.I("s_barrier")
    for ks in range(3):
        a.I("ds_read_b128 %s, %s offset:%d" % (vr(AO + 4 * ks, 4), vr(V_L16), L_F + ks * 1024))
    for ks in range(3):
        a.I("s_waitcnt lgkmcnt(%d)" % (2 - ks))
        for nu in range(4):
            a.I("v_mfma_f32_32x32x16_bf16 %s, %s, %s, %s"
                % (vr(ACC + 16 * nu, 16), vr(AO + 4 * ks, 4), ar(A_W2 + (nu * 3 + ks) * 4, 4), "0" if ks == 0 else vr(ACC + 16 * nu, 16)))
    store_partials(a, w, S_WS, s_rank, G_INB2, st)
    signal(a, w, S_WS, s_rank, 512, st)
    wait_flags(a, w, S_WS, 512, abort)
    reduce_rows(a, w, S_WS, s_rank, G_INB2)
    a.I("v_accvgpr_read_b32 %s, %s" % (vr(g0), ar(A_GB)))
    a.I("v_accvgpr_read_b32 %s, %s" % (vr(g1), ar(A_GB + 1)))
    a.I("v_accvgpr_read_b32 %s, %s" % (vr(x0), ar(A_X1)))
    a.I("v_accvgpr_read_b32 %s, %s" % (vr(x1), ar(A_X1 + 1)))
    for (A_, g_, x_) in ((A0, g0, x0), (A1, g1, x1)):
        rbf(a, A_, A_)
        a.I("v_mul_f32 %s, %s, %s" % (vr(A_), vr(A_), vr(g_)))
        rbf(a, A_, A_)
        a.I("v_add_f32 %s, %s, %s" % (vr(x_), vr(x_), vr(A_)))
    a.I("v_cvt_pk_bf16_f32 %s, %s, %s" % (vr(x0), vr(x0), vr(x1)))
    a.I("s_lshl_b32 s%d, s%d, 5" % (S_T, S_SEG))
    a.I("s_add_u32 s%d, s%d, s%d" % (S_T, S_T, s_rank))
    a.I("s_lshl_b32 s%d, s%d, 10" % (S_T, S_T))
    a.I("buffer_store_dword %s, %s, %s, s%d offen" % (vr(x0), vr(V_TID2), os_, S_T))
    a.I("s_add_u32 s%d, s%d, %d" % (S_SEG, S_SEG, stride))
    a.I("s_add_u32 s%d, s%d, 1" % (S_IT, S_IT))
    a.I("s_branch %s" % Lp)
    a.label(Le, clear=True)
    a.I("s_waitcnt vmcnt(0)")


def poll_lanes(a, S_WS, s_off, v_addr, v_thr, v_tmp, s_cnt, abort, sleep=0, limit=300000):
    ws = "s[%d:%d]" % (S_WS, S_WS + 3)
    L = a.newlabel("pl")
    a.I("s_mov_b32 s%d, %d" % (s_cnt, limit))
    a.label(L)
    a.I("buffer_load_dwordx2 %s, %s, %s, s%d offen sc1" % (vr(v_tmp, 2), vr(v_addr), ws, s_off))
    a.I("s_sub_u32 s%d, s%d, 1" % (s_cnt, s_cnt))
    a.I("s_cmp_eq_u32 s%d, 0" % s_cnt)
    a.I("s_cbranch_scc1 %s" % abort)
    a.I("s_waitcnt vmcnt(0)")
    a.I("v_cmp_eq_u32 vcc, s%d, %s" % (S_NONCE, vr(v_tmp + 1)))
    a.I("v_cndmask_b32 %s, 0, %s, vcc" % (vr(v_tmp), vr(v_tmp)))
    a.I("v_cmp_gt_u32 vcc, %s, %s" % (vr(v_thr), vr(v_tmp)))
    if sleep:
        L2 = a.newlabel("plx")
        a.I("s_cbranch_vccz %s" % L2)
        a.I("s_sleep %d" % sleep)
        a.I("s_branch %s" % L)
        a.label(L2)
    else:
        a.I("s_cbranch_vccnz %s" % L)


def fused_hooks(S_WS, s_rank, abort):
    def wait_mod(a, w):
        if w == 0:
            a.I("s_mov_b32 s%d, 0x%x" % (S_T, FL_MOD))
            a.I("v_mov_b32 %s, 1" % vr(TT + 2))
            a.I("v_cmp_gt_u32 vcc, 48, %s" % vr(V_LANE))
            a.I("v_cndmask_b32 %s, 0, %s, vcc" % (vr(TT + 2), vr(TT + 2)))
            a.I("v_lshlrev_b32 %s, 1, %s" % (vr(TT + 3), vr(V_L4)))
            poll_lanes(a, S_WS, S_T, TT + 3, TT + 2, TT, S_T + 2, abort, sleep=2)
        a.I("s_barrier")

    def thr(a, chain_part):
        a.I("s_lshl_b32 s%d, s%d, 6" % (S_T, s_rank))
        a.I("s_add_u32 s%d, s%d, 0x%x" % (S_T, S_T, FL_PROG))
        a.I("v_lshlrev_b32 %s, 1, %s" % (vr(TT + 3), vr(V_L4)))
        a.I("v_and_b32 %s, 63, %s" % (vr(TT + 3), vr(TT + 3)))
        if chain_part:
            a.I("s_add_u32 s%d, s%d, 1" % (S_T + 4, S_SEG))
            a.I("v_mov_b32 %s, s%d" % (vr(TT + 2), S_T + 4))
            a.I("v_cmp_eq_u32 vcc, 6, %s" % vr(V_LANE))
            a.I("v_cndmask_b32 %s, 0, %s, vcc" % (vr(TT + 2), vr(TT + 2)))
        else:
            a.I("s_lshr_b32 s%d, s%d, 1" % (S_T + 1, S_SEG))
            a.I("s_add_u32 s%d, s%d, 1" % (S_T + 1, S_T + 1))
            a.I("s_and_b32 s%d, s%d, 1" % (S_T + 3, S_SEG))
            a.I("v_and_b32 %s, 1, %s" % (vr(TT + 4), vr(V_LANE)))
            a.I("v_mov_b32 %s, s%d" % (vr(TT + 2), S_T + 1))
            a.I("v_cmp_eq_u32 vcc, s%d, %s" % (S_T + 3, vr(TT + 4)))
            a.I("v_cndmask_b32 %s, 0, %s, vcc" % (vr(TT + 2), vr(TT + 2)))
            a.I("v_cmp_gt_u32 vcc, 6, %s" % vr(V_LANE))
            a.I("v_cndmask_b32 %s, 0, %s, vcc" % (vr(TT + 2), vr(TT + 2)))

    def wait_inputs(a, w):
        if w == 0:
            thr(a, False)
            poll_lanes(a, S_WS, S_T, TT + 3, TT + 2, TT, S_T + 2, abort, sleep=4)
        a.I("s_barrier")

    def wait_chain(a, w):
        if w == 0:
            thr(a, True)
            poll_lanes(a, S_WS, S_T, TT + 3, TT + 2, TT, S_T + 2, abort, sleep=1)
        a.I("s_barrier")
    return {"wait_mod": wait_mod, "wait_inputs": wait_inputs, "wait_chain": wait_chain}
```

```python
import sys
from common import *
import pre, front, tail, chain
from chain import *
from tail import poll_lanes

D_TK0, D_NONCE, D_CHAIN = 128, 132, 136
L_BCAST = 163840 - 64

S_MODE = 32
FORCE_SLOW = False
D_GTK = 140
S_XCC, S_TK, S_FI = 33, 21, 35


STAMPS = False
WS_STAMP = 0x00080000


def stamp(a, slot, vt=250):
    if not STAMPS:
        return
    L = a.newlabel("st")
    a.I("s_cmp_lg_u32 s%d, 0" % S_WAVE)
    a.I("s_cbranch_scc1 %s" % L)
    a.I("s_memrealtime s[94:95]")
    a.I("s_lshl_b32 s93, s3, 6")
    a.I("s_add_u32 s93, s93, 0x%x" % (WS_STAMP + slot * 4))
    a.I("s_waitcnt lgkmcnt(0)")
    a.I("v_mov_b32 v%d, s94" % vt)
    a.I("v_mov_b32 v%d, 0" % (vt + 1))
    a.I("s_mov_b64 exec, 1")
    a.I("buffer_store_dword v%d, v%d, s[%d:%d], s93 offen sc1" % (vt, vt + 1, S_WS, S_WS + 3))
    a.I("s_mov_b64 exec, -1")
    a.label(L)


def entry(a):
    a.I("s_cmp_ge_u32 s2, 256")
    a.I("s_cbranch_scc1 L_exit")
    a.I("s_load_dwordx4 s[%d:%d], s[0:1], %d" % (S_PTR + 12, S_PTR + 15, K_DBG))
    a.I("s_memrealtime s[96:97]")
    if STAMPS:
        a.I("s_mov_b32 s3, s2")
    a.I("v_and_b32 %s, 63, v0" % vr(V_T))
    a.I("v_lshrrev_b32 v1, 6, v0")
    a.I("s_getreg_b32 s%d, hwreg(HW_REG_XCC_ID, 0, 4)" % S_XCC)
    a.I("v_readfirstlane_b32 s%d, v1" % S_WAVE)
    a.I("s_waitcnt lgkmcnt(0)")
    srd(a, S_DBG, S_PTR + 12, 256)
    srd(a, S_WS, S_PTR + 14, WS_SIZE)
    a.I("s_mov_b32 s%d, 0x00020000" % (S_W + 3))
    a.I("s_mov_b32 s%d, 0" % S_MODE)
    a.I("s_cmp_lg_u32 s%d, 0" % S_WAVE)
    a.I("s_cbranch_scc1 L_el_wait")
    a.I("s_and_b32 s%d, s%d, 7" % (S_T0, S_XCC))
    a.I("s_lshl_b32 s%d, s%d, 2" % (S_T0, S_T0))
    a.I("s_cmp_eq_u32 s%d, 0" % S_T0)
    a.I("s_cselect_b32 s%d, %d, s%d" % (S_T0, D_TK0, S_T0))
    a.I("v_mov_b32 v2, 1")
    a.I("v_mov_b32 v3, s%d" % S_T0)
    a.I("s_mov_b64 exec, 1")
    a.I("buffer_atomic_add v2, v3, s[%d:%d], 0 offen sc0" % (S_DBG, S_DBG + 3))
    a.I("s_waitcnt vmcnt(0)")
    a.I("v_readfirstlane_b32 s%d, v2" % (S_T0 + 1))
    a.I("s_cmp_lg_u32 s%d, 0" % (S_T0 + 1))
    a.I("s_cbranch_scc1 L_el_nononce")
    a.I("s_or_b32 s%d, s96, 1" % (S_T0 + 1))
    a.I("v_mov_b32 v4, s%d" % (S_T0 + 1))
    a.I("v_mov_b32 v5, 0")
    a.I("v_mov_b32 v6, %d" % D_NONCE)
    a.I("buffer_atomic_cmpswap v[4:5], v6, s[%d:%d], 0 offen" % (S_DBG, S_DBG + 3))
    a.label("L_el_nononce")
    a.I("v_mov_b32 v3, %d" % L_BCAST)
    a.I("ds_write_b32 v3, v2")
    a.I("s_mov_b64 exec, -1")
    a.label("L_el_wait")
    a.I("s_waitcnt lgkmcnt(0)")
    a.I("s_barrier")
    a.I("v_mov_b32 v3, %d" % L_BCAST)
    a.I("ds_read_b32 v2, v3")
    a.I("s_waitcnt lgkmcnt(0)")
    a.I("v_readfirstlane_b32 s%d, v2" % S_TK)
    a.I("s_barrier")
    if STAMPS:
        L = a.newlabel("st")
        a.I("s_cmp_lg_u32 s%d, 0" % S_WAVE)
        a.I("s_cbranch_scc1 %s" % L)
        a.I("s_lshl_b32 s93, s3, 6")
        a.I("s_add_u32 s93, s93, 0x%x" % WS_STAMP)
        a.I("s_lshl_b32 s94, s%d, 8" % S_XCC)
        a.I("s_add_u32 s94, s94, s%d" % S_TK)
        a.I("v_mov_b32 v10, s96")
        a.I("v_mov_b32 v11, 0")
        a.I("v_mov_b32 v12, s94")
        a.I("s_mov_b64 exec, 1")
        a.I("buffer_store_dword v10, v11, s[%d:%d], s93 offen sc1" % (S_WS, S_WS + 3))
        a.I("buffer_store_dword v12, v11, s[%d:%d], s93 offen offset:60 sc1" % (S_WS, S_WS + 3))
        a.I("s_mov_b64 exec, -1")
        a.label(L)
    stamp(a, 1, 10)


def verify(a, vt, st, slow):
    L = a.newlabel("vf")
    Lskip = a.newlabel("vfx")
    a.I("s_cmp_lg_u32 s%d, 0" % S_MODE)
    a.I("s_cbranch_scc1 %s" % Lskip)
    a.I("s_mov_b32 s%d, 4000000" % st)
    a.I("v_mov_b32 %s, 0" % vr(vt + 12))
    a.label(L)
    a.I("buffer_load_dwordx4 %s, %s, s[%d:%d], 0 offen sc1" % (vr(vt, 4), vr(vt + 12), S_DBG, S_DBG + 3))
    a.I("buffer_load_dwordx4 %s, %s, s[%d:%d], 0 offen offset:16 sc1" % (vr(vt + 4, 4), vr(vt + 12), S_DBG, S_DBG + 3))
    a.I("buffer_load_dwordx2 %s, %s, s[%d:%d], 0 offen offset:%d sc1" % (vr(vt + 8, 2), vr(vt + 12), S_DBG, S_DBG + 3, D_TK0))
    a.I("s_sub_u32 s%d, s%d, 1" % (st, st))
    a.I("s_cmp_eq_u32 s%d, 0" % st)
    a.I("s_cbranch_scc1 L_abort")
    a.I("s_waitcnt vmcnt(0)")
    a.I("v_add3_u32 %s, %s, %s, %s" % (vr(vt + 10), vr(vt + 1), vr(vt + 2), vr(vt + 3)))
    a.I("v_add3_u32 %s, %s, %s, %s" % (vr(vt + 10), vr(vt + 10), vr(vt + 4), vr(vt + 5)))
    a.I("v_add3_u32 %s, %s, %s, %s" % (vr(vt + 10), vr(vt + 10), vr(vt + 6), vr(vt + 7)))
    a.I("v_add_u32 %s, %s, %s" % (vr(vt + 10), vr(vt + 10), vr(vt + 8)))
    a.I("v_max3_u32 %s, %s, %s, %s" % (vr(vt + 11), vr(vt + 1), vr(vt + 2), vr(vt + 3)))
    a.I("v_max3_u32 %s, %s, %s, %s" % (vr(vt + 11), vr(vt + 11), vr(vt + 4), vr(vt + 5)))
    a.I("v_max3_u32 %s, %s, %s, %s" % (vr(vt + 11), vr(vt + 11), vr(vt + 6), vr(vt + 7)))
    a.I("v_max_u32 %s, %s, %s" % (vr(vt + 11), vr(vt + 11), vr(vt + 8)))
    a.I("v_cmp_ne_u32 vcc, 0x100, %s" % vr(vt + 10))
    a.I("s_cbranch_vccnz %s" % L)
    a.I("v_cmp_eq_u32 vcc, 0, %s" % vr(vt + 9))
    a.I("s_cbranch_vccnz %s" % L)
    a.I("v_readfirstlane_b32 s%d, %s" % (S_NONCE, vr(vt + 9)))
    a.I("v_readfirstlane_b32 s%d, %s" % (st, vr(vt + 11)))
    a.I("s_cmp_lg_u32 s%d, %d" % (st, 33 if FORCE_SLOW else 32))
    a.I("s_cbranch_scc1 %s" % slow)
    a.label(Lskip)


def set_flag(a, S_WSq, s_off, s_val, vt, s_wave):
    L = a.newlabel("sf")
    a.I("s_cmp_lg_u32 s%d, 0" % s_wave)
    a.I("s_cbranch_scc1 %s" % L)
    a.I("v_mov_b32 %s, %s" % (vr(vt), s_val))
    a.I("v_mov_b32 %s, s%d" % (vr(vt + 1), S_NONCE))
    a.I("v_mov_b32 %s, 0" % vr(vt + 2))
    a.I("s_mov_b64 exec, 1")
    a.I("buffer_store_dwordx2 %s, %s, s[%d:%d], s%d offen sc1" % (vr(vt, 2), vr(vt + 2), S_WSq, S_WSq + 3, s_off))
    a.I("s_mov_b64 exec, -1")
    a.label(L)


def chain_part(a, timing, kw):
    a.label("L_chain", clear=True)
    a.I("s_load_dwordx8 s[%d:%d], s[0:1], 8" % (S_PTR, S_PTR + 7))
    a.I("s_load_dwordx2 s[%d:%d], s[0:1], 40" % (S_PTR + 8, S_PTR + 9))
    a.I("s_waitcnt lgkmcnt(0)")
    for w in range(1, 4):
        a.I("s_cmp_eq_u32 s%d, %d" % (S_WAVE, w))
        a.I("s_cbranch_scc1 L_wave%d" % w)
    for w in range(4):
        a.label("L_wave%d" % w, clear=True)
        lane_consts(a, w)
        if w == 0: stamp(a, 2, V_MEM)
        load_weights(a, w)
        if w == 0: stamp(a, 3, V_MEM)
        verify(a, V_MEM, S_RETRY, "L_slow")
        init_buffers(a, w, "sc1")
        a.I("s_waitcnt vmcnt(0) lgkmcnt(0)")
        a.I("s_barrier")
        if w == 2:
            a.I("s_mov_b64 exec, 1")
            a.I("v_mov_b32 v%d, 1" % V_MEM)
            a.I("v_mov_b32 v%d, %d" % (V_MEM + 1, D_CHAIN))
            a.I("buffer_atomic_add v%d, v%d, s[%d:%d], 0 offen" % (V_MEM, V_MEM + 1, S_DBG, S_DBG + 3))
            a.I("s_mov_b64 exec, -1")
        loop_setup(a, w, fused=True)
        if w == 0: stamp(a, 4, V_MEM)
        if w == 0:
            T = V_MEM
            lp = a.newlabel("arr")
            a.I("s_mov_b32 s%d, %d" % (S_RETRY, RETRY_MAX))
            a.I("v_mov_b32 %s, %d" % (vr(T), D_CHAIN))
            a.label(lp)
            a.I("buffer_load_dword %s, %s, s[%d:%d], 0 offen sc1" % (vr(T + 1), vr(T), S_DBG, S_DBG + 3))
            a.I("s_sub_u32 s%d, s%d, 1" % (S_RETRY, S_RETRY))
            a.I("s_cmp_eq_u32 s%d, 0" % S_RETRY)
            a.I("s_cbranch_scc1 L_abort")
            a.I("s_waitcnt vmcnt(0)")
            a.I("v_cmp_ne_u32 vcc, 32, %s" % vr(T + 1))
            a.I("s_cbranch_vccnz %s" % lp)
        a.I("s_waitcnt vmcnt(0)")
        a.I("s_barrier")
        if w == 0: stamp(a, 5, V_MEM)
        a.I("s_cmp_lg_u32 s%d, 0" % S_MODE)
        a.I("s_cbranch_scc1 L_cslow%d" % w)
        chain_loop(a, w, timing=timing, exp="latepois", fused=True, tag="f", **kw)
        if w == 0: stamp(a, 6, V_MEM)
        a.I("s_endpgm")
    for w in range(4):
        a.label("L_cslow%d" % w, clear=True)
        chain_loop(a, w, st_flags="sc1", timing=False, exp="latepois", fused=True, tag="s", looptime=False,
                   **{k: v for k, v in kw.items() if k != "looptime"})
        a.I("s_endpgm")


def worker_part(a):
    a.label("L_worker", clear=True)
    lane = 1
    sW = S_WAVE
    a.I("s_sub_u32 s%d, s%d, 1" % (S_FI, S_XCC))
    a.I("s_lshl_b32 s%d, s%d, 5" % (S_FI, S_FI))
    a.I("s_add_u32 s%d, s%d, s%d" % (S_FI, S_FI, S_TK))
    a.I("v_and_b32 v%d, 63, v0" % lane)
    a.I("s_load_dwordx2 s[22:23], s[0:1], %d" % K_X)
    a.I("s_load_dwordx4 s[24:27], s[0:1], %d" % K_C)
    a.I("s_load_dwordx4 s[28:31], s[0:1], %d" % K_WQ)
    a.I("s_load_dwordx2 s[36:37], s[0:1], %d" % K_WV)
    a.I("s_waitcnt lgkmcnt(0)")
    a.I("s_cmp_lt_u32 s%d, 192" % S_FI)
    a.I("s_cbranch_scc1 L_front")
    a.I("s_sub_u32 s38, s%d, 192" % S_FI)
    LV = 112
    srd(a, 4, 22, 2048 * 1024)
    a.I("s_lshl_b32 s39, s38, 5")
    R0 = pre.ln_stats(a, 4, 39, sW, lane, LV, 0)
    a.I("s_add_u32 s39, s39, 1024")
    R1 = pre.ln_stats(a, 4, 39, sW, lane, LV + 0, 1) if False else None
    pre.mod_role(a, S_WS, 12, 40, 38, sW, lane, 24, 26, 140000)
    verify(a, 16, 90, "L_slow")
    a.I("s_lshl_b32 s90, s38, 3")
    a.I("s_add_u32 s90, s90, 0x%x" % FL_MOD)
    set_flag(a, S_WS, 90, "1", 16, sW)
    stamp(a, 2, 16)
    pre.ln_stats2(a, *R0)
    Lx = a.newlabel("lnw")
    a.I("s_cmp_lg_u32 s%d, 0" % sW)
    a.I("s_cbranch_scc1 %s" % Lx)
    a.I("s_mov_b32 s90, 0x%x" % FL_MOD)
    a.I("v_lshlrev_b32 v16, 3, v%d" % lane)
    a.I("v_mov_b32 v17, 1")
    a.I("v_cmp_gt_u32 vcc, 16, v%d" % lane)
    a.I("v_cndmask_b32 v17, 0, v17, vcc")
    poll_lanes(a, S_WS, 90, 16, 17, 18, 91, "L_abort")
    a.label(Lx)
    a.I("s_barrier")
    pre.mod_to_lds(a, S_WS, sW, lane, 144000, 16)
    for it in range(2):
        if it == 1:
            R0 = pre.ln_stats(a, 4, 39, sW, lane, LV, 0)
            a.I("s_waitcnt vmcnt(0)")
            pre.ln_stats2(a, *R0)
        pre.ln_apply(a, S_WS, R0[0], R0[1], R0[2], 144000, 20)
        a.I("s_waitcnt vmcnt(0)")
        a.I("s_barrier")
        a.I("s_lshl_b32 s90, s38, 3")
        a.I("s_add_u32 s90, s90, 0x%x" % (FL_H + it * 256))
        set_flag(a, S_WS, 90, "1", 16, sW)
    stamp(a, 3, 16)
    a.I("s_cmp_ge_u32 s38, 16")
    a.I("s_cbranch_scc1 L_tail")
    a.I("s_add_u32 s38, s38, 32")
    pre.mod_role(a, S_WS, 12, 40, 38, sW, lane, 24, 26, 140000)
    a.I("s_lshl_b32 s90, s38, 3")
    a.I("s_add_u32 s90, s90, 0x%x" % FL_MOD)
    set_flag(a, S_WS, 90, "1", 16, sW)
    a.I("s_branch L_tail")
    a.label("L_front", clear=True)
    a.I("s_and_b32 s38, s%d, 1" % S_FI)
    a.I("s_lshr_b32 s39, s%d, 1" % S_FI)
    a.I("s_and_b32 s40, s39, 31")
    a.I("s_lshr_b32 s41, s39, 5")
    a.I("s_add_u32 s41, s41, 1")
    a.I("s_cmp_eq_u32 s41, 3")
    a.I("s_cselect_b32 s41, 0, s41")
    a.I("s_cmp_eq_u32 s41, 1")
    a.I("s_cselect_b32 s28, s30, s28")
    a.I("s_cselect_b32 s29, s31, s29")
    a.I("s_cmp_eq_u32 s41, 2")
    a.I("s_cselect_b32 s28, s36, s28")
    a.I("s_cselect_b32 s29, s37, s29")
    a.I("s_lshl_b32 s42, s40, 6")
    a.I("s_lshl_b32 s43, s41, 1")
    a.I("s_add_u32 s43, s43, s38")
    a.I("s_lshl_b32 s43, s43, 3")
    a.I("s_add_u32 s42, s42, s43")
    a.I("s_add_u32 s42, s42, 0x%x" % FL_PROG)

    def wait_h(a, nflags):
        Lh = a.newlabel("bh")
        a.I("s_cmp_lg_u32 s%d, 0" % sW)
        a.I("s_cbranch_scc1 %s" % Lh)
        a.I("s_mov_b32 s90, 0x%x" % FL_H)
        a.I("v_lshlrev_b32 v2, 3, v%d" % lane)
        a.I("v_mov_b32 v3, 1")
        if nflags < 64:
            a.I("v_cmp_gt_u32 vcc, %d, v%d" % (nflags, lane))
            a.I("v_cndmask_b32 v3, 0, v3, vcc")
        poll_lanes(a, S_WS, 90, 2, 3, 4, 91, "L_abort", sleep=1)
        a.label(Lh)

    def before_h(a):
        verify(a, 16, 90, "L_slow")
        stamp(a, 4, 8)
        wait_h(a, 32)
        stamp(a, 5, 8)

    def stores_done(a, s_it):
        set_flag(a, S_WS, 42, "s%d" % s_it, 2, sW)

    def mid(a, s_it):
        L = a.newlabel("mid")
        a.I("s_cmp_lg_u32 s%d, 13" % s_it)
        a.I("s_cbranch_scc1 %s" % L)
        wait_h(a, 64)
        a.I("s_barrier")
        a.label(L)
    front.front_role(a, S_WS, 12, 41, 40, 38, sW, lane, 28, hooks={"before_h": before_h, "stores_done": stores_done, "mid": mid})
    stamp(a, 6, 16)
    a.label("L_tail", clear=True)
    a.I("s_barrier")
    a.I("s_load_dwordx2 s[22:23], s[0:1], %d" % K_X)
    a.I("s_load_dwordx2 s[24:25], s[0:1], %d" % K_WO)
    a.I("s_load_dwordx4 s[28:31], s[0:1], %d" % K_W1)
    a.I("s_load_dwordx2 s[26:27], s[0:1], %d" % K_OUT)
    a.I("v_and_b32 %s, 63, v0" % vr(tail.V_LANE))
    a.I("s_mov_b32 s68, s%d" % S_TK)
    a.I("s_waitcnt lgkmcnt(0)")
    for w in range(1, 4):
        a.I("s_cmp_eq_u32 s%d, %d" % (sW, w))
        a.I("s_cbranch_scc1 L_tw%d" % w)
    hk = tail.fused_hooks(S_WS, 68, "L_abort")
    for w in range(4):
        a.label("L_tw%d" % w, clear=True)
        tail.tail_setup(a, w, S_WS, 12, 68, S_XCC, 24, 28, 30)
        if w == 0: stamp(a, 7, 150)
        a.I("s_sub_u32 s%d, s%d, 1" % (tail.S_SEG, S_XCC))
        a.I("s_mov_b32 s%d, 0" % tail.S_IT)
        a.I("s_cmp_lg_u32 s%d, 0" % S_MODE)
        a.I("s_cbranch_scc1 L_tslow%d" % w)
        tail.tail_loop(a, w, S_WS, 12, 4, 68, 22, 26, 7, abort="L_abort", hooks=hk, tag="f")
        if w == 0: stamp(a, 8, 150)
        a.I("s_endpgm")
    for w in range(4):
        a.label("L_tslow%d" % w, clear=True)
        tail.tail_loop(a, w, S_WS, 12, 4, 68, 22, 26, 7, st="sc1", abort="L_abort", hooks=hk, tag="s")
        a.I("s_endpgm")


def build(timing=False, **kw):
    a = Asm()
    a.raw("; @launch grid=(256,1,1) block=(256,1,1) lds=163840")
    a.raw('.amdgcn_target "amdgcn-amd-amdhsa--gfx950"')
    a.raw(".text")
    a.raw(".globl %s" % NAME)
    a.raw(".p2align 8")
    a.raw(".type %s,@function" % NAME)
    a.label(NAME)
    entry(a)
    a.I("s_cmp_ge_u32 s%d, 32" % S_TK)
    a.I("s_cbranch_scc1 L_overflow")
    a.label("L_dispatch")
    a.I("s_cmp_lg_u32 s%d, 0" % S_XCC)
    a.I("s_cbranch_scc1 L_far_worker")
    a.I("s_branch L_chain")
    a.label("L_far_worker")
    a.I("s_branch L_hop_worker")
    a.label("L_overflow", clear=True)
    verify(a, 16, 90, "L_slow")
    a.I("s_branch L_abort")
    a.label("L_slow", clear=True)
    a.I("s_waitcnt vmcnt(0) lgkmcnt(0)")
    a.I("s_barrier")
    a.I("s_cmp_lg_u32 s%d, 0" % S_WAVE)
    a.I("s_cbranch_scc1 L_sl_wait")
    a.I("s_mov_b64 exec, 1")
    a.I("v_mov_b32 v2, 1")
    a.I("v_mov_b32 v3, %d" % D_GTK)
    a.I("buffer_atomic_add v2, v3, s[%d:%d], 0 offen sc0" % (S_DBG, S_DBG + 3))
    a.I("v_mov_b32 v3, %d" % L_BCAST)
    a.I("s_waitcnt vmcnt(0)")
    a.I("ds_write_b32 v3, v2")
    a.I("s_mov_b64 exec, -1")
    a.label("L_sl_wait")
    a.I("s_waitcnt lgkmcnt(0)")
    a.I("s_barrier")
    a.I("v_mov_b32 v3, %d" % L_BCAST)
    a.I("ds_read_b32 v2, v3")
    a.I("s_waitcnt lgkmcnt(0)")
    a.I("v_readfirstlane_b32 s%d, v2" % S_TK)
    a.I("s_barrier")
    a.I("s_lshr_b32 s%d, s%d, 5" % (S_XCC, S_TK))
    a.I("s_and_b32 s%d, s%d, 31" % (S_TK, S_TK))
    a.I("s_mov_b32 s%d, 1" % S_MODE)
    a.I("v_mbcnt_lo_u32_b32 v1, -1, 0")
    a.I("v_mbcnt_hi_u32_b32 v1, -1, v1")
    a.I("s_lshl_b32 s%d, s%d, 6" % (S_T0, S_WAVE))
    a.I("v_add_u32 v0, s%d, v1" % S_T0)
    a.I("v_and_b32 %s, 63, v0" % vr(V_T))
    a.I("s_branch L_dispatch")
    a.label("L_exit")
    a.I("s_endpgm")
    a.label("L_abort0", clear=True)
    chain_part(a, timing, kw)
    a.label("L_abort", clear=True)
    a.I("s_mov_b64 exec, 1")
    a.I("v_mov_b32 v2, 0x7777")
    a.I("v_mov_b32 v3, 252")
    a.I("buffer_store_dword v2, v3, s[%d:%d], 0 offen" % (S_DBG, S_DBG + 3))
    a.I("s_waitcnt vmcnt(0)")
    a.I("s_endpgm")
    a.label("L_hop_worker")
    a.I("s_branch L_worker")
    worker_part(a)
    txt = a.text() + kd(NAME)
    txt = "\n".join(l.strip() if l.startswith("    ") else l for l in txt.split("\n"))
    return txt, a


if __name__ == "__main__":
    kw = dict(gap=36, rgap=36, delay=24, rdelay=48)
    timing = False
    for arg in sys.argv[2:]:
        k, v = arg.split("=")
        if k == "timing":
            timing = bool(int(v))
        elif k == "force_slow":
            FORCE_SLOW = bool(int(v))
        elif k == "stamps":
            STAMPS = bool(int(v))
        else:
            kw[k] = int(v) if v.lstrip("-").isdigit() else v
    txt, a = build(timing=timing, **kw)
    open(sys.argv[1], "w").write(txt)
    print("instructions", a.n_inst, "bytes", len(txt))
```

```python
import sys
from common import *
import pre, front, tail, chain
from chain import *
from tail import poll_lanes

D_TK0, D_NONCE, D_CHAIN = 128, 132, 136
L_BCAST = 163840 - 64

S_MODE = 32
FORCE_SLOW = False
D_GTK = 140
S_XCC, S_TK, S_FI = 33, 21, 35


STAMPS = False
WS_STAMP = 0x00080000


DBGT = False


def dbgmax(a, off, vt, neg=False):
    if not DBGT:
        return
    L = a.newlabel("dm")
    a.I("s_cmp_lg_u32 s%d, 0" % S_WAVE)
    a.I("s_cbranch_scc1 %s" % L)
    a.I("s_memrealtime s[94:95]")
    a.I("s_waitcnt lgkmcnt(0)")
    if neg:
        a.I("s_not_b32 s94, s94")
    a.I("v_mov_b32 v%d, s94" % vt)
    a.I("v_mov_b32 v%d, %d" % (vt + 1, off))
    a.I("s_mov_b64 exec, 1")
    a.I("buffer_atomic_umax v%d, v%d, s[%d:%d], 0 offen" % (vt, vt + 1, S_DBG, S_DBG + 3))
    a.I("s_mov_b64 exec, -1")
    a.label(L)


def stamp(a, slot, vt=250):
    if DBGT:
        m = {1: (32, True), 3: None, 5: 40, 6: 44, 8: 48, 4: 52}
        return
    if not STAMPS:
        return
    L = a.newlabel("st")
    a.I("s_cmp_lg_u32 s%d, 0" % S_WAVE)
    a.I("s_cbranch_scc1 %s" % L)
    a.I("s_memrealtime s[94:95]")
    a.I("s_lshl_b32 s93, s3, 6")
    a.I("s_add_u32 s93, s93, 0x%x" % (WS_STAMP + slot * 4))
    a.I("s_waitcnt lgkmcnt(0)")
    a.I("v_mov_b32 v%d, s94" % vt)
    a.I("v_mov_b32 v%d, 0" % (vt + 1))
    a.I("s_mov_b64 exec, 1")
    a.I("buffer_store_dword v%d, v%d, s[%d:%d], s93 offen sc1" % (vt, vt + 1, S_WS, S_WS + 3))
    a.I("s_mov_b64 exec, -1")
    a.label(L)


def entry(a):
    a.I("s_cmp_ge_u32 s2, 256")
    a.I("s_cbranch_scc1 L_exit")
    a.I("s_load_dwordx4 s[%d:%d], s[0:1], %d" % (S_PTR + 12, S_PTR + 15, K_DBG))
    a.I("s_memrealtime s[96:97]")
    if STAMPS:
        a.I("s_mov_b32 s3, s2")
    a.I("v_and_b32 %s, 63, v0" % vr(V_T))
    a.I("v_lshrrev_b32 v1, 6, v0")
    a.I("s_getreg_b32 s%d, hwreg(HW_REG_XCC_ID, 0, 4)" % S_XCC)
    a.I("v_readfirstlane_b32 s%d, v1" % S_WAVE)
    a.I("s_waitcnt lgkmcnt(0)")
    srd(a, S_DBG, S_PTR + 12, 256)
    srd(a, S_WS, S_PTR + 14, WS_SIZE)
    a.I("s_mov_b32 s%d, 0x00020000" % (S_W + 3))
    a.I("s_mov_b32 s%d, 0" % S_MODE)
    a.I("s_cmp_lg_u32 s%d, 0" % S_WAVE)
    a.I("s_cbranch_scc1 L_el_wait")
    a.I("s_and_b32 s%d, s%d, 7" % (S_T0, S_XCC))
    a.I("s_lshl_b32 s%d, s%d, 2" % (S_T0, S_T0))
    a.I("s_cmp_eq_u32 s%d, 0" % S_T0)
    a.I("s_cselect_b32 s%d, %d, s%d" % (S_T0, D_TK0, S_T0))
    a.I("v_mov_b32 v2, 1")
    a.I("v_mov_b32 v3, s%d" % S_T0)
    a.I("s_mov_b64 exec, 1")
    a.I("buffer_atomic_add v2, v3, s[%d:%d], 0 offen sc0" % (S_DBG, S_DBG + 3))
    a.I("s_waitcnt vmcnt(0)")
    a.I("v_readfirstlane_b32 s%d, v2" % (S_T0 + 1))
    a.I("s_cmp_lg_u32 s%d, 0" % (S_T0 + 1))
    a.I("s_cbranch_scc1 L_el_nononce")
    a.I("s_or_b32 s%d, s96, 1" % (S_T0 + 1))
    a.I("v_mov_b32 v4, s%d" % (S_T0 + 1))
    a.I("v_mov_b32 v5, 0")
    a.I("v_mov_b32 v6, %d" % D_NONCE)
    a.I("buffer_atomic_cmpswap v[4:5], v6, s[%d:%d], 0 offen" % (S_DBG, S_DBG + 3))
    a.label("L_el_nononce")
    a.I("v_mov_b32 v3, %d" % L_BCAST)
    a.I("ds_write_b32 v3, v2")
    a.I("s_mov_b64 exec, -1")
    a.label("L_el_wait")
    a.I("s_waitcnt lgkmcnt(0)")
    a.I("s_barrier")
    a.I("v_mov_b32 v3, %d" % L_BCAST)
    a.I("ds_read_b32 v2, v3")
    a.I("s_waitcnt lgkmcnt(0)")
    a.I("v_readfirstlane_b32 s%d, v2" % S_TK)
    a.I("s_barrier")
    if STAMPS:
        L = a.newlabel("st")
        a.I("s_cmp_lg_u32 s%d, 0" % S_WAVE)
        a.I("s_cbranch_scc1 %s" % L)
        a.I("s_lshl_b32 s93, s3, 6")
        a.I("s_add_u32 s93, s93, 0x%x" % WS_STAMP)
        a.I("s_lshl_b32 s94, s%d, 8" % S_XCC)
        a.I("s_add_u32 s94, s94, s%d" % S_TK)
        a.I("v_mov_b32 v10, s96")
        a.I("v_mov_b32 v11, 0")
        a.I("v_mov_b32 v12, s94")
        a.I("s_mov_b64 exec, 1")
        a.I("buffer_store_dword v10, v11, s[%d:%d], s93 offen sc1" % (S_WS, S_WS + 3))
        a.I("buffer_store_dword v12, v11, s[%d:%d], s93 offen offset:60 sc1" % (S_WS, S_WS + 3))
        a.I("s_mov_b64 exec, -1")
        a.label(L)
    stamp(a, 1, 10)
    dbgmax(a, 36, 10, neg=True)


def verify(a, vt, st, slow):
    L = a.newlabel("vf")
    Lskip = a.newlabel("vfx")
    a.I("s_cmp_lg_u32 s%d, 0" % S_MODE)
    a.I("s_cbranch_scc1 %s" % Lskip)
    a.I("s_mov_b32 s%d, 200000" % st)
    a.I("v_mov_b32 %s, 0" % vr(vt + 12))
    a.label(L)
    a.I("buffer_load_dwordx4 %s, %s, s[%d:%d], 0 offen sc1" % (vr(vt, 4), vr(vt + 12), S_DBG, S_DBG + 3))
    a.I("buffer_load_dwordx4 %s, %s, s[%d:%d], 0 offen offset:16 sc1" % (vr(vt + 4, 4), vr(vt + 12), S_DBG, S_DBG + 3))
    a.I("buffer_load_dwordx2 %s, %s, s[%d:%d], 0 offen offset:%d sc1" % (vr(vt + 8, 2), vr(vt + 12), S_DBG, S_DBG + 3, D_TK0))
    a.I("s_sub_u32 s%d, s%d, 1" % (st, st))
    a.I("s_cmp_eq_u32 s%d, 0" % st)
    a.I("s_cbranch_scc1 L_abort")
    a.I("s_waitcnt vmcnt(0)")
    a.I("v_add3_u32 %s, %s, %s, %s" % (vr(vt + 10), vr(vt + 1), vr(vt + 2), vr(vt + 3)))
    a.I("v_add3_u32 %s, %s, %s, %s" % (vr(vt + 10), vr(vt + 10), vr(vt + 4), vr(vt + 5)))
    a.I("v_add3_u32 %s, %s, %s, %s" % (vr(vt + 10), vr(vt + 10), vr(vt + 6), vr(vt + 7)))
    a.I("v_add_u32 %s, %s, %s" % (vr(vt + 10), vr(vt + 10), vr(vt + 8)))
    a.I("v_max3_u32 %s, %s, %s, %s" % (vr(vt + 11), vr(vt + 1), vr(vt + 2), vr(vt + 3)))
    a.I("v_max3_u32 %s, %s, %s, %s" % (vr(vt + 11), vr(vt + 11), vr(vt + 4), vr(vt + 5)))
    a.I("v_max3_u32 %s, %s, %s, %s" % (vr(vt + 11), vr(vt + 11), vr(vt + 6), vr(vt + 7)))
    a.I("v_max_u32 %s, %s, %s" % (vr(vt + 11), vr(vt + 11), vr(vt + 8)))
    a.I("v_cmp_lt_u32 vcc, 0x100, %s" % vr(vt + 10))
    a.I("s_cbranch_vccnz L_abort")
    a.I("v_cmp_ne_u32 vcc, 0x100, %s" % vr(vt + 10))
    a.I("s_cbranch_vccnz %s" % L)
    a.I("v_cmp_eq_u32 vcc, 0, %s" % vr(vt + 9))
    a.I("s_cbranch_vccnz %s" % L)
    a.I("v_readfirstlane_b32 s%d, %s" % (S_NONCE, vr(vt + 9)))
    a.I("v_readfirstlane_b32 s%d, %s" % (st, vr(vt + 11)))
    a.I("s_cmp_lg_u32 s%d, %d" % (st, 33 if FORCE_SLOW else 32))
    a.I("s_cbranch_scc1 %s" % slow)
    a.label(Lskip)


def set_flag(a, S_WSq, s_off, s_val, vt, s_wave):
    L = a.newlabel("sf")
    a.I("s_cmp_lg_u32 s%d, 0" % s_wave)
    a.I("s_cbranch_scc1 %s" % L)
    a.I("v_mov_b32 %s, %s" % (vr(vt), s_val))
    a.I("v_mov_b32 %s, s%d" % (vr(vt + 1), S_NONCE))
    a.I("v_mov_b32 %s, 0" % vr(vt + 2))
    a.I("s_mov_b64 exec, 1")
    a.I("buffer_store_dwordx2 %s, %s, s[%d:%d], s%d offen sc1" % (vr(vt, 2), vr(vt + 2), S_WSq, S_WSq + 3, s_off))
    a.I("s_mov_b64 exec, -1")
    a.label(L)


def chain_part(a, timing, kw):
    a.label("L_chain", clear=True)
    a.I("s_load_dwordx8 s[%d:%d], s[0:1], 8" % (S_PTR, S_PTR + 7))
    a.I("s_load_dwordx2 s[%d:%d], s[0:1], 40" % (S_PTR + 8, S_PTR + 9))
    a.I("s_waitcnt lgkmcnt(0)")
    for w in range(1, 4):
        a.I("s_cmp_eq_u32 s%d, %d" % (S_WAVE, w))
        a.I("s_cbranch_scc1 L_wave%d" % w)
    for w in range(4):
        a.label("L_wave%d" % w, clear=True)
        lane_consts(a, w)
        if w == 0: stamp(a, 2, V_MEM)
        load_weights(a, w)
        if w == 0: stamp(a, 3, V_MEM)
        if w == 0: dbgmax(a, 52, V_MEM)
        verify(a, V_MEM, S_RETRY, "L_slow")
        init_buffers(a, w, "sc1")
        a.I("s_waitcnt vmcnt(0) lgkmcnt(0)")
        a.I("s_barrier")
        if w == 2:
            a.I("s_mov_b64 exec, 1")
            a.I("v_mov_b32 v%d, 1" % V_MEM)
            a.I("v_mov_b32 v%d, %d" % (V_MEM + 1, D_CHAIN))
            a.I("buffer_atomic_add v%d, v%d, s[%d:%d], 0 offen" % (V_MEM, V_MEM + 1, S_DBG, S_DBG + 3))
            a.I("s_mov_b64 exec, -1")
        loop_setup(a, w, fused=True)
        if w == 0: stamp(a, 4, V_MEM)
        if w == 0:
            T = V_MEM
            lp = a.newlabel("arr")
            a.I("s_mov_b32 s%d, %d" % (S_RETRY, RETRY_MAX))
            a.I("v_mov_b32 %s, %d" % (vr(T), D_CHAIN))
            a.label(lp)
            a.I("buffer_load_dword %s, %s, s[%d:%d], 0 offen sc1" % (vr(T + 1), vr(T), S_DBG, S_DBG + 3))
            a.I("s_sub_u32 s%d, s%d, 1" % (S_RETRY, S_RETRY))
            a.I("s_cmp_eq_u32 s%d, 0" % S_RETRY)
            a.I("s_cbranch_scc1 L_abort")
            a.I("s_waitcnt vmcnt(0)")
            a.I("v_cmp_ne_u32 vcc, 32, %s" % vr(T + 1))
            a.I("s_cbranch_vccnz %s" % lp)
        a.I("s_waitcnt vmcnt(0)")
        a.I("s_barrier")
        if w == 0: stamp(a, 5, V_MEM)
        if w == 0: dbgmax(a, 40, V_MEM)
        a.I("s_cmp_lg_u32 s%d, 0" % S_MODE)
        a.I("s_cbranch_scc1 L_cslow%d" % w)
        chain_loop(a, w, timing=timing, exp="latepois", fused=True, tag="f", **kw)
        if w == 0: stamp(a, 6, V_MEM)
        if w == 0: dbgmax(a, 44, V_MEM)
        a.I("s_endpgm")
    for w in range(4):
        a.label("L_cslow%d" % w, clear=True)
        chain_loop(a, w, st_flags="sc1", timing=False, exp="latepois", fused=True, tag="s", looptime=False,
                   **{k: v for k, v in kw.items() if k != "looptime"})
        a.I("s_endpgm")


def worker_part(a):
    a.label("L_worker", clear=True)
    lane = 1
    sW = S_WAVE
    a.I("s_sub_u32 s%d, s%d, 1" % (S_FI, S_XCC))
    a.I("s_lshl_b32 s%d, s%d, 5" % (S_FI, S_FI))
    a.I("s_add_u32 s%d, s%d, s%d" % (S_FI, S_FI, S_TK))
    a.I("v_and_b32 v%d, 63, v0" % lane)
    a.I("s_load_dwordx2 s[22:23], s[0:1], %d" % K_X)
    a.I("s_load_dwordx4 s[24:27], s[0:1], %d" % K_C)
    a.I("s_load_dwordx4 s[28:31], s[0:1], %d" % K_WQ)
    a.I("s_load_dwordx2 s[36:37], s[0:1], %d" % K_WV)
    a.I("s_waitcnt lgkmcnt(0)")
    a.I("s_cmp_lt_u32 s%d, 192" % S_FI)
    a.I("s_cbranch_scc1 L_front")
    a.I("s_sub_u32 s38, s%d, 192" % S_FI)
    LV = 112
    srd(a, 4, 22, 2048 * 1024)
    a.I("s_lshl_b32 s39, s38, 5")
    R0 = pre.ln_stats(a, 4, 39, sW, lane, LV, 0)
    a.I("s_add_u32 s39, s39, 1024")
    R1 = pre.ln_stats(a, 4, 39, sW, lane, LV + 0, 1) if False else None
    pre.mod_role(a, S_WS, 12, 40, 38, sW, lane, 24, 26, 140000)
    verify(a, 16, 90, "L_slow")
    a.I("s_lshl_b32 s90, s38, 3")
    a.I("s_add_u32 s90, s90, 0x%x" % FL_MOD)
    set_flag(a, S_WS, 90, "1", 16, sW)
    stamp(a, 2, 16)
    pre.ln_stats2(a, *R0)
    Lx = a.newlabel("lnw")
    a.I("s_cmp_lg_u32 s%d, 0" % sW)
    a.I("s_cbranch_scc1 %s" % Lx)
    a.I("s_mov_b32 s90, 0x%x" % FL_MOD)
    a.I("v_lshlrev_b32 v16, 3, v%d" % lane)
    a.I("v_mov_b32 v17, 1")
    a.I("v_cmp_gt_u32 vcc, 16, v%d" % lane)
    a.I("v_cndmask_b32 v17, 0, v17, vcc")
    poll_lanes(a, S_WS, 90, 16, 17, 18, 91, "L_abort")
    a.label(Lx)
    a.I("s_barrier")
    pre.mod_to_lds(a, S_WS, sW, lane, 144000, 16)
    for it in range(2):
        if it == 1:
            R0 = pre.ln_stats(a, 4, 39, sW, lane, LV, 0)
            a.I("s_waitcnt vmcnt(0)")
            pre.ln_stats2(a, *R0)
        pre.ln_apply(a, S_WS, R0[0], R0[1], R0[2], 144000, 20)
        a.I("s_waitcnt vmcnt(0)")
        a.I("s_barrier")
        a.I("s_lshl_b32 s90, s38, 3")
        a.I("s_add_u32 s90, s90, 0x%x" % (FL_H + it * 256))
        set_flag(a, S_WS, 90, "1", 16, sW)
    stamp(a, 3, 16)
    a.I("s_cmp_ge_u32 s38, 16")
    a.I("s_cbranch_scc1 L_tail")
    a.I("s_add_u32 s38, s38, 32")
    pre.mod_role(a, S_WS, 12, 40, 38, sW, lane, 24, 26, 140000)
    a.I("s_lshl_b32 s90, s38, 3")
    a.I("s_add_u32 s90, s90, 0x%x" % FL_MOD)
    set_flag(a, S_WS, 90, "1", 16, sW)
    a.I("s_branch L_tail")
    a.label("L_front", clear=True)
    a.I("s_and_b32 s38, s%d, 1" % S_FI)
    a.I("s_lshr_b32 s39, s%d, 1" % S_FI)
    a.I("s_and_b32 s40, s39, 31")
    a.I("s_lshr_b32 s41, s39, 5")
    a.I("s_add_u32 s41, s41, 1")
    a.I("s_cmp_eq_u32 s41, 3")
    a.I("s_cselect_b32 s41, 0, s41")
    a.I("s_cmp_eq_u32 s41, 1")
    a.I("s_cselect_b32 s28, s30, s28")
    a.I("s_cselect_b32 s29, s31, s29")
    a.I("s_cmp_eq_u32 s41, 2")
    a.I("s_cselect_b32 s28, s36, s28")
    a.I("s_cselect_b32 s29, s37, s29")
    a.I("s_lshl_b32 s42, s40, 6")
    a.I("s_lshl_b32 s43, s41, 1")
    a.I("s_add_u32 s43, s43, s38")
    a.I("s_lshl_b32 s43, s43, 3")
    a.I("s_add_u32 s42, s42, s43")
    a.I("s_add_u32 s42, s42, 0x%x" % FL_PROG)

    def wait_h(a, nflags):
        Lh = a.newlabel("bh")
        a.I("s_cmp_lg_u32 s%d, 0" % sW)
        a.I("s_cbranch_scc1 %s" % Lh)
        a.I("s_mov_b32 s90, 0x%x" % FL_H)
        a.I("v_lshlrev_b32 v2, 3, v%d" % lane)
        a.I("v_mov_b32 v3, 1")
        if nflags < 64:
            a.I("v_cmp_gt_u32 vcc, %d, v%d" % (nflags, lane))
            a.I("v_cndmask_b32 v3, 0, v3, vcc")
        poll_lanes(a, S_WS, 90, 2, 3, 4, 91, "L_abort", sleep=1)
        a.label(Lh)

    def before_h(a):
        verify(a, 16, 90, "L_slow")
        stamp(a, 4, 8)
        wait_h(a, 32)
        stamp(a, 5, 8)

    def stores_done(a, s_it):
        set_flag(a, S_WS, 42, "s%d" % s_it, 2, sW)

    def mid(a, s_it):
        L = a.newlabel("mid")
        a.I("s_cmp_lg_u32 s%d, 13" % s_it)
        a.I("s_cbranch_scc1 %s" % L)
        wait_h(a, 64)
        a.I("s_barrier")
        a.label(L)
    front.front_role(a, S_WS, 12, 41, 40, 38, sW, lane, 28, hooks={"before_h": before_h, "stores_done": stores_done, "mid": mid})
    stamp(a, 6, 16)
    a.label("L_tail", clear=True)
    a.I("s_barrier")
    a.I("s_load_dwordx2 s[22:23], s[0:1], %d" % K_X)
    a.I("s_load_dwordx2 s[24:25], s[0:1], %d" % K_WO)
    a.I("s_load_dwordx4 s[28:31], s[0:1], %d" % K_W1)
    a.I("s_load_dwordx2 s[26:27], s[0:1], %d" % K_OUT)
    a.I("v_and_b32 %s, 63, v0" % vr(tail.V_LANE))
    a.I("s_mov_b32 s68, s%d" % S_TK)
    a.I("s_waitcnt lgkmcnt(0)")
    for w in range(1, 4):
        a.I("s_cmp_eq_u32 s%d, %d" % (sW, w))
        a.I("s_cbranch_scc1 L_tw%d" % w)
    hk = tail.fused_hooks(S_WS, 68, "L_abort")
    for w in range(4):
        a.label("L_tw%d" % w, clear=True)
        tail.tail_setup(a, w, S_WS, 12, 68, S_XCC, 24, 28, 30)
        if w == 0: stamp(a, 7, 150)
        a.I("s_sub_u32 s%d, s%d, 1" % (tail.S_SEG, S_XCC))
        a.I("s_mov_b32 s%d, 0" % tail.S_IT)
        a.I("s_cmp_lg_u32 s%d, 0" % S_MODE)
        a.I("s_cbranch_scc1 L_tslow%d" % w)
        tail.tail_loop(a, w, S_WS, 12, 4, 68, 22, 26, 7, abort="L_abort", hooks=hk, tag="f")
        if w == 0: stamp(a, 8, 150)
        if w == 0: dbgmax(a, 48, 150)
        a.I("s_endpgm")
    for w in range(4):
        a.label("L_tslow%d" % w, clear=True)
        tail.tail_loop(a, w, S_WS, 12, 4, 68, 22, 26, 7, st="sc1", abort="L_abort", hooks=hk, tag="s")
        a.I("s_endpgm")


def build(timing=False, **kw):
    a = Asm()
    a.raw("; @launch grid=(256,1,1) block=(256,1,1) lds=163840")
    a.raw('.amdgcn_target "amdgcn-amd-amdhsa--gfx950"')
    a.raw(".text")
    a.raw(".globl %s" % NAME)
    a.raw(".p2align 8")
    a.raw(".type %s,@function" % NAME)
    a.label(NAME)
    entry(a)
    a.I("s_cmp_ge_u32 s%d, 32" % S_TK)
    a.I("s_cbranch_scc1 L_overflow")
    a.label("L_dispatch")
    a.I("s_cmp_lg_u32 s%d, 0" % S_XCC)
    a.I("s_cbranch_scc1 L_far_worker")
    a.I("s_branch L_chain")
    a.label("L_far_worker")
    a.I("s_branch L_hop_worker")
    a.label("L_overflow", clear=True)
    verify(a, 16, 90, "L_slow")
    a.I("s_branch L_abort")
    a.label("L_slow", clear=True)
    a.I("s_waitcnt vmcnt(0) lgkmcnt(0)")
    a.I("s_barrier")
    a.I("s_cmp_lg_u32 s%d, 0" % S_WAVE)
    a.I("s_cbranch_scc1 L_sl_wait")
    a.I("s_mov_b64 exec, 1")
    a.I("v_mov_b32 v2, 1")
    a.I("v_mov_b32 v3, %d" % D_GTK)
    a.I("buffer_atomic_add v2, v3, s[%d:%d], 0 offen sc0" % (S_DBG, S_DBG + 3))
    a.I("v_mov_b32 v3, %d" % L_BCAST)
    a.I("s_waitcnt vmcnt(0)")
    a.I("ds_write_b32 v3, v2")
    a.I("s_mov_b64 exec, -1")
    a.label("L_sl_wait")
    a.I("s_waitcnt lgkmcnt(0)")
    a.I("s_barrier")
    a.I("v_mov_b32 v3, %d" % L_BCAST)
    a.I("ds_read_b32 v2, v3")
    a.I("s_waitcnt lgkmcnt(0)")
    a.I("v_readfirstlane_b32 s%d, v2" % S_TK)
    a.I("s_barrier")
    a.I("s_lshr_b32 s%d, s%d, 5" % (S_XCC, S_TK))
    a.I("s_and_b32 s%d, s%d, 31" % (S_TK, S_TK))
    a.I("s_mov_b32 s%d, 1" % S_MODE)
    a.I("v_mbcnt_lo_u32_b32 v1, -1, 0")
    a.I("v_mbcnt_hi_u32_b32 v1, -1, v1")
    a.I("s_lshl_b32 s%d, s%d, 6" % (S_T0, S_WAVE))
    a.I("v_add_u32 v0, s%d, v1" % S_T0)
    a.I("v_and_b32 %s, 63, v0" % vr(V_T))
    a.I("s_branch L_dispatch")
    a.label("L_exit")
    a.I("s_endpgm")
    a.label("L_abort0", clear=True)
    chain_part(a, timing, kw)
    a.label("L_abort", clear=True)
    a.I("s_mov_b64 exec, 1")
    a.I("v_mov_b32 v2, 0x7777")
    a.I("v_mov_b32 v3, 252")
    a.I("buffer_store_dword v2, v3, s[%d:%d], 0 offen" % (S_DBG, S_DBG + 3))
    a.I("s_waitcnt vmcnt(0)")
    a.I("s_endpgm")
    a.label("L_hop_worker")
    a.I("s_branch L_worker")
    worker_part(a)
    txt = a.text() + kd(NAME)
    txt = "\n".join(l.strip() if l.startswith("    ") else l for l in txt.split("\n"))
    return txt, a


if __name__ == "__main__":
    kw = dict(gap=36, rgap=36, delay=24, rdelay=48)
    timing = False
    for arg in sys.argv[2:]:
        k, v = arg.split("=")
        if k == "timing":
            timing = bool(int(v))
        elif k == "force_slow":
            FORCE_SLOW = bool(int(v))
        elif k == "dbgt":
            DBGT = bool(int(v))
        elif k == "stamps":
            STAMPS = bool(int(v))
        else:
            kw[k] = int(v) if v.lstrip("-").isdigit() else v
    txt, a = build(timing=timing, **kw)
    open(sys.argv[1], "w").write(txt)
    print("instructions", a.n_inst, "bytes", len(txt))
```

```python
import sys
from common import *
import pre, front, tail, chain
from chain import *
from tail import poll_lanes

D_TK0, D_NONCE, D_CHAIN = 128, 132, 136
L_BCAST = 163840 - 64

S_MODE = 32
FORCE_SLOW = False
D_GTK = 140
S_XCC, S_TK, S_FI = 33, 21, 35


STAMPS = False
WS_STAMP = 0x00080000


DBGT = False
OPT = {}


def dbgmax(a, off, vt, neg=False):
    if not DBGT:
        return
    L = a.newlabel("dm")
    a.I("s_cmp_lg_u32 s%d, 0" % S_WAVE)
    a.I("s_cbranch_scc1 %s" % L)
    a.I("s_memrealtime s[94:95]")
    a.I("s_waitcnt lgkmcnt(0)")
    if neg:
        a.I("s_not_b32 s94, s94")
    a.I("v_mov_b32 v%d, s94" % vt)
    a.I("v_mov_b32 v%d, %d" % (vt + 1, off))
    a.I("s_mov_b64 exec, 1")
    a.I("buffer_atomic_umax v%d, v%d, s[%d:%d], 0 offen" % (vt, vt + 1, S_DBG, S_DBG + 3))
    a.I("s_mov_b64 exec, -1")
    a.label(L)


def stamp(a, slot, vt=250):
    if DBGT:
        m = {1: (32, True), 3: None, 5: 40, 6: 44, 8: 48, 4: 52}
        return
    if not STAMPS:
        return
    L = a.newlabel("st")
    a.I("s_cmp_lg_u32 s%d, 0" % S_WAVE)
    a.I("s_cbranch_scc1 %s" % L)
    a.I("s_memrealtime s[94:95]")
    a.I("s_lshl_b32 s93, s3, 6")
    a.I("s_add_u32 s93, s93, 0x%x" % (WS_STAMP + slot * 4))
    a.I("s_waitcnt lgkmcnt(0)")
    a.I("v_mov_b32 v%d, s94" % vt)
    a.I("v_mov_b32 v%d, 0" % (vt + 1))
    a.I("s_mov_b64 exec, 1")
    a.I("buffer_store_dword v%d, v%d, s[%d:%d], s93 offen sc1" % (vt, vt + 1, S_WS, S_WS + 3))
    a.I("s_mov_b64 exec, -1")
    a.label(L)


def entry(a):
    a.I("s_cmp_ge_u32 s2, 256")
    a.I("s_cbranch_scc1 L_exit")
    a.I("s_load_dwordx4 s[%d:%d], s[0:1], %d" % (S_PTR + 12, S_PTR + 15, K_DBG))
    a.I("s_memrealtime s[96:97]")
    if STAMPS:
        a.I("s_mov_b32 s3, s2")
    a.I("v_and_b32 %s, 63, v0" % vr(V_T))
    a.I("v_lshrrev_b32 v1, 6, v0")
    a.I("s_getreg_b32 s%d, hwreg(HW_REG_XCC_ID, 0, 4)" % S_XCC)
    a.I("v_readfirstlane_b32 s%d, v1" % S_WAVE)
    a.I("s_waitcnt lgkmcnt(0)")
    srd(a, S_DBG, S_PTR + 12, 256)
    srd(a, S_WS, S_PTR + 14, WS_SIZE)
    a.I("s_mov_b32 s%d, 0x00020000" % (S_W + 3))
    a.I("s_mov_b32 s%d, 0" % S_MODE)
    a.I("s_cmp_lg_u32 s%d, 0" % S_WAVE)
    a.I("s_cbranch_scc1 L_el_wait")
    a.I("s_and_b32 s%d, s%d, 7" % (S_T0, S_XCC))
    a.I("s_lshl_b32 s%d, s%d, 2" % (S_T0, S_T0))
    a.I("s_cmp_eq_u32 s%d, 0" % S_T0)
    a.I("s_cselect_b32 s%d, %d, s%d" % (S_T0, D_TK0, S_T0))
    a.I("v_mov_b32 v2, 1")
    a.I("v_mov_b32 v3, s%d" % S_T0)
    a.I("s_mov_b64 exec, 1")
    a.I("buffer_atomic_add v2, v3, s[%d:%d], 0 offen sc0" % (S_DBG, S_DBG + 3))
    a.I("s_waitcnt vmcnt(0)")
    a.I("v_readfirstlane_b32 s%d, v2" % (S_T0 + 1))
    a.I("s_cmp_lg_u32 s%d, 0" % (S_T0 + 1))
    a.I("s_cbranch_scc1 L_el_nononce")
    a.I("s_or_b32 s%d, s96, 1" % (S_T0 + 1))
    a.I("v_mov_b32 v4, s%d" % (S_T0 + 1))
    a.I("v_mov_b32 v5, 0")
    a.I("v_mov_b32 v6, %d" % D_NONCE)
    a.I("buffer_atomic_cmpswap v[4:5], v6, s[%d:%d], 0 offen" % (S_DBG, S_DBG + 3))
    a.label("L_el_nononce")
    a.I("v_mov_b32 v3, %d" % L_BCAST)
    a.I("ds_write_b32 v3, v2")
    a.I("s_mov_b64 exec, -1")
    a.label("L_el_wait")
    a.I("s_waitcnt lgkmcnt(0)")
    a.I("s_barrier")
    a.I("v_mov_b32 v3, %d" % L_BCAST)
    a.I("ds_read_b32 v2, v3")
    a.I("s_waitcnt lgkmcnt(0)")
    a.I("v_readfirstlane_b32 s%d, v2" % S_TK)
    a.I("s_barrier")
    if STAMPS:
        L = a.newlabel("st")
        a.I("s_cmp_lg_u32 s%d, 0" % S_WAVE)
        a.I("s_cbranch_scc1 %s" % L)
        a.I("s_lshl_b32 s93, s3, 6")
        a.I("s_add_u32 s93, s93, 0x%x" % WS_STAMP)
        a.I("s_lshl_b32 s94, s%d, 8" % S_XCC)
        a.I("s_add_u32 s94, s94, s%d" % S_TK)
        a.I("v_mov_b32 v10, s96")
        a.I("v_mov_b32 v11, 0")
        a.I("v_mov_b32 v12, s94")
        a.I("s_mov_b64 exec, 1")
        a.I("buffer_store_dword v10, v11, s[%d:%d], s93 offen sc1" % (S_WS, S_WS + 3))
        a.I("buffer_store_dword v12, v11, s[%d:%d], s93 offen offset:60 sc1" % (S_WS, S_WS + 3))
        a.I("s_mov_b64 exec, -1")
        a.label(L)
    stamp(a, 1, 10)
    dbgmax(a, 36, 10, neg=True)


def verify(a, vt, st, slow):
    L = a.newlabel("vf")
    Lskip = a.newlabel("vfx")
    a.I("s_cmp_lg_u32 s%d, 0" % S_MODE)
    a.I("s_cbranch_scc1 %s" % Lskip)
    a.I("s_mov_b32 s%d, 200000" % st)
    a.I("v_mov_b32 %s, 0" % vr(vt + 12))
    a.label(L)
    a.I("buffer_load_dwordx4 %s, %s, s[%d:%d], 0 offen sc1" % (vr(vt, 4), vr(vt + 12), S_DBG, S_DBG + 3))
    a.I("buffer_load_dwordx4 %s, %s, s[%d:%d], 0 offen offset:16 sc1" % (vr(vt + 4, 4), vr(vt + 12), S_DBG, S_DBG + 3))
    a.I("buffer_load_dwordx2 %s, %s, s[%d:%d], 0 offen offset:%d sc1" % (vr(vt + 8, 2), vr(vt + 12), S_DBG, S_DBG + 3, D_TK0))
    a.I("s_sub_u32 s%d, s%d, 1" % (st, st))
    a.I("s_cmp_eq_u32 s%d, 0" % st)
    a.I("s_cbranch_scc1 L_abort")
    a.I("s_waitcnt vmcnt(0)")
    a.I("v_add3_u32 %s, %s, %s, %s" % (vr(vt + 10), vr(vt + 1), vr(vt + 2), vr(vt + 3)))
    a.I("v_add3_u32 %s, %s, %s, %s" % (vr(vt + 10), vr(vt + 10), vr(vt + 4), vr(vt + 5)))
    a.I("v_add3_u32 %s, %s, %s, %s" % (vr(vt + 10), vr(vt + 10), vr(vt + 6), vr(vt + 7)))
    a.I("v_add_u32 %s, %s, %s" % (vr(vt + 10), vr(vt + 10), vr(vt + 8)))
    a.I("v_max3_u32 %s, %s, %s, %s" % (vr(vt + 11), vr(vt + 1), vr(vt + 2), vr(vt + 3)))
    a.I("v_max3_u32 %s, %s, %s, %s" % (vr(vt + 11), vr(vt + 11), vr(vt + 4), vr(vt + 5)))
    a.I("v_max3_u32 %s, %s, %s, %s" % (vr(vt + 11), vr(vt + 11), vr(vt + 6), vr(vt + 7)))
    a.I("v_max_u32 %s, %s, %s" % (vr(vt + 11), vr(vt + 11), vr(vt + 8)))
    a.I("v_cmp_lt_u32 vcc, 0x100, %s" % vr(vt + 10))
    a.I("s_cbranch_vccnz L_abort")
    a.I("v_cmp_ne_u32 vcc, 0x100, %s" % vr(vt + 10))
    a.I("s_cbranch_vccnz %s" % L)
    a.I("v_cmp_eq_u32 vcc, 0, %s" % vr(vt + 9))
    a.I("s_cbranch_vccnz %s" % L)
    a.I("v_readfirstlane_b32 s%d, %s" % (S_NONCE, vr(vt + 9)))
    a.I("v_readfirstlane_b32 s%d, %s" % (st, vr(vt + 11)))
    a.I("s_cmp_lg_u32 s%d, %d" % (st, 33 if FORCE_SLOW else 32))
    a.I("s_cbranch_scc1 %s" % slow)
    a.label(Lskip)


def set_flag(a, S_WSq, s_off, s_val, vt, s_wave):
    L = a.newlabel("sf")
    a.I("s_cmp_lg_u32 s%d, 0" % s_wave)
    a.I("s_cbranch_scc1 %s" % L)
    a.I("v_mov_b32 %s, %s" % (vr(vt), s_val))
    a.I("v_mov_b32 %s, s%d" % (vr(vt + 1), S_NONCE))
    a.I("v_mov_b32 %s, 0" % vr(vt + 2))
    a.I("s_mov_b64 exec, 1")
    a.I("buffer_store_dwordx2 %s, %s, s[%d:%d], s%d offen sc1" % (vr(vt, 2), vr(vt + 2), S_WSq, S_WSq + 3, s_off))
    a.I("s_mov_b64 exec, -1")
    a.label(L)


def chain_part(a, timing, kw):
    a.label("L_chain", clear=True)
    a.I("s_load_dwordx8 s[%d:%d], s[0:1], 8" % (S_PTR, S_PTR + 7))
    a.I("s_load_dwordx2 s[%d:%d], s[0:1], 40" % (S_PTR + 8, S_PTR + 9))
    a.I("s_waitcnt lgkmcnt(0)")
    for w in range(1, 4):
        a.I("s_cmp_eq_u32 s%d, %d" % (S_WAVE, w))
        a.I("s_cbranch_scc1 L_wave%d" % w)
    for w in range(4):
        a.label("L_wave%d" % w, clear=True)
        lane_consts(a, w)
        if w == 0: stamp(a, 2, V_MEM)
        load_weights(a, w, OPT.get('wflags', ''), bool(OPT.get('rot')))
        if w == 0: stamp(a, 3, V_MEM)
        if w == 0: dbgmax(a, 52, V_MEM)
        verify(a, V_MEM, S_RETRY, "L_slow")
        init_buffers(a, w, "sc1")
        a.I("s_waitcnt vmcnt(0) lgkmcnt(0)")
        a.I("s_barrier")
        if w == 2:
            a.I("s_mov_b64 exec, 1")
            a.I("v_mov_b32 v%d, 1" % V_MEM)
            a.I("v_mov_b32 v%d, %d" % (V_MEM + 1, D_CHAIN))
            a.I("buffer_atomic_add v%d, v%d, s[%d:%d], 0 offen" % (V_MEM, V_MEM + 1, S_DBG, S_DBG + 3))
            a.I("s_mov_b64 exec, -1")
        loop_setup(a, w, fused=True)
        if w == 0: stamp(a, 4, V_MEM)
        if w == 0:
            T = V_MEM
            lp = a.newlabel("arr")
            a.I("s_mov_b32 s%d, %d" % (S_RETRY, RETRY_MAX))
            a.I("v_mov_b32 %s, %d" % (vr(T), D_CHAIN))
            a.label(lp)
            a.I("buffer_load_dword %s, %s, s[%d:%d], 0 offen sc1" % (vr(T + 1), vr(T), S_DBG, S_DBG + 3))
            a.I("s_sub_u32 s%d, s%d, 1" % (S_RETRY, S_RETRY))
            a.I("s_cmp_eq_u32 s%d, 0" % S_RETRY)
            a.I("s_cbranch_scc1 L_abort")
            a.I("s_waitcnt vmcnt(0)")
            a.I("v_cmp_ne_u32 vcc, 32, %s" % vr(T + 1))
            a.I("s_cbranch_vccnz %s" % lp)
        a.I("s_waitcnt vmcnt(0)")
        a.I("s_barrier")
        if w == 0: stamp(a, 5, V_MEM)
        if w == 0: dbgmax(a, 40, V_MEM)
        a.I("s_cmp_lg_u32 s%d, 0" % S_MODE)
        a.I("s_cbranch_scc1 L_cslow%d" % w)
        chain_loop(a, w, timing=timing, exp="latepois", fused=True, tag="f", **kw)
        if w == 0: stamp(a, 6, V_MEM)
        if w == 0: dbgmax(a, 44, V_MEM)
        a.I("s_endpgm")
    for w in range(4):
        a.label("L_cslow%d" % w, clear=True)
        chain_loop(a, w, st_flags="sc1", timing=False, exp="latepois", fused=True, tag="s", looptime=False,
                   **{k: v for k, v in kw.items() if k != "looptime"})
        a.I("s_endpgm")


def worker_part(a):
    a.label("L_worker", clear=True)
    lane = 1
    sW = S_WAVE
    a.I("s_sub_u32 s%d, s%d, 1" % (S_FI, S_XCC))
    a.I("s_lshl_b32 s%d, s%d, 5" % (S_FI, S_FI))
    a.I("s_add_u32 s%d, s%d, s%d" % (S_FI, S_FI, S_TK))
    a.I("v_and_b32 v%d, 63, v0" % lane)
    a.I("s_load_dwordx2 s[22:23], s[0:1], %d" % K_X)
    a.I("s_load_dwordx4 s[24:27], s[0:1], %d" % K_C)
    a.I("s_load_dwordx4 s[28:31], s[0:1], %d" % K_WQ)
    a.I("s_load_dwordx2 s[36:37], s[0:1], %d" % K_WV)
    a.I("s_waitcnt lgkmcnt(0)")
    a.I("s_cmp_lt_u32 s%d, 192" % S_FI)
    a.I("s_cbranch_scc1 L_front")
    a.I("s_sub_u32 s38, s%d, 192" % S_FI)
    LV = 112
    srd(a, 4, 22, 2048 * 1024)
    a.I("s_lshl_b32 s39, s38, 5")
    R0 = pre.ln_stats(a, 4, 39, sW, lane, LV, 0)
    a.I("s_add_u32 s39, s39, 1024")
    R1 = pre.ln_stats(a, 4, 39, sW, lane, LV + 0, 1) if False else None
    pre.mod_role(a, S_WS, 12, 40, 38, sW, lane, 24, 26, 140000)
    verify(a, 16, 90, "L_slow")
    a.I("s_lshl_b32 s90, s38, 3")
    a.I("s_add_u32 s90, s90, 0x%x" % FL_MOD)
    set_flag(a, S_WS, 90, "1", 16, sW)
    stamp(a, 2, 16)
    pre.ln_stats2(a, *R0)
    Lx = a.newlabel("lnw")
    a.I("s_cmp_lg_u32 s%d, 0" % sW)
    a.I("s_cbranch_scc1 %s" % Lx)
    a.I("s_mov_b32 s90, 0x%x" % FL_MOD)
    a.I("v_lshlrev_b32 v16, 3, v%d" % lane)
    a.I("v_mov_b32 v17, 1")
    a.I("v_cmp_gt_u32 vcc, 16, v%d" % lane)
    a.I("v_cndmask_b32 v17, 0, v17, vcc")
    poll_lanes(a, S_WS, 90, 16, 17, 18, 91, "L_abort")
    a.label(Lx)
    a.I("s_barrier")
    pre.mod_to_lds(a, S_WS, sW, lane, 144000, 16)
    for it in range(2):
        if it == 1:
            R0 = pre.ln_stats(a, 4, 39, sW, lane, LV, 0)
            a.I("s_waitcnt vmcnt(0)")
            pre.ln_stats2(a, *R0)
        pre.ln_apply(a, S_WS, R0[0], R0[1], R0[2], 144000, 20)
        a.I("s_waitcnt vmcnt(0)")
        a.I("s_barrier")
        a.I("s_lshl_b32 s90, s38, 3")
        a.I("s_add_u32 s90, s90, 0x%x" % (FL_H + it * 256))
        set_flag(a, S_WS, 90, "1", 16, sW)
    stamp(a, 3, 16)
    a.I("s_cmp_ge_u32 s38, 16")
    a.I("s_cbranch_scc1 L_tail")
    a.I("s_add_u32 s38, s38, 32")
    pre.mod_role(a, S_WS, 12, 40, 38, sW, lane, 24, 26, 140000)
    a.I("s_lshl_b32 s90, s38, 3")
    a.I("s_add_u32 s90, s90, 0x%x" % FL_MOD)
    set_flag(a, S_WS, 90, "1", 16, sW)
    a.I("s_branch L_tail")
    a.label("L_front", clear=True)
    a.I("s_and_b32 s38, s%d, 1" % S_FI)
    a.I("s_lshr_b32 s39, s%d, 1" % S_FI)
    a.I("s_and_b32 s40, s39, 31")
    a.I("s_lshr_b32 s41, s39, 5")
    a.I("s_add_u32 s41, s41, 1")
    a.I("s_cmp_eq_u32 s41, 3")
    a.I("s_cselect_b32 s41, 0, s41")
    a.I("s_cmp_eq_u32 s41, 1")
    a.I("s_cselect_b32 s28, s30, s28")
    a.I("s_cselect_b32 s29, s31, s29")
    a.I("s_cmp_eq_u32 s41, 2")
    a.I("s_cselect_b32 s28, s36, s28")
    a.I("s_cselect_b32 s29, s37, s29")
    a.I("s_lshl_b32 s42, s40, 6")
    a.I("s_lshl_b32 s43, s41, 1")
    a.I("s_add_u32 s43, s43, s38")
    a.I("s_lshl_b32 s43, s43, 3")
    a.I("s_add_u32 s42, s42, s43")
    a.I("s_add_u32 s42, s42, 0x%x" % FL_PROG)

    def wait_h(a, nflags):
        Lh = a.newlabel("bh")
        a.I("s_cmp_lg_u32 s%d, 0" % sW)
        a.I("s_cbranch_scc1 %s" % Lh)
        a.I("s_mov_b32 s90, 0x%x" % FL_H)
        a.I("v_lshlrev_b32 v2, 3, v%d" % lane)
        a.I("v_mov_b32 v3, 1")
        if nflags < 64:
            a.I("v_cmp_gt_u32 vcc, %d, v%d" % (nflags, lane))
            a.I("v_cndmask_b32 v3, 0, v3, vcc")
        poll_lanes(a, S_WS, 90, 2, 3, 4, 91, "L_abort", sleep=1)
        a.label(Lh)

    def before_h(a):
        verify(a, 16, 90, "L_slow")
        stamp(a, 4, 8)
        wait_h(a, 32)
        stamp(a, 5, 8)

    def stores_done(a, s_it):
        set_flag(a, S_WS, 42, "s%d" % s_it, 2, sW)

    def mid(a, s_it):
        L = a.newlabel("mid")
        a.I("s_cmp_lg_u32 s%d, 13" % s_it)
        a.I("s_cbranch_scc1 %s" % L)
        wait_h(a, 64)
        a.I("s_barrier")
        a.label(L)
    def before_w(a):
        if OPT.get("latew"):
            verify(a, 16, 90, "L_slow")
            wait_h(a, 32)
            a.I("s_barrier")
        if OPT.get("pfwo"):
            srd(a, 4, 24, 0x400000) if False else None
    front.front_role(a, S_WS, 12, 41, 40, 38, sW, lane, 28, hooks={"before_w": before_w, "before_h": before_h, "stores_done": stores_done, "mid": mid})
    stamp(a, 6, 16)
    a.label("L_tail", clear=True)
    a.I("s_barrier")
    a.I("s_load_dwordx2 s[22:23], s[0:1], %d" % K_X)
    a.I("s_load_dwordx2 s[24:25], s[0:1], %d" % K_WO)
    a.I("s_load_dwordx4 s[28:31], s[0:1], %d" % K_W1)
    a.I("s_load_dwordx2 s[26:27], s[0:1], %d" % K_OUT)
    a.I("v_and_b32 %s, 63, v0" % vr(tail.V_LANE))
    a.I("s_mov_b32 s68, s%d" % S_TK)
    a.I("s_waitcnt lgkmcnt(0)")
    for w in range(1, 4):
        a.I("s_cmp_eq_u32 s%d, %d" % (sW, w))
        a.I("s_cbranch_scc1 L_tw%d" % w)
    hk = tail.fused_hooks(S_WS, 68, "L_abort")
    for w in range(4):
        a.label("L_tw%d" % w, clear=True)
        tail.tail_setup(a, w, S_WS, 12, 68, S_XCC, 24, 28, 30)
        if w == 0: stamp(a, 7, 150)
        a.I("s_sub_u32 s%d, s%d, 1" % (tail.S_SEG, S_XCC))
        a.I("s_mov_b32 s%d, 0" % tail.S_IT)
        a.I("s_cmp_lg_u32 s%d, 0" % S_MODE)
        a.I("s_cbranch_scc1 L_tslow%d" % w)
        tail.tail_loop(a, w, S_WS, 12, 4, 68, 22, 26, 7, abort="L_abort", hooks=hk, tag="f")
        if w == 0: stamp(a, 8, 150)
        if w == 0: dbgmax(a, 48, 150)
        a.I("s_endpgm")
    for w in range(4):
        a.label("L_tslow%d" % w, clear=True)
        tail.tail_loop(a, w, S_WS, 12, 4, 68, 22, 26, 7, st="sc1", abort="L_abort", hooks=hk, tag="s")
        a.I("s_endpgm")


def build(timing=False, **kw):
    a = Asm()
    a.raw("; @launch grid=(256,1,1) block=(256,1,1) lds=163840")
    a.raw('.amdgcn_target "amdgcn-amd-amdhsa--gfx950"')
    a.raw(".text")
    a.raw(".globl %s" % NAME)
    a.raw(".p2align 8")
    a.raw(".type %s,@function" % NAME)
    a.label(NAME)
    entry(a)
    a.I("s_cmp_ge_u32 s%d, 32" % S_TK)
    a.I("s_cbranch_scc1 L_overflow")
    a.label("L_dispatch")
    a.I("s_cmp_lg_u32 s%d, 0" % S_XCC)
    a.I("s_cbranch_scc1 L_far_worker")
    a.I("s_branch L_chain")
    a.label("L_far_worker")
    a.I("s_branch L_hop_worker")
    a.label("L_overflow", clear=True)
    verify(a, 16, 90, "L_slow")
    a.I("s_branch L_abort")
    a.label("L_slow", clear=True)
    a.I("s_waitcnt vmcnt(0) lgkmcnt(0)")
    a.I("s_barrier")
    a.I("s_cmp_lg_u32 s%d, 0" % S_WAVE)
    a.I("s_cbranch_scc1 L_sl_wait")
    a.I("s_mov_b64 exec, 1")
    a.I("v_mov_b32 v2, 1")
    a.I("v_mov_b32 v3, %d" % D_GTK)
    a.I("buffer_atomic_add v2, v3, s[%d:%d], 0 offen sc0" % (S_DBG, S_DBG + 3))
    a.I("v_mov_b32 v3, %d" % L_BCAST)
    a.I("s_waitcnt vmcnt(0)")
    a.I("ds_write_b32 v3, v2")
    a.I("s_mov_b64 exec, -1")
    a.label("L_sl_wait")
    a.I("s_waitcnt lgkmcnt(0)")
    a.I("s_barrier")
    a.I("v_mov_b32 v3, %d" % L_BCAST)
    a.I("ds_read_b32 v2, v3")
    a.I("s_waitcnt lgkmcnt(0)")
    a.I("v_readfirstlane_b32 s%d, v2" % S_TK)
    a.I("s_barrier")
    a.I("s_lshr_b32 s%d, s%d, 5" % (S_XCC, S_TK))
    a.I("s_and_b32 s%d, s%d, 31" % (S_TK, S_TK))
    a.I("s_mov_b32 s%d, 1" % S_MODE)
    a.I("v_mbcnt_lo_u32_b32 v1, -1, 0")
    a.I("v_mbcnt_hi_u32_b32 v1, -1, v1")
    a.I("s_lshl_b32 s%d, s%d, 6" % (S_T0, S_WAVE))
    a.I("v_add_u32 v0, s%d, v1" % S_T0)
    a.I("v_and_b32 %s, 63, v0" % vr(V_T))
    a.I("s_branch L_dispatch")
    a.label("L_exit")
    a.I("s_endpgm")
    a.label("L_abort0", clear=True)
    chain_part(a, timing, kw)
    a.label("L_abort", clear=True)
    a.I("s_mov_b64 exec, 1")
    a.I("v_mov_b32 v2, 0x7777")
    a.I("v_mov_b32 v3, 252")
    a.I("buffer_store_dword v2, v3, s[%d:%d], 0 offen" % (S_DBG, S_DBG + 3))
    a.I("s_waitcnt vmcnt(0)")
    a.I("s_endpgm")
    a.label("L_hop_worker")
    a.I("s_branch L_worker")
    worker_part(a)
    txt = a.text() + kd(NAME)
    txt = "\n".join(l.strip() if l.startswith("    ") else l for l in txt.split("\n"))
    return txt, a


if __name__ == "__main__":
    kw = dict(gap=36, rgap=36, delay=24, rdelay=48)
    timing = False
    for arg in sys.argv[2:]:
        k, v = arg.split("=")
        if k == "timing":
            timing = bool(int(v))
        elif k == "force_slow":
            FORCE_SLOW = bool(int(v))
        elif k in ("wflags", "latew", "pfwo", "rot"):
            OPT[k] = v if k == "wflags" else int(v)
        elif k == "dbgt":
            DBGT = bool(int(v))
        elif k == "stamps":
            STAMPS = bool(int(v))
        else:
            kw[k] = int(v) if v.lstrip("-").isdigit() else v
    txt, a = build(timing=timing, **kw)
    open(sys.argv[1], "w").write(txt)
    print("instructions", a.n_inst, "bytes", len(txt))
```

```python
from asmlib import Asm, vr, ar, sr

WS_MOD = 0x00000000
WS_FLAGS = 0x00010000
FL_MOD = WS_FLAGS + 0x0000
FL_H = WS_FLAGS + 0x0200
FL_PROG = WS_FLAGS + 0x0400
FL_TAIL = WS_FLAGS + 0x1000
S_NONCE = 46
WS_MEM = 0x00100000
WS_PART = 0x00200000
WS_H = 0x00400000
WS_KT = 0x00800000
WS_VT = 0x01800000
WS_QT = 0x02800000
WS_KM = 0x03800000
WS_VM = 0x03C00000
WS_TAIL = 0x04000000
WS_SIZE = 0x10000000
OOB = 0x40000000

L_WO = 0
L_K = 131072
L_M = 147456
L_MB = L_M + 4096
L_O = L_MB + 8192
O_OFF = L_O - L_M
L_SEL = L_O + 512
L_BC = L_O + 2048 + 512

S_WS = 8
S_W = 12
S_DBG = 16
S_WAVE = 20
S_RANK = 21
S_STEP = 22
S_MEM = 23
S_MEMHI = 24
S_PW0 = 25
S_PW1 = 26
S_PR = 27
S_PRHI = 28
S_KT = 29
S_VT = 30
S_KM = 31
S_HI = 32
S_C = 34
S_NC = 35
S_RETRY = 36
S_VM = 37
S_T0 = 38
S_POIS = 46
S_POISHI = 47
S_PWB = 96
S_PRB = 97
S_RING = 98
S_ONE = 100
S_SEL = 99
S_TAG = 96
S_HZ = 97
S_PG = 98
S_CP = 47
S_KB = 44
S_PTR = 48
S_TM = 64

V_VW = 0
V_MEM = 128
V_ACC = 160
V_KT = 184
V_S = 216
V_VT = 228
V_PX = 236
V_IDX = 246
V_L16 = 247
V_L16W = 248
V_K = 249
V_PS = 250
V_MS = 251
V_MW = 252
V_MR = 253
V_KM = 254
V_T = 255
V_Z = V_PX + 8
V_MB = V_PX + 9

RETRY_MAX = 200000
ROT = True


def wacc(t):
    return V_ACC + 4 * t if t < 6 else V_VT + 4 * (t - 6)


class Timer:
    def __init__(self, a, on, trace=None):
        self.a = a
        self.on = on
        self.trace = trace

    def start(self):
        if not self.on:
            return
        a = self.a
        for i in range(16):
            a.I("s_mov_b32 s%d, 0" % (S_TM + 4 + i))
        a.I("s_memtime s[%d:%d]" % (S_TM, S_TM + 1))
        a.I("s_waitcnt lgkmcnt(0)")

    def stamp(self, idx):
        if self.trace is not None:
            a = self.a
            l = a.newlabel("tr")
            a.I("s_cmp_lg_u32 s%d, %d" % (S_STEP, self.trace + (1 if idx in (14, 13, 7, 8) else 0)))
            a.I("s_cbranch_scc1 %s" % l)
            a.I("s_memrealtime s[%d:%d]" % (S_TM + 2, S_TM + 3))
            a.I("s_waitcnt lgkmcnt(0)")
            a.I("s_mov_b32 s%d, s%d" % (S_TM + 4 + idx, S_TM + 2))
            a.label(l)
            return
        if not self.on:
            return
        a = self.a
        a.I("s_memtime s[%d:%d]" % (S_TM + 2, S_TM + 3))
        a.I("s_waitcnt lgkmcnt(0)")
        a.I("s_sub_u32 s%d, s%d, s%d" % (S_T0 + 7, S_TM + 2, S_TM))
        a.I("s_add_u32 s%d, s%d, s%d" % (S_TM + 4 + idx, S_TM + 4 + idx, S_T0 + 7))
        a.I("s_mov_b32 s%d, s%d" % (S_TM, S_TM + 2))


def lane_consts(a, w):
    T = V_MEM
    lane = V_T
    a.I("v_lshlrev_b32 %s, 4, %s" % (vr(V_L16), vr(lane)))
    a.I("v_add_u32 %s, %d, %s" % (vr(V_L16W), L_WO + w * 32768, vr(V_L16)))
    a.I("v_add_u32 %s, %d, %s" % (vr(V_K), L_K, vr(V_L16)))
    a.I("v_and_b32 %s, 15, %s" % (vr(T), vr(lane)))
    a.I("v_lshrrev_b32 %s, 4, %s" % (vr(T + 1), vr(lane)))
    a.I("v_mov_b32 %s, 0x4444" % vr(V_IDX))
    a.I("v_mov_b32 %s, 0xeeee" % vr(T + 2))
    a.I("v_and_b32 %s, 2, %s" % (vr(T + 3), vr(T)))
    a.I("v_cmp_ne_u32 vcc, 0, %s" % vr(T + 3))
    a.I("v_cndmask_b32 %s, %s, %s, vcc" % (vr(V_IDX), vr(V_IDX), vr(T + 2)))
    a.I("v_lshlrev_b32 %s, 13, %s" % (vr(T + 2), vr(T + 1)))
    a.I("v_lshrrev_b32 %s, 2, %s" % (vr(T + 3), vr(T)))
    a.I("v_lshl_add_u32 %s, %s, 11, %s" % (vr(T + 2), vr(T + 3), vr(T + 2)))
    a.I("v_mov_b32 %s, s%d" % (vr(T + 3), S_RANK))
    a.I("v_lshl_add_u32 %s, %s, 6, %s" % (vr(T + 2), vr(T + 3), vr(T + 2)))
    a.I("v_and_b32 %s, 3, %s" % (vr(T + 3), vr(T)))
    a.I("v_lshl_add_u32 %s, %s, 4, %s" % (vr(V_PS), vr(T + 3), vr(T + 2)))
    a.I("v_lshrrev_b32 %s, 2, %s" % (vr(T + 2), vr(T)))
    a.I("v_xor_b32 %s, %s, %s" % (vr(T + 2), vr(T + 2), vr(T + 1)))
    a.I("v_lshlrev_b32 %s, 3, %s" % (vr(T + 2), vr(T + 2)))
    a.I("v_lshl_add_u32 %s, %s, 5, %s" % (vr(T + 2), vr(T), vr(T + 2)))
    a.I("v_add_u32 %s, %d, %s" % (vr(V_MW), L_M + 1024 * w, vr(T + 2)))
    a.I("v_lshrrev_b32 %s, 2, %s" % (vr(T + 2), vr(T)))
    a.I("v_lshl_add_u32 %s, %s, 2, %s" % (vr(T + 2), vr(T + 1), vr(T + 2)))
    a.I("v_and_b32 %s, 3, %s" % (vr(T + 3), vr(T)))
    a.I("v_xor_b32 %s, %s, %s" % (vr(T + 3), vr(T + 3), vr(T + 1)))
    a.I("v_lshlrev_b32 %s, 3, %s" % (vr(T + 3), vr(T + 3)))
    a.I("v_lshl_add_u32 %s, %s, 5, %s" % (vr(T + 2), vr(T + 2), vr(T + 3)))
    a.I("v_add_u32 %s, %d, %s" % (vr(V_MR), L_M, vr(T + 2)))
    a.I("v_lshrrev_b32 %s, 2, %s" % (vr(T + 2), vr(T)))
    a.I("v_and_b32 %s, 1, %s" % (vr(T + 3), vr(T)))
    a.I("v_lshl_add_u32 %s, %s, 1, %s" % (vr(T + 2), vr(T + 2), vr(T + 3)))
    a.I("v_lshl_add_u32 %s, %s, 3, %s" % (vr(T + 2), vr(T + 1), vr(T + 2)))
    a.I("v_lshlrev_b32 %s, 4, %s" % (vr(T + 2), vr(T + 2)))
    a.I("v_mov_b32 %s, 0x%x" % (vr(T + 4), OOB))
    a.I("v_and_b32 %s, 2, %s" % (vr(T + 3), vr(T)))
    a.I("v_cmp_ne_u32 vcc, 0, %s" % vr(T + 3))
    a.I("v_cndmask_b32 %s, %s, %s, vcc" % (vr(V_KM), vr(T + 2), vr(T + 4)))
    s0, s1, s2 = S_T0, S_T0 + 1, S_T0 + 2
    a.I("s_lshr_b32 s%d, s%d, 3" % (s0, S_RANK))
    a.I("s_bfe_u32 s%d, s%d, 0x10002" % (s1, S_RANK))
    a.I("s_lshl_b32 s%d, s%d, 2" % (s1, s1))
    a.I("s_add_u32 s%d, s%d, s%d" % (s0, s0, s1))
    a.I("s_lshl_b32 s%d, s%d, 10" % (s0, s0))
    a.I("s_and_b32 s%d, s%d, 3" % (s1, S_RANK))
    a.I("s_lshl_b32 s%d, s%d, 6" % (s1, s1))
    a.I("s_add_u32 s%d, s%d, s%d" % (s0, s0, s1))
    a.I("s_add_u32 s%d, s%d, %d" % (s0, s0, w * 256))
    a.I("v_and_b32 %s, 3, %s" % (vr(T + 2), vr(T)))
    a.I("v_lshlrev_b32 %s, 4, %s" % (vr(T + 2), vr(T + 2)))
    a.I("v_lshrrev_b32 %s, 2, %s" % (vr(T + 3), vr(T)))
    a.I("v_lshl_add_u32 %s, %s, 3, %s" % (vr(T + 2), vr(T + 3), vr(T + 2)))
    a.I("v_lshrrev_b32 %s, 1, %s" % (vr(T + 3), vr(T + 1)))
    a.I("v_lshl_add_u32 %s, %s, 2, %s" % (vr(T + 2), vr(T + 3), vr(T + 2)))
    a.I("v_add_u32 %s, s%d, %s" % (vr(T + 2), s0, vr(T + 2)))
    a.I("v_and_b32 %s, 24, %s" % (vr(T + 3), vr(lane)))
    a.I("v_mov_b32 %s, 0x%x" % (vr(V_MS), OOB))
    a.I("v_cmp_eq_u32 vcc, 0, %s" % vr(T + 3))
    a.I("v_cndmask_b32 %s, %s, %s, vcc" % (vr(V_MS), vr(V_MS), vr(T + 2)))


def sel_addr(a, dst, tmp):
    a.I("v_lshrrev_b32 %s, 9, %s" % (vr(tmp), vr(V_L16)))
    a.I("v_mul_u32_u24 %s, 512, %s" % (vr(tmp), vr(tmp)))
    a.I("v_add3_u32 %s, %s, %s, s%d" % (vr(dst), vr(V_L16), vr(tmp), S_SEL))


def init_buffers(a, w, st_flags=""):
    T = V_MEM
    lane = V_T
    P = V_MEM + 8
    a.I("s_mov_b32 s%d, %d" % (S_SEL, L_SEL))
    for i in range(4):
        a.I("v_mov_b32 %s, -1" % vr(P + i))
    if True:
        s0, s1 = S_T0, S_T0 + 1
        a.I("v_and_b32 %s, 15, %s" % (vr(T), vr(lane)))
        a.I("v_lshrrev_b32 %s, 4, %s" % (vr(T + 1), vr(lane)))
        a.I("s_and_b32 s%d, s%d, 3" % (s0, S_RANK))
        a.I("s_lshl_b32 s%d, s%d, 11" % (s0, s0))
        a.I("s_lshr_b32 s%d, s%d, 2" % (s1, S_RANK))
        a.I("s_lshl_b32 s%d, s%d, 7" % (s1, s1))
        a.I("s_add_u32 s%d, s%d, s%d" % (s0, s0, s1))
        a.I("s_add_u32 s%d, s%d, %d" % (s0, s0, w * 8))
        a.I("v_and_b32 %s, 1, %s" % (vr(T + 2), vr(T)))
        a.I("v_lshlrev_b32 %s, 10, %s" % (vr(T + 2), vr(T + 2)))
        a.I("v_bfe_u32 %s, %s, 1, 2" % (vr(T + 3), vr(T)))
        a.I("v_lshl_add_u32 %s, %s, 5, %s" % (vr(T + 2), vr(T + 3), vr(T + 2)))
        a.I("v_lshrrev_b32 %s, 1, %s" % (vr(T + 3), vr(T + 1)))
        a.I("v_lshl_add_u32 %s, %s, 2, %s" % (vr(T + 2), vr(T + 3), vr(T + 2)))
        a.I("v_add_u32 %s, s%d, %s" % (vr(T + 2), s0, vr(T + 2)))
        a.I("s_mov_b32 s%d, s%d" % (S_W, S_PTR + 0))
        a.I("s_mov_b32 s%d, s%d" % (S_W + 1, S_PTR + 1))
        a.I("s_mov_b32 s%d, 8192" % (S_W + 2))
        a.I("buffer_load_dword %s, %s, s[%d:%d], 0 offen" % (vr(T + 4), vr(T + 2), S_W, S_W + 3))
        a.I("s_mov_b32 s%d, 0x%x" % (s0, WS_MEM))
        a.I("s_waitcnt vmcnt(0)")
        a.I("v_min_u32 %s, 0xfffffffe, %s" % (vr(T + 4), vr(T + 4)))
        a.I("buffer_store_dword %s, %s, s[%d:%d], s%d offen %s" % (vr(T + 4), vr(V_MS), S_WS, S_WS + 3, s0, st_flags))
        for i in range(3):
            a.I("s_add_u32 s%d, s%d, 8192" % (s0, s0))
            a.I("buffer_store_dword %s, %s, s[%d:%d], s%d offen %s" % (vr(P), vr(V_MS), S_WS, S_WS + 3, s0, st_flags))
        for ring in range(2):
            a.I("s_lshl_b32 s%d, s%d, 13" % (s0, S_RANK))
            a.I("s_add_u32 s%d, s%d, 0x%x" % (s0, s0, WS_PART + ring * 262144 + w * 2048))
            for m in range(2):
                a.I("buffer_store_dwordx4 %s, %s, s[%d:%d], s%d offen offset:%d %s"
                    % (vr(P, 4), vr(V_L16), S_WS, S_WS + 3, s0, m * 1024, st_flags))
    if w == 0:
        a.I("v_and_b32 %s, 1, %s" % (vr(T + 2), vr(T)))
        a.I("v_lshlrev_b32 %s, 4, %s" % (vr(T + 2), vr(T + 2)))
        a.I("v_mov_b32 %s, 0x3f80" % vr(T + 3))
        a.I("v_lshlrev_b32 %s, %s, %s" % (vr(T + 3), vr(T + 2), vr(T + 3)))
        a.I("v_lshrrev_b32 %s, 1, %s" % (vr(T + 2), vr(T)))
        for m in range(4):
            a.I("v_cmp_eq_u32 vcc, %d, %s" % (m, vr(T + 2)))
            a.I("v_cndmask_b32 %s, 0, %s, vcc" % (vr(T + 4 + m), vr(T + 3)))
        sel_addr(a, T + 2, T + 3)
        a.I("ds_write_b128 %s, %s" % (vr(T + 2), vr(T + 4, 4)))


def load_weights(a, w, wflags="", rot=False):
    lane = V_T
    T = V_MEM
    VO = V_MEM + 8
    TA = V_MEM + 12
    base = L_WO + w * 32768
    so = S_T0
    a.I("v_lshrrev_b32 %s, 2, %s" % (vr(T), vr(lane)))
    a.I("v_and_b32 %s, 3, %s" % (vr(T + 1), vr(lane)))
    a.I("s_lshl_b32 s%d, s%d, 8" % (so, S_RANK))
    a.I("s_add_u32 s%d, s%d, %d" % (so, so, w * 64))
    for v in range(4):
        a.I("v_xor_b32 %s, %d, %s" % (vr(T + 2), 2 * ((v >> 1) & 1), vr(T)))
        a.I("v_lshlrev_b32 %s, 13, %s" % (vr(T + 2), vr(T + 2)))
        a.I("v_xor_b32 %s, %d, %s" % (vr(T + 3), 2 * (v & 1), vr(T + 1)))
        a.I("v_lshl_add_u32 %s, %s, 4, %s" % (vr(T + 2), vr(T + 3), vr(T + 2)))
        a.I("v_add_u32 %s, s%d, %s" % (vr(VO + v), so, vr(T + 2)))
    gb, r, c = T, T + 1, T + 2
    a.I("v_lshrrev_b32 %s, 4, %s" % (vr(gb), vr(lane)))
    a.I("v_bfe_u32 %s, %s, 2, 2" % (vr(r), vr(lane)))
    a.I("v_and_b32 %s, 3, %s" % (vr(c), vr(lane)))
    t4, t5, t6, t7 = T + 3, T + 4, T + 5, T + 6
    for qb in range(2):
        for tau in range(2):
            a.I("v_and_b32 %s, 1, %s" % (vr(t4), vr(gb)))
            a.I("v_lshlrev_b32 %s, 5, %s" % (vr(t5), vr(t4)))
            a.I("v_xor_b32 %s, %d, %s" % (vr(t4), qb, vr(t4)))
            a.I("v_lshl_add_u32 %s, %s, 1, %s" % (vr(t5), vr(t4), vr(t5)))
            a.I("v_lshrrev_b32 %s, 1, %s" % (vr(t4), vr(gb)))
            a.I("v_lshl_add_u32 %s, %s, 2, %s" % (vr(t5), vr(t4), vr(t5)))
            a.I("v_and_b32 %s, 1, %s" % (vr(t4), vr(r)))
            a.I("v_add_u32 %s, %s, %s" % (vr(t5), vr(t4), vr(t5)))
            a.I("v_lshrrev_b32 %s, 1, %s" % (vr(t4), vr(r)))
            a.I("v_lshl_add_u32 %s, %s, 4, %s" % (vr(t5), vr(t4), vr(t5)))
            a.I("v_lshlrev_b32 %s, 6, %s" % (vr(t5), vr(t5)))
            a.I("v_xor_b32 %s, %d, %s" % (vr(t4), tau, vr(t4)))
            a.I("v_lshlrev_b32 %s, 1, %s" % (vr(t4), vr(t4)))
            a.I("v_lshrrev_b32 %s, 1, %s" % (vr(t6), vr(c)))
            a.I("v_add_u32 %s, %s, %s" % (vr(t4), vr(t4), vr(t6)))
            a.I("v_lshl_add_u32 %s, %s, 4, %s" % (vr(t5), vr(t4), vr(t5)))
            a.I("v_and_b32 %s, 1, %s" % (vr(t6), vr(c)))
            a.I("v_lshl_add_u32 %s, %s, 3, %s" % (vr(t5), vr(t6), vr(t5)))
            a.I("v_add_u32 %s, %d, %s" % (vr(TA + 2 * qb + tau), base, vr(t5)))

    S_ROT = S_T0 + 3

    def set_srd(ptr, nbytes):
        a.I("s_mov_b32 s%d, s%d" % (S_W, ptr))
        a.I("s_mov_b32 s%d, s%d" % (S_W + 1, ptr + 1))
        a.I("s_mov_b32 s%d, 0x%x" % (S_W + 2, nbytes))

    def dma_qkv(half):
        for i in range(16):
            if rot:
                a.I("s_add_u32 s%d, s%d, %d" % (so + 1, S_ROT, i))
                a.I("s_and_b32 s%d, s%d, 15" % (so + 1, so + 1))
                a.I("s_add_u32 s%d, s%d, %d" % (so + 1, so + 1, 16 * half))
                a.I("s_lshl_b32 s%d, s%d, 17" % (so, so + 1))
                a.I("s_lshl_b32 s%d, s%d, 10" % (so + 1, so + 1))
                a.I("s_add_u32 m0, s%d, %d" % (so + 1, base))
            else:
                a.I("s_mov_b32 m0, %d" % (base + (16 * half + i) * 1024))
                a.I("s_mov_b32 s%d, 0x%x" % (so, (16 * half + i) * 131072))
            a.I("buffer_load_dwordx4 %s, s[%d:%d], s%d offen %s lds" % (vr(VO + (i & 3)), S_W, S_W + 3, so, wflags))

    def tr_qkv(half, dst):
        for kappa in range(8):
            B = 128 * (kappa & 3) + 64 * (kappa >> 2)
            if (B >= 256) != (half == 1):
                continue
            for tau in range(2):
                for q in range(4):
                    off = (B + 8 * (q >> 1)) * 64
                    a.I("ds_read_b64_tr_b16 %s, %s offset:%d" % (dst(tau, kappa, q), vr(TA + 2 * (q & 1) + tau), off))

    dsts = [
        lambda tau, kappa, q: ar((0 + tau) * 64 + kappa * 8 + 2 * q, 2),
        lambda tau, kappa, q: ar((2 + tau) * 64 + kappa * 8 + 2 * q, 2),
        lambda tau, kappa, q: vr(V_VW + tau * 64 + kappa * 8 + 2 * q, 2),
    ]
    ptrs = [S_PTR + 2, S_PTR + 4, S_PTR + 6]
    WOV = V_MEM + 16
    a.I("v_lshrrev_b32 %s, 4, %s" % (vr(T), vr(lane)))
    a.I("v_and_b32 %s, 15, %s" % (vr(T + 1), vr(lane)))
    a.I("s_lshl_b32 s%d, s%d, 17" % (so, S_RANK))
    a.I("s_add_u32 s%d, s%d, %d" % (so, so, w * 256))
    for u in range(4):
        a.I("v_and_b32 %s, 1, %s" % (vr(T + 2), vr(T)))
        a.I("v_add_u32 %s, %d, %s" % (vr(T + 2), 2 * u, vr(T + 2)))
        a.I("v_lshlrev_b32 %s, 1, %s" % (vr(T + 2), vr(T + 2)))
        a.I("v_xor_b32 %s, %s, %s" % (vr(T + 2), vr(T + 2), vr(T + 1)))
        a.I("v_lshlrev_b32 %s, 4, %s" % (vr(T + 2), vr(T + 2)))
        a.I("v_lshl_add_u32 %s, %s, 10, %s" % (vr(T + 2), vr(T), vr(T + 2)))
        a.I("v_add_u32 %s, s%d, %s" % (vr(WOV + u), so, vr(T + 2)))

    def dma_wo(half):
        for i in range(16 * half, 16 * half + 16):
            u = ((i >> 2) & 1) + 2 * ((i >> 3) & 1)
            a.I("s_mov_b32 m0, %d" % (base + i * 1024))
            a.I("s_mov_b32 s%d, 0x%x" % (so, i * 4096))
            a.I("buffer_load_dwordx4 %s, s[%d:%d], s%d offen %s lds" % (vr(WOV + u), S_W, S_W + 3, so, wflags))

    S_ROT = S_T0 + 3
    a.I("s_and_b32 s%d, s%d, 3" % (S_ROT, S_RANK))
    a.I("s_lshl_b32 s%d, s%d, 2" % (S_ROT, S_ROT))
    set_srd(ptrs[0], 0x400000)
    dma_qkv(0)
    dma_qkv(1)
    for mi in range(3):
        a.I("s_waitcnt vmcnt(16)")
        tr_qkv(0, dsts[mi])
        a.I("s_waitcnt lgkmcnt(0)")
        if mi < 2:
            set_srd(ptrs[mi + 1], 0x400000)
            dma_qkv(0)
        else:
            set_srd(S_PTR + 8, 0x400000)
            dma_wo(0)
        a.I("s_waitcnt vmcnt(16)")
        tr_qkv(1, dsts[mi])
        a.I("s_waitcnt lgkmcnt(0)")
        if mi < 2:
            dma_qkv(1)
        else:
            dma_wo(1)
    WA = V_MEM + 20
    a.I("v_lshrrev_b32 %s, 4, %s" % (vr(gb), vr(lane)))
    a.I("v_bfe_u32 %s, %s, 2, 2" % (vr(r), vr(lane)))
    a.I("v_and_b32 %s, 3, %s" % (vr(c), vr(lane)))
    a.I("v_and_b32 %s, 1, %s" % (vr(t4), vr(gb)))
    a.I("v_lshl_add_u32 %s, %s, 2, %s" % (vr(t7), vr(t4), vr(r)))
    a.I("v_lshlrev_b32 %s, 5, %s" % (vr(t5), vr(t4)))
    a.I("v_lshrrev_b32 %s, 1, %s" % (vr(t4), vr(gb)))
    a.I("v_lshl_add_u32 %s, %s, 2, %s" % (vr(t5), vr(t4), vr(t5)))
    a.I("v_and_b32 %s, 1, %s" % (vr(t4), vr(r)))
    a.I("v_add_u32 %s, %s, %s" % (vr(t5), vr(t4), vr(t5)))
    a.I("v_lshrrev_b32 %s, 1, %s" % (vr(t4), vr(r)))
    a.I("v_lshl_add_u32 %s, %s, 4, %s" % (vr(t5), vr(t4), vr(t5)))
    a.I("v_lshlrev_b32 %s, 8, %s" % (vr(t5), vr(t5)))
    a.I("v_lshrrev_b32 %s, 1, %s" % (vr(t4), vr(c)))
    a.I("v_lshl_add_u32 %s, %s, 4, %s" % (vr(t5), vr(t4), vr(t5)))
    a.I("v_and_b32 %s, 1, %s" % (vr(t4), vr(c)))
    a.I("v_lshl_add_u32 %s, %s, 3, %s" % (vr(t5), vr(t4), vr(t5)))
    a.I("v_add_u32 %s, %d, %s" % (vr(t5), base, vr(t5)))
    for tau in range(8):
        a.I("v_xor_b32 %s, %d, %s" % (vr(t4), tau, vr(t7)))
        a.I("v_lshl_add_u32 %s, %s, 5, %s" % (vr(WA + tau), vr(t4), vr(t5)))
    ST = V_MEM + 32
    for xi in range(2):
        a.I("s_waitcnt vmcnt(%d)" % (16 if xi == 0 else 0))
        for tau in range(8):
            for q in range(4):
                off = (64 * xi + 8 * (q >> 1) + 2 * (q & 1)) * 256
                a.I("ds_read_b64_tr_b16 %s, %s offset:%d" % (vr(ST + tau * 8 + 2 * q, 2), vr(WA + tau), off))
        a.I("s_waitcnt lgkmcnt(0)")
        for tau in range(8):
            for hf in range(2):
                a.I("ds_write_b128 %s, %s offset:%d"
                    % (vr(V_L16W), vr(ST + tau * 8 + 4 * hf, 4), xi * 16384 + tau * 2048 + hf * 1024))
        a.I("s_waitcnt lgkmcnt(0)")


def wo_img_off(tau, xi, hf):
    return xi * 16384 + tau * 2048 + hf * 1024


def weave(a, main, fill, every=1, start=0):
    fill = list(fill)
    for i, m in enumerate(main):
        a.I(m)
        if i >= start:
            for _ in range(every):
                if fill:
                    a.I(fill.pop(0))
    for f in fill:
        a.I(f)


def check_insts(regs, tmp):
    regs = list(regs)
    if len(regs) == 2:
        L = ["v_max_u32 %s, %s, %s" % (vr(tmp), vr(regs[0]), vr(regs[1]))]
        rest = []
    else:
        L = ["v_max3_u32 %s, %s, %s, %s" % (vr(tmp), vr(regs[0]), vr(regs[1]), vr(regs[2]))]
        rest = regs[3:]
    while len(rest) >= 2:
        L.append("v_max3_u32 %s, %s, %s, %s" % (vr(tmp), vr(tmp), vr(rest[0]), vr(rest[1])))
        rest = rest[2:]
    if rest:
        L.append("v_max_u32 %s, %s, %s" % (vr(tmp), vr(tmp), vr(rest[0])))
    L.append("v_cmp_eq_u32 vcc, -1, %s" % vr(tmp))
    return L


def dump(a, w, base, n, slot=0):
    a.nops(12)
    a.I("s_lshl_b32 s%d, s%d, 16" % (S_T0, S_RANK))
    a.I("s_add_u32 s%d, s%d, 0x%x" % (S_T0, S_T0, 0x5000000 + w * 16384 + ((slot * 256) & ~4095)))
    a.I("v_lshrrev_b32 %s, 2, %s" % (vr(V_T), vr(V_L16)))
    for i in range(n):
        a.I("buffer_store_dword %s, %s, s[%d:%d], s%d offen offset:%d" % (vr(base + i), vr(V_T), S_WS, S_WS + 3, S_T0, ((slot + i) * 256) & 4095))
        if ((slot + i + 1) * 256) & 4095 == 0:
            a.I("s_add_u32 s%d, s%d, 4096" % (S_T0, S_T0))
    a.I("s_waitcnt vmcnt(0)")


def horizon_refresh(a, s_need, abort):
    ws = "s[%d:%d]" % (S_WS, S_WS + 3)
    Lq = a.newlabel("hq")
    Lx = a.newlabel("hx")
    a.I("s_cmp_ge_u32 s%d, 64" % s_need)
    a.I("s_cbranch_scc1 %s" % Lx)
    a.I("s_mov_b32 s%d, %d" % (S_RETRY, RETRY_MAX))
    a.label(Lq)
    a.I("buffer_load_dwordx4 %s, %s, %s, s%d offen offset:16 sc1" % (vr(V_S, 4), vr(V_Z), ws, S_PG))
    a.I("buffer_load_dwordx4 %s, %s, %s, s%d offen offset:32 sc1" % (vr(V_S + 4, 4), vr(V_Z), ws, S_PG))
    a.I("s_sub_u32 s%d, s%d, 1" % (S_RETRY, S_RETRY))
    a.I("s_cmp_eq_u32 s%d, 0" % S_RETRY)
    a.I("s_cbranch_scc1 %s" % abort)
    a.I("s_waitcnt vmcnt(0)")
    for i in range(4):
        a.I("v_cmp_eq_u32 vcc, s%d, %s" % (S_NONCE, vr(V_S + 2 * i + 1)))
        a.I("v_cndmask_b32 %s, 0, %s, vcc" % (vr(V_S + 2 * i), vr(V_S + 2 * i)))
    a.I("v_min_u32 %s, %s, %s" % (vr(V_S), vr(V_S), vr(V_S + 4)))
    a.I("v_min_u32 %s, %s, %s" % (vr(V_S + 1), vr(V_S + 2), vr(V_S + 6)))
    a.I("v_lshlrev_b32 %s, 1, %s" % (vr(V_S), vr(V_S)))
    a.I("v_lshl_add_u32 %s, %s, 1, 1" % (vr(V_S + 1), vr(V_S + 1)))
    a.I("v_min_u32 %s, %s, %s" % (vr(V_S), vr(V_S), vr(V_S + 1)))
    a.I("v_readfirstlane_b32 s%d, %s" % (S_HZ, vr(V_S)))
    a.I("s_cmp_lt_u32 s%d, s%d" % (s_need, S_HZ))
    a.I("s_cbranch_scc0 %s" % Lq)
    a.label(Lx)


def retry_block(a, label, target, abort):
    a.label(label)
    a.I("s_sub_u32 s%d, s%d, 1" % (S_RETRY, S_RETRY))
    a.I("s_cmp_lg_u32 s%d, 0" % S_RETRY)
    a.I("s_cbranch_scc1 %s" % target)
    a.I("s_branch %s" % abort)


def chain_loop(a, w, st_flags="", timing=False, abort="L_abort", stop_after=None, dbg=None,
               delay=0, exp="", rdelay=0, hooks=None, kvflags="sc1 nt", gap=24, rgap=24, trace=None, looptime=True, fused=False, nsets=2, rsets=2, tag=""):
    tm = Timer(a, timing, trace)
    ws = "s[%d:%d]" % (S_WS, S_WS + 3)
    MEM, ACC, KT, S, VT, PX = V_MEM, V_ACC, V_KT, V_S, V_VT, V_PX
    q = [ACC, ACC + 8]
    k = [ACC + 4, ACC + 12]
    v = [ACC + 16, ACC + 20]
    L_step = "L_step_w%d%s" % (w, tag)
    L_done = "L_done_w%d%s" % (w, tag)
    ool = []
    cool = []
    hzl = []

    def smf(acc, A, B):
        return "v_smfmac_f32_16x16x64_bf16 %s, %s, %s, %s" % (vr(acc, 4), A, B, vr(V_IDX))

    def mem_load(kap):
        return ("buffer_load_dwordx4 %s, %s, %s, s%d offen offset:%d sc1"
                % (vr(MEM + 4 * kap, 4), vr(V_L16), ws, S_MEM if kap < 4 else S_MEMHI, (kap & 3) * 1024))

    def qkw(mat, tau, kap):
        return ar((mat * 2 + tau) * 64 + kap * 8, 8)

    def chunk_check(kap):
        return ["v_max_u32 %s, %s, %s" % (vr(V_T), vr(MEM + 4 * kap), vr(MEM + 4 * kap + 2)),
                "v_cmp_eq_u32 vcc, -1, %s" % vr(V_T)]

    def emit_check(kap):
        lr = a.newlabel("cr%d" % kap)
        lb = a.newlabel("cb%d" % kap)
        a.I("s_waitcnt vmcnt(%d)" % (7 - kap))
        for x in chunk_check(kap):
            a.I(x)
        a.I("s_cbranch_vccnz %s" % lr)
        a.label(lb)
        cool.append((lr, kap, lb))

    def add2(d, x, y):
        return ["v_add_f32 %s, %s, %s" % (vr(d), vr(x), vr(y)),
                "v_add_f32 %s, %s, %s" % (vr(d + 1), vr(x + 1), vr(y + 1))]

    def qk_post(tau):
        return (add2(q[tau], q[tau], q[tau] + 2) + add2(k[tau], k[tau], k[tau] + 2) +
                ["v_cvt_pk_bf16_f32 %s, %s, %s" % (vr(q[tau] + 3), vr(q[tau]), vr(q[tau] + 1)),
                 "v_cvt_pk_bf16_f32 %s, %s, %s" % (vr(q[tau] + 2), vr(k[tau]), vr(k[tau] + 1)),
                 "ds_write_b64 %s, %s offset:%d" % (vr(V_MW), vr(q[tau] + 2, 2), 512 * tau)])

    def far_ops():
        L = []
        for tau in range(2):
            L.append(["buffer_load_dwordx4 %s, %s, %s, s%d offen offset:%d %s"
                      % (vr(VT + 4 * tau, 4), vr(V_L16), ws, S_VT, (tau) * 1024, kvflags)])
        L.append(["s_mov_b32 m0, s%d" % S_KB,
                  "buffer_load_dwordx4 %s, %s, s%d offen %s lds" % (vr(V_L16), ws, S_KT, kvflags)])
        L.append(["buffer_load_dwordx4 %s, %s, s%d offen offset:1024 %s lds" % (vr(V_L16), ws, S_KT, kvflags)])
        return L

    pois = ["buffer_store_dword %s, %s, %s, s%d offen %s" % (vr(S + 8), vr(V_MS), ws, S_T0 + 3, st_flags)]
    tm.start()
    if looptime:
        a.I("s_memrealtime s[92:93]")
        a.I("s_waitcnt lgkmcnt(0)")
    a.label(L_step, clear=True)
    own = [2 * w, 2 * w + 1]
    others = [x for x in range(8) if x not in own]
    sets = [KT, KT + 8, KT + 16, KT + 24]
    mbo = L_MB - L_M

    def qk4(kap, A=None):
        A = A or vr(MEM + 4 * kap, 4)
        return [smf(q[0], A, qkw(0, 0, kap)), smf(k[0], A, qkw(1, 0, kap)),
                smf(q[1], A, qkw(0, 1, kap)), smf(k[1], A, qkw(1, 1, kap))]

    def poll2(issue, oks, gap, cnt, check):
        n = len(oks)
        Lp = a.newlabel("pl")
        a.I("s_mov_b32 s%d, %d" % (S_RETRY, RETRY_MAX))
        for i in range(n - 1):
            issue(sets[i])
            if gap:
                a.nops(gap)
        a.label(Lp)
        for i in range(n):
            issue(sets[(i + n - 1) % n])
            a.I("s_waitcnt vmcnt(%d)" % (2 * (n - 1)))
            check(sets[i], oks[i])
        if timing:
            a.I("s_add_u32 s%d, s%d, 1" % (S_TM + 4 + cnt, S_TM + 4 + cnt))
        a.I("s_sub_u32 s%d, s%d, 1" % (S_RETRY, S_RETRY))
        a.I("s_cmp_lg_u32 s%d, 0" % S_RETRY)
        a.I("s_cbranch_scc1 %s" % Lp)
        a.I("s_branch %s" % abort)

    def check_poison(R, ok):
        for x in check_insts([R + i for i in range(8)], V_T):
            a.I(x)
        a.I("s_cbranch_vccz %s" % ok)

    def check_tag(R, ok):
        a.I("v_bitop3_b32 %s, %s, %s, s%d bitop3:0x7e" % (vr(V_T), vr(R), vr(R + 4), S_TAG))
        a.I("v_and_b32 %s, 1, %s" % (vr(V_T), vr(V_T)))
        a.I("v_cmp_ne_u32 vcc, 0, %s" % vr(V_T))
        a.I("s_cbranch_vccz %s" % ok)

    def issue_mem(R):
        for i, kap in enumerate(own):
            a.I("buffer_load_dwordx4 %s, %s, %s, s%d offen offset:%d sc1"
                % (vr(R + 4 * i, 4), vr(V_L16), ws, S_MEM if kap < 4 else S_MEMHI, (kap & 3) * 1024))
    if delay:
        a.nops(delay)
    oks = [a.newlabel("mok%d" % i) for i in range(nsets)]
    Lj = a.newlabel("mjoin")
    poll2(issue_mem, oks, gap, 9, check_poison)
    for si in range(nsets - 1, -1, -1):
        R = sets[si]
        a.label(oks[si], clear=True)
        tm.stamp(11)
        for i, kap in enumerate(own):
            a.I("ds_write_b128 %s, %s offset:%d" % (vr(V_MB), vr(R + 4 * i, 4), kap * 1024))
        m_own = qk4(own[0], vr(R, 4)) + qk4(own[1], vr(R + 4, 4))
        for m in m_own[:3]:
            a.I(m)
        a.I("s_waitcnt lgkmcnt(0)")
        a.I("s_barrier")
        tm.stamp(12)
        rd = ["ds_read_b128 %s, %s offset:%d" % (vr(MEM + 4 * kap, 4), vr(V_MB), kap * 1024) for kap in others + own]
        a.I(rd[0])
        a.I(rd[1])
        for j, m in enumerate(m_own[3:]):
            a.I(m)
            a.I(rd[2 + j])
        a.I(rd[7])
        if si != 0:
            a.I("s_branch %s" % Lj)
    a.label(Lj, clear=True)
    tm.stamp(0)
    a.I("s_waitcnt vmcnt(0)")
    if "latepois" in exp:
        for x in pois:
            a.I(x)
    if fused and w == 3:
        a.I("v_mov_b32 %s, s%d" % (vr(V_S), S_STEP))
        a.I("v_mov_b32 %s, s%d" % (vr(V_S + 1), S_NONCE))
        a.I("buffer_store_dwordx2 %s, %s, %s, s%d offen sc1" % (vr(V_S, 2), vr(V_Z), ws, S_CP))
    if "nocompute" in exp:
        a.I("s_waitcnt lgkmcnt(0)")
        for i in range(0, 24, 2):
            a.I("v_mov_b64 %s, 0" % vr(ACC + i, 2))
        a.I("v_mov_b32 %s, s%d" % (vr(ACC), S_TAG))
        a.I("v_mov_b32 %s, s%d" % (vr(ACC + 16), S_TAG))
        a.I("buffer_store_dwordx4 %s, %s, %s, s%d offen %s" % (vr(ACC, 4), vr(V_PS), ws, S_PW0, st_flags))
        a.I("buffer_store_dwordx4 %s, %s, %s, s%d offen %s" % (vr(ACC + 16, 4), vr(V_PS), ws, S_PW1, st_flags))
        a.I("s_branch L_skip_w%d%s" % (w, tag))
    lds_fill = []
    for T_ in range(2):
        for ks in range(4):
            lds_fill.append("ds_read_b128 %s, %s offset:%d" % (vr(KT + (T_ * 4 + ks) * 4, 4), vr(V_K), (T_ * 4 + ks) * 1024))
    if fused:
        Lh = a.newlabel("hz")
        Lb = a.newlabel("hzb")
        a.I("s_add_u32 s%d, s%d, 1" % (S_T0 + 5, S_STEP))
        a.I("s_cmp_ge_u32 s%d, s%d" % (S_T0 + 5, S_HZ))
        a.I("s_cbranch_scc1 %s" % Lh)
        a.label(Lb)
        hzl.append((Lh, Lb))
    far = far_ops() if "nofar" not in exp else []
    nissued = 0
    cnt = 0
    for j, kap in enumerate(others[:4]):
        a.I("s_waitcnt lgkmcnt(%d)" % min(15, 7 - j + nissued))
        for m in qk4(kap):
            a.I(m)
            if cnt % 2 == 0 and lds_fill:
                a.I(lds_fill.pop(0))
                nissued += 1
            elif cnt % 4 == 1 and far:
                for x in far.pop(0):
                    a.I(x)
            cnt += 1
    assert not lds_fill and not far
    k6, k7 = others[4], others[5]
    A6, A7 = vr(MEM + 4 * k6, 4), vr(MEM + 4 * k7, 4)
    a.I("s_waitcnt lgkmcnt(%d)" % min(15, nissued))
    a.I(smf(q[0], A6, qkw(0, 0, k6)))
    a.I(smf(k[0], A6, qkw(1, 0, k6)))
    a.I(smf(q[0], A7, qkw(0, 0, k7)))
    a.I(smf(k[0], A7, qkw(1, 0, k7)))
    tm.stamp(1)
    m1 = [smf(q[1], A6, qkw(0, 1, k6)), smf(k[1], A6, qkw(1, 1, k6)),
          smf(q[1], A7, qkw(0, 1, k7)), smf(k[1], A7, qkw(1, 1, k7))]
    vm = []
    for kap in range(8):
        for tau in range(2):
            vm.append(smf(v[tau], vr(MEM + 4 * kap, 4), vr(V_VW + tau * 64 + kap * 8, 8)))
    p0, p1 = qk_post(0), qk_post(1)
    a.I(m1[0])
    a.I(m1[1])
    a.I(m1[2])
    a.I(m1[3])
    a.I(vm[0])
    for x in p0[0:2]:
        a.I(x)
    a.I(vm[1])
    for x in p0[2:4]:
        a.I(x)
    a.I(vm[2])
    for x in p0[4:7]:
        a.I(x)
    for x in p1:
        a.I(x)
    a.I(vm[3])
    a.I(vm[4])
    a.I(vm[5])
    a.I("s_waitcnt lgkmcnt(0)")
    a.I("s_barrier")
    trs = ["ds_read_b64_tr_b16 %s, %s offset:%d" % (vr(ACC + 4 * ks + 2 * hh, 2), vr(V_MR), 1024 * ks + 512 * hh)
           for ks in range(4) for hh in range(2)]
    a.I(trs[0])
    a.I(trs[1])
    for i, m in enumerate(vm[6:16]):
        a.I(m)
        if 2 + i < 8:
            a.I(trs[2 + i])
    tm.stamp(2)
    order = [(tau, xi) for tau in range(8) for xi in range(2)]
    slots = [KT + 8 * i for i in range(4)] + [MEM + 8 * i for i in range(4)]

    def stage(n, slot):
        tau, xi = order[n]
        return ["ds_read_b128 %s, %s offset:%d" % (vr(slot + 4 * hf, 4), vr(V_L16W), wo_img_off(tau, xi, hf))
                for hf in range(2)]

    T1, T2, T0 = S, S + 4, S + 8
    sc = []
    for ks in range(4):
        M = vr(ACC + 4 * ks, 4)
        for (D, A) in ((T1, vr(KT + ks * 4, 4)), (T2, vr(KT + (4 + ks) * 4, 4)), (T0, M)):
            sc.append("v_mfma_f32_16x16x32_bf16 %s, %s, %s, %s" % (vr(D, 4), A, M, "0" if ks == 0 else vr(D, 4)))
    P0q, ones = ACC, ACC + 4
    stgM = []
    for n in range(4, 8):
        stgM += stage(n, slots[n])
    a.I("s_waitcnt lgkmcnt(0)")
    for j, m in enumerate(sc):
        a.I(m)
        if j < 8:
            a.I(stgM[j])
        if j == 9 and "nopub" not in exp:
            a.I("buffer_store_dwordx4 %s, %s, %s, s%d offen offset:%d sc1"
                % (vr(ACC + 4 * w, 4), vr(V_KM), ws, S_KM, w * 512))
    tm.stamp(3)
    if dbg == "S":
        dump(a, w, S, 12)
    mx, tt, nmc = ACC + 8, ACC + 9, ACC + 10
    rs = ACC + 12
    stg = []
    for n in range(0, 4):
        stg += stage(n, slots[n])
    sm = []
    sm.append("v_max3_f32 %s, %s, %s, %s" % (vr(mx), vr(S + 0), vr(S + 1), vr(S + 2)))
    sm.append("v_max3_f32 %s, %s, %s, %s" % (vr(tt), vr(S + 3), vr(S + 4), vr(S + 5)))
    sm.append("v_max3_f32 %s, %s, %s, %s" % (vr(mx), vr(mx), vr(S + 6), vr(S + 7)))
    sm.append("v_max3_f32 %s, %s, %s, %s" % (vr(tt), vr(tt), vr(S + 8), vr(S + 9)))
    sm.append("v_max_f32 %s, %s, %s" % (vr(mx), vr(mx), vr(tt)))
    sm.append("v_mov_b32 %s, %s" % (vr(tt), vr(mx)))
    sm.append(None)
    sm.append("v_permlane32_swap_b32 %s, %s" % (vr(mx), vr(tt)))
    sm.append("v_max_f32 %s, %s, %s" % (vr(mx), vr(mx), vr(tt)))
    sm.append("v_mov_b32 %s, %s" % (vr(tt), vr(mx)))
    sm.append(None)
    sm.append("v_permlane16_swap_b32 %s, %s" % (vr(mx), vr(tt)))
    sm.append("v_max_f32 %s, %s, %s" % (vr(mx), vr(mx), vr(tt)))
    sm.append("v_mul_f32 %s, s%d, %s" % (vr(nmc), S_NC, vr(mx)))
    for j in range(5):
        sm.append("v_pk_fma_f32 %s, %s, s[%d:%d], %s op_sel_hi:[1,0,0]"
                  % (vr(S + 2 * j, 2), vr(S + 2 * j, 2), S_C, S_C + 1, vr(nmc, 2)))
    for i in range(10):
        sm.append("v_exp_f32 %s, %s" % (vr(S + i), vr(S + i)))
    si = 0
    consts = ["v_mov_b64 %s, s[%d:%d]" % (vr(ones, 2), S_ONE, S_ONE + 1),
              "v_mov_b64 %s, s[%d:%d]" % (vr(ones + 2, 2), S_ONE, S_ONE + 1),
              "v_mov_b32 %s, 0" % vr(ACC + 1), "v_mov_b64 %s, 0" % vr(ACC + 2, 2)]
    for j, x in enumerate(sm):
        if x is None:
            a.I(stg[si])
            si += 1
            a.I(consts.pop(0))
            continue
        a.I(x)
        if j >= 14 and si < len(stg) and j % 3 == 0:
            a.I(stg[si])
            si += 1
    while si < len(stg):
        a.I(stg[si])
        si += 1
    for x in consts:
        a.I(x)
    for j in range(4):
        a.I("v_cvt_pk_bf16_f32 %s, %s, %s" % (vr(PX + j), vr(S + 2 * j), vr(S + 1 + 2 * j)))
    a.I("v_cvt_pk_bf16_f32 %s, %s, %s" % (vr(P0q), vr(S + 8), vr(S + 9)))
    tm.stamp(4)
    if dbg == "P":
        dump(a, w, PX, 10)
    O0, O1, OS = S, S + 4, S + 8
    P = vr(PX, 4)
    vp = add2(v[0], v[0], v[0] + 2) + add2(v[1], v[1], v[1] + 2)
    a.I(vp[0])
    a.I("v_mfma_f32_16x16x32_bf16 %s, %s, %s, 0" % (vr(OS, 4), P, vr(ones, 4)))
    a.I("s_waitcnt vmcnt(%d)" % (2 + (0 if "nopub" in exp else 1)))
    a.I(vp[1])
    a.I("v_mfma_f32_16x16x32_bf16 %s, %s, %s, 0" % (vr(O0, 4), P, vr(VT, 4)))
    a.I(vp[2])
    a.I("v_mfma_f32_16x16x32_bf16 %s, %s, %s, 0" % (vr(O1, 4), P, vr(VT + 4, 4)))
    a.I(vp[3])
    a.I("v_mfma_f32_16x16x32_bf16 %s, %s, %s, %s" % (vr(OS, 4), vr(P0q, 4), vr(ones, 4), vr(OS, 4)))
    a.I("v_cvt_pk_bf16_f32 %s, %s, %s" % (vr(PX + 4), vr(v[0]), vr(v[0] + 1)))
    a.I("v_cvt_pk_bf16_f32 %s, %s, %s" % (vr(PX + 6), vr(v[1]), vr(v[1] + 1)))
    a.I("v_lshrrev_b32 %s, 2, %s" % (vr(V_T), vr(V_L16)))
    a.I("v_mfma_f32_16x16x32_bf16 %s, %s, %s, %s" % (vr(O0, 4), vr(P0q, 4), vr(PX + 4, 4), vr(O0, 4)))
    a.I("v_mfma_f32_16x16x32_bf16 %s, %s, %s, %s" % (vr(O1, 4), vr(P0q, 4), vr(PX + 6, 4), vr(O1, 4)))
    if "nopub" not in exp:
        a.I("buffer_store_dword %s, %s, %s, s%d offen sc1" % (vr(PX + 4), vr(V_T), ws, S_VM))
        a.I("buffer_store_dword %s, %s, %s, s%d offen offset:256 sc1" % (vr(PX + 6), vr(V_T), ws, S_VM))
    a.I("v_rcp_f32 %s, %s" % (vr(rs), vr(OS + 2)))
    a.I("v_rcp_f32 %s, %s" % (vr(rs + 1), vr(OS + 3)))
    zl = []
    for tI in range(8):
        for r in range(0, 4, 2):
            zl.append("v_mov_b64 %s, 0" % vr(wacc(tI) + r, 2))
    a.I("v_mul_f32 %s, %s, %s" % (vr(O0 + 2), vr(O0 + 2), vr(rs)))
    a.I("v_mul_f32 %s, %s, %s" % (vr(O0 + 3), vr(O0 + 3), vr(rs + 1)))
    a.I("v_mul_f32 %s, %s, %s" % (vr(O1 + 2), vr(O1 + 2), vr(rs)))
    a.I("v_mul_f32 %s, %s, %s" % (vr(O1 + 3), vr(O1 + 3), vr(rs + 1)))
    a.I("v_cvt_pk_bf16_f32 %s, %s, %s" % (vr(S), vr(O0 + 2), vr(O0 + 3)))
    a.I("v_cvt_pk_bf16_f32 %s, %s, %s" % (vr(S + 1), vr(O1 + 2), vr(O1 + 3)))
    if dbg == "O":
        dump(a, w, S, 2)
    a.I("ds_write_b64 %s, %s offset:%d" % (vr(V_MW), vr(S, 2), O_OFF))
    for x in zl[4:12]:
        a.I(x)
    a.I("s_waitcnt lgkmcnt(0)")
    a.I("s_barrier")
    for xi in range(2):
        for hh in range(2):
            a.I("ds_read_b64_tr_b16 %s, %s offset:%d" % (vr(PX + 4 * xi + 2 * hh, 2), vr(V_MR), O_OFF + 2048 * xi + 1024 * hh))
    for x in zl[:4] + zl[12:]:
        a.I(x)
    a.I("s_waitcnt lgkmcnt(0)")
    tm.stamp(5)
    def post_tile(t):
        ta = wacc(t)
        dq = wacc(4 * (t >> 2)) + (t & 3)
        L = add2(ta, ta, ta + 2) + ["v_cvt_pk_bf16_f32 %s, %s, %s" % (vr(dq), vr(ta), vr(ta + 1))]
        if (t & 3) == 3:
            d0 = wacc(4 * (t >> 2))
            L.append("v_bfi_b32 %s, 1, s%d, %s" % (vr(d0), S_TAG, vr(d0)))
            L.append("buffer_store_dwordx4 %s, %s, %s, s%d offen %s"
                     % (vr(d0, 4), vr(V_PS), ws, S_PW0 if t == 3 else S_PW1, st_flags))
        return L
    pend = []
    seq = []
    todo = []
    for n8 in range(8, 16):
        todo += [(n8, x) for x in stage(n8, slots[n8 % 8])]
    for n in range(16):
        tau, xi = order[n]
        slot = slots[n % 8]
        if n >= 8:
            last = max(i for i, o in enumerate(seq) if o == n)
            a.I("s_waitcnt lgkmcnt(%d)" % (len(seq) - last - 1))
        a.I(smf(wacc(tau), vr(PX + 4 * xi, 4), vr(slot, 8)))
        target = min(16, 2 * (n + 1), (3 * (n + 1) + 1) // 2)
        while len(seq) < target:
            o, x = todo.pop(0)
            a.I(x)
            seq.append(o)
        if n >= 4 and n % 2 == 0:
            pend += post_tile((n - 4) // 2)
        for _ in range(1 if n < 10 else 2):
            if pend:
                a.I(pend.pop(0))
    for x in pend:
        a.I(x)
    for t_ in (6, 7):
        for x in post_tile(t_):
            a.I(x)
    a.label("L_skip_w%d%s" % (w, tag))
    tm.stamp(6)
    if "ack" in exp:
        a.I("s_waitcnt vmcnt(0)")
        tm.stamp(15)

    SEL = S
    D2 = S + 4
    sel_addr(a, V_T, SEL)
    a.I("ds_read_b128 %s, %s" % (vr(SEL, 4), vr(V_T)))
    for i in range(0, 24, 2):
        a.I("v_mov_b64 %s, 0" % vr(ACC + i, 2))
    a.I("s_add_u32 s%d, s%d, 262144" % (S_KT, S_KT))
    a.I("s_add_u32 s%d, s%d, 262144" % (S_VT, S_VT))
    a.I("s_add_u32 s%d, s%d, 65536" % (S_VM, S_VM))
    a.I("s_add_u32 s%d, s%d, 65536" % (S_KM, S_KM))
    a.I("s_add_u32 s%d, s%d, 1" % (S_STEP, S_STEP))
    a.I("s_xor_b32 s%d, s%d, 8192" % (S_KB, S_KB))
    a.I("v_xor_b32 %s, 8192, %s" % (vr(V_K), vr(V_K)))
    if rdelay:
        a.nops(rdelay)

    def issue_in(R):
        for m in range(2):
            a.I("buffer_load_dwordx4 %s, %s, %s, s%d offen offset:%d sc1"
                % (vr(R + 4 * m, 4), vr(V_L16), ws, S_PR, m * 1024))
    oks = [a.newlabel("rok%d" % i) for i in range(rsets)]
    Lj = a.newlabel("rjoin")
    a.I("s_waitcnt lgkmcnt(0)")
    tm.stamp(14)
    poll2(issue_in, oks, rgap, 10, check_tag)
    for si in range(rsets - 1, -1, -1):
        R = sets[si]
        a.label(oks[si], clear=True)
        tm.stamp(13)
        a.I("v_mfma_f32_16x16x32_bf16 %s, %s, %s, 0" % (vr(D2, 4), vr(R, 4), vr(SEL, 4)))
        a.I("v_mfma_f32_16x16x32_bf16 %s, %s, %s, %s" % (vr(D2, 4), vr(R + 4, 4), vr(SEL, 4), vr(D2, 4)))
        if si != 0:
            a.I("s_branch %s" % Lj)
    a.label(Lj)
    a.I("s_add_u32 s%d, s%d, 8192" % (S_MEM, S_MEM))
    a.I("s_and_b32 s%d, s%d, 0x%x" % (S_MEM, S_MEM, WS_MEM | 0x7fff))
    a.I("s_add_u32 s%d, s%d, 4096" % (S_MEMHI, S_MEM))
    a.I("s_add_u32 s%d, s%d, 2 * 8192" % (S_T0 + 3, S_MEM))
    a.I("s_and_b32 s%d, s%d, 0x%x" % (S_T0 + 3, S_T0 + 3, WS_MEM | 0x7fff))
    a.I("v_mov_b32 %s, -1" % vr(S + 8))
    a.nops(3)
    a.I("v_permlane32_swap_b32 %s, %s" % (vr(D2), vr(D2 + 2)))
    a.I("v_permlane32_swap_b32 %s, %s" % (vr(D2 + 1), vr(D2 + 3)))
    a.I("v_add_f32 %s, %s, %s" % (vr(D2), vr(D2), vr(D2 + 2)))
    a.I("v_add_f32 %s, %s, %s" % (vr(D2 + 1), vr(D2 + 1), vr(D2 + 3)))
    a.I("v_permlane16_swap_b32 %s, %s" % (vr(D2), vr(D2 + 1)))
    a.I("v_add_f32 %s, %s, %s" % (vr(D2), vr(D2), vr(D2 + 1)))
    a.I("v_mov_b32 %s, %s" % (vr(D2 + 1), vr(D2)))
    a.I("v_permlane16_swap_b32 %s, %s" % (vr(D2), vr(D2 + 1)))
    a.I("v_cvt_pk_bf16_f32 %s, %s, %s" % (vr(D2), vr(D2), vr(D2 + 1)))
    a.I("v_min_u32 %s, 0xfffffffe, %s" % (vr(D2), vr(D2)))
    a.I("buffer_store_dword %s, %s, %s, s%d offen %s" % (vr(D2), vr(V_MS), ws, S_MEM, st_flags))
    tm.stamp(7)
    if "latepois" not in exp:
        for x in pois:
            a.I(x)
    for s_ in (S_PW0, S_PW1, S_PR):
        a.I("s_xor_b32 s%d, s%d, 262144" % (s_, s_))
    a.I("s_bfe_u32 s%d, s%d, 0x10001" % (S_TAG, S_STEP))
    if "rtt" not in exp:
        tm.stamp(8)
    if stop_after is not None:
        a.I("s_cmp_eq_u32 s%d, %d" % (S_STEP, stop_after))
        a.I("s_cbranch_scc1 %s" % L_done)
    a.I("s_cmp_lg_u32 s%d, 63" % S_STEP)
    a.I("s_cbranch_scc1 %s" % L_step)
    a.I("s_mov_b32 s%d, %d" % (S_RETRY, RETRY_MAX))
    Lp = a.newlabel("lpoll")
    Lr = a.newlabel("lretry")
    a.label(Lp)
    for kap in range(8):
        a.I(mem_load(kap))
    a.I("s_waitcnt vmcnt(0)")
    for x in check_insts([MEM + i for i in range(32)], V_T):
        a.I(x)
    a.I("s_cbranch_vccnz %s" % Lr)
    ool.append((Lr, Lp))
    for kap in range(8):
        A = vr(MEM + 4 * kap, 4)
        a.I(smf(k[0], A, qkw(1, 0, kap)))
        a.I(smf(k[1], A, qkw(1, 1, kap)))
        a.I(smf(v[0], A, vr(V_VW + kap * 8, 8)))
        a.I(smf(v[1], A, vr(V_VW + 64 + kap * 8, 8)))
    for tau in range(2):
        for x in qk_post(tau):
            a.I(x)
    for x in add2(v[0], v[0], v[0] + 2) + add2(v[1], v[1], v[1] + 2):
        a.I(x)
    a.I("v_cvt_pk_bf16_f32 %s, %s, %s" % (vr(PX + 4), vr(v[0]), vr(v[0] + 1)))
    a.I("v_cvt_pk_bf16_f32 %s, %s, %s" % (vr(PX + 6), vr(v[1]), vr(v[1] + 1)))
    a.I("v_lshrrev_b32 %s, 2, %s" % (vr(V_T), vr(V_L16)))
    a.I("buffer_store_dword %s, %s, %s, s%d offen sc1" % (vr(PX + 4), vr(V_T), ws, S_VM))
    a.I("buffer_store_dword %s, %s, %s, s%d offen offset:256 sc1" % (vr(PX + 6), vr(V_T), ws, S_VM))
    a.I("s_waitcnt lgkmcnt(0)")
    a.I("s_barrier")
    if fused and w == 3:
        a.I("v_mov_b32 %s, 63" % vr(V_S))
        a.I("v_mov_b32 %s, s%d" % (vr(V_S + 1), S_NONCE))
        a.I("buffer_store_dwordx2 %s, %s, %s, s%d offen sc1" % (vr(V_S, 2), vr(V_Z), ws, S_CP))
    for hh in range(2):
        a.I("ds_read_b64_tr_b16 %s, %s offset:%d" % (vr(KT + 2 * hh, 2), vr(V_MR), 1024 * w + 512 * hh))
    a.I("s_waitcnt lgkmcnt(0)")
    a.I("buffer_store_dwordx4 %s, %s, %s, s%d offen offset:%d sc1" % (vr(KT, 4), vr(V_KM), ws, S_KM, w * 512))
    if fused:
        a.I("s_waitcnt vmcnt(0)")
        a.I("s_barrier")
        if w == 3:
            a.I("v_mov_b32 %s, 64" % vr(V_S))
            a.I("v_mov_b32 %s, s%d" % (vr(V_S + 1), S_NONCE))
            a.I("buffer_store_dwordx2 %s, %s, %s, s%d offen sc1" % (vr(V_S, 2), vr(V_Z), ws, S_CP))
    a.label(L_done, clear=True)
    a.I("s_waitcnt vmcnt(0) lgkmcnt(0)")
    if looptime and w == 0:
        a.I("s_memrealtime s[94:95]")
        a.I("s_waitcnt lgkmcnt(0)")
        a.I("s_sub_u32 s94, s94, s92")
        a.I("v_mov_b32 %s, s94" % vr(V_MEM))
        a.I("v_mov_b32 %s, s92" % vr(V_MEM + 1))
        a.I("s_lshl_b32 s%d, s%d, 3" % (S_T0, S_RANK))
        a.I("v_mov_b32 %s, s%d" % (vr(V_MEM + 2), S_T0))
        a.I("s_mov_b32 s%d, 0x%x" % (S_T0, WS_FLAGS + 0xc000))
        a.I("buffer_store_dwordx2 %s, %s, %s, s%d offen" % (vr(V_MEM, 2), vr(V_MEM + 2), ws, S_T0))
        a.I("s_waitcnt vmcnt(0)")
    if timing:
        Ls = a.newlabel("notm")
        if trace is None:
            a.I("s_cmp_lg_u32 s%d, 0" % S_RANK)
            a.I("s_cbranch_scc1 %s" % Ls)
        for i in range(16):
            a.I("v_mov_b32 %s, s%d" % (vr(V_MEM + i), S_TM + 4 + i))
        a.I("v_mov_b32 %s, 0" % vr(V_MEM + 16))
        a.I("s_lshl_b32 s%d, s%d, 8" % (S_T0, S_RANK))
        a.I("s_add_u32 s%d, s%d, 0x%x" % (S_T0, S_T0, WS_FLAGS + 0x8000 + w * 64))
        for i in range(16):
            a.I("buffer_store_dword %s, %s, %s, s%d offen offset:%d" % (vr(V_MEM + i), vr(V_MEM + 16), ws, S_T0, i * 4))
        a.I("s_waitcnt vmcnt(0)")
        a.label(Ls)
    Lend = a.newlabel("end")
    a.I("s_branch %s" % Lend)
    for (lab, tgt) in ool:
        retry_block(a, lab, tgt, abort)
    for (lh, lb) in hzl:
        a.label(lh, clear=True)
        horizon_refresh(a, S_T0 + 5, abort)
        a.I("s_branch %s" % lb)
    for (lr, kap, lb) in cool:
        a.label(lr, clear=True)
        lq = a.newlabel("cq")
        a.I("s_mov_b32 s%d, %d" % (S_RETRY, RETRY_MAX))
        a.label(lq)
        a.I(mem_load(kap))
        a.I("s_waitcnt vmcnt(0)")
        for x in chunk_check(kap):
            a.I(x)
        a.I("s_cbranch_vccz %s" % lb)
        a.I("s_sub_u32 s%d, s%d, 1" % (S_RETRY, S_RETRY))
        a.I("s_cmp_lg_u32 s%d, 0" % S_RETRY)
        a.I("s_cbranch_scc1 %s" % lq)
        a.I("s_branch %s" % abort)
    a.label(Lend, clear=True)


def loop_setup(a, w, fused=False, abort="L_abort"):
    r = S_RANK
    a.I("s_mov_b32 s%d, 0" % S_STEP)
    a.I("s_mov_b32 s%d, 0" % S_TAG)
    a.I("s_mov_b32 s%d, 0x%x" % (S_MEM, WS_MEM))
    a.I("s_mov_b32 s%d, 0x%x" % (S_MEMHI, WS_MEM + 4096))
    a.I("s_mov_b32 s%d, 0x%x" % (S_PW0, WS_PART + w * 65536))
    a.I("s_add_u32 s%d, s%d, 32768" % (S_PW1, S_PW0))
    a.I("s_lshl_b32 s%d, s%d, 13" % (S_PR, r))
    a.I("s_add_u32 s%d, s%d, 0x%x" % (S_PR, S_PR, WS_PART + w * 2048))
    a.I("s_lshl_b32 s%d, s%d, 13" % (S_KT, r))
    a.I("s_add_u32 s%d, s%d, 0x%x" % (S_VT, S_KT, WS_VT))
    a.I("s_add_u32 s%d, s%d, 0x%x" % (S_KT, S_KT, WS_KT))
    a.I("s_lshl_b32 s%d, s%d, 11" % (S_KM, r))
    a.I("s_add_u32 s%d, s%d, 0x%x" % (S_VM, S_KM, WS_VM + w * 512))
    a.I("s_add_u32 s%d, s%d, 0x%x" % (S_KM, S_KM, WS_KM))
    import struct
    c = struct.unpack("<I", struct.pack("<f", 128 ** -0.5 * 1.4426950408889634))[0]
    a.I("s_mov_b32 s%d, 0x%x" % (S_C, c))
    a.I("s_mov_b32 s%d, 0x%x" % (S_NC, c | 0x80000000))
    a.I("s_mov_b32 s%d, 0x3f803f80" % S_ONE)
    a.I("s_mov_b32 s%d, 0x3f803f80" % (S_ONE + 1))
    a.I("v_mov_b64 %s, 0" % vr(V_PX + 8, 2))
    if fused:
        a.I("s_lshl_b32 s%d, s%d, 6" % (S_PG, r))
        a.I("s_add_u32 s%d, s%d, 0x%x" % (S_PG, S_PG, FL_PROG))
        a.I("s_add_u32 s%d, s%d, 48" % (S_CP, S_PG))
        a.I("s_mov_b32 s%d, 0" % (S_T0 + 5))
        horizon_refresh(a, S_T0 + 5, abort)
    a.I("s_add_u32 s%d, s%d, %d" % (S_KT, S_KT, 2 * w * 1024))
    a.I("s_add_u32 s%d, s%d, %d" % (S_VT, S_VT, 2 * w * 1024))
    a.I("s_mov_b32 m0, %d" % (L_K + 2 * w * 1024))
    for p in range(2):
        a.I("buffer_load_dwordx4 %s, s[%d:%d], s%d offen offset:%d sc1 lds" % (vr(V_L16), S_WS, S_WS + 3, S_KT, p * 1024))
    a.I("s_add_u32 s%d, s%d, 262144" % (S_KT, S_KT))
    a.I("s_mov_b32 s%d, %d" % (S_KB, L_K + 8192 + 2 * w * 1024))
    for i in range(0, 24, 2):
        a.I("v_mov_b64 %s, 0" % vr(V_ACC + i, 2))
    a.I("v_mov_b64 %s, -1" % vr(V_S + 8, 2))
    a.I("v_mov_b64 %s, -1" % vr(V_S + 10, 2))
    a.I("s_mov_b32 s%d, 0x%x" % (S_T0 + 3, WS_MEM + 3 * 8192))
    a.I("v_mov_b64 %s, 0" % vr(V_PX + 8, 2))
    a.I("v_mov_b64 %s, 0" % vr(V_PX + 4, 2))
    a.I("v_mov_b64 %s, 0" % vr(V_PX + 6, 2))
    a.I("v_add_u32 %s, %d, %s" % (vr(V_MB), L_MB, vr(V_L16)))
```

```python
from asmlib import Asm, vr, ar, sr

WS_MOD = 0x00000000
WS_FLAGS = 0x00010000
FL_MOD = WS_FLAGS + 0x0000
FL_H = WS_FLAGS + 0x0200
FL_PROG = WS_FLAGS + 0x0400
FL_TAIL = WS_FLAGS + 0x1000
S_NONCE = 46
WS_MEM = 0x00100000
WS_PART = 0x00200000
WS_H = 0x00400000
WS_KT = 0x00800000
WS_VT = 0x01800000
WS_QT = 0x02800000
WS_KM = 0x03800000
WS_VM = 0x03C00000
WS_TAIL = 0x04000000
WS_SIZE = 0x10000000
OOB = 0x40000000

L_WO = 0
L_K = 131072
L_M = 147456
L_MB = L_M + 4096
L_O = L_MB + 8192
O_OFF = L_O - L_M
L_SEL = L_O + 512
L_BC = L_O + 2048 + 512

S_WS = 8
S_W = 12
S_DBG = 16
S_WAVE = 20
S_RANK = 21
S_STEP = 22
S_MEM = 23
S_MEMHI = 24
S_PW0 = 25
S_PW1 = 26
S_PR = 27
S_PRHI = 28
S_KT = 29
S_VT = 30
S_KM = 31
S_HI = 32
S_C = 34
S_NC = 35
S_RETRY = 36
S_VM = 37
S_T0 = 38
S_POIS = 46
S_POISHI = 47
S_PWB = 96
S_PRB = 97
S_RING = 98
S_ONE = 100
S_SEL = 99
S_TAG = 96
S_HZ = 97
S_PG = 98
S_CP = 47
S_KB = 44
S_PTR = 48
S_TM = 64

V_VW = 0
V_MEM = 128
V_ACC = 160
V_KT = 184
V_S = 216
V_VT = 228
V_PX = 236
V_IDX = 246
V_L16 = 247
V_L16W = 248
V_K = 249
V_PS = 250
V_MS = 251
V_MW = 252
V_MR = 253
V_KM = 254
V_T = 255
V_Z = V_PX + 8
V_MB = V_PX + 9

RETRY_MAX = 200000
ROT = True


def wacc(t):
    return V_ACC + 4 * t if t < 6 else V_VT + 4 * (t - 6)


FINE = {"on": False, "n": 0, "names": []}


def hop(a, idx):
    if FINE.get("hop"):
        a.I("s_memtime s[%d:%d]" % (64 + 2 * idx, 65 + 2 * idx))


def fine(a, name):
    FINE["k"] = FINE.get("k", 0) + 1
    if not FINE["on"] or FINE["n"] >= 16 or FINE["k"] <= FINE.get("skip", 0):
        return
    n = FINE["n"]
    a.I("s_memtime s[%d:%d]" % (64 + 2 * n, 65 + 2 * n))
    FINE["names"].append(name)
    FINE["n"] = n + 1


class Timer:
    def __init__(self, a, on, trace=None):
        self.a = a
        self.on = on
        self.trace = trace

    def start(self):
        if not self.on:
            return
        a = self.a
        for i in range(16):
            a.I("s_mov_b32 s%d, 0" % (S_TM + 4 + i))
        a.I("s_memtime s[%d:%d]" % (S_TM, S_TM + 1))
        a.I("s_waitcnt lgkmcnt(0)")

    def stamp(self, idx):
        if self.trace is not None:
            a = self.a
            l = a.newlabel("tr")
            a.I("s_cmp_lg_u32 s%d, %d" % (S_STEP, self.trace + (1 if idx in (14, 13, 7, 8) else 0)))
            a.I("s_cbranch_scc1 %s" % l)
            a.I("s_memrealtime s[%d:%d]" % (S_TM + 2, S_TM + 3))
            a.I("s_waitcnt lgkmcnt(0)")
            a.I("s_mov_b32 s%d, s%d" % (S_TM + 4 + idx, S_TM + 2))
            a.label(l)
            return
        if not self.on:
            return
        a = self.a
        a.I("s_memtime s[%d:%d]" % (S_TM + 2, S_TM + 3))
        a.I("s_waitcnt lgkmcnt(0)")
        a.I("s_sub_u32 s%d, s%d, s%d" % (S_T0 + 7, S_TM + 2, S_TM))
        a.I("s_add_u32 s%d, s%d, s%d" % (S_TM + 4 + idx, S_TM + 4 + idx, S_T0 + 7))
        a.I("s_mov_b32 s%d, s%d" % (S_TM, S_TM + 2))


def lane_consts(a, w):
    T = V_MEM
    lane = V_T
    a.I("v_lshlrev_b32 %s, 4, %s" % (vr(V_L16), vr(lane)))
    a.I("v_add_u32 %s, %d, %s" % (vr(V_L16W), L_WO + w * 32768, vr(V_L16)))
    a.I("v_add_u32 %s, %d, %s" % (vr(V_K), L_K, vr(V_L16)))
    a.I("v_and_b32 %s, 15, %s" % (vr(T), vr(lane)))
    a.I("v_lshrrev_b32 %s, 4, %s" % (vr(T + 1), vr(lane)))
    a.I("v_mov_b32 %s, 0x4444" % vr(V_IDX))
    a.I("v_mov_b32 %s, 0xeeee" % vr(T + 2))
    a.I("v_and_b32 %s, 2, %s" % (vr(T + 3), vr(T)))
    a.I("v_cmp_ne_u32 vcc, 0, %s" % vr(T + 3))
    a.I("v_cndmask_b32 %s, %s, %s, vcc" % (vr(V_IDX), vr(V_IDX), vr(T + 2)))
    a.I("v_lshlrev_b32 %s, 13, %s" % (vr(T + 2), vr(T + 1)))
    a.I("v_lshrrev_b32 %s, 2, %s" % (vr(T + 3), vr(T)))
    a.I("v_lshl_add_u32 %s, %s, 11, %s" % (vr(T + 2), vr(T + 3), vr(T + 2)))
    a.I("v_mov_b32 %s, s%d" % (vr(T + 3), S_RANK))
    a.I("v_lshl_add_u32 %s, %s, 6, %s" % (vr(T + 2), vr(T + 3), vr(T + 2)))
    a.I("v_and_b32 %s, 3, %s" % (vr(T + 3), vr(T)))
    a.I("v_lshl_add_u32 %s, %s, 4, %s" % (vr(V_PS), vr(T + 3), vr(T + 2)))
    a.I("v_lshrrev_b32 %s, 2, %s" % (vr(T + 2), vr(T)))
    a.I("v_xor_b32 %s, %s, %s" % (vr(T + 2), vr(T + 2), vr(T + 1)))
    a.I("v_lshlrev_b32 %s, 3, %s" % (vr(T + 2), vr(T + 2)))
    a.I("v_lshl_add_u32 %s, %s, 5, %s" % (vr(T + 2), vr(T), vr(T + 2)))
    a.I("v_add_u32 %s, %d, %s" % (vr(V_MW), L_M + 1024 * w, vr(T + 2)))
    a.I("v_lshrrev_b32 %s, 2, %s" % (vr(T + 2), vr(T)))
    a.I("v_lshl_add_u32 %s, %s, 2, %s" % (vr(T + 2), vr(T + 1), vr(T + 2)))
    a.I("v_and_b32 %s, 3, %s" % (vr(T + 3), vr(T)))
    a.I("v_xor_b32 %s, %s, %s" % (vr(T + 3), vr(T + 3), vr(T + 1)))
    a.I("v_lshlrev_b32 %s, 3, %s" % (vr(T + 3), vr(T + 3)))
    a.I("v_lshl_add_u32 %s, %s, 5, %s" % (vr(T + 2), vr(T + 2), vr(T + 3)))
    a.I("v_add_u32 %s, %d, %s" % (vr(V_MR), L_M, vr(T + 2)))
    a.I("v_lshrrev_b32 %s, 2, %s" % (vr(T + 2), vr(T)))
    a.I("v_and_b32 %s, 1, %s" % (vr(T + 3), vr(T)))
    a.I("v_lshl_add_u32 %s, %s, 1, %s" % (vr(T + 2), vr(T + 2), vr(T + 3)))
    a.I("v_lshl_add_u32 %s, %s, 3, %s" % (vr(T + 2), vr(T + 1), vr(T + 2)))
    a.I("v_lshlrev_b32 %s, 4, %s" % (vr(T + 2), vr(T + 2)))
    a.I("v_mov_b32 %s, 0x%x" % (vr(T + 4), OOB))
    a.I("v_and_b32 %s, 2, %s" % (vr(T + 3), vr(T)))
    a.I("v_cmp_ne_u32 vcc, 0, %s" % vr(T + 3))
    a.I("v_cndmask_b32 %s, %s, %s, vcc" % (vr(V_KM), vr(T + 2), vr(T + 4)))
    s0, s1, s2 = S_T0, S_T0 + 1, S_T0 + 2
    a.I("s_lshr_b32 s%d, s%d, 3" % (s0, S_RANK))
    a.I("s_bfe_u32 s%d, s%d, 0x10002" % (s1, S_RANK))
    a.I("s_lshl_b32 s%d, s%d, 2" % (s1, s1))
    a.I("s_add_u32 s%d, s%d, s%d" % (s0, s0, s1))
    a.I("s_lshl_b32 s%d, s%d, 10" % (s0, s0))
    a.I("s_and_b32 s%d, s%d, 3" % (s1, S_RANK))
    a.I("s_lshl_b32 s%d, s%d, 6" % (s1, s1))
    a.I("s_add_u32 s%d, s%d, s%d" % (s0, s0, s1))
    a.I("s_add_u32 s%d, s%d, %d" % (s0, s0, w * 256))
    a.I("v_and_b32 %s, 3, %s" % (vr(T + 2), vr(T)))
    a.I("v_lshlrev_b32 %s, 4, %s" % (vr(T + 2), vr(T + 2)))
    a.I("v_lshrrev_b32 %s, 2, %s" % (vr(T + 3), vr(T)))
    a.I("v_lshl_add_u32 %s, %s, 3, %s" % (vr(T + 2), vr(T + 3), vr(T + 2)))
    a.I("v_lshrrev_b32 %s, 1, %s" % (vr(T + 3), vr(T + 1)))
    a.I("v_lshl_add_u32 %s, %s, 2, %s" % (vr(T + 2), vr(T + 3), vr(T + 2)))
    a.I("v_add_u32 %s, s%d, %s" % (vr(T + 2), s0, vr(T + 2)))
    a.I("v_and_b32 %s, 24, %s" % (vr(T + 3), vr(lane)))
    a.I("v_mov_b32 %s, 0x%x" % (vr(V_MS), OOB))
    a.I("v_cmp_eq_u32 vcc, 0, %s" % vr(T + 3))
    a.I("v_cndmask_b32 %s, %s, %s, vcc" % (vr(V_MS), vr(V_MS), vr(T + 2)))


def sel_addr(a, dst, tmp):
    a.I("v_lshrrev_b32 %s, 9, %s" % (vr(tmp), vr(V_L16)))
    a.I("v_mul_u32_u24 %s, 512, %s" % (vr(tmp), vr(tmp)))
    a.I("v_add3_u32 %s, %s, %s, s%d" % (vr(dst), vr(V_L16), vr(tmp), S_SEL))


def init_issue(a, w, T):
    lane = V_T
    s0, s1 = S_T0 + 1, S_T0 + 2
    a.I("v_and_b32 %s, 15, %s" % (vr(T), vr(lane)))
    a.I("v_lshrrev_b32 %s, 4, %s" % (vr(T + 1), vr(lane)))
    a.I("s_and_b32 s%d, s%d, 3" % (s0, S_RANK))
    a.I("s_lshl_b32 s%d, s%d, 11" % (s0, s0))
    a.I("s_lshr_b32 s%d, s%d, 2" % (s1, S_RANK))
    a.I("s_lshl_b32 s%d, s%d, 7" % (s1, s1))
    a.I("s_add_u32 s%d, s%d, s%d" % (s0, s0, s1))
    a.I("s_add_u32 s%d, s%d, %d" % (s0, s0, w * 8))
    a.I("v_and_b32 %s, 1, %s" % (vr(T + 2), vr(T)))
    a.I("v_lshlrev_b32 %s, 10, %s" % (vr(T + 2), vr(T + 2)))
    a.I("v_bfe_u32 %s, %s, 1, 2" % (vr(T + 3), vr(T)))
    a.I("v_lshl_add_u32 %s, %s, 5, %s" % (vr(T + 2), vr(T + 3), vr(T + 2)))
    a.I("v_lshrrev_b32 %s, 1, %s" % (vr(T + 3), vr(T + 1)))
    a.I("v_lshl_add_u32 %s, %s, 2, %s" % (vr(T + 2), vr(T + 3), vr(T + 2)))
    a.I("v_add_u32 %s, s%d, %s" % (vr(T + 2), s0, vr(T + 2)))
    a.I("s_mov_b32 s4, s%d" % (S_PTR + 0))
    a.I("s_mov_b32 s5, s%d" % (S_PTR + 1))
    a.I("s_mov_b32 s6, 8192")
    a.I("s_mov_b32 s7, 0x00020000")
    a.I("buffer_load_dword %s, %s, s[4:7], 0 offen" % (vr(T + 4), vr(T + 2)))


def init_stores(a, w, T, st_flags):
    P = T + 8
    s0 = S_T0 + 1
    a.I("s_mov_b32 s%d, %d" % (S_SEL, L_SEL))
    for i in range(4):
        a.I("v_mov_b32 %s, -1" % vr(P + i))
    a.I("s_mov_b32 s%d, 0x%x" % (s0, WS_MEM))
    a.I("v_min_u32 %s, 0xfffffffe, %s" % (vr(T + 4), vr(T + 4)))
    a.I("buffer_store_dword %s, %s, s[%d:%d], s%d offen %s" % (vr(T + 4), vr(V_MS), S_WS, S_WS + 3, s0, st_flags))
    for i in range(3):
        a.I("s_add_u32 s%d, s%d, 8192" % (s0, s0))
        a.I("buffer_store_dword %s, %s, s[%d:%d], s%d offen %s" % (vr(P), vr(V_MS), S_WS, S_WS + 3, s0, st_flags))
    for ring in range(2):
        a.I("s_lshl_b32 s%d, s%d, 13" % (s0, S_RANK))
        a.I("s_add_u32 s%d, s%d, 0x%x" % (s0, s0, WS_PART + ring * 262144 + w * 2048))
        for m in range(2):
            a.I("buffer_store_dwordx4 %s, %s, s[%d:%d], s%d offen offset:%d %s"
                % (vr(P, 4), vr(V_L16), S_WS, S_WS + 3, s0, m * 1024, st_flags))
    if w == 0:
        a.I("v_and_b32 %s, 1, %s" % (vr(T + 2), vr(T)))
        a.I("v_lshlrev_b32 %s, 4, %s" % (vr(T + 2), vr(T + 2)))
        a.I("v_mov_b32 %s, 0x3f80" % vr(T + 3))
        a.I("v_lshlrev_b32 %s, %s, %s" % (vr(T + 3), vr(T + 2), vr(T + 3)))
        a.I("v_lshrrev_b32 %s, 1, %s" % (vr(T + 2), vr(T)))
        for m in range(4):
            a.I("v_cmp_eq_u32 vcc, %d, %s" % (m, vr(T + 2)))
            a.I("v_cndmask_b32 %s, 0, %s, vcc" % (vr(T + 4 + m), vr(T + 3)))
        sel_addr(a, T + 2, T + 3)
        a.I("ds_write_b128 %s, %s" % (vr(T + 2), vr(T + 4, 4)))


def init_buffers(a, w, st_flags=""):
    T = 200
    init_issue(a, w, T)
    a.I("s_waitcnt vmcnt(0)")
    init_stores(a, w, T, st_flags)


def load_weights(a, w, wflags="", rot=False, hooks=None, consts=True):
    hooks = hooks or {}
    lane = V_T
    T = V_MEM
    VO = V_MEM + 8
    TA = V_MEM + 12
    base = L_WO + w * 32768
    so = S_T0
    a.I("v_lshrrev_b32 %s, 2, %s" % (vr(T), vr(lane)))
    a.I("v_and_b32 %s, 3, %s" % (vr(T + 1), vr(lane)))
    a.I("s_lshl_b32 s%d, s%d, 8" % (so, S_RANK))
    a.I("s_add_u32 s%d, s%d, %d" % (so, so, w * 64))
    for v in range(4):
        a.I("v_xor_b32 %s, %d, %s" % (vr(T + 2), 2 * ((v >> 1) & 1), vr(T)))
        a.I("v_lshlrev_b32 %s, 13, %s" % (vr(T + 2), vr(T + 2)))
        a.I("v_xor_b32 %s, %d, %s" % (vr(T + 3), 2 * (v & 1), vr(T + 1)))
        a.I("v_lshl_add_u32 %s, %s, 4, %s" % (vr(T + 2), vr(T + 3), vr(T + 2)))
        a.I("v_add_u32 %s, s%d, %s" % (vr(VO + v), so, vr(T + 2)))

    def set_srd(ptr, nbytes):
        a.I("s_mov_b32 s%d, s%d" % (S_W, ptr))
        a.I("s_mov_b32 s%d, s%d" % (S_W + 1, ptr + 1))
        a.I("s_mov_b32 s%d, 0x%x" % (S_W + 2, nbytes))

    def dma_qkv(j):
        for i in range(8 * j, 8 * j + 8):
            a.I("s_mov_b32 m0, %d" % (base + i * 1024))
            a.I("s_mov_b32 s%d, 0x%x" % (so, i * 131072))
            a.I("buffer_load_dwordx4 %s, s[%d:%d], s%d offen %s lds" % (vr(VO + (i & 3)), S_W, S_W + 3, so, wflags))
    ptrs = [S_PTR + 2, S_PTR + 4, S_PTR + 6]
    set_srd(ptrs[0], 0x400000)
    for j in range(4):
        dma_qkv(j)
    if consts:
        lane_consts(a, w)
    gb, r, c = T, T + 1, T + 2
    a.I("v_lshrrev_b32 %s, 4, %s" % (vr(gb), vr(lane)))
    a.I("v_bfe_u32 %s, %s, 2, 2" % (vr(r), vr(lane)))
    a.I("v_and_b32 %s, 3, %s" % (vr(c), vr(lane)))
    t4, t5, t6, t7 = T + 3, T + 4, T + 5, T + 6
    for qb in range(2):
        for tau in range(2):
            a.I("v_and_b32 %s, 1, %s" % (vr(t4), vr(gb)))
            a.I("v_lshlrev_b32 %s, 5, %s" % (vr(t5), vr(t4)))
            a.I("v_xor_b32 %s, %d, %s" % (vr(t4), qb, vr(t4)))
            a.I("v_lshl_add_u32 %s, %s, 1, %s" % (vr(t5), vr(t4), vr(t5)))
            a.I("v_lshrrev_b32 %s, 1, %s" % (vr(t4), vr(gb)))
            a.I("v_lshl_add_u32 %s, %s, 2, %s" % (vr(t5), vr(t4), vr(t5)))
            a.I("v_and_b32 %s, 1, %s" % (vr(t4), vr(r)))
            a.I("v_add_u32 %s, %s, %s" % (vr(t5), vr(t4), vr(t5)))
            a.I("v_lshrrev_b32 %s, 1, %s" % (vr(t4), vr(r)))
            a.I("v_lshl_add_u32 %s, %s, 4, %s" % (vr(t5), vr(t4), vr(t5)))
            a.I("v_lshlrev_b32 %s, 6, %s" % (vr(t5), vr(t5)))
            a.I("v_xor_b32 %s, %d, %s" % (vr(t4), tau, vr(t4)))
            a.I("v_lshlrev_b32 %s, 1, %s" % (vr(t4), vr(t4)))
            a.I("v_lshrrev_b32 %s, 1, %s" % (vr(t6), vr(c)))
            a.I("v_add_u32 %s, %s, %s" % (vr(t4), vr(t4), vr(t6)))
            a.I("v_lshl_add_u32 %s, %s, 4, %s" % (vr(t5), vr(t4), vr(t5)))
            a.I("v_and_b32 %s, 1, %s" % (vr(t6), vr(c)))
            a.I("v_lshl_add_u32 %s, %s, 3, %s" % (vr(t5), vr(t6), vr(t5)))
            a.I("v_add_u32 %s, %d, %s" % (vr(TA + 2 * qb + tau), base, vr(t5)))

    def tr_qkv(j, dst):
        for kappa in (j, 4 + j):
            B = 128 * (kappa & 3) + 64 * (kappa >> 2)
            for tau in range(2):
                for q in range(4):
                    off = (B + 8 * (q >> 1)) * 64
                    a.I("ds_read_b64_tr_b16 %s, %s offset:%d" % (dst(tau, kappa, q), vr(TA + 2 * (q & 1) + tau), off))

    dsts = [
        lambda tau, kappa, q: ar((0 + tau) * 64 + kappa * 8 + 2 * q, 2),
        lambda tau, kappa, q: ar((2 + tau) * 64 + kappa * 8 + 2 * q, 2),
        lambda tau, kappa, q: vr(V_VW + tau * 64 + kappa * 8 + 2 * q, 2),
    ]
    WOV = V_MEM + 16
    a.I("v_lshrrev_b32 %s, 4, %s" % (vr(T), vr(lane)))
    a.I("v_and_b32 %s, 15, %s" % (vr(T + 1), vr(lane)))
    a.I("s_lshl_b32 s%d, s%d, 17" % (so, S_RANK))
    a.I("s_add_u32 s%d, s%d, %d" % (so, so, w * 256))
    for u in range(4):
        a.I("v_and_b32 %s, 1, %s" % (vr(T + 2), vr(T)))
        a.I("v_add_u32 %s, %d, %s" % (vr(T + 2), 2 * u, vr(T + 2)))
        a.I("v_lshlrev_b32 %s, 1, %s" % (vr(T + 2), vr(T + 2)))
        a.I("v_xor_b32 %s, %s, %s" % (vr(T + 2), vr(T + 2), vr(T + 1)))
        a.I("v_lshlrev_b32 %s, 4, %s" % (vr(T + 2), vr(T + 2)))
        a.I("v_lshl_add_u32 %s, %s, 10, %s" % (vr(T + 2), vr(T), vr(T + 2)))
        a.I("v_add_u32 %s, s%d, %s" % (vr(WOV + u), so, vr(T + 2)))

    def dma_wo(j):
        for i in range(8 * j, 8 * j + 8):
            u = ((i >> 2) & 1) + 2 * ((i >> 3) & 1)
            a.I("s_mov_b32 m0, %d" % (base + i * 1024))
            a.I("s_mov_b32 s%d, 0x%x" % (so, i * 4096))
            a.I("buffer_load_dwordx4 %s, s[%d:%d], s%d offen %s lds" % (vr(WOV + u), S_W, S_W + 3, so, wflags))

    for mi in range(3):
        for j in range(4):
            u = 4 * mi + j
            a.I("s_waitcnt vmcnt(24)")
            tr_qkv(j, dsts[mi])
            a.I("s_waitcnt lgkmcnt(0)")
            if u in hooks:
                hooks[u](a)
            if j == 0:
                set_srd(ptrs[mi + 1] if mi < 2 else S_PTR + 8, 0x400000)
            if mi < 2:
                dma_qkv(j)
            else:
                dma_wo(j)
    WA = V_MEM + 20
    a.I("v_lshrrev_b32 %s, 4, %s" % (vr(gb), vr(lane)))
    a.I("v_bfe_u32 %s, %s, 2, 2" % (vr(r), vr(lane)))
    a.I("v_and_b32 %s, 3, %s" % (vr(c), vr(lane)))
    a.I("v_and_b32 %s, 1, %s" % (vr(t4), vr(gb)))
    a.I("v_lshl_add_u32 %s, %s, 2, %s" % (vr(t7), vr(t4), vr(r)))
    a.I("v_lshlrev_b32 %s, 5, %s" % (vr(t5), vr(t4)))
    a.I("v_lshrrev_b32 %s, 1, %s" % (vr(t4), vr(gb)))
    a.I("v_lshl_add_u32 %s, %s, 2, %s" % (vr(t5), vr(t4), vr(t5)))
    a.I("v_and_b32 %s, 1, %s" % (vr(t4), vr(r)))
    a.I("v_add_u32 %s, %s, %s" % (vr(t5), vr(t4), vr(t5)))
    a.I("v_lshrrev_b32 %s, 1, %s" % (vr(t4), vr(r)))
    a.I("v_lshl_add_u32 %s, %s, 4, %s" % (vr(t5), vr(t4), vr(t5)))
    a.I("v_lshlrev_b32 %s, 8, %s" % (vr(t5), vr(t5)))
    a.I("v_lshrrev_b32 %s, 1, %s" % (vr(t4), vr(c)))
    a.I("v_lshl_add_u32 %s, %s, 4, %s" % (vr(t5), vr(t4), vr(t5)))
    a.I("v_and_b32 %s, 1, %s" % (vr(t4), vr(c)))
    a.I("v_lshl_add_u32 %s, %s, 3, %s" % (vr(t5), vr(t4), vr(t5)))
    a.I("v_add_u32 %s, %d, %s" % (vr(t5), base, vr(t5)))
    for tau in range(8):
        a.I("v_xor_b32 %s, %d, %s" % (vr(t4), tau, vr(t7)))
        a.I("v_lshl_add_u32 %s, %s, 5, %s" % (vr(WA + tau), vr(t4), vr(t5)))
    ST = V_MEM + 32
    for xi in range(2):
        a.I("s_waitcnt vmcnt(%d)" % (16 if xi == 0 else 0))
        if (12 + xi) in hooks:
            hooks[12 + xi](a)
        for tau in range(8):
            for q in range(4):
                off = (64 * xi + 8 * (q >> 1) + 2 * (q & 1)) * 256
                a.I("ds_read_b64_tr_b16 %s, %s offset:%d" % (vr(ST + tau * 8 + 2 * q, 2), vr(WA + tau), off))
        a.I("s_waitcnt lgkmcnt(0)")
        for tau in range(8):
            for hf in range(2):
                a.I("ds_write_b128 %s, %s offset:%d"
                    % (vr(V_L16W), vr(ST + tau * 8 + 4 * hf, 4), xi * 16384 + tau * 2048 + hf * 1024))
        a.I("s_waitcnt lgkmcnt(0)")


def wo_img_off(tau, xi, hf):
    return xi * 16384 + tau * 2048 + hf * 1024


def weave(a, main, fill, every=1, start=0):
    fill = list(fill)
    for i, m in enumerate(main):
        a.I(m)
        if i >= start:
            for _ in range(every):
                if fill:
                    a.I(fill.pop(0))
    for f in fill:
        a.I(f)


def check_insts(regs, tmp):
    regs = list(regs)
    if len(regs) == 2:
        L = ["v_max_u32 %s, %s, %s" % (vr(tmp), vr(regs[0]), vr(regs[1]))]
        rest = []
    else:
        L = ["v_max3_u32 %s, %s, %s, %s" % (vr(tmp), vr(regs[0]), vr(regs[1]), vr(regs[2]))]
        rest = regs[3:]
    while len(rest) >= 2:
        L.append("v_max3_u32 %s, %s, %s, %s" % (vr(tmp), vr(tmp), vr(rest[0]), vr(rest[1])))
        rest = rest[2:]
    if rest:
        L.append("v_max_u32 %s, %s, %s" % (vr(tmp), vr(tmp), vr(rest[0])))
    L.append("v_cmp_eq_u32 vcc, -1, %s" % vr(tmp))
    return L


def dump(a, w, base, n, slot=0):
    a.nops(12)
    a.I("s_lshl_b32 s%d, s%d, 16" % (S_T0, S_RANK))
    a.I("s_add_u32 s%d, s%d, 0x%x" % (S_T0, S_T0, 0x5000000 + w * 16384 + ((slot * 256) & ~4095)))
    a.I("v_lshrrev_b32 %s, 2, %s" % (vr(V_T), vr(V_L16)))
    for i in range(n):
        a.I("buffer_store_dword %s, %s, s[%d:%d], s%d offen offset:%d" % (vr(base + i), vr(V_T), S_WS, S_WS + 3, S_T0, ((slot + i) * 256) & 4095))
        if ((slot + i + 1) * 256) & 4095 == 0:
            a.I("s_add_u32 s%d, s%d, 4096" % (S_T0, S_T0))
    a.I("s_waitcnt vmcnt(0)")


def horizon_issue(a, vb):
    ws = "s[%d:%d]" % (S_WS, S_WS + 3)
    a.I("buffer_load_dwordx4 %s, %s, %s, s%d offen offset:16 sc1" % (vr(vb, 4), vr(V_Z), ws, S_PG))
    a.I("buffer_load_dwordx4 %s, %s, %s, s%d offen offset:32 sc1" % (vr(vb + 4, 4), vr(V_Z), ws, S_PG))


def horizon_refresh(a, s_need, abort, vb=None, pre=False):
    vb = V_S if vb is None else vb
    Lq = a.newlabel("hq")
    Lx = a.newlabel("hx")
    Le = a.newlabel("he")
    a.I("s_cmp_ge_u32 s%d, 64" % s_need)
    a.I("s_cbranch_scc1 %s" % Lx)
    a.I("s_mov_b32 s%d, %d" % (S_RETRY, RETRY_MAX))
    if pre:
        a.I("s_branch %s" % Le)
    a.label(Lq)
    horizon_issue(a, vb)
    a.I("s_sub_u32 s%d, s%d, 1" % (S_RETRY, S_RETRY))
    a.I("s_cmp_eq_u32 s%d, 0" % S_RETRY)
    a.I("s_cbranch_scc1 %s" % abort)
    a.I("s_waitcnt vmcnt(0)")
    a.label(Le)
    for i in range(4):
        a.I("v_cmp_eq_u32 vcc, s%d, %s" % (S_NONCE, vr(vb + 2 * i + 1)))
        a.I("v_cndmask_b32 %s, 0, %s, vcc" % (vr(vb + 2 * i), vr(vb + 2 * i)))
    a.I("v_min_u32 %s, %s, %s" % (vr(vb), vr(vb), vr(vb + 4)))
    a.I("v_min_u32 %s, %s, %s" % (vr(vb + 1), vr(vb + 2), vr(vb + 6)))
    a.I("v_lshlrev_b32 %s, 1, %s" % (vr(vb), vr(vb)))
    a.I("v_lshl_add_u32 %s, %s, 1, 1" % (vr(vb + 1), vr(vb + 1)))
    a.I("v_min_u32 %s, %s, %s" % (vr(vb), vr(vb), vr(vb + 1)))
    a.I("v_readfirstlane_b32 s%d, %s" % (S_HZ, vr(vb)))
    a.I("s_cmp_lt_u32 s%d, s%d" % (s_need, S_HZ))
    a.I("s_cbranch_scc0 %s" % Lq)
    a.label(Lx)


def retry_block(a, label, target, abort):
    a.label(label)
    a.I("s_sub_u32 s%d, s%d, 1" % (S_RETRY, S_RETRY))
    a.I("s_cmp_lg_u32 s%d, 0" % S_RETRY)
    a.I("s_cbranch_scc1 %s" % target)
    a.I("s_branch %s" % abort)


def chain_loop(a, w, st_flags="", timing=False, abort="L_abort", stop_after=None, dbg=None,
               delay=0, exp="", rdelay=0, hooks=None, kvflags="sc1 nt", gap=24, rgap=24, trace=None, looptime=True, fused=False, nsets=2, rsets=2, tag="", solo=0):
    tm = Timer(a, timing, trace)
    ws = "s[%d:%d]" % (S_WS, S_WS + 3)
    MEM, ACC, KT, S, VT, PX = V_MEM, V_ACC, V_KT, V_S, V_VT, V_PX
    q = [ACC, ACC + 8]
    k = [ACC + 4, ACC + 12]
    v = [ACC + 16, ACC + 20]
    L_step = "L_step_w%d%s" % (w, tag)
    L_done = "L_done_w%d%s" % (w, tag)
    ool = []
    cool = []
    hzl = []

    def smf(acc, A, B):
        return "v_smfmac_f32_16x16x64_bf16 %s, %s, %s, %s" % (vr(acc, 4), A, B, vr(V_IDX))

    def mem_load(kap):
        return ("buffer_load_dwordx4 %s, %s, %s, s%d offen offset:%d sc1"
                % (vr(MEM + 4 * kap, 4), vr(V_L16), ws, S_MEM if kap < 4 else S_MEMHI, (kap & 3) * 1024))

    def qkw(mat, tau, kap):
        return ar((mat * 2 + tau) * 64 + kap * 8, 8)

    def chunk_check(kap):
        return ["v_max_u32 %s, %s, %s" % (vr(V_T), vr(MEM + 4 * kap), vr(MEM + 4 * kap + 2)),
                "v_cmp_eq_u32 vcc, -1, %s" % vr(V_T)]

    def emit_check(kap):
        lr = a.newlabel("cr%d" % kap)
        lb = a.newlabel("cb%d" % kap)
        a.I("s_waitcnt vmcnt(%d)" % (7 - kap))
        for x in chunk_check(kap):
            a.I(x)
        a.I("s_cbranch_vccnz %s" % lr)
        a.label(lb)
        cool.append((lr, kap, lb))

    def add2(d, x, y):
        return ["v_add_f32 %s, %s, %s" % (vr(d), vr(x), vr(y)),
                "v_add_f32 %s, %s, %s" % (vr(d + 1), vr(x + 1), vr(y + 1))]

    def qk_post(tau):
        return (add2(q[tau], q[tau], q[tau] + 2) + add2(k[tau], k[tau], k[tau] + 2) +
                ["v_cvt_pk_bf16_f32 %s, %s, %s" % (vr(q[tau] + 3), vr(q[tau]), vr(q[tau] + 1)),
                 "v_cvt_pk_bf16_f32 %s, %s, %s" % (vr(q[tau] + 2), vr(k[tau]), vr(k[tau] + 1)),
                 "ds_write_b64 %s, %s offset:%d" % (vr(V_MW), vr(q[tau] + 2, 2), 512 * tau)])

    def far_ops():
        L = []
        for tau in range(2):
            L.append(["buffer_load_dwordx4 %s, %s, %s, s%d offen offset:%d %s"
                      % (vr(VT + 4 * tau, 4), vr(V_L16), ws, S_VT, (tau) * 1024, kvflags)])
        L.append(["s_mov_b32 m0, s%d" % S_KB,
                  "buffer_load_dwordx4 %s, %s, s%d offen %s lds" % (vr(V_L16), ws, S_KT, kvflags)])
        L.append(["buffer_load_dwordx4 %s, %s, s%d offen offset:1024 %s lds" % (vr(V_L16), ws, S_KT, kvflags)])
        return L

    pois = ["buffer_store_dword %s, %s, %s, s%d offen %s" % (vr(S + 8), vr(V_MS), ws, S_T0 + 3, st_flags)]
    tm.start()
    if looptime:
        a.I("s_memrealtime s[92:93]")
        a.I("s_waitcnt lgkmcnt(0)")
    a.label(L_step, clear=True)
    own = [2 * w, 2 * w + 1]
    others = [x for x in range(8) if x not in own]
    sets = [KT, KT + 8, KT + 16, KT + 24]
    mbo = L_MB - L_M

    def qk4(kap, A=None):
        A = A or vr(MEM + 4 * kap, 4)
        return [smf(q[0], A, qkw(0, 0, kap)), smf(k[0], A, qkw(1, 0, kap)),
                smf(q[1], A, qkw(0, 1, kap)), smf(k[1], A, qkw(1, 1, kap))]

    def poll2(issue, oks, gap, cnt, check, solo=False):
        n = len(oks)
        Lp = a.newlabel("pl")
        a.I("s_mov_b32 s%d, %d" % (S_RETRY, RETRY_MAX))
        if solo:
            issue(sets[0])
            a.I("s_waitcnt vmcnt(0)")
            check(sets[0], oks[0])
        for i in range(n - 1):
            issue(sets[i])
            if gap:
                a.nops(gap)
        a.label(Lp)
        for i in range(n):
            issue(sets[(i + n - 1) % n])
            a.I("s_waitcnt vmcnt(%d)" % (2 * (n - 1)))
            check(sets[i], oks[i])
        if timing:
            a.I("s_add_u32 s%d, s%d, 1" % (S_TM + 4 + cnt, S_TM + 4 + cnt))
        a.I("s_sub_u32 s%d, s%d, 1" % (S_RETRY, S_RETRY))
        a.I("s_cmp_lg_u32 s%d, 0" % S_RETRY)
        a.I("s_cbranch_scc1 %s" % Lp)
        a.I("s_branch %s" % abort)

    def check_poison(R, ok):
        for i, kap in enumerate(own):
            a.I("ds_write_b128 %s, %s offset:%d" % (vr(V_MB), vr(R + 4 * i, 4), kap * 1024))
        for x in check_insts([R + i for i in range(8)], V_T):
            a.I(x)
        if "nomemchk" in exp:
            a.I("s_branch %s" % ok)
        a.I("s_cbranch_vccz %s" % ok)

    def check_tag(R, ok):
        a.I("v_bitop3_b32 %s, %s, %s, s%d bitop3:0x7e" % (vr(V_T), vr(R), vr(R + 4), S_TAG))
        a.I("v_and_b32 %s, 1, %s" % (vr(V_T), vr(V_T)))
        a.I("v_cmp_ne_u32 vcc, 0, %s" % vr(V_T))
        if "noinchk" in exp:
            a.I("s_branch %s" % ok)
        a.I("s_cbranch_vccz %s" % ok)

    def issue_mem(R):
        for i, kap in enumerate(own):
            a.I("buffer_load_dwordx4 %s, %s, %s, s%d offen offset:%d sc1"
                % (vr(R + 4 * i, 4), vr(V_L16), ws, S_MEM if kap < 4 else S_MEMHI, (kap & 3) * 1024))
    if delay:
        a.nops(delay)
    hop(a, 4)
    oks = [a.newlabel("mok%d" % i) for i in range(nsets)]
    Lj = a.newlabel("mjoin")
    poll2(issue_mem, oks, gap, 9, check_poison, solo=bool(solo & 1))
    for si in range(nsets - 1, -1, -1):
        R = sets[si]
        a.label(oks[si], clear=True)
        tm.stamp(11)
        hop(a, 5)
        m_own = qk4(own[0], vr(R, 4)) + qk4(own[1], vr(R + 4, 4))
        for m in m_own[:3]:
            a.I(m)
        a.I("s_waitcnt lgkmcnt(0)")
        a.I("s_barrier")
        tm.stamp(12)
        hop(a, 6)
        rd = ["ds_read_b128 %s, %s offset:%d" % (vr(MEM + 4 * kap, 4), vr(V_MB), kap * 1024) for kap in others + own]
        a.I(rd[0])
        a.I(rd[1])
        for j, m in enumerate(m_own[3:]):
            a.I(m)
            a.I(rd[2 + j])
        a.I(rd[7])
        if si != 0:
            a.I("s_branch %s" % Lj)
    a.label(Lj, clear=True)
    tm.stamp(0)
    FINE["n"] = 0; FINE["k"] = 0; FINE["names"] = []
    fine(a, "join")
    hop(a, 7)
    nv = 0
    if "latepois" in exp:
        for x in pois:
            a.I(x)
            nv += 1
    if fused and w == 3:
        a.I("v_mov_b32 %s, s%d" % (vr(V_S), S_STEP))
        a.I("v_mov_b32 %s, s%d" % (vr(V_S + 1), S_NONCE))
        a.I("buffer_store_dwordx2 %s, %s, %s, s%d offen sc1" % (vr(V_S, 2), vr(V_Z), ws, S_CP))
        nv += 1
    if "nocompute" in exp:
        a.I("s_waitcnt vmcnt(0)")
        a.I("s_waitcnt lgkmcnt(0)")
        for i in range(0, 24, 2):
            a.I("v_mov_b64 %s, 0" % vr(ACC + i, 2))
        a.I("v_mov_b32 %s, s%d" % (vr(ACC), S_TAG))
        a.I("v_mov_b32 %s, s%d" % (vr(ACC + 16), S_TAG))
        a.I("buffer_store_dwordx4 %s, %s, %s, s%d offen %s" % (vr(ACC, 4), vr(V_PS), ws, S_PW0, st_flags))
        a.I("buffer_store_dwordx4 %s, %s, %s, s%d offen %s" % (vr(ACC + 16, 4), vr(V_PS), ws, S_PW1, st_flags))
        a.I("s_branch L_skip_w%d%s" % (w, tag))
    fill_hi = ["ds_read_b128 %s, %s offset:%d" % (vr(KT + (4 + ks) * 4, 4), vr(V_K), (4 + ks) * 1024) for ks in range(4)]
    fill_lo = ["ds_read_b128 %s, %s offset:%d" % (vr(KT + ks * 4, 4), vr(V_K), ks * 1024) for ks in range(4)]
    if fused:
        Lh = a.newlabel("hz")
        Lb = a.newlabel("hzb")
        a.I("s_add_u32 s%d, s%d, 1" % (S_T0 + 5, S_STEP))
        a.I("s_cmp_ge_u32 s%d, s%d" % (S_T0 + 5, S_HZ))
        a.I("s_cbranch_scc1 %s" % Lh)
        a.label(Lb)
        hzl.append((Lh, Lb))
    far = far_ops() if "nofar" not in exp else []
    nissued = 0
    cnt = 0
    waited = False
    for j, kap in enumerate(others[:4]):
        a.I("s_waitcnt lgkmcnt(%d)" % min(15, 7 - j + nissued))
        for m in qk4(kap):
            a.I(m)
            if cnt % 2 == 0:
                if fill_hi:
                    a.I(fill_hi.pop(0))
                    nissued += 1
                elif fill_lo:
                    if not waited:
                        a.I("s_waitcnt vmcnt(%d)" % nv)
                        waited = True
                    a.I(fill_lo.pop(0))
                    nissued += 1
            elif cnt % 4 == 1 and far:
                for x in far.pop(0):
                    a.I(x)
                nv += 1
            cnt += 1
        fine(a, "chunk%d" % j)
    assert not fill_lo and not far
    k6, k7 = others[4], others[5]
    A6, A7 = vr(MEM + 4 * k6, 4), vr(MEM + 4 * k7, 4)
    a.I("s_waitcnt lgkmcnt(%d)" % min(15, nissued))
    a.I(smf(q[0], A6, qkw(0, 0, k6)))
    a.I(smf(k[0], A6, qkw(1, 0, k6)))
    a.I(smf(q[0], A7, qkw(0, 0, k7)))
    a.I(smf(k[0], A7, qkw(1, 0, k7)))
    fine(a, "last4")
    tm.stamp(1)
    m1 = [smf(q[1], A6, qkw(0, 1, k6)), smf(k[1], A6, qkw(1, 1, k6)),
          smf(q[1], A7, qkw(0, 1, k7)), smf(k[1], A7, qkw(1, 1, k7))]
    vm = []
    for kap in range(8):
        for tau in range(2):
            vm.append(smf(v[tau], vr(MEM + 4 * kap, 4), vr(V_VW + tau * 64 + kap * 8, 8)))
    p0, p1 = qk_post(0), qk_post(1)
    a.I(m1[0])
    a.I(m1[1])
    a.I(m1[2])
    a.I(m1[3])
    fine(a, "m1")
    a.I(vm[0])
    for x in p0[0:2]:
        a.I(x)
    a.I(vm[1])
    for x in p0[2:4]:
        a.I(x)
    a.I(vm[2])
    for x in p0[4:7]:
        a.I(x)
    fine(a, "p0")
    for x in p1:
        a.I(x)
    fine(a, "p1")
    a.I(vm[3])
    a.I(vm[4])
    a.I(vm[5])
    a.I(vm[6])
    fine(a, "vm6")
    a.I("s_waitcnt lgkmcnt(0)")
    a.I("s_barrier")
    fine(a, "B1")
    trs = ["ds_read_b64_tr_b16 %s, %s offset:%d" % (vr(ACC + 4 * ks + 2 * hh, 2), vr(V_MR), 1024 * ks + 512 * hh)
           for ks in range(4) for hh in range(2)]
    a.I(trs[0])
    a.I(trs[1])
    a.I(trs[2])
    for i, m in enumerate(vm[7:12]):
        a.I(m)
        a.I(trs[3 + i])
    fine(a, "trs")
    tm.stamp(2)
    order = [(tau, xi) for tau in range(8) for xi in range(2)]
    slots = [KT + 8 * i for i in range(4)] + [MEM + 8 * i for i in range(4)]

    def stage(n, slot):
        tau, xi = order[n]
        return ["ds_read_b128 %s, %s offset:%d" % (vr(slot + 4 * hf, 4), vr(V_L16W), wo_img_off(tau, xi, hf))
                for hf in range(2)]

    T1, T2, T0 = S, S + 4, S + 8
    sc = []
    for ks in range(4):
        M = vr(ACC + 4 * ks, 4)
        for (D, A) in ((T1, vr(KT + ks * 4, 4)), (T2, vr(KT + (4 + ks) * 4, 4)), (T0, M)):
            sc.append("v_mfma_f32_16x16x32_bf16 %s, %s, %s, %s" % (vr(D, 4), A, M, "0" if ks == 0 else vr(D, 4)))
    P0q, ones = ACC, ACC + 4
    stgM = []
    for n in range(4, 8):
        stgM += stage(n, slots[n])
    nst = 0
    for ks in range(4):
        a.I("s_waitcnt lgkmcnt(%d)" % min(15, 6 - 2 * ks + nst))
        for j, m in enumerate(sc[3 * ks:3 * ks + 3]):
            a.I(m)
            if nst < 6 and (ks > 0 or j > 0):
                a.I(stgM[nst])
                nst += 1
        fine(a, "sc%d" % ks)
    if "nopub" not in exp:
        a.I("buffer_store_dwordx4 %s, %s, %s, s%d offen offset:%d sc1"
            % (vr(ACC + 4 * w, 4), vr(V_KM), ws, S_KM, w * 512))
    for m in vm[12:16]:
        a.I(m)
    a.I(stgM[6])
    a.I(stgM[7])
    fine(a, "vm15")
    tm.stamp(3)
    if dbg == "S":
        dump(a, w, S, 12)
    mx, tt, nmc = ACC + 8, ACC + 9, ACC + 10
    rs = ACC + 12
    stg = []
    for n in range(0, 4):
        stg += stage(n, slots[n])
    sm = []
    sm.append("v_max3_f32 %s, %s, %s, %s" % (vr(mx), vr(S + 0), vr(S + 1), vr(S + 2)))
    sm.append("v_max3_f32 %s, %s, %s, %s" % (vr(tt), vr(S + 3), vr(S + 4), vr(S + 5)))
    sm.append("v_max3_f32 %s, %s, %s, %s" % (vr(mx), vr(mx), vr(S + 6), vr(S + 7)))
    sm.append("v_max3_f32 %s, %s, %s, %s" % (vr(tt), vr(tt), vr(S + 8), vr(S + 9)))
    sm.append("v_max_f32 %s, %s, %s" % (vr(mx), vr(mx), vr(tt)))
    sm.append("v_mov_b32 %s, %s" % (vr(tt), vr(mx)))
    sm.append(None)
    sm.append("v_permlane32_swap_b32 %s, %s" % (vr(mx), vr(tt)))
    sm.append("v_max_f32 %s, %s, %s" % (vr(mx), vr(mx), vr(tt)))
    sm.append("v_mov_b32 %s, %s" % (vr(tt), vr(mx)))
    sm.append(None)
    sm.append("v_permlane16_swap_b32 %s, %s" % (vr(mx), vr(tt)))
    sm.append("v_max_f32 %s, %s, %s" % (vr(mx), vr(mx), vr(tt)))
    sm.append("v_mul_f32 %s, s%d, %s" % (vr(nmc), S_NC, vr(mx)))
    for j in range(5):
        sm.append("v_pk_fma_f32 %s, %s, s[%d:%d], %s op_sel_hi:[1,0,0]"
                  % (vr(S + 2 * j, 2), vr(S + 2 * j, 2), S_C, S_C + 1, vr(nmc, 2)))
    for i in range(10):
        sm.append("v_exp_f32 %s, %s" % (vr(S + i), vr(S + i)))
    si = 0
    consts = ["v_mov_b64 %s, s[%d:%d]" % (vr(ones, 2), S_ONE, S_ONE + 1),
              "v_mov_b64 %s, s[%d:%d]" % (vr(ones + 2, 2), S_ONE, S_ONE + 1),
              "v_mov_b32 %s, 0" % vr(ACC + 1), "v_mov_b64 %s, 0" % vr(ACC + 2, 2)]
    for j, x in enumerate(sm):
        if x is None:
            a.I(stg[si])
            si += 1
            a.I(consts.pop(0))
            continue
        a.I(x)
        if j >= 14 and si < len(stg) and j % 3 == 0:
            a.I(stg[si])
            si += 1
    while si < len(stg):
        a.I(stg[si])
        si += 1
    for x in consts:
        a.I(x)
    fine(a, "exp")
    for j in range(4):
        a.I("v_cvt_pk_bf16_f32 %s, %s, %s" % (vr(PX + j), vr(S + 2 * j), vr(S + 1 + 2 * j)))
    a.I("v_cvt_pk_bf16_f32 %s, %s, %s" % (vr(P0q), vr(S + 8), vr(S + 9)))
    fine(a, "P")
    tm.stamp(4)
    if dbg == "P":
        dump(a, w, PX, 10)
    O0, O1, OS = S, S + 4, S + 8
    P = vr(PX, 4)
    vp = add2(v[0], v[0], v[0] + 2) + add2(v[1], v[1], v[1] + 2)
    a.I(vp[0])
    a.I("v_mfma_f32_16x16x32_bf16 %s, %s, %s, 0" % (vr(OS, 4), P, vr(ones, 4)))
    a.I("s_waitcnt vmcnt(%d)" % (2 + (0 if "nopub" in exp else 1)))
    a.I(vp[1])
    a.I("v_mfma_f32_16x16x32_bf16 %s, %s, %s, 0" % (vr(O0, 4), P, vr(VT, 4)))
    a.I(vp[2])
    a.I("v_mfma_f32_16x16x32_bf16 %s, %s, %s, 0" % (vr(O1, 4), P, vr(VT + 4, 4)))
    a.I(vp[3])
    a.I("v_mfma_f32_16x16x32_bf16 %s, %s, %s, %s" % (vr(OS, 4), vr(P0q, 4), vr(ones, 4), vr(OS, 4)))
    a.I("v_cvt_pk_bf16_f32 %s, %s, %s" % (vr(PX + 4), vr(v[0]), vr(v[0] + 1)))
    a.I("v_cvt_pk_bf16_f32 %s, %s, %s" % (vr(PX + 6), vr(v[1]), vr(v[1] + 1)))
    a.I("v_lshrrev_b32 %s, 2, %s" % (vr(V_T), vr(V_L16)))
    a.I("v_mfma_f32_16x16x32_bf16 %s, %s, %s, %s" % (vr(O0, 4), vr(P0q, 4), vr(PX + 4, 4), vr(O0, 4)))
    a.I("v_mfma_f32_16x16x32_bf16 %s, %s, %s, %s" % (vr(O1, 4), vr(P0q, 4), vr(PX + 6, 4), vr(O1, 4)))
    fine(a, "PVm")
    if "nopub" not in exp:
        a.I("buffer_store_dword %s, %s, %s, s%d offen sc1" % (vr(PX + 4), vr(V_T), ws, S_VM))
        a.I("buffer_store_dword %s, %s, %s, s%d offen offset:256 sc1" % (vr(PX + 6), vr(V_T), ws, S_VM))
    a.I("v_rcp_f32 %s, %s" % (vr(rs), vr(OS + 2)))
    a.I("v_rcp_f32 %s, %s" % (vr(rs + 1), vr(OS + 3)))
    zl = []
    for tI in range(8):
        for r in range(0, 4, 2):
            zl.append("v_mov_b64 %s, 0" % vr(wacc(tI) + r, 2))
    a.I("v_pk_mul_f32 %s, %s, %s" % (vr(O0 + 2, 2), vr(O0 + 2, 2), vr(rs, 2)))
    a.I("v_pk_mul_f32 %s, %s, %s" % (vr(O1 + 2, 2), vr(O1 + 2, 2), vr(rs, 2)))
    a.I("v_cvt_pk_bf16_f32 %s, %s, %s" % (vr(S), vr(O0 + 2), vr(O0 + 3)))
    a.I("v_cvt_pk_bf16_f32 %s, %s, %s" % (vr(S + 1), vr(O1 + 2), vr(O1 + 3)))
    if dbg == "O":
        dump(a, w, S, 2)
    a.I("ds_write_b64 %s, %s offset:%d" % (vr(V_MW), vr(S, 2), O_OFF))
    fine(a, "owr")
    for x in zl[4:12]:
        a.I(x)
    a.I("s_waitcnt lgkmcnt(0)")
    a.I("s_barrier")
    fine(a, "B2")
    for xi in range(2):
        for hh in range(2):
            a.I("ds_read_b64_tr_b16 %s, %s offset:%d" % (vr(PX + 4 * xi + 2 * hh, 2), vr(V_MR), O_OFF + 2048 * xi + 1024 * hh))
    for x in zl[:4] + zl[12:]:
        a.I(x)
    a.I("s_waitcnt lgkmcnt(0)")
    fine(a, "OA")
    tm.stamp(5)
    def post_tile(t):
        ta = wacc(t)
        dq = wacc(4 * (t >> 2)) + (t & 3)
        L = add2(ta, ta, ta + 2) + ["v_cvt_pk_bf16_f32 %s, %s, %s" % (vr(dq), vr(ta), vr(ta + 1))]
        if (t & 3) == 3:
            d0 = wacc(4 * (t >> 2))
            L.append("v_bfi_b32 %s, 1, s%d, %s" % (vr(d0), S_TAG, vr(d0)))
            L.append("buffer_store_dwordx4 %s, %s, %s, s%d offen %s"
                     % (vr(d0, 4), vr(V_PS), ws, S_PW0 if t == 3 else S_PW1, st_flags))
        return L
    pend = []
    seq = []
    todo = []
    for n8 in range(8, 16):
        todo += [(n8, x) for x in stage(n8, slots[n8 % 8])]
    for n in range(16):
        tau, xi = order[n]
        slot = slots[n % 8]
        if n >= 8:
            last = max(i for i, o in enumerate(seq) if o == n)
            a.I("s_waitcnt lgkmcnt(%d)" % (len(seq) - last - 1))
        a.I(smf(wacc(tau), vr(PX + 4 * xi, 4), vr(slot, 8)))
        target = min(16, 2 * (n + 1), (3 * (n + 1) + 1) // 2)
        while len(seq) < target:
            o, x = todo.pop(0)
            a.I(x)
            seq.append(o)
        if n in (3, 7, 11, 15):
            fine(a, "wo%d" % n)
        if n >= 3 and n % 2 == 1:
            pend += post_tile((n - 3) // 2)
        for _ in range(1 if n < 8 else 2):
            if pend:
                a.I(pend.pop(0))
    for x in pend:
        a.I(x)
    ta = wacc(7)
    a.I("v_pk_add_f32 %s, %s, %s" % (vr(ta, 2), vr(ta, 2), vr(ta + 2, 2)))
    for x in post_tile(7)[2:]:
        a.I(x)
    fine(a, "woend")
    hop(a, 0)
    tm.stamp(6)
    if "ack" in exp:
        a.I("s_waitcnt vmcnt(0)")
        tm.stamp(15)

    SEL = S
    D2 = S + 4
    sel_addr(a, V_T, SEL)
    a.I("ds_read_b128 %s, %s" % (vr(SEL, 4), vr(V_T)))
    for i in range(0, 24, 2):
        a.I("v_mov_b64 %s, 0" % vr(ACC + i, 2))
    a.I("s_add_u32 s%d, s%d, 262144" % (S_KT, S_KT))
    a.I("s_add_u32 s%d, s%d, 262144" % (S_VT, S_VT))
    a.I("s_add_u32 s%d, s%d, 65536" % (S_VM, S_VM))
    a.I("s_add_u32 s%d, s%d, 65536" % (S_KM, S_KM))
    a.I("s_add_u32 s%d, s%d, 1" % (S_STEP, S_STEP))
    a.I("s_xor_b32 s%d, s%d, 8192" % (S_KB, S_KB))
    a.I("v_xor_b32 %s, 8192, %s" % (vr(V_K), vr(V_K)))
    if rdelay:
        a.nops(rdelay)
    hop(a, 1)

    def issue_in(R):
        for m in range(2):
            a.I("buffer_load_dwordx4 %s, %s, %s, s%d offen offset:%d sc1"
                % (vr(R + 4 * m, 4), vr(V_L16), ws, S_PR, m * 1024))
    oks = [a.newlabel("rok%d" % i) for i in range(rsets)]
    Lj = a.newlabel("rjoin")
    a.I("s_waitcnt lgkmcnt(0)")
    tm.stamp(14)
    poll2(issue_in, oks, rgap, 10, check_tag, solo=bool(solo & 2))
    for si in range(rsets - 1, -1, -1):
        R = sets[si]
        a.label(oks[si], clear=True)
        tm.stamp(13)
        hop(a, 2)
        a.I("v_mfma_f32_16x16x32_bf16 %s, %s, %s, 0" % (vr(D2, 4), vr(R, 4), vr(SEL, 4)))
        a.I("v_mfma_f32_16x16x32_bf16 %s, %s, %s, %s" % (vr(D2, 4), vr(R + 4, 4), vr(SEL, 4), vr(D2, 4)))
        if si != 0:
            a.I("s_branch %s" % Lj)
    a.label(Lj)
    a.I("s_add_u32 s%d, s%d, 8192" % (S_MEM, S_MEM))
    a.I("s_and_b32 s%d, s%d, 0x%x" % (S_MEM, S_MEM, WS_MEM | 0x7fff))
    a.I("s_add_u32 s%d, s%d, 4096" % (S_MEMHI, S_MEM))
    a.I("s_add_u32 s%d, s%d, 2 * 8192" % (S_T0 + 3, S_MEM))
    a.I("s_and_b32 s%d, s%d, 0x%x" % (S_T0 + 3, S_T0 + 3, WS_MEM | 0x7fff))
    a.I("v_mov_b32 %s, -1" % vr(S + 8))
    a.nops(3)
    a.I("v_permlane32_swap_b32 %s, %s" % (vr(D2), vr(D2 + 2)))
    a.I("v_permlane32_swap_b32 %s, %s" % (vr(D2 + 1), vr(D2 + 3)))
    a.I("v_add_f32 %s, %s, %s" % (vr(D2), vr(D2), vr(D2 + 2)))
    a.I("v_add_f32 %s, %s, %s" % (vr(D2 + 1), vr(D2 + 1), vr(D2 + 3)))
    a.I("v_permlane16_swap_b32 %s, %s" % (vr(D2), vr(D2 + 1)))
    a.I("v_add_f32 %s, %s, %s" % (vr(D2), vr(D2), vr(D2 + 1)))
    a.I("v_mov_b32 %s, %s" % (vr(D2 + 1), vr(D2)))
    a.I("v_permlane16_swap_b32 %s, %s" % (vr(D2), vr(D2 + 1)))
    a.I("v_cvt_pk_bf16_f32 %s, %s, %s" % (vr(D2), vr(D2), vr(D2 + 1)))
    a.I("v_min_u32 %s, 0xfffffffe, %s" % (vr(D2), vr(D2)))
    a.I("buffer_store_dword %s, %s, %s, s%d offen %s" % (vr(D2), vr(V_MS), ws, S_MEM, st_flags))
    hop(a, 3)
    tm.stamp(7)
    if "latepois" not in exp:
        for x in pois:
            a.I(x)
    for s_ in (S_PW0, S_PW1, S_PR):
        a.I("s_xor_b32 s%d, s%d, 262144" % (s_, s_))
    a.I("s_bfe_u32 s%d, s%d, 0x10001" % (S_TAG, S_STEP))
    if "rtt" not in exp:
        tm.stamp(8)
    if stop_after is not None:
        a.I("s_cmp_eq_u32 s%d, %d" % (S_STEP, stop_after))
        a.I("s_cbranch_scc1 %s" % L_done)
    a.I("s_cmp_lg_u32 s%d, 63" % S_STEP)
    a.I("s_cbranch_scc1 %s" % L_step)
    a.I("s_mov_b32 s%d, %d" % (S_RETRY, RETRY_MAX))
    Lp = a.newlabel("lpoll")
    Lr = a.newlabel("lretry")
    a.label(Lp)
    for kap in range(8):
        a.I(mem_load(kap))
    a.I("s_waitcnt vmcnt(0)")
    for x in check_insts([MEM + i for i in range(32)], V_T):
        a.I(x)
    a.I("s_cbranch_vccnz %s" % Lr)
    ool.append((Lr, Lp))
    for kap in range(8):
        A = vr(MEM + 4 * kap, 4)
        a.I(smf(k[0], A, qkw(1, 0, kap)))
        a.I(smf(k[1], A, qkw(1, 1, kap)))
        a.I(smf(v[0], A, vr(V_VW + kap * 8, 8)))
        a.I(smf(v[1], A, vr(V_VW + 64 + kap * 8, 8)))
    for tau in range(2):
        for x in qk_post(tau):
            a.I(x)
    for x in add2(v[0], v[0], v[0] + 2) + add2(v[1], v[1], v[1] + 2):
        a.I(x)
    a.I("v_cvt_pk_bf16_f32 %s, %s, %s" % (vr(PX + 4), vr(v[0]), vr(v[0] + 1)))
    a.I("v_cvt_pk_bf16_f32 %s, %s, %s" % (vr(PX + 6), vr(v[1]), vr(v[1] + 1)))
    a.I("v_lshrrev_b32 %s, 2, %s" % (vr(V_T), vr(V_L16)))
    a.I("buffer_store_dword %s, %s, %s, s%d offen sc1" % (vr(PX + 4), vr(V_T), ws, S_VM))
    a.I("buffer_store_dword %s, %s, %s, s%d offen offset:256 sc1" % (vr(PX + 6), vr(V_T), ws, S_VM))
    a.I("s_waitcnt lgkmcnt(0)")
    a.I("s_barrier")
    if fused and w == 3:
        a.I("v_mov_b32 %s, 63" % vr(V_S))
        a.I("v_mov_b32 %s, s%d" % (vr(V_S + 1), S_NONCE))
        a.I("buffer_store_dwordx2 %s, %s, %s, s%d offen sc1" % (vr(V_S, 2), vr(V_Z), ws, S_CP))
    for hh in range(2):
        a.I("ds_read_b64_tr_b16 %s, %s offset:%d" % (vr(KT + 2 * hh, 2), vr(V_MR), 1024 * w + 512 * hh))
    a.I("s_waitcnt lgkmcnt(0)")
    a.I("buffer_store_dwordx4 %s, %s, %s, s%d offen offset:%d sc1" % (vr(KT, 4), vr(V_KM), ws, S_KM, w * 512))
    if fused:
        a.I("s_waitcnt vmcnt(0)")
        a.I("s_barrier")
        if w == 3:
            a.I("v_mov_b32 %s, 64" % vr(V_S))
            a.I("v_mov_b32 %s, s%d" % (vr(V_S + 1), S_NONCE))
            a.I("buffer_store_dwordx2 %s, %s, %s, s%d offen sc1" % (vr(V_S, 2), vr(V_Z), ws, S_CP))
    a.label(L_done, clear=True)
    a.I("s_waitcnt vmcnt(0) lgkmcnt(0)")
    if FINE["on"] or FINE.get("hop"):
        Lq = a.newlabel("fq")
        for i in range(16):
            a.I("v_mov_b32 %s, s%d" % (vr(V_MEM + i), 64 + 2 * i))
        a.I("v_mov_b32 %s, 0" % vr(V_MEM + 16))
        a.I("s_lshl_b32 s%d, s%d, 8" % (S_T0, S_RANK))
        a.I("s_add_u32 s%d, s%d, 0x%x" % (S_T0, S_T0, WS_FLAGS + 0x9000 + w * 64))
        for i in range(16):
            a.I("buffer_store_dword %s, %s, %s, s%d offen offset:%d" % (vr(V_MEM + i), vr(V_MEM + 16), ws, S_T0, i * 4))
        a.I("s_waitcnt vmcnt(0)")
        a.label(Lq)
    if looptime and w == 0:
        a.I("s_memrealtime s[94:95]")
        a.I("s_waitcnt lgkmcnt(0)")
        a.I("s_sub_u32 s94, s94, s92")
        a.I("v_mov_b32 %s, s94" % vr(V_MEM))
        a.I("v_mov_b32 %s, s92" % vr(V_MEM + 1))
        a.I("s_lshl_b32 s%d, s%d, 3" % (S_T0, S_RANK))
        a.I("v_mov_b32 %s, s%d" % (vr(V_MEM + 2), S_T0))
        a.I("s_mov_b32 s%d, 0x%x" % (S_T0, WS_FLAGS + 0xc000))
        a.I("buffer_store_dwordx2 %s, %s, %s, s%d offen" % (vr(V_MEM, 2), vr(V_MEM + 2), ws, S_T0))
        a.I("s_waitcnt vmcnt(0)")
    if timing:
        Ls = a.newlabel("notm")
        if trace is None:
            a.I("s_cmp_lg_u32 s%d, 0" % S_RANK)
            a.I("s_cbranch_scc1 %s" % Ls)
        for i in range(16):
            a.I("v_mov_b32 %s, s%d" % (vr(V_MEM + i), S_TM + 4 + i))
        a.I("v_mov_b32 %s, 0" % vr(V_MEM + 16))
        a.I("s_lshl_b32 s%d, s%d, 8" % (S_T0, S_RANK))
        a.I("s_add_u32 s%d, s%d, 0x%x" % (S_T0, S_T0, WS_FLAGS + 0x8000 + w * 64))
        for i in range(16):
            a.I("buffer_store_dword %s, %s, %s, s%d offen offset:%d" % (vr(V_MEM + i), vr(V_MEM + 16), ws, S_T0, i * 4))
        a.I("s_waitcnt vmcnt(0)")
        a.label(Ls)
    Lend = a.newlabel("end")
    a.I("s_branch %s" % Lend)
    for (lab, tgt) in ool:
        retry_block(a, lab, tgt, abort)
    for (lh, lb) in hzl:
        a.label(lh, clear=True)
        horizon_refresh(a, S_T0 + 5, abort)
        a.I("s_branch %s" % lb)
    for (lr, kap, lb) in cool:
        a.label(lr, clear=True)
        lq = a.newlabel("cq")
        a.I("s_mov_b32 s%d, %d" % (S_RETRY, RETRY_MAX))
        a.label(lq)
        a.I(mem_load(kap))
        a.I("s_waitcnt vmcnt(0)")
        for x in chunk_check(kap):
            a.I(x)
        a.I("s_cbranch_vccz %s" % lb)
        a.I("s_sub_u32 s%d, s%d, 1" % (S_RETRY, S_RETRY))
        a.I("s_cmp_lg_u32 s%d, 0" % S_RETRY)
        a.I("s_cbranch_scc1 %s" % lq)
        a.I("s_branch %s" % abort)
    a.label(Lend, clear=True)


def setup_scalar(a, w, fused=False):
    r = S_RANK
    a.I("s_mov_b32 s%d, 0" % S_STEP)
    a.I("s_mov_b32 s%d, 0" % S_TAG)
    a.I("s_mov_b32 s%d, 0x%x" % (S_MEM, WS_MEM))
    a.I("s_mov_b32 s%d, 0x%x" % (S_MEMHI, WS_MEM + 4096))
    a.I("s_mov_b32 s%d, 0x%x" % (S_PW0, WS_PART + w * 65536))
    a.I("s_add_u32 s%d, s%d, 32768" % (S_PW1, S_PW0))
    a.I("s_lshl_b32 s%d, s%d, 13" % (S_PR, r))
    a.I("s_add_u32 s%d, s%d, 0x%x" % (S_PR, S_PR, WS_PART + w * 2048))
    a.I("s_lshl_b32 s%d, s%d, 13" % (S_KT, r))
    a.I("s_add_u32 s%d, s%d, 0x%x" % (S_VT, S_KT, WS_VT + 2 * w * 1024))
    a.I("s_add_u32 s%d, s%d, 0x%x" % (S_KT, S_KT, WS_KT + 2 * w * 1024))
    a.I("s_lshl_b32 s%d, s%d, 11" % (S_KM, r))
    a.I("s_add_u32 s%d, s%d, 0x%x" % (S_VM, S_KM, WS_VM + w * 512))
    a.I("s_add_u32 s%d, s%d, 0x%x" % (S_KM, S_KM, WS_KM))
    import struct
    c = struct.unpack("<I", struct.pack("<f", 128 ** -0.5 * 1.4426950408889634))[0]
    a.I("s_mov_b32 s%d, 0x%x" % (S_C, c))
    a.I("s_mov_b32 s%d, 0x%x" % (S_NC, c | 0x80000000))
    a.I("s_mov_b32 s%d, 0x3f803f80" % S_ONE)
    a.I("s_mov_b32 s%d, 0x3f803f80" % (S_ONE + 1))
    a.I("v_mov_b64 %s, 0" % vr(V_PX + 8, 2))
    if fused:
        a.I("s_lshl_b32 s%d, s%d, 6" % (S_PG, r))
        a.I("s_add_u32 s%d, s%d, 0x%x" % (S_PG, S_PG, FL_PROG))
        a.I("s_add_u32 s%d, s%d, 48" % (S_CP, S_PG))


def k0_dma(a, w):
    a.I("s_mov_b32 m0, %d" % (L_K + 2 * w * 1024))
    for p in range(2):
        a.I("buffer_load_dwordx4 %s, s[%d:%d], s%d offen offset:%d sc1 lds" % (vr(V_L16), S_WS, S_WS + 3, S_KT, p * 1024))
    a.I("s_add_u32 s%d, s%d, 262144" % (S_KT, S_KT))
    a.I("s_mov_b32 s%d, %d" % (S_KB, L_K + 8192 + 2 * w * 1024))


def setup_regs(a, w):
    for i in range(0, 24, 2):
        a.I("v_mov_b64 %s, 0" % vr(V_ACC + i, 2))
    a.I("v_mov_b64 %s, -1" % vr(V_S + 8, 2))
    a.I("v_mov_b64 %s, -1" % vr(V_S + 10, 2))
    a.I("s_mov_b32 s%d, 0x%x" % (S_T0 + 3, WS_MEM + 3 * 8192))
    a.I("v_mov_b64 %s, 0" % vr(V_PX + 8, 2))
    a.I("v_mov_b64 %s, 0" % vr(V_PX + 4, 2))
    a.I("v_mov_b64 %s, 0" % vr(V_PX + 6, 2))
    a.I("v_add_u32 %s, %d, %s" % (vr(V_MB), L_MB, vr(V_L16)))


def loop_setup(a, w, fused=False, abort="L_abort"):
    setup_scalar(a, w, fused)
    if fused:
        a.I("s_mov_b32 s%d, 0" % (S_T0 + 5))
        horizon_refresh(a, S_T0 + 5, abort)
    k0_dma(a, w)
    setup_regs(a, w)
```

```python
import sys
from common import *
import pre, front, tail, chain
from chain import *
from tail import poll_lanes

D_TK0, D_NONCE, D_CHAIN = 128, 132, 136
L_BCAST = 163840 - 64

S_MODE = 32
FORCE_SLOW = False
D_GTK = 140
S_XCC, S_TK, S_FI = 33, 21, 35


STAMPS = False
WS_STAMP = 0x00080000


DBGT = False
OPT = {}


def dbgmax(a, off, vt, neg=False):
    if not DBGT:
        return
    L = a.newlabel("dm")
    a.I("s_cmp_lg_u32 s%d, 0" % S_WAVE)
    a.I("s_cbranch_scc1 %s" % L)
    a.I("s_memrealtime s[94:95]")
    a.I("s_waitcnt lgkmcnt(0)")
    if neg:
        a.I("s_not_b32 s94, s94")
    a.I("v_mov_b32 v%d, s94" % vt)
    a.I("v_mov_b32 v%d, %d" % (vt + 1, off))
    a.I("s_mov_b64 exec, 1")
    a.I("buffer_atomic_umax v%d, v%d, s[%d:%d], 0 offen" % (vt, vt + 1, S_DBG, S_DBG + 3))
    a.I("s_mov_b64 exec, -1")
    a.label(L)


def stamp(a, slot, vt=250):
    if DBGT:
        m = {1: (32, True), 3: None, 5: 40, 6: 44, 8: 48, 4: 52}
        return
    if not STAMPS:
        return
    L = a.newlabel("st")
    a.I("s_cmp_lg_u32 s%d, 0" % S_WAVE)
    a.I("s_cbranch_scc1 %s" % L)
    a.I("s_memrealtime s[94:95]")
    a.I("s_lshl_b32 s93, s3, 6")
    a.I("s_add_u32 s93, s93, 0x%x" % (WS_STAMP + slot * 4))
    a.I("s_waitcnt lgkmcnt(0)")
    a.I("v_mov_b32 v%d, s94" % vt)
    a.I("v_mov_b32 v%d, 0" % (vt + 1))
    a.I("s_mov_b64 exec, 1")
    a.I("buffer_store_dword v%d, v%d, s[%d:%d], s93 offen sc1" % (vt, vt + 1, S_WS, S_WS + 3))
    a.I("s_mov_b64 exec, -1")
    a.label(L)


def entry(a):
    a.I("s_cmp_ge_u32 s2, 256")
    a.I("s_cbranch_scc1 L_exit")
    a.I("s_load_dwordx4 s[%d:%d], s[0:1], %d" % (S_PTR + 12, S_PTR + 15, K_DBG))
    a.I("s_memrealtime s[96:97]")
    if STAMPS:
        a.I("s_mov_b32 s3, s2")
    a.I("v_and_b32 %s, 63, v0" % vr(V_T))
    a.I("v_lshrrev_b32 v1, 6, v0")
    a.I("s_getreg_b32 s%d, hwreg(HW_REG_XCC_ID, 0, 4)" % S_XCC)
    a.I("v_readfirstlane_b32 s%d, v1" % S_WAVE)
    a.I("s_waitcnt lgkmcnt(0)")
    srd(a, S_DBG, S_PTR + 12, 256)
    srd(a, S_WS, S_PTR + 14, WS_SIZE)
    a.I("s_mov_b32 s%d, 0x00020000" % (S_W + 3))
    a.I("s_mov_b32 s%d, 0" % S_MODE)
    a.I("s_cmp_lg_u32 s%d, 0" % S_WAVE)
    a.I("s_cbranch_scc1 L_el_wait")
    a.I("s_and_b32 s%d, s%d, 7" % (S_T0, S_XCC))
    a.I("s_lshl_b32 s%d, s%d, 2" % (S_T0, S_T0))
    a.I("s_cmp_eq_u32 s%d, 0" % S_T0)
    a.I("s_cselect_b32 s%d, %d, s%d" % (S_T0, D_TK0, S_T0))
    a.I("v_mov_b32 v2, 1")
    a.I("v_mov_b32 v3, s%d" % S_T0)
    a.I("s_mov_b64 exec, 1")
    a.I("buffer_atomic_add v2, v3, s[%d:%d], 0 offen sc0" % (S_DBG, S_DBG + 3))
    a.I("s_waitcnt vmcnt(0)")
    a.I("v_readfirstlane_b32 s%d, v2" % (S_T0 + 1))
    a.I("s_cmp_lg_u32 s%d, 0" % (S_T0 + 1))
    a.I("s_cbranch_scc1 L_el_nononce")
    a.I("s_or_b32 s%d, s96, 1" % (S_T0 + 1))
    a.I("v_mov_b32 v4, s%d" % (S_T0 + 1))
    a.I("v_mov_b32 v5, 0")
    a.I("v_mov_b32 v6, %d" % D_NONCE)
    a.I("buffer_atomic_cmpswap v[4:5], v6, s[%d:%d], 0 offen" % (S_DBG, S_DBG + 3))
    a.label("L_el_nononce")
    a.I("v_mov_b32 v3, %d" % L_BCAST)
    a.I("ds_write_b32 v3, v2")
    a.I("s_mov_b64 exec, -1")
    a.label("L_el_wait")
    a.I("s_waitcnt lgkmcnt(0)")
    a.I("s_barrier")
    a.I("v_mov_b32 v3, %d" % L_BCAST)
    a.I("ds_read_b32 v2, v3")
    a.I("s_waitcnt lgkmcnt(0)")
    a.I("v_readfirstlane_b32 s%d, v2" % S_TK)
    a.I("s_barrier")
    if STAMPS:
        L = a.newlabel("st")
        a.I("s_cmp_lg_u32 s%d, 0" % S_WAVE)
        a.I("s_cbranch_scc1 %s" % L)
        a.I("s_lshl_b32 s93, s3, 6")
        a.I("s_add_u32 s93, s93, 0x%x" % WS_STAMP)
        a.I("s_lshl_b32 s94, s%d, 8" % S_XCC)
        a.I("s_add_u32 s94, s94, s%d" % S_TK)
        a.I("v_mov_b32 v10, s96")
        a.I("v_mov_b32 v11, 0")
        a.I("v_mov_b32 v12, s94")
        a.I("s_mov_b64 exec, 1")
        a.I("buffer_store_dword v10, v11, s[%d:%d], s93 offen sc1" % (S_WS, S_WS + 3))
        a.I("buffer_store_dword v12, v11, s[%d:%d], s93 offen offset:60 sc1" % (S_WS, S_WS + 3))
        a.I("s_mov_b64 exec, -1")
        a.label(L)
    stamp(a, 1, 10)
    dbgmax(a, 36, 10, neg=True)


def verify_issue(a, vt):
    a.I("v_mov_b32 %s, 0" % vr(vt + 12))
    a.I("buffer_load_dwordx4 %s, %s, s[%d:%d], 0 offen sc1" % (vr(vt, 4), vr(vt + 12), S_DBG, S_DBG + 3))
    a.I("buffer_load_dwordx4 %s, %s, s[%d:%d], 0 offen offset:16 sc1" % (vr(vt + 4, 4), vr(vt + 12), S_DBG, S_DBG + 3))
    a.I("buffer_load_dwordx2 %s, %s, s[%d:%d], 0 offen offset:%d sc1" % (vr(vt + 8, 2), vr(vt + 12), S_DBG, S_DBG + 3, D_TK0))


def verify(a, vt, st, slow, pre=False):
    L = a.newlabel("vf")
    Le = a.newlabel("vfe")
    Lskip = a.newlabel("vfx")
    a.I("s_cmp_lg_u32 s%d, 0" % S_MODE)
    a.I("s_cbranch_scc1 %s" % Lskip)
    a.I("s_mov_b32 s%d, 200000" % st)
    if pre:
        a.I("s_branch %s" % Le)
    a.label(L)
    verify_issue(a, vt)
    a.I("s_sub_u32 s%d, s%d, 1" % (st, st))
    a.I("s_cmp_eq_u32 s%d, 0" % st)
    a.I("s_cbranch_scc1 L_abort")
    a.I("s_waitcnt vmcnt(0)")
    a.label(Le)
    a.I("v_add3_u32 %s, %s, %s, %s" % (vr(vt + 10), vr(vt + 1), vr(vt + 2), vr(vt + 3)))
    a.I("v_add3_u32 %s, %s, %s, %s" % (vr(vt + 10), vr(vt + 10), vr(vt + 4), vr(vt + 5)))
    a.I("v_add3_u32 %s, %s, %s, %s" % (vr(vt + 10), vr(vt + 10), vr(vt + 6), vr(vt + 7)))
    a.I("v_add_u32 %s, %s, %s" % (vr(vt + 10), vr(vt + 10), vr(vt + 8)))
    a.I("v_max3_u32 %s, %s, %s, %s" % (vr(vt + 11), vr(vt + 1), vr(vt + 2), vr(vt + 3)))
    a.I("v_max3_u32 %s, %s, %s, %s" % (vr(vt + 11), vr(vt + 11), vr(vt + 4), vr(vt + 5)))
    a.I("v_max3_u32 %s, %s, %s, %s" % (vr(vt + 11), vr(vt + 11), vr(vt + 6), vr(vt + 7)))
    a.I("v_max_u32 %s, %s, %s" % (vr(vt + 11), vr(vt + 11), vr(vt + 8)))
    a.I("v_cmp_lt_u32 vcc, 0x100, %s" % vr(vt + 10))
    a.I("s_cbranch_vccnz L_abort")
    a.I("v_cmp_ne_u32 vcc, 0x100, %s" % vr(vt + 10))
    a.I("s_cbranch_vccnz %s" % L)
    a.I("v_cmp_eq_u32 vcc, 0, %s" % vr(vt + 9))
    a.I("s_cbranch_vccnz %s" % L)
    a.I("v_readfirstlane_b32 s%d, %s" % (S_NONCE, vr(vt + 9)))
    a.I("v_readfirstlane_b32 s%d, %s" % (st, vr(vt + 11)))
    a.I("s_cmp_lg_u32 s%d, %d" % (st, 33 if FORCE_SLOW else 32))
    a.I("s_cbranch_scc1 %s" % slow)
    a.label(Lskip)


def set_flag(a, S_WSq, s_off, s_val, vt, s_wave):
    L = a.newlabel("sf")
    a.I("s_cmp_lg_u32 s%d, 0" % s_wave)
    a.I("s_cbranch_scc1 %s" % L)
    a.I("v_mov_b32 %s, %s" % (vr(vt), s_val))
    a.I("v_mov_b32 %s, s%d" % (vr(vt + 1), S_NONCE))
    a.I("v_mov_b32 %s, 0" % vr(vt + 2))
    a.I("s_mov_b64 exec, 1")
    a.I("buffer_store_dwordx2 %s, %s, s[%d:%d], s%d offen sc1" % (vr(vt, 2), vr(vt + 2), S_WSq, S_WSq + 3, s_off))
    a.I("s_mov_b64 exec, -1")
    a.label(L)


def chain_part(a, timing, kw):
    a.label("L_chain", clear=True)
    a.I("s_load_dwordx8 s[%d:%d], s[0:1], 8" % (S_PTR, S_PTR + 7))
    a.I("s_load_dwordx2 s[%d:%d], s[0:1], 40" % (S_PTR + 8, S_PTR + 9))
    a.I("s_waitcnt lgkmcnt(0)")
    for w in range(1, 4):
        a.I("s_cmp_eq_u32 s%d, %d" % (S_WAVE, w))
        a.I("s_cbranch_scc1 L_wave%d" % w)
    for w in range(4):
        a.label("L_wave%d" % w, clear=True)
        if w == 0: stamp(a, 2, V_MEM)
        VV, VI, VH = 224, 200, 224

        def h1(a):
            verify_issue(a, VV)
            init_issue(a, w, VI)

        def h5(a):
            verify(a, VV, S_RETRY, "L_slow", pre=True)
            init_stores(a, w, VI, "sc1")

        def h9(a):
            a.I("s_barrier")
            if w == 2:
                a.I("s_mov_b64 exec, 1")
                a.I("v_mov_b32 v%d, 1" % VI)
                a.I("v_mov_b32 v%d, %d" % (VI + 1, D_CHAIN))
                a.I("buffer_atomic_add v%d, v%d, s[%d:%d], 0 offen" % (VI, VI + 1, S_DBG, S_DBG + 3))
                a.I("s_mov_b64 exec, -1")
            setup_scalar(a, w, True)

        def h11(a):
            horizon_issue(a, VH)

        def h12(a):
            a.I("s_mov_b32 s%d, 0" % (S_T0 + 5))
            horizon_refresh(a, S_T0 + 5, "L_abort", vb=VH, pre=True)
            k0_dma(a, w)
            a.I("v_mov_b32 v%d, %d" % (VH + 8, D_CHAIN))
            a.I("buffer_load_dword v%d, v%d, s[%d:%d], 0 offen sc1" % (VH + 9, VH + 8, S_DBG, S_DBG + 3))
        load_weights(a, w, OPT.get('wflags', ''), hooks={1: h1, 5: h5, 9: h9, 10: h11, 12: h12})
        if w == 0: stamp(a, 3, V_MEM)
        if w == 0: dbgmax(a, 52, V_MEM)
        setup_regs(a, w)
        if w == 0: stamp(a, 4, V_MEM)
        lp = a.newlabel("arr")
        lq = a.newlabel("arq")
        a.I("s_mov_b32 s%d, %d" % (S_RETRY, RETRY_MAX))
        a.I("s_branch %s" % lq)
        a.label(lp)
        a.I("buffer_load_dword v%d, v%d, s[%d:%d], 0 offen sc1" % (VH + 9, VH + 8, S_DBG, S_DBG + 3))
        a.I("s_sub_u32 s%d, s%d, 1" % (S_RETRY, S_RETRY))
        a.I("s_cmp_eq_u32 s%d, 0" % S_RETRY)
        a.I("s_cbranch_scc1 L_abort")
        a.I("s_waitcnt vmcnt(0)")
        a.label(lq)
        a.I("v_cmp_ne_u32 vcc, 32, v%d" % (VH + 9))
        a.I("s_cbranch_vccnz %s" % lp)
        a.I("s_waitcnt vmcnt(0)")
        a.I("s_barrier")
        if w == 0: stamp(a, 5, V_MEM)
        if w == 0: dbgmax(a, 40, V_MEM)
        a.I("s_cmp_lg_u32 s%d, 0" % S_MODE)
        a.I("s_cbranch_scc1 L_cslow%d" % w)
        chain_loop(a, w, timing=timing, exp="latepois," + OPT.get("exp", ""), fused=True, tag="f", **kw)
        if w == 0: stamp(a, 6, V_MEM)
        if w == 0: dbgmax(a, 44, V_MEM)
        a.I("s_endpgm")
    for w in range(4):
        a.label("L_cslow%d" % w, clear=True)
        if OPT.get("noslow"):
            a.I("s_endpgm")
            continue
        chain_loop(a, w, st_flags="sc1", timing=False, exp="latepois", fused=True, tag="s", looptime=False,
                   **{k: v for k, v in kw.items() if k != "looptime"})
        a.I("s_endpgm")


def worker_part(a):
    a.label("L_worker", clear=True)
    lane = 1
    sW = S_WAVE
    a.I("s_sub_u32 s%d, s%d, 1" % (S_FI, S_XCC))
    a.I("s_lshl_b32 s%d, s%d, 5" % (S_FI, S_FI))
    a.I("s_add_u32 s%d, s%d, s%d" % (S_FI, S_FI, S_TK))
    a.I("v_and_b32 v%d, 63, v0" % lane)
    a.I("s_load_dwordx2 s[22:23], s[0:1], %d" % K_X)
    a.I("s_load_dwordx4 s[24:27], s[0:1], %d" % K_C)
    a.I("s_load_dwordx4 s[28:31], s[0:1], %d" % K_WQ)
    a.I("s_load_dwordx2 s[36:37], s[0:1], %d" % K_WV)
    a.I("s_waitcnt lgkmcnt(0)")
    a.I("s_cmp_lt_u32 s%d, 192" % S_FI)
    a.I("s_cbranch_scc1 L_front")
    a.I("s_sub_u32 s38, s%d, 192" % S_FI)
    LV = 112
    srd(a, 4, 22, 2048 * 1024)
    a.I("s_lshl_b32 s39, s38, 5")
    R0 = pre.ln_stats(a, 4, 39, sW, lane, LV, 0)
    a.I("s_add_u32 s39, s39, 1024")
    R1 = pre.ln_stats(a, 4, 39, sW, lane, LV + 0, 1) if False else None
    pre.mod_role(a, S_WS, 12, 40, 38, sW, lane, 24, 26, 140000)
    verify(a, 16, 90, "L_slow")
    a.I("s_lshl_b32 s90, s38, 3")
    a.I("s_add_u32 s90, s90, 0x%x" % FL_MOD)
    set_flag(a, S_WS, 90, "1", 16, sW)
    stamp(a, 2, 16)
    pre.ln_stats2(a, *R0)
    Lx = a.newlabel("lnw")
    a.I("s_cmp_lg_u32 s%d, 0" % sW)
    a.I("s_cbranch_scc1 %s" % Lx)
    a.I("s_mov_b32 s90, 0x%x" % FL_MOD)
    a.I("v_lshlrev_b32 v16, 3, v%d" % lane)
    a.I("v_mov_b32 v17, 1")
    a.I("v_cmp_gt_u32 vcc, 16, v%d" % lane)
    a.I("v_cndmask_b32 v17, 0, v17, vcc")
    poll_lanes(a, S_WS, 90, 16, 17, 18, 91, "L_abort")
    a.label(Lx)
    a.I("s_barrier")
    pre.mod_to_lds(a, S_WS, sW, lane, 144000, 16)
    for it in range(2):
        if it == 1:
            R0 = pre.ln_stats(a, 4, 39, sW, lane, LV, 0)
            a.I("s_waitcnt vmcnt(0)")
            pre.ln_stats2(a, *R0)
        pre.ln_apply(a, S_WS, R0[0], R0[1], R0[2], 144000, 20)
        a.I("s_waitcnt vmcnt(0)")
        a.I("s_barrier")
        a.I("s_lshl_b32 s90, s38, 3")
        a.I("s_add_u32 s90, s90, 0x%x" % (FL_H + it * 256))
        set_flag(a, S_WS, 90, "1", 16, sW)
    stamp(a, 3, 16)
    a.I("s_cmp_ge_u32 s38, 16")
    a.I("s_cbranch_scc1 L_tail")
    a.I("s_add_u32 s38, s38, 32")
    pre.mod_role(a, S_WS, 12, 40, 38, sW, lane, 24, 26, 140000)
    a.I("s_lshl_b32 s90, s38, 3")
    a.I("s_add_u32 s90, s90, 0x%x" % FL_MOD)
    set_flag(a, S_WS, 90, "1", 16, sW)
    a.I("s_branch L_tail")
    a.label("L_front", clear=True)
    a.I("s_and_b32 s38, s%d, 1" % S_FI)
    a.I("s_lshr_b32 s39, s%d, 1" % S_FI)
    a.I("s_and_b32 s40, s39, 31")
    a.I("s_lshr_b32 s41, s39, 5")
    a.I("s_add_u32 s41, s41, 1")
    a.I("s_cmp_eq_u32 s41, 3")
    a.I("s_cselect_b32 s41, 0, s41")
    a.I("s_cmp_eq_u32 s41, 1")
    a.I("s_cselect_b32 s28, s30, s28")
    a.I("s_cselect_b32 s29, s31, s29")
    a.I("s_cmp_eq_u32 s41, 2")
    a.I("s_cselect_b32 s28, s36, s28")
    a.I("s_cselect_b32 s29, s37, s29")
    a.I("s_lshl_b32 s42, s40, 6")
    a.I("s_lshl_b32 s43, s41, 1")
    a.I("s_add_u32 s43, s43, s38")
    a.I("s_lshl_b32 s43, s43, 3")
    a.I("s_add_u32 s42, s42, s43")
    a.I("s_add_u32 s42, s42, 0x%x" % FL_PROG)

    def wait_h(a, nflags):
        Lh = a.newlabel("bh")
        a.I("s_cmp_lg_u32 s%d, 0" % sW)
        a.I("s_cbranch_scc1 %s" % Lh)
        a.I("s_mov_b32 s90, 0x%x" % FL_H)
        a.I("v_lshlrev_b32 v2, 3, v%d" % lane)
        a.I("v_mov_b32 v3, 1")
        if nflags < 64:
            a.I("v_cmp_gt_u32 vcc, %d, v%d" % (nflags, lane))
            a.I("v_cndmask_b32 v3, 0, v3, vcc")
        poll_lanes(a, S_WS, 90, 2, 3, 4, 91, "L_abort", sleep=1)
        a.label(Lh)

    def before_h(a):
        verify(a, 16, 90, "L_slow")
        stamp(a, 4, 8)
        wait_h(a, 32)
        stamp(a, 5, 8)

    def stores_done(a, s_it):
        set_flag(a, S_WS, 42, "s%d" % s_it, 2, sW)

    def mid(a, s_it):
        L = a.newlabel("mid")
        a.I("s_cmp_lg_u32 s%d, 13" % s_it)
        a.I("s_cbranch_scc1 %s" % L)
        wait_h(a, 64)
        a.I("s_barrier")
        a.label(L)
    def before_w(a):
        if OPT.get("latew"):
            verify(a, 16, 90, "L_slow")
            wait_h(a, 32)
            a.I("s_barrier")
        if OPT.get("pfwo"):
            srd(a, 4, 24, 0x400000) if False else None
    front.front_role(a, S_WS, 12, 41, 40, 38, sW, lane, 28, hooks={"before_w": before_w, "before_h": before_h, "stores_done": stores_done, "mid": mid})
    stamp(a, 6, 16)
    a.label("L_tail", clear=True)
    a.I("s_barrier")
    a.I("s_load_dwordx2 s[22:23], s[0:1], %d" % K_X)
    a.I("s_load_dwordx2 s[24:25], s[0:1], %d" % K_WO)
    a.I("s_load_dwordx4 s[28:31], s[0:1], %d" % K_W1)
    a.I("s_load_dwordx2 s[26:27], s[0:1], %d" % K_OUT)
    a.I("v_and_b32 %s, 63, v0" % vr(tail.V_LANE))
    a.I("s_mov_b32 s68, s%d" % S_TK)
    a.I("s_waitcnt lgkmcnt(0)")
    for w in range(1, 4):
        a.I("s_cmp_eq_u32 s%d, %d" % (sW, w))
        a.I("s_cbranch_scc1 L_tw%d" % w)
    hk = tail.fused_hooks(S_WS, 68, "L_abort")
    for w in range(4):
        a.label("L_tw%d" % w, clear=True)
        tail.tail_setup(a, w, S_WS, 12, 68, S_XCC, 24, 28, 30)
        if w == 0: stamp(a, 7, 150)
        a.I("s_sub_u32 s%d, s%d, 1" % (tail.S_SEG, S_XCC))
        a.I("s_mov_b32 s%d, 0" % tail.S_IT)
        a.I("s_cmp_lg_u32 s%d, 0" % S_MODE)
        a.I("s_cbranch_scc1 L_tslow%d" % w)
        tail.tail_loop(a, w, S_WS, 12, 4, 68, 22, 26, 7, abort="L_abort", hooks=hk, tag="f")
        if w == 0: stamp(a, 8, 150)
        if w == 0: dbgmax(a, 48, 150)
        a.I("s_endpgm")
    for w in range(4):
        a.label("L_tslow%d" % w, clear=True)
        if OPT.get("noslow"):
            a.I("s_endpgm")
            continue
        tail.tail_loop(a, w, S_WS, 12, 4, 68, 22, 26, 7, st="sc1", abort="L_abort", hooks=hk, tag="s")
        a.I("s_endpgm")


def build(timing=False, **kw):
    a = Asm()
    a.raw("; @launch grid=(256,1,1) block=(256,1,1) lds=163840")
    a.raw('.amdgcn_target "amdgcn-amd-amdhsa--gfx950"')
    a.raw(".text")
    a.raw(".globl %s" % NAME)
    a.raw(".p2align 8")
    a.raw(".type %s,@function" % NAME)
    a.label(NAME)
    entry(a)
    a.I("s_cmp_ge_u32 s%d, 32" % S_TK)
    a.I("s_cbranch_scc1 L_overflow")
    a.label("L_dispatch")
    a.I("s_cmp_lg_u32 s%d, 0" % S_XCC)
    a.I("s_cbranch_scc1 L_far_worker")
    a.I("s_branch L_chain")
    a.label("L_far_worker")
    a.I("s_branch L_hop_worker")
    a.label("L_overflow", clear=True)
    verify(a, 16, 90, "L_slow")
    a.I("s_branch L_abort")
    a.label("L_slow", clear=True)
    a.I("s_waitcnt vmcnt(0) lgkmcnt(0)")
    a.I("s_barrier")
    a.I("s_cmp_lg_u32 s%d, 0" % S_WAVE)
    a.I("s_cbranch_scc1 L_sl_wait")
    a.I("s_mov_b64 exec, 1")
    a.I("v_mov_b32 v2, 1")
    a.I("v_mov_b32 v3, %d" % D_GTK)
    a.I("buffer_atomic_add v2, v3, s[%d:%d], 0 offen sc0" % (S_DBG, S_DBG + 3))
    a.I("v_mov_b32 v3, %d" % L_BCAST)
    a.I("s_waitcnt vmcnt(0)")
    a.I("ds_write_b32 v3, v2")
    a.I("s_mov_b64 exec, -1")
    a.label("L_sl_wait")
    a.I("s_waitcnt lgkmcnt(0)")
    a.I("s_barrier")
    a.I("v_mov_b32 v3, %d" % L_BCAST)
    a.I("ds_read_b32 v2, v3")
    a.I("s_waitcnt lgkmcnt(0)")
    a.I("v_readfirstlane_b32 s%d, v2" % S_TK)
    a.I("s_barrier")
    a.I("s_lshr_b32 s%d, s%d, 5" % (S_XCC, S_TK))
    a.I("s_and_b32 s%d, s%d, 31" % (S_TK, S_TK))
    a.I("s_mov_b32 s%d, 1" % S_MODE)
    a.I("v_mbcnt_lo_u32_b32 v1, -1, 0")
    a.I("v_mbcnt_hi_u32_b32 v1, -1, v1")
    a.I("s_lshl_b32 s%d, s%d, 6" % (S_T0, S_WAVE))
    a.I("v_add_u32 v0, s%d, v1" % S_T0)
    a.I("v_and_b32 %s, 63, v0" % vr(V_T))
    a.I("s_branch L_dispatch")
    a.label("L_exit")
    a.I("s_endpgm")
    a.label("L_abort0", clear=True)
    chain_part(a, timing, kw)
    a.label("L_abort", clear=True)
    a.I("s_mov_b64 exec, 1")
    a.I("v_mov_b32 v2, 0x7777")
    a.I("v_mov_b32 v3, 252")
    a.I("buffer_store_dword v2, v3, s[%d:%d], 0 offen" % (S_DBG, S_DBG + 3))
    a.I("s_waitcnt vmcnt(0)")
    a.I("s_endpgm")
    a.label("L_hop_worker")
    a.I("s_branch L_worker")
    worker_part(a)
    txt = a.text() + kd(NAME)
    txt = "\n".join(l.strip() if l.startswith("    ") else l for l in txt.split("\n"))
    return txt, a


if __name__ == "__main__":
    kw = dict(gap=36, rgap=36, delay=24, rdelay=48)
    timing = False
    for arg in sys.argv[2:]:
        k, v = arg.split("=")
        if k == "timing":
            timing = bool(int(v))
        elif k == "force_slow":
            FORCE_SLOW = bool(int(v))
        elif k == "hop":
            chain.FINE["hop"] = True
        elif k == "fine":
            chain.FINE["on"] = True
            chain.FINE["skip"] = int(v)
        elif k == "exp":
            OPT[k] = v
        elif k in ("wflags", "latew", "pfwo", "rot", "touch", "noslow"):
            OPT[k] = v if k == "wflags" else int(v)
        elif k == "dbgt":
            DBGT = bool(int(v))
        elif k == "stamps":
            STAMPS = bool(int(v))
        else:
            kw[k] = int(v) if v.lstrip("-").isdigit() else v
    txt, a = build(timing=timing, **kw)
    open(sys.argv[1], "w").write(txt)
    print("instructions", a.n_inst, "bytes", len(txt), chain.FINE["names"])
```

```python
import sys
from common import *
import pre, front, tail, chain
from chain import *
from tail import poll_lanes

D_TK0, D_NONCE, D_CHAIN = 128, 132, 136
L_BCAST = 163840 - 64

S_MODE = 32
FORCE_SLOW = False
D_GTK = 140
S_XCC, S_TK, S_FI = 33, 21, 35


STAMPS = False
WS_STAMP = 0x00080000


DBGT = False
OPT = {}


def dbgmax(a, off, vt, neg=False):
    if not DBGT:
        return
    L = a.newlabel("dm")
    a.I("s_cmp_lg_u32 s%d, 0" % S_WAVE)
    a.I("s_cbranch_scc1 %s" % L)
    a.I("s_memrealtime s[94:95]")
    a.I("s_waitcnt lgkmcnt(0)")
    if neg:
        a.I("s_not_b32 s94, s94")
    a.I("v_mov_b32 v%d, s94" % vt)
    a.I("v_mov_b32 v%d, %d" % (vt + 1, off))
    a.I("s_mov_b64 exec, 1")
    a.I("buffer_atomic_umax v%d, v%d, s[%d:%d], 0 offen" % (vt, vt + 1, S_DBG, S_DBG + 3))
    a.I("s_mov_b64 exec, -1")
    a.label(L)


def stamp(a, slot, vt=250):
    if DBGT:
        m = {1: (32, True), 3: None, 5: 40, 6: 44, 8: 48, 4: 52}
        return
    if not STAMPS:
        return
    L = a.newlabel("st")
    a.I("s_cmp_lg_u32 s%d, 0" % S_WAVE)
    a.I("s_cbranch_scc1 %s" % L)
    a.I("s_memrealtime s[94:95]")
    a.I("s_lshl_b32 s93, s3, 6")
    a.I("s_add_u32 s93, s93, 0x%x" % (WS_STAMP + slot * 4))
    a.I("s_waitcnt lgkmcnt(0)")
    a.I("v_mov_b32 v%d, s94" % vt)
    a.I("v_mov_b32 v%d, 0" % (vt + 1))
    a.I("s_mov_b64 exec, 1")
    a.I("buffer_store_dword v%d, v%d, s[%d:%d], s93 offen sc1" % (vt, vt + 1, S_WS, S_WS + 3))
    a.I("s_mov_b64 exec, -1")
    a.label(L)


def entry(a):
    a.I("s_cmp_ge_u32 s2, 256")
    a.I("s_cbranch_scc1 L_exit")
    a.I("s_load_dwordx4 s[%d:%d], s[0:1], %d" % (S_PTR + 12, S_PTR + 15, K_DBG))
    a.I("s_load_dwordx8 s[%d:%d], s[0:1], %d" % (S_PTR, S_PTR + 7, K_WQ))
    a.I("s_memrealtime s[96:97]")
    if STAMPS:
        a.I("s_mov_b32 s3, s2")
    a.I("v_and_b32 %s, 63, v0" % vr(V_T))
    a.I("v_lshrrev_b32 v1, 6, v0")
    a.I("s_getreg_b32 s%d, hwreg(HW_REG_XCC_ID, 0, 4)" % S_XCC)
    a.I("v_readfirstlane_b32 s%d, v1" % S_WAVE)
    a.I("s_waitcnt lgkmcnt(0)")
    srd(a, S_DBG, S_PTR + 12, 256)
    srd(a, S_WS, S_PTR + 14, WS_SIZE)
    a.I("s_mov_b32 s%d, 0x00020000" % (S_W + 3))
    a.I("s_mov_b32 s%d, 0" % S_MODE)
    PF = OPT.get("pf", 1)

    def prefetch():
        L = a.newlabel("nopf")
        a.I("s_cmp_eq_u32 s%d, 0" % S_XCC)
        a.I("s_cbranch_scc1 %s" % L)
        for i in range(16):
            if i % 4 == 0:
                a.I("s_add_u32 s%d, s%d, %d" % (S_T0 + 3, S_T0 + 2, i * 1024))
            a.I("buffer_load_dwordx4 %s, v7, s[%d:%d], s%d offen offset:%d" % (vr(176 + 4 * i, 4), S_W, S_W + 3, S_T0 + 3, (i % 4) * 1024))
        a.label(L)
    if PF:
        a.I("s_mov_b32 s%d, s%d" % (S_W, S_PTR))
        a.I("s_mov_b32 s%d, s%d" % (S_W + 1, S_PTR + 1))
        for w in range(1, 4):
            a.I("s_cmp_eq_u32 s%d, %d" % (S_WAVE, w))
            a.I("s_cselect_b32 s%d, s%d, s%d" % (S_W, S_PTR + 2 * w, S_W))
            a.I("s_cselect_b32 s%d, s%d, s%d" % (S_W + 1, S_PTR + 2 * w + 1, S_W + 1))
        a.I("s_mov_b32 s%d, 0x400000" % (S_W + 2))
        a.I("s_lshl_b32 s%d, s2, 14" % (S_T0 + 2))
        a.I("v_lshlrev_b32 v7, 4, %s" % vr(V_T))
    a.I("s_cmp_lg_u32 s%d, 0" % S_WAVE)
    a.I("s_cbranch_scc1 L_el_other")
    a.I("s_and_b32 s%d, s%d, 7" % (S_T0, S_XCC))
    a.I("s_lshl_b32 s%d, s%d, 2" % (S_T0, S_T0))
    a.I("s_cmp_eq_u32 s%d, 0" % S_T0)
    a.I("s_cselect_b32 s%d, %d, s%d" % (S_T0, D_TK0, S_T0))
    a.I("v_mov_b32 v2, 1")
    a.I("v_mov_b32 v3, s%d" % S_T0)
    a.I("s_mov_b64 exec, 1")
    a.I("buffer_atomic_add v2, v3, s[%d:%d], 0 offen sc0" % (S_DBG, S_DBG + 3))
    if PF:
        Lc = a.newlabel("elc")
        Ld = a.newlabel("eld")
        a.I("s_cmp_eq_u32 s%d, 0" % S_XCC)
        a.I("s_cbranch_scc1 %s" % Lc)
        a.I("s_mov_b64 exec, -1")
        prefetch()
        a.I("s_mov_b64 exec, 1")
        a.I("s_waitcnt vmcnt(16)")
        a.I("s_branch %s" % Ld)
        a.label(Lc)
        a.I("s_waitcnt vmcnt(0)")
        a.label(Ld)
    else:
        a.I("s_waitcnt vmcnt(0)")
    a.I("v_readfirstlane_b32 s%d, v2" % (S_T0 + 1))
    a.I("s_cmp_lg_u32 s%d, 0" % (S_T0 + 1))
    a.I("s_cbranch_scc1 L_el_nononce")
    a.I("s_or_b32 s%d, s96, 1" % (S_T0 + 1))
    a.I("v_mov_b32 v4, s%d" % (S_T0 + 1))
    a.I("v_mov_b32 v5, 0")
    a.I("v_mov_b32 v6, %d" % D_NONCE)
    a.I("buffer_atomic_cmpswap v[4:5], v6, s[%d:%d], 0 offen" % (S_DBG, S_DBG + 3))
    a.label("L_el_nononce")
    a.I("v_mov_b32 v3, %d" % L_BCAST)
    a.I("ds_write_b32 v3, v2")
    a.I("s_mov_b64 exec, -1")
    a.I("s_branch L_el_wait")
    a.label("L_el_other")
    if PF:
        prefetch()
    a.label("L_el_wait")
    a.I("s_waitcnt lgkmcnt(0)")
    a.I("s_barrier")
    a.I("v_mov_b32 v3, %d" % L_BCAST)
    a.I("ds_read_b32 v2, v3")
    a.I("s_waitcnt lgkmcnt(0)")
    a.I("v_readfirstlane_b32 s%d, v2" % S_TK)
    a.I("s_barrier")
    if STAMPS:
        L = a.newlabel("st")
        a.I("s_cmp_lg_u32 s%d, 0" % S_WAVE)
        a.I("s_cbranch_scc1 %s" % L)
        a.I("s_lshl_b32 s93, s3, 6")
        a.I("s_add_u32 s93, s93, 0x%x" % WS_STAMP)
        a.I("s_lshl_b32 s94, s%d, 8" % S_XCC)
        a.I("s_add_u32 s94, s94, s%d" % S_TK)
        a.I("v_mov_b32 v10, s96")
        a.I("v_mov_b32 v11, 0")
        a.I("v_mov_b32 v12, s94")
        a.I("s_mov_b64 exec, 1")
        a.I("buffer_store_dword v10, v11, s[%d:%d], s93 offen sc1" % (S_WS, S_WS + 3))
        a.I("buffer_store_dword v12, v11, s[%d:%d], s93 offen offset:60 sc1" % (S_WS, S_WS + 3))
        a.I("s_mov_b64 exec, -1")
        a.label(L)
    stamp(a, 1, 10)
    dbgmax(a, 36, 10, neg=True)


def verify_issue(a, vt):
    a.I("v_mov_b32 %s, 0" % vr(vt + 12))
    a.I("buffer_load_dwordx4 %s, %s, s[%d:%d], 0 offen sc1" % (vr(vt, 4), vr(vt + 12), S_DBG, S_DBG + 3))
    a.I("buffer_load_dwordx4 %s, %s, s[%d:%d], 0 offen offset:16 sc1" % (vr(vt + 4, 4), vr(vt + 12), S_DBG, S_DBG + 3))
    a.I("buffer_load_dwordx2 %s, %s, s[%d:%d], 0 offen offset:%d sc1" % (vr(vt + 8, 2), vr(vt + 12), S_DBG, S_DBG + 3, D_TK0))


def verify(a, vt, st, slow, pre=False):
    L = a.newlabel("vf")
    Le = a.newlabel("vfe")
    Lskip = a.newlabel("vfx")
    a.I("s_cmp_lg_u32 s%d, 0" % S_MODE)
    a.I("s_cbranch_scc1 %s" % Lskip)
    a.I("s_mov_b32 s%d, 200000" % st)
    if pre:
        a.I("s_branch %s" % Le)
    a.label(L)
    verify_issue(a, vt)
    a.I("s_sub_u32 s%d, s%d, 1" % (st, st))
    a.I("s_cmp_eq_u32 s%d, 0" % st)
    a.I("s_cbranch_scc1 L_abort")
    a.I("s_waitcnt vmcnt(0)")
    a.label(Le)
    a.I("v_add3_u32 %s, %s, %s, %s" % (vr(vt + 10), vr(vt + 1), vr(vt + 2), vr(vt + 3)))
    a.I("v_add3_u32 %s, %s, %s, %s" % (vr(vt + 10), vr(vt + 10), vr(vt + 4), vr(vt + 5)))
    a.I("v_add3_u32 %s, %s, %s, %s" % (vr(vt + 10), vr(vt + 10), vr(vt + 6), vr(vt + 7)))
    a.I("v_add_u32 %s, %s, %s" % (vr(vt + 10), vr(vt + 10), vr(vt + 8)))
    a.I("v_max3_u32 %s, %s, %s, %s" % (vr(vt + 11), vr(vt + 1), vr(vt + 2), vr(vt + 3)))
    a.I("v_max3_u32 %s, %s, %s, %s" % (vr(vt + 11), vr(vt + 11), vr(vt + 4), vr(vt + 5)))
    a.I("v_max3_u32 %s, %s, %s, %s" % (vr(vt + 11), vr(vt + 11), vr(vt + 6), vr(vt + 7)))
    a.I("v_max_u32 %s, %s, %s" % (vr(vt + 11), vr(vt + 11), vr(vt + 8)))
    a.I("v_cmp_lt_u32 vcc, 0x100, %s" % vr(vt + 10))
    a.I("s_cbranch_vccnz L_abort")
    a.I("v_cmp_ne_u32 vcc, 0x100, %s" % vr(vt + 10))
    a.I("s_cbranch_vccnz %s" % L)
    a.I("v_cmp_eq_u32 vcc, 0, %s" % vr(vt + 9))
    a.I("s_cbranch_vccnz %s" % L)
    a.I("v_readfirstlane_b32 s%d, %s" % (S_NONCE, vr(vt + 9)))
    a.I("v_readfirstlane_b32 s%d, %s" % (st, vr(vt + 11)))
    a.I("s_cmp_lg_u32 s%d, %d" % (st, 33 if FORCE_SLOW else 32))
    a.I("s_cbranch_scc1 %s" % slow)
    a.label(Lskip)


def set_flag(a, S_WSq, s_off, s_val, vt, s_wave):
    L = a.newlabel("sf")
    a.I("s_cmp_lg_u32 s%d, 0" % s_wave)
    a.I("s_cbranch_scc1 %s" % L)
    a.I("v_mov_b32 %s, %s" % (vr(vt), s_val))
    a.I("v_mov_b32 %s, s%d" % (vr(vt + 1), S_NONCE))
    a.I("v_mov_b32 %s, 0" % vr(vt + 2))
    a.I("s_mov_b64 exec, 1")
    a.I("buffer_store_dwordx2 %s, %s, s[%d:%d], s%d offen sc1" % (vr(vt, 2), vr(vt + 2), S_WSq, S_WSq + 3, s_off))
    a.I("s_mov_b64 exec, -1")
    a.label(L)


def chain_part(a, timing, kw):
    a.label("L_chain", clear=True)
    a.I("s_load_dwordx8 s[%d:%d], s[0:1], 8" % (S_PTR, S_PTR + 7))
    a.I("s_load_dwordx2 s[%d:%d], s[0:1], 40" % (S_PTR + 8, S_PTR + 9))
    a.I("s_waitcnt lgkmcnt(0)")
    for w in range(1, 4):
        a.I("s_cmp_eq_u32 s%d, %d" % (S_WAVE, w))
        a.I("s_cbranch_scc1 L_wave%d" % w)
    for w in range(4):
        a.label("L_wave%d" % w, clear=True)
        if w == 0: stamp(a, 2, V_MEM)
        VV, VI, VH = 224, 200, 224

        def h1(a):
            verify_issue(a, VV)
            init_issue(a, w, VI)

        def h5(a):
            verify(a, VV, S_RETRY, "L_slow", pre=True)
            init_stores(a, w, VI, "sc1")

        def h9(a):
            a.I("s_barrier")
            if w == 2:
                a.I("s_mov_b64 exec, 1")
                a.I("v_mov_b32 v%d, 1" % VI)
                a.I("v_mov_b32 v%d, %d" % (VI + 1, D_CHAIN))
                a.I("buffer_atomic_add v%d, v%d, s[%d:%d], 0 offen" % (VI, VI + 1, S_DBG, S_DBG + 3))
                a.I("s_mov_b64 exec, -1")
            setup_scalar(a, w, True)

        def h11(a):
            horizon_issue(a, VH)

        def h12(a):
            a.I("s_mov_b32 s%d, 0" % (S_T0 + 5))
            horizon_refresh(a, S_T0 + 5, "L_abort", vb=VH, pre=True)
            k0_dma(a, w)
            a.I("v_mov_b32 v%d, %d" % (VH + 8, D_CHAIN))
            a.I("buffer_load_dword v%d, v%d, s[%d:%d], 0 offen sc1" % (VH + 9, VH + 8, S_DBG, S_DBG + 3))
        load_weights(a, w, OPT.get('wflags', ''), hooks={1: h1, 5: h5, 9: h9, 10: h11, 12: h12})
        if w == 0: stamp(a, 3, V_MEM)
        if w == 0: dbgmax(a, 52, V_MEM)
        setup_regs(a, w)
        if w == 0: stamp(a, 4, V_MEM)
        lp = a.newlabel("arr")
        lq = a.newlabel("arq")
        a.I("s_mov_b32 s%d, %d" % (S_RETRY, RETRY_MAX))
        a.I("s_branch %s" % lq)
        a.label(lp)
        a.I("buffer_load_dword v%d, v%d, s[%d:%d], 0 offen sc1" % (VH + 9, VH + 8, S_DBG, S_DBG + 3))
        a.I("s_sub_u32 s%d, s%d, 1" % (S_RETRY, S_RETRY))
        a.I("s_cmp_eq_u32 s%d, 0" % S_RETRY)
        a.I("s_cbranch_scc1 L_abort")
        a.I("s_waitcnt vmcnt(0)")
        a.label(lq)
        a.I("v_cmp_ne_u32 vcc, 32, v%d" % (VH + 9))
        a.I("s_cbranch_vccnz %s" % lp)
        a.I("s_waitcnt vmcnt(0)")
        a.I("s_barrier")
        if w == 0: stamp(a, 5, V_MEM)
        if w == 0: dbgmax(a, 40, V_MEM)
        a.I("s_cmp_lg_u32 s%d, 0" % S_MODE)
        a.I("s_cbranch_scc1 L_cslow%d" % w)
        chain_loop(a, w, timing=timing, exp="latepois," + OPT.get("exp", ""), fused=True, tag="f", **kw)
        if w == 0: stamp(a, 6, V_MEM)
        if w == 0: dbgmax(a, 44, V_MEM)
        a.I("s_endpgm")
    for w in range(4):
        a.label("L_cslow%d" % w, clear=True)
        if OPT.get("noslow"):
            a.I("s_endpgm")
            continue
        chain_loop(a, w, st_flags="sc1", timing=False, exp="latepois", fused=True, tag="s", looptime=False,
                   **{k: v for k, v in kw.items() if k != "looptime"})
        a.I("s_endpgm")


def worker_part(a):
    a.label("L_worker", clear=True)
    lane = 1
    sW = S_WAVE
    a.I("s_sub_u32 s%d, s%d, 1" % (S_FI, S_XCC))
    a.I("s_lshl_b32 s%d, s%d, 5" % (S_FI, S_FI))
    a.I("s_add_u32 s%d, s%d, s%d" % (S_FI, S_FI, S_TK))
    a.I("v_and_b32 v%d, 63, v0" % lane)
    a.I("s_load_dwordx2 s[22:23], s[0:1], %d" % K_X)
    a.I("s_load_dwordx4 s[24:27], s[0:1], %d" % K_C)
    a.I("s_load_dwordx4 s[28:31], s[0:1], %d" % K_WQ)
    a.I("s_load_dwordx2 s[36:37], s[0:1], %d" % K_WV)
    a.I("s_waitcnt lgkmcnt(0)")
    a.I("s_cmp_lt_u32 s%d, 192" % S_FI)
    a.I("s_cbranch_scc1 L_front")
    a.I("s_sub_u32 s38, s%d, 192" % S_FI)
    LV = 112
    srd(a, 4, 22, 2048 * 1024)
    a.I("s_lshl_b32 s39, s38, 5")
    R0 = pre.ln_stats(a, 4, 39, sW, lane, LV, 0)
    a.I("s_add_u32 s39, s39, 1024")
    R1 = pre.ln_stats(a, 4, 39, sW, lane, LV + 0, 1) if False else None
    pre.mod_role(a, S_WS, 12, 40, 38, sW, lane, 24, 26, 140000)
    verify(a, 16, 90, "L_slow")
    a.I("s_lshl_b32 s90, s38, 3")
    a.I("s_add_u32 s90, s90, 0x%x" % FL_MOD)
    set_flag(a, S_WS, 90, "1", 16, sW)
    stamp(a, 2, 16)
    pre.ln_stats2(a, *R0)
    Lx = a.newlabel("lnw")
    a.I("s_cmp_lg_u32 s%d, 0" % sW)
    a.I("s_cbranch_scc1 %s" % Lx)
    a.I("s_mov_b32 s90, 0x%x" % FL_MOD)
    a.I("v_lshlrev_b32 v16, 3, v%d" % lane)
    a.I("v_mov_b32 v17, 1")
    a.I("v_cmp_gt_u32 vcc, 16, v%d" % lane)
    a.I("v_cndmask_b32 v17, 0, v17, vcc")
    poll_lanes(a, S_WS, 90, 16, 17, 18, 91, "L_abort")
    a.label(Lx)
    a.I("s_barrier")
    pre.mod_to_lds(a, S_WS, sW, lane, 144000, 16)
    for it in range(2):
        if it == 1:
            R0 = pre.ln_stats(a, 4, 39, sW, lane, LV, 0)
            a.I("s_waitcnt vmcnt(0)")
            pre.ln_stats2(a, *R0)
        pre.ln_apply(a, S_WS, R0[0], R0[1], R0[2], 144000, 20)
        a.I("s_waitcnt vmcnt(0)")
        a.I("s_barrier")
        a.I("s_lshl_b32 s90, s38, 3")
        a.I("s_add_u32 s90, s90, 0x%x" % (FL_H + it * 256))
        set_flag(a, S_WS, 90, "1", 16, sW)
    stamp(a, 3, 16)
    a.I("s_cmp_ge_u32 s38, 16")
    a.I("s_cbranch_scc1 L_tail")
    a.I("s_add_u32 s38, s38, 32")
    pre.mod_role(a, S_WS, 12, 40, 38, sW, lane, 24, 26, 140000)
    a.I("s_lshl_b32 s90, s38, 3")
    a.I("s_add_u32 s90, s90, 0x%x" % FL_MOD)
    set_flag(a, S_WS, 90, "1", 16, sW)
    a.I("s_branch L_tail")
    a.label("L_front", clear=True)
    a.I("s_and_b32 s38, s%d, 1" % S_FI)
    a.I("s_lshr_b32 s39, s%d, 1" % S_FI)
    a.I("s_and_b32 s40, s39, 31")
    a.I("s_lshr_b32 s41, s39, 5")
    a.I("s_add_u32 s41, s41, 1")
    a.I("s_cmp_eq_u32 s41, 3")
    a.I("s_cselect_b32 s41, 0, s41")
    a.I("s_cmp_eq_u32 s41, 1")
    a.I("s_cselect_b32 s28, s30, s28")
    a.I("s_cselect_b32 s29, s31, s29")
    a.I("s_cmp_eq_u32 s41, 2")
    a.I("s_cselect_b32 s28, s36, s28")
    a.I("s_cselect_b32 s29, s37, s29")
    a.I("s_lshl_b32 s42, s40, 6")
    a.I("s_lshl_b32 s43, s41, 1")
    a.I("s_add_u32 s43, s43, s38")
    a.I("s_lshl_b32 s43, s43, 3")
    a.I("s_add_u32 s42, s42, s43")
    a.I("s_add_u32 s42, s42, 0x%x" % FL_PROG)

    def wait_h(a, nflags):
        Lh = a.newlabel("bh")
        a.I("s_cmp_lg_u32 s%d, 0" % sW)
        a.I("s_cbranch_scc1 %s" % Lh)
        a.I("s_mov_b32 s90, 0x%x" % FL_H)
        a.I("v_lshlrev_b32 v2, 3, v%d" % lane)
        a.I("v_mov_b32 v3, 1")
        if nflags < 64:
            a.I("v_cmp_gt_u32 vcc, %d, v%d" % (nflags, lane))
            a.I("v_cndmask_b32 v3, 0, v3, vcc")
        poll_lanes(a, S_WS, 90, 2, 3, 4, 91, "L_abort", sleep=1)
        a.label(Lh)

    def before_h(a):
        verify(a, 16, 90, "L_slow")
        stamp(a, 4, 8)
        wait_h(a, 32)
        stamp(a, 5, 8)

    def stores_done(a, s_it):
        set_flag(a, S_WS, 42, "s%d" % s_it, 2, sW)

    def mid(a, s_it):
        L = a.newlabel("mid")
        a.I("s_cmp_lg_u32 s%d, 13" % s_it)
        a.I("s_cbranch_scc1 %s" % L)
        wait_h(a, 64)
        a.I("s_barrier")
        a.label(L)
    def before_w(a):
        if OPT.get("latew"):
            verify(a, 16, 90, "L_slow")
            wait_h(a, 32)
            a.I("s_barrier")
        if OPT.get("pfwo"):
            srd(a, 4, 24, 0x400000) if False else None
    front.front_role(a, S_WS, 12, 41, 40, 38, sW, lane, 28, hooks={"before_w": before_w, "before_h": before_h, "stores_done": stores_done, "mid": mid})
    stamp(a, 6, 16)
    a.label("L_tail", clear=True)
    a.I("s_barrier")
    a.I("s_load_dwordx2 s[22:23], s[0:1], %d" % K_X)
    a.I("s_load_dwordx2 s[24:25], s[0:1], %d" % K_WO)
    a.I("s_load_dwordx4 s[28:31], s[0:1], %d" % K_W1)
    a.I("s_load_dwordx2 s[26:27], s[0:1], %d" % K_OUT)
    a.I("v_and_b32 %s, 63, v0" % vr(tail.V_LANE))
    a.I("s_mov_b32 s68, s%d" % S_TK)
    a.I("s_waitcnt lgkmcnt(0)")
    for w in range(1, 4):
        a.I("s_cmp_eq_u32 s%d, %d" % (sW, w))
        a.I("s_cbranch_scc1 L_tw%d" % w)
    hk = tail.fused_hooks(S_WS, 68, "L_abort")
    for w in range(4):
        a.label("L_tw%d" % w, clear=True)
        tail.tail_setup(a, w, S_WS, 12, 68, S_XCC, 24, 28, 30)
        if w == 0: stamp(a, 7, 150)
        a.I("s_sub_u32 s%d, s%d, 1" % (tail.S_SEG, S_XCC))
        a.I("s_mov_b32 s%d, 0" % tail.S_IT)
        a.I("s_cmp_lg_u32 s%d, 0" % S_MODE)
        a.I("s_cbranch_scc1 L_tslow%d" % w)
        tail.tail_loop(a, w, S_WS, 12, 4, 68, 22, 26, 7, abort="L_abort", hooks=hk, tag="f")
        if w == 0: stamp(a, 8, 150)
        if w == 0: dbgmax(a, 48, 150)
        a.I("s_endpgm")
    for w in range(4):
        a.label("L_tslow%d" % w, clear=True)
        if OPT.get("noslow"):
            a.I("s_endpgm")
            continue
        tail.tail_loop(a, w, S_WS, 12, 4, 68, 22, 26, 7, st="sc1", abort="L_abort", hooks=hk, tag="s")
        a.I("s_endpgm")


def build(timing=False, **kw):
    a = Asm()
    a.raw("; @launch grid=(256,1,1) block=(256,1,1) lds=163840")
    a.raw('.amdgcn_target "amdgcn-amd-amdhsa--gfx950"')
    a.raw(".text")
    a.raw(".globl %s" % NAME)
    a.raw(".p2align 8")
    a.raw(".type %s,@function" % NAME)
    a.label(NAME)
    entry(a)
    a.I("s_cmp_ge_u32 s%d, 32" % S_TK)
    a.I("s_cbranch_scc1 L_overflow")
    a.label("L_dispatch")
    a.I("s_cmp_lg_u32 s%d, 0" % S_XCC)
    a.I("s_cbranch_scc1 L_far_worker")
    a.I("s_branch L_chain")
    a.label("L_far_worker")
    a.I("s_branch L_hop_worker")
    a.label("L_overflow", clear=True)
    verify(a, 16, 90, "L_slow")
    a.I("s_branch L_abort")
    a.label("L_slow", clear=True)
    a.I("s_waitcnt vmcnt(0) lgkmcnt(0)")
    a.I("s_barrier")
    a.I("s_cmp_lg_u32 s%d, 0" % S_WAVE)
    a.I("s_cbranch_scc1 L_sl_wait")
    a.I("s_mov_b64 exec, 1")
    a.I("v_mov_b32 v2, 1")
    a.I("v_mov_b32 v3, %d" % D_GTK)
    a.I("buffer_atomic_add v2, v3, s[%d:%d], 0 offen sc0" % (S_DBG, S_DBG + 3))
    a.I("v_mov_b32 v3, %d" % L_BCAST)
    a.I("s_waitcnt vmcnt(0)")
    a.I("ds_write_b32 v3, v2")
    a.I("s_mov_b64 exec, -1")
    a.label("L_sl_wait")
    a.I("s_waitcnt lgkmcnt(0)")
    a.I("s_barrier")
    a.I("v_mov_b32 v3, %d" % L_BCAST)
    a.I("ds_read_b32 v2, v3")
    a.I("s_waitcnt lgkmcnt(0)")
    a.I("v_readfirstlane_b32 s%d, v2" % S_TK)
    a.I("s_barrier")
    a.I("s_lshr_b32 s%d, s%d, 5" % (S_XCC, S_TK))
    a.I("s_and_b32 s%d, s%d, 31" % (S_TK, S_TK))
    a.I("s_mov_b32 s%d, 1" % S_MODE)
    a.I("v_mbcnt_lo_u32_b32 v1, -1, 0")
    a.I("v_mbcnt_hi_u32_b32 v1, -1, v1")
    a.I("s_lshl_b32 s%d, s%d, 6" % (S_T0, S_WAVE))
    a.I("v_add_u32 v0, s%d, v1" % S_T0)
    a.I("v_and_b32 %s, 63, v0" % vr(V_T))
    a.I("s_branch L_dispatch")
    a.label("L_exit")
    a.I("s_endpgm")
    a.label("L_abort0", clear=True)
    chain_part(a, timing, kw)
    a.label("L_abort", clear=True)
    a.I("s_mov_b64 exec, 1")
    a.I("v_mov_b32 v2, 0x7777")
    a.I("v_mov_b32 v3, 252")
    a.I("buffer_store_dword v2, v3, s[%d:%d], 0 offen" % (S_DBG, S_DBG + 3))
    a.I("s_waitcnt vmcnt(0)")
    a.I("s_endpgm")
    a.label("L_hop_worker")
    a.I("s_branch L_worker")
    worker_part(a)
    txt = a.text() + kd(NAME)
    txt = "\n".join(l.strip() if l.startswith("    ") else l for l in txt.split("\n"))
    return txt, a


if __name__ == "__main__":
    kw = dict(gap=36, rgap=36, delay=24, rdelay=48)
    timing = False
    for arg in sys.argv[2:]:
        k, v = arg.split("=")
        if k == "timing":
            timing = bool(int(v))
        elif k == "force_slow":
            FORCE_SLOW = bool(int(v))
        elif k == "hop":
            chain.FINE["hop"] = True
        elif k == "fine":
            chain.FINE["on"] = True
            chain.FINE["skip"] = int(v)
        elif k == "exp":
            OPT[k] = v
        elif k in ("wflags", "latew", "pfwo", "rot", "touch", "noslow", "pf"):
            OPT[k] = v if k == "wflags" else int(v)
        elif k == "dbgt":
            DBGT = bool(int(v))
        elif k == "stamps":
            STAMPS = bool(int(v))
        else:
            kw[k] = int(v) if v.lstrip("-").isdigit() else v
    txt, a = build(timing=timing, **kw)
    open(sys.argv[1], "w").write(txt)
    print("instructions", a.n_inst, "bytes", len(txt), chain.FINE["names"])
```

```python
import struct
from common import *
from chain import WS_MOD, WS_KT, WS_VT, WS_QT, WS_KM, WS_VM, WS_TAIL, WS_SIZE, OOB, FL_TAIL, FL_PROG, FL_MOD, S_NONCE

G_STRIDE = 0x400000
G_INB1, G_INB2, G_H2, G_FLAG = 0, 0x100000, 0x200000, 0x210000

L_O2 = 0
L_ROW = 8192
L_ST = L_ROW + 2048 + 64
L_F = 12288
L_SELT = 16384
L_H2 = 32768

A_WO, A_W2, A_W1 = 0, 128, 176
S_SEG, S_IT, S_GB, S_T = 36, 37, 38, 40
S_TOK = 48
S_C2, S_NC2 = 64, 65
S_BASE_Q, S_BASE_M = 66, 67
S_GF = 39
V_L16, V_LANE, V_KMR, V_DELTA, V_O2W, V_P1, V_R1, V_ROWW, V_TID2, V_H2W, V_FW, V_L4 = range(2, 14)
SEL = 16
ZQ = 20
ONES = 36
QO = 40
KO = 56
VO = 104
SS = 120
PP = 132
TT = 140
DO = 160
AO = 40
WA = 0
ACC = 192
MODR = 80
V_GA, V_CB, V_SB, V_GB, V_X1 = 14, 15, 0, 0, 0


def wave_allreduce_add(a, r, t):
    for ctrl in ("quad_perm:[1,0,3,2]", "quad_perm:[2,3,0,1]", "row_half_mirror", "row_mirror"):
        a.I("v_add_f32_dpp %s, %s, %s %s row_mask:0xf bank_mask:0xf" % (vr(r), vr(r), vr(r), ctrl))
    a.I("v_mov_b32 %s, %s" % (vr(t), vr(r)))
    a.I("v_permlane16_swap_b32 %s, %s" % (vr(r), vr(t)))
    a.I("v_add_f32 %s, %s, %s" % (vr(r), vr(r), vr(t)))
    a.I("v_mov_b32 %s, %s" % (vr(t), vr(r)))
    a.I("v_permlane32_swap_b32 %s, %s" % (vr(r), vr(t)))
    a.I("v_add_f32 %s, %s, %s" % (vr(r), vr(r), vr(t)))


def rbf(a, d, s):
    a.I("v_cvt_pk_bf16_f32 %s, %s, %s" % (vr(d), vr(s), vr(s)))
    a.I("v_and_b32 %s, 0xffff0000, %s" % (vr(d), vr(d)))


def tail_setup(a, w, S_WS, S_A, s_rank, s_group, pWo, pW1, pW2):
    ws = "s[%d:%d]" % (S_WS, S_WS + 3)
    T = TT
    lane = V_LANE
    qt, eh = w & 1, w >> 1
    s0, s1, s2 = S_T, S_T + 1, S_T + 2
    a.I("v_lshlrev_b32 %s, 4, %s" % (vr(V_L16), vr(lane)))
    a.I("v_lshlrev_b32 %s, 2, %s" % (vr(V_L4), vr(lane)))
    a.I("v_and_b32 %s, 15, %s" % (vr(T), vr(lane)))
    a.I("v_lshrrev_b32 %s, 4, %s" % (vr(T + 1), vr(lane)))
    a.I("v_lshrrev_b32 %s, 2, %s" % (vr(T + 2), vr(T)))
    a.I("v_and_b32 %s, 1, %s" % (vr(T + 3), vr(T)))
    a.I("v_lshl_add_u32 %s, %s, 1, %s" % (vr(T + 2), vr(T + 2), vr(T + 3)))
    a.I("v_lshl_add_u32 %s, %s, 3, %s" % (vr(T + 2), vr(T + 1), vr(T + 2)))
    a.I("v_lshlrev_b32 %s, 4, %s" % (vr(V_KMR), vr(T + 2)))
    a.I("v_lshlrev_b32 %s, 2, %s" % (vr(T + 2), vr(T + 1)))
    a.I("v_sub_u32 %s, %s, %s" % (vr(V_DELTA), vr(T), vr(T + 2)))
    a.I("v_lshrrev_b32 %s, 1, %s" % (vr(T + 2), vr(T + 1)))
    a.I("v_lshlrev_b32 %s, 6, %s" % (vr(T + 2), vr(T + 2)))
    a.I("v_and_b32 %s, 1, %s" % (vr(T + 3), vr(T + 1)))
    a.I("v_lshl_add_u32 %s, %s, 5, %s" % (vr(T + 2), vr(T + 3), vr(T + 2)))
    a.I("v_add3_u32 %s, %s, %s, %d" % (vr(T + 2), vr(T + 2), vr(T), 16 * qt))
    a.I("v_lshlrev_b32 %s, 4, %s" % (vr(T + 2), vr(T + 2)))
    a.I("v_add_u32 %s, %d, %s" % (vr(V_O2W), L_O2, vr(T + 2)))
    a.I("v_lshrrev_b32 %s, 5, %s" % (vr(T + 2), vr(lane)))
    a.I("v_lshlrev_b32 %s, 17, %s" % (vr(T + 2), vr(T + 2)))
    a.I("v_and_b32 %s, 31, %s" % (vr(T + 3), vr(lane)))
    a.I("v_lshl_add_u32 %s, %s, 2, %s" % (vr(V_P1), vr(T + 3), vr(T + 2)))
    a.I("v_lshlrev_b32 %s, 10, %s" % (vr(T + 2), vr(T + 1)))
    a.I("v_lshl_add_u32 %s, %s, 4, %s" % (vr(V_R1), vr(T), vr(T + 2)))
    a.I("v_lshrrev_b32 %s, 1, %s" % (vr(T + 2), vr(T + 1)))
    a.I("v_lshlrev_b32 %s, 6, %s" % (vr(T + 2), vr(T + 2)))
    a.I("v_and_b32 %s, 1, %s" % (vr(T + 3), vr(T)))
    a.I("v_lshl_add_u32 %s, %s, 5, %s" % (vr(T + 2), vr(T + 3), vr(T + 2)))
    a.I("v_and_b32 %s, 1, %s" % (vr(T + 3), vr(T + 1)))
    a.I("v_lshl_add_u32 %s, %s, 4, %s" % (vr(T + 2), vr(T + 3), vr(T + 2)))
    a.I("v_lshrrev_b32 %s, 1, %s" % (vr(T + 3), vr(T)))
    a.I("v_add3_u32 %s, %s, %s, %d" % (vr(T + 2), vr(T + 2), vr(T + 3), 0))
    a.I("v_add_u32 %s, %d, %s" % (vr(T + 2), 128 * w, vr(T + 2)))
    a.I("v_lshlrev_b32 %s, 2, %s" % (vr(T + 2), vr(T + 2)))
    a.I("v_add_u32 %s, %d, %s" % (vr(T + 2), L_ROW, vr(T + 2)))
    a.I("v_mov_b32 %s, %d" % (vr(V_ROWW), L_ROW + 2048))
    a.I("v_cmp_gt_u32 vcc, 8, %s" % vr(T))
    a.I("v_cndmask_b32 %s, %s, %s, vcc" % (vr(V_ROWW), vr(V_ROWW), vr(T + 2)))
    a.I("v_add_u32 %s, %d, %s" % (vr(T + 2), 64 * w, vr(lane)))
    a.I("v_lshlrev_b32 %s, 2, %s" % (vr(V_TID2), vr(T + 2)))
    a.I("v_lshrrev_b32 %s, 4, %s" % (vr(T + 3), vr(T + 2)))
    a.I("v_lshlrev_b32 %s, 10, %s" % (vr(T + 3), vr(T + 3)))
    a.I("v_bfe_u32 %s, %s, 2, 2" % (vr(T + 4), vr(T + 2)))
    a.I("v_lshl_add_u32 %s, %s, 8, %s" % (vr(T + 3), vr(T + 4), vr(T + 3)))
    a.I("v_and_b32 %s, 3, %s" % (vr(T + 4), vr(T + 2)))
    a.I("v_lshl_add_u32 %s, %s, 2, %s" % (vr(T + 3), vr(T + 4), vr(T + 3)))
    a.I("s_lshr_b32 s%d, s%d, 4" % (s0, s_rank))
    a.I("s_lshl_b32 s%d, s%d, 14" % (s0, s0))
    a.I("s_and_b32 s%d, s%d, 15" % (s1, s_rank))
    a.I("s_lshl_b32 s%d, s%d, 4" % (s1, s1))
    a.I("s_add_u32 s%d, s%d, s%d" % (s0, s0, s1))
    a.I("v_add_u32 %s, s%d, %s" % (vr(V_H2W), s0, vr(T + 3)))
    a.I("v_lshrrev_b32 %s, 1, %s" % (vr(T + 2), vr(T + 1)))
    a.I("v_lshlrev_b32 %s, 5, %s" % (vr(T + 2), vr(T + 2)))
    a.I("v_add_u32 %s, %s, %s" % (vr(T + 2), vr(T + 2), vr(T)))
    a.I("v_lshlrev_b32 %s, 4, %s" % (vr(T + 2), vr(T + 2)))
    a.I("v_and_b32 %s, 1, %s" % (vr(T + 3), vr(T + 1)))
    a.I("v_lshl_add_u32 %s, %s, 3, %s" % (vr(T + 2), vr(T + 3), vr(T + 2)))
    a.I("v_add_u32 %s, %d, %s" % (vr(V_FW), L_F + w * 1024, vr(T + 2)))
    a.I("v_and_b32 %s, 1, %s" % (vr(T + 2), vr(T)))
    a.I("v_lshlrev_b32 %s, 4, %s" % (vr(T + 2), vr(T + 2)))
    a.I("v_mov_b32 %s, 0x3f80" % vr(T + 3))
    a.I("v_lshlrev_b32 %s, %s, %s" % (vr(T + 3), vr(T + 2), vr(T + 3)))
    a.I("v_lshrrev_b32 %s, 1, %s" % (vr(T + 2), vr(T)))
    for m in range(4):
        a.I("v_cmp_eq_u32 vcc, %d, %s" % (m, vr(T + 2)))
        a.I("v_cndmask_b32 %s, 0, %s, vcc" % (vr(SEL + m), vr(T + 3)))
    for i in range(16):
        a.I("v_mov_b32 %s, 0" % vr(ZQ + i))
    for i in range(4):
        a.I("v_mov_b32 %s, 0x3f803f80" % vr(ONES + i))
    for i in range(8):
        a.I("v_mov_b32 %s, 0" % vr(PP + i))
    for r in range(16):
        a.I("s_mov_b32 s%d, %d" % (S_TOK + r, ((r & 3) + 8 * (r >> 2)) * 32768))
    c = struct.unpack("<I", struct.pack("<f", 128 ** -0.5 * 1.4426950408889634))[0]
    a.I("s_mov_b32 s%d, 0x%x" % (S_C2, c))
    a.I("s_mov_b32 s%d, 0x%x" % (S_NC2, c | 0x80000000))
    a.I("s_mul_i32 s%d, s%d, 0x%x" % (S_GB, s_group, G_STRIDE))
    a.I("s_add_u32 s%d, s%d, 0x%x" % (S_GB, S_GB, WS_TAIL))
    a.I("s_lshl_b32 s%d, s%d, 10" % (S_GF, s_group))
    a.I("s_add_u32 s%d, s%d, 0x%x" % (S_GF, S_GF, FL_TAIL))
    base = w * 32768
    VOFF, VTA = T + 6, T + 7
    a.I("v_lshlrev_b32 %s, 10, %s" % (vr(T + 2), vr(T + 1)))
    a.I("v_lshl_add_u32 %s, %s, 4, %s" % (vr(T + 2), vr(T), vr(T + 2)))
    srd(a, S_A, pWo, 0x400000)
    a.I("s_lshl_b32 s%d, s%d, 17" % (s0, s_rank))
    a.I("s_add_u32 s%d, s%d, %d" % (s0, s0, w * 256))
    a.I("v_add_u32 %s, s%d, %s" % (vr(VOFF), s0, vr(T + 2)))
    for i in range(32):
        a.I("s_mov_b32 m0, %d" % (base + i * 1024))
        a.I("s_mov_b32 s%d, %d" % (s1, i * 4096))
        a.I("buffer_load_dwordx4 %s, s[%d:%d], s%d offen lds" % (vr(VOFF), S_A, S_A + 3, s1))
    a.I("v_bfe_u32 %s, %s, 2, 2" % (vr(T + 3), vr(lane)))
    a.I("v_lshrrev_b32 %s, 5, %s" % (vr(T + 4), vr(lane)))
    a.I("v_bfe_u32 %s, %s, 4, 1" % (vr(T + 5), vr(lane)))
    a.I("v_lshlrev_b32 %s, 5, %s" % (vr(T + 5), vr(T + 5)))
    a.I("v_and_b32 %s, 3, %s" % (vr(T + 8), vr(lane)))
    a.I("v_lshl_add_u32 %s, %s, 3, %s" % (vr(T + 5), vr(T + 8), vr(T + 5)))
    a.I("v_lshl_add_u32 %s, %s, 2, %s" % (vr(T + 8), vr(T + 4), vr(T + 3)))
    a.I("v_lshl_add_u32 %s, %s, 8, %s" % (vr(T + 8), vr(T + 8), vr(T + 5)))
    a.I("v_add_u32 %s, %d, %s" % (vr(VTA), base, vr(T + 8)))
    a.I("v_lshl_add_u32 %s, %s, 3, %s" % (vr(T + 8), vr(T + 4), vr(T + 3)))
    a.I("v_lshl_add_u32 %s, %s, 8, %s" % (vr(T + 8), vr(T + 8), vr(T + 5)))
    a.I("v_add_u32 %s, %d, %s" % (vr(T + 9), base, vr(T + 8)))
    a.I("s_waitcnt vmcnt(0)")
    for nu in range(4):
        for ks in range(8):
            for hh in range(2):
                row = 32 * (ks >> 1) + 16 * hh + 8 * (ks & 1)
                a.I("ds_read_b64_tr_b16 %s, %s offset:%d" % (ar(A_WO + (nu * 8 + ks) * 4 + 2 * hh, 2), vr(VTA), row * 256 + nu * 64))
    a.I("s_waitcnt lgkmcnt(0)")
    srd(a, S_A, pW2, 1376 * 1024)
    a.I("s_mul_i32 s%d, s%d, %d" % (s0, s_rank, 48 * 1024))
    a.I("s_add_u32 s%d, s%d, %d" % (s0, s0, w * 256))
    a.I("v_add_u32 %s, s%d, %s" % (vr(VOFF), s0, vr(T + 2)))
    for i in range(12):
        a.I("s_mov_b32 m0, %d" % (base + i * 1024))
        a.I("s_mov_b32 s%d, %d" % (s1, i * 4096))
        a.I("buffer_load_dwordx4 %s, s[%d:%d], s%d offen lds" % (vr(VOFF), S_A, S_A + 3, s1))
    if w < 3:
        a.I("v_lshrrev_b32 %s, 1, %s" % (vr(T + 10), vr(lane)))
        a.I("v_mul_u32_u24 %s, 2752, %s" % (vr(T + 10), vr(T + 10)))
        a.I("v_and_b32 %s, 1, %s" % (vr(T + 11), vr(lane)))
        a.I("s_mul_i32 s%d, s%d, 48" % (s0, s_rank))
        a.I("s_add_u32 s%d, s%d, %d" % (s0, s0, 16 * w))
        a.I("v_lshl_add_u32 %s, %s, 3, s%d" % (vr(T + 11), vr(T + 11), s0))
        a.I("v_lshl_add_u32 %s, %s, 1, %s" % (vr(T + 10), vr(T + 11), vr(T + 10)))
        a.I("v_mov_b32 %s, 0x%x" % (vr(T + 12), OOB))
        a.I("v_cmp_gt_u32 vcc, 1376, %s" % vr(T + 11))
        a.I("v_cndmask_b32 %s, %s, %s, vcc" % (vr(T + 10), vr(T + 12), vr(T + 10)))
    a.I("s_waitcnt vmcnt(0)")
    for nu in range(4):
        for ks in range(3):
            for hh in range(2):
                a.I("ds_read_b64_tr_b16 %s, %s offset:%d" % (ar(A_W2 + (nu * 3 + ks) * 4 + 2 * hh, 2), vr(T + 9), (16 * ks + 4 * hh) * 256 + nu * 64))
    a.I("s_waitcnt lgkmcnt(0)")
    if w < 3:
        srd(a, S_A, pW1, 512 * 2752)
        for i in range(16):
            a.I("s_mov_b32 m0, %d" % (base + i * 1024))
            a.I("s_mov_b32 s%d, %d" % (s1, i * 32 * 2752))
            a.I("buffer_load_dwordx4 %s, s[%d:%d], s%d offen lds" % (vr(T + 10), S_A, S_A + 3, s1))
        a.I("v_lshl_add_u32 %s, %s, 3, %s" % (vr(T + 11), vr(T + 1), vr(T + 3)))
        a.I("v_lshlrev_b32 %s, 5, %s" % (vr(T + 11), vr(T + 11)))
        a.I("v_and_b32 %s, 3, %s" % (vr(T + 12), vr(lane)))
        a.I("v_lshl_add_u32 %s, %s, 3, %s" % (vr(T + 11), vr(T + 12), vr(T + 11)))
        a.I("v_add_u32 %s, %d, %s" % (vr(T + 11), base, vr(T + 11)))
        a.I("s_waitcnt vmcnt(0)")
        for ks in range(16):
            for hh in range(2):
                a.I("ds_read_b64_tr_b16 %s, %s offset:%d" % (ar(A_W1 + ks * 4 + 2 * hh, 2), vr(T + 11), (32 * ks + 4 * hh) * 32))
        a.I("s_waitcnt lgkmcnt(0)")
    a.I("s_barrier")


V_MODS = 240


def signal(a, w, S_WS, s_rank, flag_off, st):
    ws = "s[%d:%d]" % (S_WS, S_WS + 3)
    a.I("s_waitcnt vmcnt(0)")
    a.I("s_barrier")
    if w == 0:
        a.I("s_lshl_b32 s%d, s%d, 3" % (S_T, s_rank))
        a.I("s_add_u32 s%d, s%d, s%d" % (S_T, S_T, S_GF))
        a.I("s_add_u32 s%d, s%d, 0x%x" % (S_T, S_T, flag_off))
        a.I("s_add_u32 s%d, s%d, 1" % (S_T + 1, S_IT))
        a.I("v_mov_b32 %s, s%d" % (vr(TT), S_T + 1))
        a.I("v_mov_b32 %s, s%d" % (vr(TT + 1), S_NONCE))
        a.I("v_mov_b32 %s, 0" % vr(TT + 2))
        a.I("s_mov_b64 exec, 1")
        a.I("buffer_store_dwordx2 %s, %s, %s, s%d offen %s" % (vr(TT, 2), vr(TT + 2), ws, S_T, st))
        a.I("s_mov_b64 exec, -1")


def wait_flags(a, w, S_WS, flag_off, abort, n=32):
    if w == 0:
        a.I("s_add_u32 s%d, s%d, 0x%x" % (S_T, S_GF, flag_off))
        a.I("s_add_u32 s%d, s%d, 1" % (S_T + 1, S_IT))
        a.I("v_lshlrev_b32 %s, 1, %s" % (vr(TT + 3), vr(V_L4)))
        a.I("v_and_b32 %s, 255, %s" % (vr(TT + 3), vr(TT + 3)))
        a.I("v_mov_b32 %s, s%d" % (vr(TT + 2), S_T + 1))
        poll_lanes(a, S_WS, S_T, TT + 3, TT + 2, TT, S_T + 2, abort)
    a.I("s_barrier")


def reduce_rows(a, w, S_WS, s_rank, inb):
    ws = "s[%d:%d]" % (S_WS, S_WS + 3)
    a.I("s_lshl_b32 s%d, s%d, 15" % (S_T, s_rank))
    a.I("s_add_u32 s%d, s%d, s%d" % (S_T, S_T, S_GB))
    a.I("s_add_u32 s%d, s%d, 0x%x" % (S_T, S_T, inb + w * 256))
    for m in range(8):
        a.I("s_add_u32 s%d, s%d, %d" % (S_T + 1, S_T, m * 4096))
        a.I("buffer_load_dwordx4 %s, %s, %s, s%d offen sc1" % (vr(AO + 4 * m, 4), vr(V_R1), ws, S_T + 1))
    D2 = DO
    for m in range(8):
        a.I("s_waitcnt vmcnt(%d)" % (7 - m))
        a.I("v_mfma_f32_16x16x32_bf16 %s, %s, %s, %s" % (vr(D2, 4), vr(AO + 4 * m, 4), vr(SEL, 4), "0" if m == 0 else vr(D2, 4)))
    for r in range(4):
        a.I("ds_write_b32 %s, %s offset:%d" % (vr(V_ROWW), vr(D2 + r), r * 16))
    a.I("s_waitcnt lgkmcnt(0)")
    a.I("s_barrier")
    a.I("v_lshlrev_b32 %s, 1, %s" % (vr(TT + 7), vr(V_TID2)))
    a.I("ds_read_b64 %s, %s offset:%d" % (vr(TT + 8, 2), vr(TT + 7), L_ROW))
    a.I("s_waitcnt lgkmcnt(0)")


def store_partials(a, w, S_WS, s_rank, inb, st):
    ws = "s[%d:%d]" % (S_WS, S_WS + 3)
    a.I("s_lshl_b32 s%d, s%d, 10" % (S_T, s_rank))
    a.I("s_add_u32 s%d, s%d, s%d" % (S_T, S_T, S_GB))
    a.I("s_add_u32 s%d, s%d, 0x%x" % (S_T, S_T, inb + w * 256))
    for pi in range(2):
        for r in range(16):
            d = AO + (r & 7)
            a.I("v_cvt_pk_bf16_f32 %s, %s, %s" % (vr(d), vr(ACC + 32 * pi + r), vr(ACC + 32 * pi + 16 + r)))
            a.I("s_add_u32 s%d, s%d, s%d" % (S_T + 1 + (r & 1), S_T, S_TOK + r))
            a.I("buffer_store_dword %s, %s, %s, s%d offen offset:%d %s" % (vr(d), vr(V_P1), ws, S_T + 1 + (r & 1), pi * 128, st))


def tail_loop(a, w, S_WS, S_A, S_B, s_rank, pX, pOut, stride, st="", abort="L_abort", hooks=None, tag="t"):
    ws = "s[%d:%d]" % (S_WS, S_WS + 3)
    qt, eh = w & 1, w >> 1
    xs = "s[%d:%d]" % (S_A, S_A + 3)
    os_ = "s[%d:%d]" % (S_B, S_B + 3)
    srd(a, S_A, pX, 2048 * 1024)
    srd(a, S_B, pOut, 2048 * 1024)
    A_GA, A_SB, A_CB, A_GB, A_X1 = 240, 242, 244, 246, 248
    if hooks and "wait_mod" in hooks:
        hooks["wait_mod"](a, w)
    a.I("v_lshlrev_b32 %s, 1, %s" % (vr(TT), vr(V_TID2)))
    for (part, areg) in ((2, A_GA), (3, A_SB), (4, A_CB), (5, A_GB)):
        a.I("s_mov_b32 s%d, 0x%x" % (S_T, WS_MOD + part * 2048))
        a.I("buffer_load_dwordx2 %s, %s, %s, s%d offen sc1" % (ar(areg, 2), vr(TT), ws, S_T))
    a.I("s_waitcnt vmcnt(0)")
    Lp = "L_tail_w%d_%s" % (w, tag)
    Le = "L_tailend_w%d_%s" % (w, tag)
    a.label(Lp, clear=True)
    a.I("s_cmp_ge_u32 s%d, 64" % S_SEG)
    a.I("s_cbranch_scc1 %s" % Le)
    if hooks and "wait_inputs" in hooks:
        hooks["wait_inputs"](a, w)
    a.I("s_lshl_b32 s%d, s%d, 5" % (S_T, S_SEG))
    a.I("s_add_u32 s%d, s%d, s%d" % (S_T, S_T, s_rank))
    a.I("s_lshl_b32 s%d, s%d, 13" % (S_BASE_Q, S_T))
    a.I("s_lshl_b32 s%d, s%d, 11" % (S_BASE_M, S_T))
    t0, t1 = S_T + 1, S_T + 2
    a.I("s_add_u32 s%d, s%d, 0x%x" % (t0, S_BASE_Q, WS_QT + qt * 4096))
    for ks in range(4):
        a.I("buffer_load_dwordx4 %s, %s, %s, s%d offen offset:%d sc1" % (vr(QO + 4 * ks, 4), vr(V_L16), ws, t0, ks * 1024))
    a.I("s_add_u32 s%d, s%d, 0x%x" % (t0, S_BASE_Q, WS_KT))
    for ks in range(4):
        a.I("buffer_load_dwordx4 %s, %s, %s, s%d offen offset:%d sc1" % (vr(KO + 16 + 4 * ks, 4), vr(V_L16), ws, t0, ks * 1024))
    if qt == 1:
        a.I("s_add_u32 s%d, s%d, 0x%x" % (t0, S_BASE_Q, WS_KT + 4096))
        for ks in range(4):
            a.I("buffer_load_dwordx4 %s, %s, %s, s%d offen offset:%d sc1" % (vr(KO + 32 + 4 * ks, 4), vr(V_L16), ws, t0, ks * 1024))
    a.I("s_add_u32 s%d, s%d, 0x%x" % (t0, S_BASE_Q, WS_VT + eh * 4096))
    for j in range(4):
        a.I("buffer_load_dwordx4 %s, %s, %s, s%d offen offset:%d sc1" % (vr(VO + 4 * j, 4), vr(V_L16), ws, t0, j * 1024))
    a.I("s_lshl_b32 s%d, s%d, 10" % (t0, S_T))
    a.I("buffer_load_dword %s, %s, %s, s%d offen" % (vr(TT + 12), vr(V_TID2), xs, t0))
    if hooks and "wait_chain" in hooks:
        hooks["wait_chain"](a, w)
    if hooks and "stamp" in hooks:
        hooks["stamp"](a, w, 9)
    a.I("s_add_u32 s%d, s%d, 0x%x" % (t1, S_BASE_M, WS_KM))
    for ks in range(4):
        a.I("buffer_load_dwordx4 %s, %s, %s, s%d offen offset:%d sc1" % (vr(KO + 4 * ks, 4), vr(V_KMR), ws, t1, ks * 512))
    a.I("s_add_u32 s%d, s%d, 0x%x" % (t1, S_BASE_M, WS_VM + eh * 1024))
    for j in range(4):
        a.I("buffer_load_dword %s, %s, %s, s%d offen offset:%d sc1" % (vr(ZQ + 4 * j), vr(V_L4), ws, t1, j * 256))
    a.I("s_waitcnt vmcnt(0)")
    Sm, S0, S1 = SS, SS + 4, SS + 8
    for ks in range(4):
        B = vr(QO + 4 * ks, 4)
        a.I("v_mfma_f32_16x16x32_bf16 %s, %s, %s, %s" % (vr(Sm, 4), vr(KO + 4 * ks, 4), B, "0" if ks == 0 else vr(Sm, 4)))
        a.I("v_mfma_f32_16x16x32_bf16 %s, %s, %s, %s" % (vr(S0, 4), vr(KO + 16 + 4 * ks, 4), B, "0" if ks == 0 else vr(S0, 4)))
        if qt == 1:
            a.I("v_mfma_f32_16x16x32_bf16 %s, %s, %s, %s" % (vr(S1, 4), vr(KO + 32 + 4 * ks, 4), B, "0" if ks == 0 else vr(S1, 4)))
    Sd = S0 if qt == 0 else S1
    ninf, mx, tt, nmc = TT, TT + 1, TT + 2, TT + 3
    a.I("v_mov_b32 %s, 0xff800000" % vr(ninf))
    for r in range(4):
        a.I("v_cmp_le_i32 vcc, %d, %s" % (r, vr(V_DELTA)))
        a.I("v_cndmask_b32 %s, %s, %s, vcc" % (vr(Sd + r), vr(ninf), vr(Sd + r)))
    vals = [Sm, Sm + 1] + [S0 + r for r in range(4)] + ([S1 + r for r in range(4)] if qt == 1 else [])
    a.I("v_max3_f32 %s, %s, %s, %s" % (vr(mx), vr(vals[0]), vr(vals[1]), vr(vals[2])))
    rest = vals[3:]
    while len(rest) >= 2:
        a.I("v_max3_f32 %s, %s, %s, %s" % (vr(mx), vr(mx), vr(rest[0]), vr(rest[1])))
        rest = rest[2:]
    if rest:
        a.I("v_max_f32 %s, %s, %s" % (vr(mx), vr(mx), vr(rest[0])))
    a.I("v_mov_b32 %s, %s" % (vr(tt), vr(mx)))
    a.I("v_permlane32_swap_b32 %s, %s" % (vr(mx), vr(tt)))
    a.I("v_max_f32 %s, %s, %s" % (vr(mx), vr(mx), vr(tt)))
    a.I("v_mov_b32 %s, %s" % (vr(tt), vr(mx)))
    a.I("v_permlane16_swap_b32 %s, %s" % (vr(mx), vr(tt)))
    a.I("v_max_f32 %s, %s, %s" % (vr(mx), vr(mx), vr(tt)))
    a.I("v_mul_f32 %s, s%d, %s" % (vr(nmc), S_NC2, vr(mx)))
    for x in vals:
        a.I("v_fma_f32 %s, %s, s%d, %s" % (vr(x), vr(x), S_C2, vr(nmc)))
    for x in vals:
        a.I("v_exp_f32 %s, %s" % (vr(x), vr(x)))
    a.I("v_cvt_pk_bf16_f32 %s, %s, %s" % (vr(PP), vr(S0), vr(S0 + 1)))
    a.I("v_cvt_pk_bf16_f32 %s, %s, %s" % (vr(PP + 1), vr(S0 + 2), vr(S0 + 3)))
    if qt == 1:
        a.I("v_cvt_pk_bf16_f32 %s, %s, %s" % (vr(PP + 2), vr(S1), vr(S1 + 1)))
        a.I("v_cvt_pk_bf16_f32 %s, %s, %s" % (vr(PP + 3), vr(S1 + 2), vr(S1 + 3)))
    a.I("v_cvt_pk_bf16_f32 %s, %s, %s" % (vr(PP + 4), vr(Sm), vr(Sm + 1)))
    P, P0 = vr(PP, 4), vr(PP + 4, 4)
    DS = DO + 16
    a.I("v_mfma_f32_16x16x32_bf16 %s, %s, %s, 0" % (vr(DS, 4), vr(ONES, 4), P))
    a.I("v_mfma_f32_16x16x32_bf16 %s, %s, %s, %s" % (vr(DS, 4), vr(ONES, 4), P0, vr(DS, 4)))
    for j in range(4):
        a.I("v_mfma_f32_16x16x32_bf16 %s, %s, %s, 0" % (vr(DO + 4 * j, 4), vr(VO + 4 * j, 4), P))
    for j in range(4):
        a.I("v_mfma_f32_16x16x32_bf16 %s, %s, %s, %s" % (vr(DO + 4 * j, 4), vr(ZQ + 4 * j, 4), P0, vr(DO + 4 * j, 4)))
    a.I("v_rcp_f32 %s, %s" % (vr(tt), vr(DS)))
    for i in range(16):
        a.I("v_mul_f32 %s, %s, %s" % (vr(DO + i), vr(DO + i), vr(tt)))
    for pp in range(2):
        for i in range(4):
            a.I("v_cvt_pk_bf16_f32 %s, %s, %s" % (vr(AO + 4 * pp + i), vr(DO + 8 * pp + 2 * i), vr(DO + 8 * pp + 2 * i + 1)))
        a.I("ds_write_b128 %s, %s offset:%d" % (vr(V_O2W), vr(AO + 4 * pp, 4), 2 * (2 * eh + pp) * 1024))
    a.I("s_waitcnt lgkmcnt(0)")
    a.I("s_barrier")
    for ks in range(8):
        a.I("ds_read_b128 %s, %s offset:%d" % (vr(AO + 4 * ks, 4), vr(V_L16), L_O2 + ks * 1024))
    for ks in range(8):
        a.I("s_waitcnt lgkmcnt(%d)" % (7 - ks))
        for nu in range(4):
            a.I("v_mfma_f32_32x32x16_bf16 %s, %s, %s, %s"
                % (vr(ACC + 16 * nu, 16), vr(AO + 4 * ks, 4), ar(A_WO + (nu * 8 + ks) * 4, 4), "0" if ks == 0 else vr(ACC + 16 * nu, 16)))
    if hooks and "stamp" in hooks:
        hooks["stamp"](a, w, 10)
    store_partials(a, w, S_WS, s_rank, G_INB1, st)
    signal(a, w, S_WS, s_rank, 0, st)
    wait_flags(a, w, S_WS, 0, abort)
    if hooks and "stamp" in hooks:
        hooks["stamp"](a, w, 11)
    reduce_rows(a, w, S_WS, s_rank, G_INB1)
    A0, A1 = TT + 8, TT + 9
    x0, x1 = TT + 10, TT + 11
    g0, g1 = TT + 4, TT + 5
    a.I("v_lshlrev_b32 %s, 16, %s" % (vr(x0), vr(TT + 12)))
    a.I("v_and_b32 %s, 0xffff0000, %s" % (vr(x1), vr(TT + 12)))
    a.I("v_accvgpr_read_b32 %s, %s" % (vr(g0), ar(A_GA)))
    a.I("v_accvgpr_read_b32 %s, %s" % (vr(g1), ar(A_GA + 1)))
    for (A_, g_, x_) in ((A0, g0, x0), (A1, g1, x1)):
        rbf(a, A_, A_)
        a.I("v_mul_f32 %s, %s, %s" % (vr(A_), vr(A_), vr(g_)))
        rbf(a, A_, A_)
        a.I("v_add_f32 %s, %s, %s" % (vr(x_), vr(x_), vr(A_)))
        rbf(a, x_, x_)
    a.I("v_accvgpr_write_b32 %s, %s" % (ar(A_X1), vr(x0)))
    a.I("v_accvgpr_write_b32 %s, %s" % (ar(A_X1 + 1), vr(x1)))
    s1_, s2_ = TT + 16, TT + 17
    a.I("v_add_f32 %s, %s, %s" % (vr(s1_), vr(x0), vr(x1)))
    a.I("v_mul_f32 %s, %s, %s" % (vr(s2_), vr(x0), vr(x0)))
    a.I("v_fmac_f32 %s, %s, %s" % (vr(s2_), vr(x1), vr(x1)))
    wave_allreduce_add(a, s1_, TT + 15)
    wave_allreduce_add(a, s2_, TT + 15)
    a.I("v_mov_b32 %s, %d" % (vr(TT + 15), L_ST + w * 8))
    a.I("ds_write_b64 %s, %s" % (vr(TT + 15), vr(s1_, 2)))
    a.I("s_waitcnt lgkmcnt(0)")
    a.I("s_barrier")
    a.I("v_mov_b32 %s, %d" % (vr(TT + 15), L_ST))
    a.I("ds_read_b128 %s, %s" % (vr(DO, 4), vr(TT + 15)))
    a.I("ds_read_b128 %s, %s offset:16" % (vr(DO + 4, 4), vr(TT + 15)))
    a.I("s_waitcnt lgkmcnt(0)")
    a.I("v_add_f32 %s, %s, %s" % (vr(s1_), vr(DO), vr(DO + 2)))
    a.I("v_add_f32 %s, %s, %s" % (vr(s2_), vr(DO + 1), vr(DO + 3)))
    a.I("v_add_f32 %s, %s, %s" % (vr(s1_), vr(s1_), vr(DO + 4)))
    a.I("v_add_f32 %s, %s, %s" % (vr(s2_), vr(s2_), vr(DO + 5)))
    a.I("v_add_f32 %s, %s, %s" % (vr(s1_), vr(s1_), vr(DO + 6)))
    a.I("v_add_f32 %s, %s, %s" % (vr(s2_), vr(s2_), vr(DO + 7)))
    a.I("v_mul_f32 %s, 0x3b000000, %s" % (vr(s1_), vr(s1_)))
    a.I("v_mul_f32 %s, 0x3b000000, %s" % (vr(s2_), vr(s2_)))
    a.I("v_fma_f32 %s, -%s, %s, %s" % (vr(s2_), vr(s1_), vr(s1_), vr(s2_)))
    a.I("v_max_f32 %s, 0, %s" % (vr(s2_), vr(s2_)))
    rbf(a, s1_, s1_)
    rbf(a, s2_, s2_)
    a.I("v_add_f32 %s, 0x3727c5ac, %s" % (vr(s2_), vr(s2_)))
    rbf(a, s2_, s2_)
    a.I("v_sqrt_f32 %s, %s" % (vr(s2_), vr(s2_)))
    rbf(a, s2_, s2_)
    a.I("v_rcp_f32 %s, %s" % (vr(s2_), vr(s2_)))
    a.I("v_accvgpr_read_b32 %s, %s" % (vr(g0), ar(A_CB)))
    a.I("v_accvgpr_read_b32 %s, %s" % (vr(g1), ar(A_CB + 1)))
    a.I("v_accvgpr_read_b32 %s, %s" % (vr(A0), ar(A_SB)))
    a.I("v_accvgpr_read_b32 %s, %s" % (vr(A1), ar(A_SB + 1)))
    for (x_, g_, A_) in ((x0, g0, A0), (x1, g1, A1)):
        a.I("v_sub_f32 %s, %s, %s" % (vr(x_), vr(x_), vr(s1_)))
        a.I("v_mul_f32 %s, %s, %s" % (vr(x_), vr(x_), vr(s2_)))
        a.I("v_fma_f32 %s, %s, %s, %s" % (vr(x_), vr(x_), vr(g_), vr(A_)))
    a.I("v_cvt_pk_bf16_f32 %s, %s, %s" % (vr(x0), vr(x0), vr(x1)))
    a.I("s_add_u32 s%d, s%d, 0x%x" % (S_T, S_GB, G_H2))
    a.I("buffer_store_dword %s, %s, %s, s%d offen %s" % (vr(x0), vr(V_H2W), ws, S_T, st))
    signal(a, w, S_WS, s_rank, 256, st)
    wait_flags(a, w, S_WS, 256, abort)
    if hooks and "stamp" in hooks:
        hooks["stamp"](a, w, 12)
    a.I("s_add_u32 s%d, s%d, 0x%x" % (S_T, S_GB, G_H2 + w * 8192))
    for p in range(8):
        a.I("s_mov_b32 m0, %d" % (L_H2 + w * 8192 + p * 1024))
        a.I("s_add_u32 s%d, s%d, %d" % (S_T + 1, S_T, p * 1024))
        a.I("buffer_load_dwordx4 %s, %s, s%d offen sc1 lds" % (vr(V_L16), ws, S_T + 1))
    a.I("s_waitcnt vmcnt(0)")
    a.I("s_barrier")
    if w < 3:
        HB = KO
        for T_ in range(2):
            for ks in range(16):
                a.I("ds_read_b128 %s, %s offset:%d" % (vr(HB + 4 * ks, 4), vr(V_L16), L_H2 + (T_ * 16 + ks) * 1024))
            for ks in range(16):
                a.I("s_waitcnt lgkmcnt(%d)" % (15 - ks))
                a.I("v_mfma_f32_16x16x32_bf16 %s, %s, %s, %s"
                    % (vr(DO + 4 * T_, 4), ar(A_W1 + 4 * ks, 4), vr(HB + 4 * ks, 4), "0" if ks == 0 else vr(DO + 4 * T_, 4)))
        for T_ in range(2):
            for r in range(4):
                a.I("v_max_f32 %s, 0, %s" % (vr(DO + 4 * T_ + r), vr(DO + 4 * T_ + r)))
            a.I("v_cvt_pk_bf16_f32 %s, %s, %s" % (vr(DO + 8 + 2 * T_), vr(DO + 4 * T_), vr(DO + 4 * T_ + 1)))
            a.I("v_cvt_pk_bf16_f32 %s, %s, %s" % (vr(DO + 8 + 2 * T_ + 1), vr(DO + 4 * T_ + 2), vr(DO + 4 * T_ + 3)))
            a.I("ds_write_b64 %s, %s offset:%d" % (vr(V_FW), vr(DO + 8 + 2 * T_, 2), T_ * 256))
        a.I("s_waitcnt lgkmcnt(0)")
    a.I("s_barrier")
    for ks in range(3):
        a.I("ds_read_b128 %s, %s offset:%d" % (vr(AO + 4 * ks, 4), vr(V_L16), L_F + ks * 1024))
    for ks in range(3):
        a.I("s_waitcnt lgkmcnt(%d)" % (2 - ks))
        for nu in range(4):
            a.I("v_mfma_f32_32x32x16_bf16 %s, %s, %s, %s"
                % (vr(ACC + 16 * nu, 16), vr(AO + 4 * ks, 4), ar(A_W2 + (nu * 3 + ks) * 4, 4), "0" if ks == 0 else vr(ACC + 16 * nu, 16)))
    if hooks and "stamp" in hooks:
        hooks["stamp"](a, w, 13)
    store_partials(a, w, S_WS, s_rank, G_INB2, st)
    signal(a, w, S_WS, s_rank, 512, st)
    wait_flags(a, w, S_WS, 512, abort)
    if hooks and "stamp" in hooks:
        hooks["stamp"](a, w, 14)
    reduce_rows(a, w, S_WS, s_rank, G_INB2)
    a.I("v_accvgpr_read_b32 %s, %s" % (vr(g0), ar(A_GB)))
    a.I("v_accvgpr_read_b32 %s, %s" % (vr(g1), ar(A_GB + 1)))
    a.I("v_accvgpr_read_b32 %s, %s" % (vr(x0), ar(A_X1)))
    a.I("v_accvgpr_read_b32 %s, %s" % (vr(x1), ar(A_X1 + 1)))
    for (A_, g_, x_) in ((A0, g0, x0), (A1, g1, x1)):
        rbf(a, A_, A_)
        a.I("v_mul_f32 %s, %s, %s" % (vr(A_), vr(A_), vr(g_)))
        rbf(a, A_, A_)
        a.I("v_add_f32 %s, %s, %s" % (vr(x_), vr(x_), vr(A_)))
    a.I("v_cvt_pk_bf16_f32 %s, %s, %s" % (vr(x0), vr(x0), vr(x1)))
    a.I("s_lshl_b32 s%d, s%d, 5" % (S_T, S_SEG))
    a.I("s_add_u32 s%d, s%d, s%d" % (S_T, S_T, s_rank))
    a.I("s_lshl_b32 s%d, s%d, 10" % (S_T, S_T))
    a.I("buffer_store_dword %s, %s, %s, s%d offen" % (vr(x0), vr(V_TID2), os_, S_T))
    a.I("s_add_u32 s%d, s%d, %d" % (S_SEG, S_SEG, stride))
    a.I("s_add_u32 s%d, s%d, 1" % (S_IT, S_IT))
    a.I("s_branch %s" % Lp)
    a.label(Le, clear=True)
    a.I("s_waitcnt vmcnt(0)")


def poll_lanes(a, S_WS, s_off, v_addr, v_thr, v_tmp, s_cnt, abort, sleep=0, limit=300000):
    ws = "s[%d:%d]" % (S_WS, S_WS + 3)
    L = a.newlabel("pl")
    a.I("s_mov_b32 s%d, %d" % (s_cnt, limit))
    a.label(L)
    a.I("buffer_load_dwordx2 %s, %s, %s, s%d offen sc1" % (vr(v_tmp, 2), vr(v_addr), ws, s_off))
    a.I("s_sub_u32 s%d, s%d, 1" % (s_cnt, s_cnt))
    a.I("s_cmp_eq_u32 s%d, 0" % s_cnt)
    a.I("s_cbranch_scc1 %s" % abort)
    a.I("s_waitcnt vmcnt(0)")
    a.I("v_cmp_eq_u32 vcc, s%d, %s" % (S_NONCE, vr(v_tmp + 1)))
    a.I("v_cndmask_b32 %s, 0, %s, vcc" % (vr(v_tmp), vr(v_tmp)))
    a.I("v_cmp_gt_u32 vcc, %s, %s" % (vr(v_thr), vr(v_tmp)))
    if sleep:
        L2 = a.newlabel("plx")
        a.I("s_cbranch_vccz %s" % L2)
        a.I("s_sleep %d" % sleep)
        a.I("s_branch %s" % L)
        a.label(L2)
    else:
        a.I("s_cbranch_vccnz %s" % L)


def fused_hooks(S_WS, s_rank, abort):
    def wait_mod(a, w):
        if w == 0:
            a.I("s_mov_b32 s%d, 0x%x" % (S_T, FL_MOD))
            a.I("v_mov_b32 %s, 1" % vr(TT + 2))
            a.I("v_cmp_gt_u32 vcc, 48, %s" % vr(V_LANE))
            a.I("v_cndmask_b32 %s, 0, %s, vcc" % (vr(TT + 2), vr(TT + 2)))
            a.I("v_lshlrev_b32 %s, 1, %s" % (vr(TT + 3), vr(V_L4)))
            poll_lanes(a, S_WS, S_T, TT + 3, TT + 2, TT, S_T + 2, abort, sleep=2)
        a.I("s_barrier")

    def thr(a, chain_part):
        a.I("s_lshl_b32 s%d, s%d, 6" % (S_T, s_rank))
        a.I("s_add_u32 s%d, s%d, 0x%x" % (S_T, S_T, FL_PROG))
        a.I("v_lshlrev_b32 %s, 1, %s" % (vr(TT + 3), vr(V_L4)))
        a.I("v_and_b32 %s, 63, %s" % (vr(TT + 3), vr(TT + 3)))
        if chain_part:
            a.I("s_add_u32 s%d, s%d, 1" % (S_T + 4, S_SEG))
            a.I("v_mov_b32 %s, s%d" % (vr(TT + 2), S_T + 4))
            a.I("v_cmp_eq_u32 vcc, 6, %s" % vr(V_LANE))
            a.I("v_cndmask_b32 %s, 0, %s, vcc" % (vr(TT + 2), vr(TT + 2)))
        else:
            a.I("s_lshr_b32 s%d, s%d, 1" % (S_T + 1, S_SEG))
            a.I("s_add_u32 s%d, s%d, 1" % (S_T + 1, S_T + 1))
            a.I("s_and_b32 s%d, s%d, 1" % (S_T + 3, S_SEG))
            a.I("v_and_b32 %s, 1, %s" % (vr(TT + 4), vr(V_LANE)))
            a.I("v_mov_b32 %s, s%d" % (vr(TT + 2), S_T + 1))
            a.I("v_cmp_eq_u32 vcc, s%d, %s" % (S_T + 3, vr(TT + 4)))
            a.I("v_cndmask_b32 %s, 0, %s, vcc" % (vr(TT + 2), vr(TT + 2)))
            a.I("v_cmp_gt_u32 vcc, 6, %s" % vr(V_LANE))
            a.I("v_cndmask_b32 %s, 0, %s, vcc" % (vr(TT + 2), vr(TT + 2)))

    def wait_inputs(a, w):
        if w == 0:
            thr(a, False)
            poll_lanes(a, S_WS, S_T, TT + 3, TT + 2, TT, S_T + 2, abort, sleep=4)
        a.I("s_barrier")

    def wait_chain(a, w):
        if w == 0:
            thr(a, True)
            poll_lanes(a, S_WS, S_T, TT + 3, TT + 2, TT, S_T + 2, abort, sleep=1)
        a.I("s_barrier")
    return {"wait_mod": wait_mod, "wait_inputs": wait_inputs, "wait_chain": wait_chain}
```

```python
import sys
from common import *
import pre, front, tail, chain
from chain import *
from tail import poll_lanes

D_TK0, D_NONCE, D_CHAIN = 128, 132, 136
L_BCAST = 163840 - 64

S_MODE = 32
FORCE_SLOW = False
D_GTK = 140
S_XCC, S_TK, S_FI = 33, 21, 35


STAMPS = False
WS_STAMP = 0x00080000


DBGT = False
OPT = {}


def dbgmax(a, off, vt, neg=False):
    if not DBGT:
        return
    L = a.newlabel("dm")
    a.I("s_cmp_lg_u32 s%d, 0" % S_WAVE)
    a.I("s_cbranch_scc1 %s" % L)
    a.I("s_memrealtime s[94:95]")
    a.I("s_waitcnt lgkmcnt(0)")
    if neg:
        a.I("s_not_b32 s94, s94")
    a.I("v_mov_b32 v%d, s94" % vt)
    a.I("v_mov_b32 v%d, %d" % (vt + 1, off))
    a.I("s_mov_b64 exec, 1")
    a.I("buffer_atomic_umax v%d, v%d, s[%d:%d], 0 offen" % (vt, vt + 1, S_DBG, S_DBG + 3))
    a.I("s_mov_b64 exec, -1")
    a.label(L)


def stamp(a, slot, vt=250):
    if DBGT:
        m = {1: (32, True), 3: None, 5: 40, 6: 44, 8: 48, 4: 52}
        return
    if not STAMPS:
        return
    L = a.newlabel("st")
    a.I("s_cmp_lg_u32 s%d, 0" % S_WAVE)
    a.I("s_cbranch_scc1 %s" % L)
    a.I("s_memrealtime s[94:95]")
    a.I("s_lshl_b32 s93, s3, 6")
    a.I("s_add_u32 s93, s93, 0x%x" % (WS_STAMP + slot * 4))
    a.I("s_waitcnt lgkmcnt(0)")
    a.I("v_mov_b32 v%d, s94" % vt)
    a.I("v_mov_b32 v%d, 0" % (vt + 1))
    a.I("s_mov_b64 exec, 1")
    a.I("buffer_store_dword v%d, v%d, s[%d:%d], s93 offen sc1" % (vt, vt + 1, S_WS, S_WS + 3))
    a.I("s_mov_b64 exec, -1")
    a.label(L)


def entry(a):
    a.I("s_cmp_ge_u32 s2, 256")
    a.I("s_cbranch_scc1 L_exit")
    a.I("s_load_dwordx4 s[%d:%d], s[0:1], %d" % (S_PTR + 12, S_PTR + 15, K_DBG))
    a.I("s_load_dwordx8 s[%d:%d], s[0:1], %d" % (S_PTR, S_PTR + 7, K_WQ))
    a.I("s_memrealtime s[96:97]")
    if STAMPS:
        a.I("s_mov_b32 s3, s2")
    a.I("v_and_b32 %s, 63, v0" % vr(V_T))
    a.I("v_lshrrev_b32 v1, 6, v0")
    a.I("s_getreg_b32 s%d, hwreg(HW_REG_XCC_ID, 0, 4)" % S_XCC)
    a.I("v_readfirstlane_b32 s%d, v1" % S_WAVE)
    a.I("s_waitcnt lgkmcnt(0)")
    srd(a, S_DBG, S_PTR + 12, 256)
    srd(a, S_WS, S_PTR + 14, WS_SIZE)
    a.I("s_mov_b32 s%d, 0x00020000" % (S_W + 3))
    a.I("s_mov_b32 s%d, 0" % S_MODE)
    PF = OPT.get("pf", 0)

    def prefetch():
        L = a.newlabel("nopf")
        a.I("s_cmp_eq_u32 s%d, 0" % S_XCC)
        a.I("s_cbranch_scc1 %s" % L)
        for i in range(16):
            if i % 4 == 0:
                a.I("s_add_u32 s%d, s%d, %d" % (S_T0 + 3, S_T0 + 2, i * 1024))
            a.I("buffer_load_dwordx4 %s, v7, s[%d:%d], s%d offen offset:%d" % (vr(176 + 4 * i, 4), S_W, S_W + 3, S_T0 + 3, (i % 4) * 1024))
        a.label(L)
    if PF:
        a.I("s_mov_b32 s%d, s%d" % (S_W, S_PTR))
        a.I("s_mov_b32 s%d, s%d" % (S_W + 1, S_PTR + 1))
        for w in range(1, 4):
            a.I("s_cmp_eq_u32 s%d, %d" % (S_WAVE, w))
            a.I("s_cselect_b32 s%d, s%d, s%d" % (S_W, S_PTR + 2 * w, S_W))
            a.I("s_cselect_b32 s%d, s%d, s%d" % (S_W + 1, S_PTR + 2 * w + 1, S_W + 1))
        a.I("s_mov_b32 s%d, 0x400000" % (S_W + 2))
        a.I("s_lshl_b32 s%d, s2, 14" % (S_T0 + 2))
        a.I("v_lshlrev_b32 v7, 4, %s" % vr(V_T))
    a.I("s_cmp_lg_u32 s%d, 0" % S_WAVE)
    a.I("s_cbranch_scc1 L_el_other")
    a.I("s_and_b32 s%d, s%d, 7" % (S_T0, S_XCC))
    a.I("s_lshl_b32 s%d, s%d, 2" % (S_T0, S_T0))
    a.I("s_cmp_eq_u32 s%d, 0" % S_T0)
    a.I("s_cselect_b32 s%d, %d, s%d" % (S_T0, D_TK0, S_T0))
    a.I("v_mov_b32 v2, 1")
    a.I("v_mov_b32 v3, s%d" % S_T0)
    a.I("s_mov_b64 exec, 1")
    a.I("buffer_atomic_add v2, v3, s[%d:%d], 0 offen sc0" % (S_DBG, S_DBG + 3))
    if PF:
        Lc = a.newlabel("elc")
        Ld = a.newlabel("eld")
        a.I("s_cmp_eq_u32 s%d, 0" % S_XCC)
        a.I("s_cbranch_scc1 %s" % Lc)
        a.I("s_mov_b64 exec, -1")
        prefetch()
        a.I("s_mov_b64 exec, 1")
        a.I("s_waitcnt vmcnt(16)")
        a.I("s_branch %s" % Ld)
        a.label(Lc)
        a.I("s_waitcnt vmcnt(0)")
        a.label(Ld)
    else:
        a.I("s_waitcnt vmcnt(0)")
    a.I("v_readfirstlane_b32 s%d, v2" % (S_T0 + 1))
    a.I("s_cmp_lg_u32 s%d, 0" % (S_T0 + 1))
    a.I("s_cbranch_scc1 L_el_nononce")
    a.I("s_or_b32 s%d, s96, 1" % (S_T0 + 1))
    a.I("v_mov_b32 v4, s%d" % (S_T0 + 1))
    a.I("v_mov_b32 v5, 0")
    a.I("v_mov_b32 v6, %d" % D_NONCE)
    a.I("buffer_atomic_cmpswap v[4:5], v6, s[%d:%d], 0 offen" % (S_DBG, S_DBG + 3))
    a.label("L_el_nononce")
    a.I("v_mov_b32 v3, %d" % L_BCAST)
    a.I("ds_write_b32 v3, v2")
    a.I("s_mov_b64 exec, -1")
    a.I("s_branch L_el_wait")
    a.label("L_el_other")
    if PF:
        prefetch()
    a.label("L_el_wait")
    a.I("s_waitcnt lgkmcnt(0)")
    a.I("s_barrier")
    a.I("v_mov_b32 v3, %d" % L_BCAST)
    a.I("ds_read_b32 v2, v3")
    a.I("s_waitcnt lgkmcnt(0)")
    a.I("v_readfirstlane_b32 s%d, v2" % S_TK)
    a.I("s_barrier")
    if STAMPS:
        L = a.newlabel("st")
        a.I("s_cmp_lg_u32 s%d, 0" % S_WAVE)
        a.I("s_cbranch_scc1 %s" % L)
        a.I("s_lshl_b32 s93, s3, 6")
        a.I("s_add_u32 s93, s93, 0x%x" % WS_STAMP)
        a.I("s_lshl_b32 s94, s%d, 8" % S_XCC)
        a.I("s_add_u32 s94, s94, s%d" % S_TK)
        a.I("v_mov_b32 v10, s96")
        a.I("v_mov_b32 v11, 0")
        a.I("v_mov_b32 v12, s94")
        a.I("s_mov_b64 exec, 1")
        a.I("buffer_store_dword v10, v11, s[%d:%d], s93 offen sc1" % (S_WS, S_WS + 3))
        a.I("buffer_store_dword v12, v11, s[%d:%d], s93 offen offset:60 sc1" % (S_WS, S_WS + 3))
        a.I("s_mov_b64 exec, -1")
        a.label(L)
    stamp(a, 1, 10)
    dbgmax(a, 36, 10, neg=True)


def verify_issue(a, vt):
    a.I("v_mov_b32 %s, 0" % vr(vt + 12))
    a.I("buffer_load_dwordx4 %s, %s, s[%d:%d], 0 offen sc1" % (vr(vt, 4), vr(vt + 12), S_DBG, S_DBG + 3))
    a.I("buffer_load_dwordx4 %s, %s, s[%d:%d], 0 offen offset:16 sc1" % (vr(vt + 4, 4), vr(vt + 12), S_DBG, S_DBG + 3))
    a.I("buffer_load_dwordx2 %s, %s, s[%d:%d], 0 offen offset:%d sc1" % (vr(vt + 8, 2), vr(vt + 12), S_DBG, S_DBG + 3, D_TK0))


def verify(a, vt, st, slow, pre=False):
    L = a.newlabel("vf")
    Le = a.newlabel("vfe")
    Lskip = a.newlabel("vfx")
    a.I("s_cmp_lg_u32 s%d, 0" % S_MODE)
    a.I("s_cbranch_scc1 %s" % Lskip)
    a.I("s_mov_b32 s%d, 200000" % st)
    if pre:
        a.I("s_branch %s" % Le)
    a.label(L)
    verify_issue(a, vt)
    a.I("s_sub_u32 s%d, s%d, 1" % (st, st))
    a.I("s_cmp_eq_u32 s%d, 0" % st)
    a.I("s_cbranch_scc1 L_abort")
    a.I("s_waitcnt vmcnt(0)")
    a.label(Le)
    a.I("v_add3_u32 %s, %s, %s, %s" % (vr(vt + 10), vr(vt + 1), vr(vt + 2), vr(vt + 3)))
    a.I("v_add3_u32 %s, %s, %s, %s" % (vr(vt + 10), vr(vt + 10), vr(vt + 4), vr(vt + 5)))
    a.I("v_add3_u32 %s, %s, %s, %s" % (vr(vt + 10), vr(vt + 10), vr(vt + 6), vr(vt + 7)))
    a.I("v_add_u32 %s, %s, %s" % (vr(vt + 10), vr(vt + 10), vr(vt + 8)))
    a.I("v_max3_u32 %s, %s, %s, %s" % (vr(vt + 11), vr(vt + 1), vr(vt + 2), vr(vt + 3)))
    a.I("v_max3_u32 %s, %s, %s, %s" % (vr(vt + 11), vr(vt + 11), vr(vt + 4), vr(vt + 5)))
    a.I("v_max3_u32 %s, %s, %s, %s" % (vr(vt + 11), vr(vt + 11), vr(vt + 6), vr(vt + 7)))
    a.I("v_max_u32 %s, %s, %s" % (vr(vt + 11), vr(vt + 11), vr(vt + 8)))
    a.I("v_cmp_lt_u32 vcc, 0x100, %s" % vr(vt + 10))
    a.I("s_cbranch_vccnz L_abort")
    a.I("v_cmp_ne_u32 vcc, 0x100, %s" % vr(vt + 10))
    a.I("s_cbranch_vccnz %s" % L)
    a.I("v_cmp_eq_u32 vcc, 0, %s" % vr(vt + 9))
    a.I("s_cbranch_vccnz %s" % L)
    a.I("v_readfirstlane_b32 s%d, %s" % (S_NONCE, vr(vt + 9)))
    a.I("v_readfirstlane_b32 s%d, %s" % (st, vr(vt + 11)))
    a.I("s_cmp_lg_u32 s%d, %d" % (st, 33 if FORCE_SLOW else 32))
    a.I("s_cbranch_scc1 %s" % slow)
    a.label(Lskip)


def set_flag(a, S_WSq, s_off, s_val, vt, s_wave):
    L = a.newlabel("sf")
    a.I("s_cmp_lg_u32 s%d, 0" % s_wave)
    a.I("s_cbranch_scc1 %s" % L)
    a.I("v_mov_b32 %s, %s" % (vr(vt), s_val))
    a.I("v_mov_b32 %s, s%d" % (vr(vt + 1), S_NONCE))
    a.I("v_mov_b32 %s, 0" % vr(vt + 2))
    a.I("s_mov_b64 exec, 1")
    a.I("buffer_store_dwordx2 %s, %s, s[%d:%d], s%d offen sc1" % (vr(vt, 2), vr(vt + 2), S_WSq, S_WSq + 3, s_off))
    a.I("s_mov_b64 exec, -1")
    a.label(L)


def chain_part(a, timing, kw):
    a.label("L_chain", clear=True)
    a.I("s_load_dwordx8 s[%d:%d], s[0:1], 8" % (S_PTR, S_PTR + 7))
    a.I("s_load_dwordx2 s[%d:%d], s[0:1], 40" % (S_PTR + 8, S_PTR + 9))
    a.I("s_waitcnt lgkmcnt(0)")
    for w in range(1, 4):
        a.I("s_cmp_eq_u32 s%d, %d" % (S_WAVE, w))
        a.I("s_cbranch_scc1 L_wave%d" % w)
    for w in range(4):
        a.label("L_wave%d" % w, clear=True)
        if w == 0: stamp(a, 2, V_MEM)
        VV, VI, VH = 224, 200, 224

        def h1(a):
            verify_issue(a, VV)
            init_issue(a, w, VI)

        def h5(a):
            verify(a, VV, S_RETRY, "L_slow", pre=True)
            init_stores(a, w, VI, "sc1")

        def h9(a):
            a.I("s_barrier")
            if w == 2:
                a.I("s_mov_b64 exec, 1")
                a.I("v_mov_b32 v%d, 1" % VI)
                a.I("v_mov_b32 v%d, %d" % (VI + 1, D_CHAIN))
                a.I("buffer_atomic_add v%d, v%d, s[%d:%d], 0 offen" % (VI, VI + 1, S_DBG, S_DBG + 3))
                a.I("s_mov_b64 exec, -1")
            setup_scalar(a, w, True)

        def h11(a):
            horizon_issue(a, VH)

        def h12(a):
            a.I("s_mov_b32 s%d, 0" % (S_T0 + 5))
            horizon_refresh(a, S_T0 + 5, "L_abort", vb=VH, pre=True)
            k0_dma(a, w)
            a.I("v_mov_b32 v%d, %d" % (VH + 8, D_CHAIN))
            a.I("buffer_load_dword v%d, v%d, s[%d:%d], 0 offen sc1" % (VH + 9, VH + 8, S_DBG, S_DBG + 3))
        load_weights(a, w, OPT.get('wflags', ''), hooks={1: h1, 5: h5, 9: h9, 10: h11, 12: h12})
        if w == 0: stamp(a, 3, V_MEM)
        if w == 0: dbgmax(a, 52, V_MEM)
        setup_regs(a, w)
        if w == 0: stamp(a, 4, V_MEM)
        lp = a.newlabel("arr")
        lq = a.newlabel("arq")
        a.I("s_mov_b32 s%d, %d" % (S_RETRY, RETRY_MAX))
        a.I("s_branch %s" % lq)
        a.label(lp)
        a.I("buffer_load_dword v%d, v%d, s[%d:%d], 0 offen sc1" % (VH + 9, VH + 8, S_DBG, S_DBG + 3))
        a.I("s_sub_u32 s%d, s%d, 1" % (S_RETRY, S_RETRY))
        a.I("s_cmp_eq_u32 s%d, 0" % S_RETRY)
        a.I("s_cbranch_scc1 L_abort")
        a.I("s_waitcnt vmcnt(0)")
        a.label(lq)
        a.I("v_cmp_ne_u32 vcc, 32, v%d" % (VH + 9))
        a.I("s_cbranch_vccnz %s" % lp)
        a.I("s_waitcnt vmcnt(0)")
        a.I("s_barrier")
        if w == 0: stamp(a, 5, V_MEM)
        if w == 0: dbgmax(a, 40, V_MEM)
        a.I("s_cmp_lg_u32 s%d, 0" % S_MODE)
        a.I("s_cbranch_scc1 L_cslow%d" % w)
        chain_loop(a, w, timing=timing, exp="latepois," + OPT.get("exp", ""), fused=True, tag="f", **kw)
        if w == 0: stamp(a, 6, V_MEM)
        if w == 0: dbgmax(a, 44, V_MEM)
        a.I("s_endpgm")
    for w in range(4):
        a.label("L_cslow%d" % w, clear=True)
        if OPT.get("noslow"):
            a.I("s_endpgm")
            continue
        chain_loop(a, w, st_flags="sc1", timing=False, exp="latepois", fused=True, tag="s", looptime=False,
                   **{k: v for k, v in kw.items() if k != "looptime"})
        a.I("s_endpgm")


def worker_part(a):
    a.label("L_worker", clear=True)
    lane = 1
    sW = S_WAVE
    a.I("s_sub_u32 s%d, s%d, 1" % (S_FI, S_XCC))
    a.I("s_lshl_b32 s%d, s%d, 5" % (S_FI, S_FI))
    a.I("s_add_u32 s%d, s%d, s%d" % (S_FI, S_FI, S_TK))
    a.I("v_and_b32 v%d, 63, v0" % lane)
    a.I("s_load_dwordx2 s[22:23], s[0:1], %d" % K_X)
    a.I("s_load_dwordx4 s[24:27], s[0:1], %d" % K_C)
    a.I("s_load_dwordx4 s[28:31], s[0:1], %d" % K_WQ)
    a.I("s_load_dwordx2 s[36:37], s[0:1], %d" % K_WV)
    a.I("s_waitcnt lgkmcnt(0)")
    a.I("s_cmp_lt_u32 s%d, 192" % S_FI)
    a.I("s_cbranch_scc1 L_front")
    a.I("s_sub_u32 s38, s%d, 192" % S_FI)
    LV = 112
    srd(a, 4, 22, 2048 * 1024)
    a.I("s_lshl_b32 s39, s38, 5")
    R0 = pre.ln_stats(a, 4, 39, sW, lane, LV, 0)
    a.I("s_add_u32 s39, s39, 1024")
    R1 = pre.ln_stats(a, 4, 39, sW, lane, LV + 0, 1) if False else None
    pre.mod_role(a, S_WS, 12, 40, 38, sW, lane, 24, 26, 140000)
    verify(a, 16, 90, "L_slow")
    a.I("s_lshl_b32 s90, s38, 3")
    a.I("s_add_u32 s90, s90, 0x%x" % FL_MOD)
    set_flag(a, S_WS, 90, "1", 16, sW)
    stamp(a, 2, 16)
    pre.ln_stats2(a, *R0)
    Lx = a.newlabel("lnw")
    a.I("s_cmp_lg_u32 s%d, 0" % sW)
    a.I("s_cbranch_scc1 %s" % Lx)
    a.I("s_mov_b32 s90, 0x%x" % FL_MOD)
    a.I("v_lshlrev_b32 v16, 3, v%d" % lane)
    a.I("v_mov_b32 v17, 1")
    a.I("v_cmp_gt_u32 vcc, 16, v%d" % lane)
    a.I("v_cndmask_b32 v17, 0, v17, vcc")
    poll_lanes(a, S_WS, 90, 16, 17, 18, 91, "L_abort")
    a.label(Lx)
    a.I("s_barrier")
    pre.mod_to_lds(a, S_WS, sW, lane, 144000, 16)
    for it in range(2):
        if it == 1:
            R0 = pre.ln_stats(a, 4, 39, sW, lane, LV, 0)
            a.I("s_waitcnt vmcnt(0)")
            pre.ln_stats2(a, *R0)
        pre.ln_apply(a, S_WS, R0[0], R0[1], R0[2], 144000, 20)
        a.I("s_waitcnt vmcnt(0)")
        a.I("s_barrier")
        a.I("s_lshl_b32 s90, s38, 3")
        a.I("s_add_u32 s90, s90, 0x%x" % (FL_H + it * 256))
        set_flag(a, S_WS, 90, "1", 16, sW)
    stamp(a, 3, 16)
    a.I("s_cmp_ge_u32 s38, 16")
    a.I("s_cbranch_scc1 L_tail")
    a.I("s_add_u32 s38, s38, 32")
    pre.mod_role(a, S_WS, 12, 40, 38, sW, lane, 24, 26, 140000)
    a.I("s_lshl_b32 s90, s38, 3")
    a.I("s_add_u32 s90, s90, 0x%x" % FL_MOD)
    set_flag(a, S_WS, 90, "1", 16, sW)
    a.I("s_branch L_tail")
    a.label("L_front", clear=True)
    a.I("s_and_b32 s38, s%d, 1" % S_FI)
    a.I("s_lshr_b32 s39, s%d, 1" % S_FI)
    a.I("s_and_b32 s40, s39, 31")
    a.I("s_lshr_b32 s41, s39, 5")
    a.I("s_add_u32 s41, s41, 1")
    a.I("s_cmp_eq_u32 s41, 3")
    a.I("s_cselect_b32 s41, 0, s41")
    a.I("s_cmp_eq_u32 s41, 1")
    a.I("s_cselect_b32 s28, s30, s28")
    a.I("s_cselect_b32 s29, s31, s29")
    a.I("s_cmp_eq_u32 s41, 2")
    a.I("s_cselect_b32 s28, s36, s28")
    a.I("s_cselect_b32 s29, s37, s29")
    a.I("s_lshl_b32 s42, s40, 6")
    a.I("s_lshl_b32 s43, s41, 1")
    a.I("s_add_u32 s43, s43, s38")
    a.I("s_lshl_b32 s43, s43, 3")
    a.I("s_add_u32 s42, s42, s43")
    a.I("s_add_u32 s42, s42, 0x%x" % FL_PROG)

    def wait_h(a, nflags):
        Lh = a.newlabel("bh")
        a.I("s_cmp_lg_u32 s%d, 0" % sW)
        a.I("s_cbranch_scc1 %s" % Lh)
        a.I("s_mov_b32 s90, 0x%x" % FL_H)
        a.I("v_lshlrev_b32 v2, 3, v%d" % lane)
        a.I("v_mov_b32 v3, 1")
        if nflags < 64:
            a.I("v_cmp_gt_u32 vcc, %d, v%d" % (nflags, lane))
            a.I("v_cndmask_b32 v3, 0, v3, vcc")
        poll_lanes(a, S_WS, 90, 2, 3, 4, 91, "L_abort", sleep=1)
        a.label(Lh)

    def before_h(a):
        verify(a, 16, 90, "L_slow")
        stamp(a, 4, 8)
        wait_h(a, 32)
        stamp(a, 5, 8)

    def stores_done(a, s_it):
        set_flag(a, S_WS, 42, "s%d" % s_it, 2, sW)

    def mid(a, s_it):
        L = a.newlabel("mid")
        a.I("s_cmp_lg_u32 s%d, 13" % s_it)
        a.I("s_cbranch_scc1 %s" % L)
        wait_h(a, 64)
        a.I("s_barrier")
        a.label(L)
    def before_w(a):
        if OPT.get("latew"):
            verify(a, 16, 90, "L_slow")
            wait_h(a, 32)
            a.I("s_barrier")
        if OPT.get("pfwo"):
            srd(a, 4, 24, 0x400000) if False else None
    front.front_role(a, S_WS, 12, 41, 40, 38, sW, lane, 28, hooks={"before_w": before_w, "before_h": before_h, "stores_done": stores_done, "mid": mid})
    stamp(a, 6, 16)
    a.label("L_tail", clear=True)
    a.I("s_barrier")
    a.I("s_load_dwordx2 s[22:23], s[0:1], %d" % K_X)
    a.I("s_load_dwordx2 s[24:25], s[0:1], %d" % K_WO)
    a.I("s_load_dwordx4 s[28:31], s[0:1], %d" % K_W1)
    a.I("s_load_dwordx2 s[26:27], s[0:1], %d" % K_OUT)
    a.I("v_and_b32 %s, 63, v0" % vr(tail.V_LANE))
    a.I("s_mov_b32 s68, s%d" % S_TK)
    a.I("s_waitcnt lgkmcnt(0)")
    for w in range(1, 4):
        a.I("s_cmp_eq_u32 s%d, %d" % (sW, w))
        a.I("s_cbranch_scc1 L_tw%d" % w)
    hk = tail.fused_hooks(S_WS, 68, "L_abort")
    if STAMPS:
        hk["stamp"] = lambda a, w, slot: stamp(a, slot, 150) if w == 0 else None
    for w in range(4):
        a.label("L_tw%d" % w, clear=True)
        tail.tail_setup(a, w, S_WS, 12, 68, S_XCC, 24, 28, 30)
        if w == 0: stamp(a, 7, 150)
        a.I("s_sub_u32 s%d, s%d, 1" % (tail.S_SEG, S_XCC))
        a.I("s_mov_b32 s%d, 0" % tail.S_IT)
        a.I("s_cmp_lg_u32 s%d, 0" % S_MODE)
        a.I("s_cbranch_scc1 L_tslow%d" % w)
        tail.tail_loop(a, w, S_WS, 12, 4, 68, 22, 26, 7, abort="L_abort", hooks=hk, tag="f")
        if w == 0 and OPT.get("wb"):
            a.I("buffer_wbl2 sc1")
            a.I("s_waitcnt vmcnt(0)")
        if w == 0: stamp(a, 8, 150)
        if w == 0: dbgmax(a, 48, 150)
        a.I("s_endpgm")
    for w in range(4):
        a.label("L_tslow%d" % w, clear=True)
        if OPT.get("noslow"):
            a.I("s_endpgm")
            continue
        tail.tail_loop(a, w, S_WS, 12, 4, 68, 22, 26, 7, st="sc1", abort="L_abort", hooks=hk, tag="s")
        a.I("s_endpgm")


def build(timing=False, **kw):
    a = Asm()
    a.raw("; @launch grid=(256,1,1) block=(256,1,1) lds=163840")
    a.raw('.amdgcn_target "amdgcn-amd-amdhsa--gfx950"')
    a.raw(".text")
    a.raw(".globl %s" % NAME)
    a.raw(".p2align 8")
    a.raw(".type %s,@function" % NAME)
    a.label(NAME)
    entry(a)
    a.I("s_cmp_ge_u32 s%d, 32" % S_TK)
    a.I("s_cbranch_scc1 L_overflow")
    a.label("L_dispatch")
    a.I("s_cmp_lg_u32 s%d, 0" % S_XCC)
    a.I("s_cbranch_scc1 L_far_worker")
    a.I("s_branch L_chain")
    a.label("L_far_worker")
    a.I("s_branch L_hop_worker")
    a.label("L_overflow", clear=True)
    verify(a, 16, 90, "L_slow")
    a.I("s_branch L_abort")
    a.label("L_slow", clear=True)
    a.I("s_waitcnt vmcnt(0) lgkmcnt(0)")
    a.I("s_barrier")
    a.I("s_cmp_lg_u32 s%d, 0" % S_WAVE)
    a.I("s_cbranch_scc1 L_sl_wait")
    a.I("s_mov_b64 exec, 1")
    a.I("v_mov_b32 v2, 1")
    a.I("v_mov_b32 v3, %d" % D_GTK)
    a.I("buffer_atomic_add v2, v3, s[%d:%d], 0 offen sc0" % (S_DBG, S_DBG + 3))
    a.I("v_mov_b32 v3, %d" % L_BCAST)
    a.I("s_waitcnt vmcnt(0)")
    a.I("ds_write_b32 v3, v2")
    a.I("s_mov_b64 exec, -1")
    a.label("L_sl_wait")
    a.I("s_waitcnt lgkmcnt(0)")
    a.I("s_barrier")
    a.I("v_mov_b32 v3, %d" % L_BCAST)
    a.I("ds_read_b32 v2, v3")
    a.I("s_waitcnt lgkmcnt(0)")
    a.I("v_readfirstlane_b32 s%d, v2" % S_TK)
    a.I("s_barrier")
    a.I("s_lshr_b32 s%d, s%d, 5" % (S_XCC, S_TK))
    a.I("s_and_b32 s%d, s%d, 31" % (S_TK, S_TK))
    a.I("s_mov_b32 s%d, 1" % S_MODE)
    a.I("v_mbcnt_lo_u32_b32 v1, -1, 0")
    a.I("v_mbcnt_hi_u32_b32 v1, -1, v1")
    a.I("s_lshl_b32 s%d, s%d, 6" % (S_T0, S_WAVE))
    a.I("v_add_u32 v0, s%d, v1" % S_T0)
    a.I("v_and_b32 %s, 63, v0" % vr(V_T))
    a.I("s_branch L_dispatch")
    a.label("L_exit")
    a.I("s_endpgm")
    a.label("L_abort0", clear=True)
    chain_part(a, timing, kw)
    a.label("L_abort", clear=True)
    a.I("s_mov_b64 exec, 1")
    a.I("v_mov_b32 v2, 0x7777")
    a.I("v_mov_b32 v3, 252")
    a.I("buffer_store_dword v2, v3, s[%d:%d], 0 offen" % (S_DBG, S_DBG + 3))
    a.I("s_waitcnt vmcnt(0)")
    a.I("s_endpgm")
    a.label("L_hop_worker")
    a.I("s_branch L_worker")
    worker_part(a)
    txt = a.text() + kd(NAME)
    txt = "\n".join(l.strip() if l.startswith("    ") else l for l in txt.split("\n"))
    return txt, a


if __name__ == "__main__":
    kw = dict(gap=36, rgap=36, delay=24, rdelay=48)
    timing = False
    for arg in sys.argv[2:]:
        k, v = arg.split("=")
        if k == "timing":
            timing = bool(int(v))
        elif k == "force_slow":
            FORCE_SLOW = bool(int(v))
        elif k == "hop":
            chain.FINE["hop"] = True
        elif k == "fine":
            chain.FINE["on"] = True
            chain.FINE["skip"] = int(v)
        elif k == "exp":
            OPT[k] = v
        elif k in ("wflags", "latew", "pfwo", "rot", "touch", "noslow", "pf", "wb"):
            OPT[k] = v if k == "wflags" else int(v)
        elif k == "dbgt":
            DBGT = bool(int(v))
        elif k == "stamps":
            STAMPS = bool(int(v))
        else:
            kw[k] = int(v) if v.lstrip("-").isdigit() else v
    txt, a = build(timing=timing, **kw)
    open(sys.argv[1], "w").write(txt)
    print("instructions", a.n_inst, "bytes", len(txt), chain.FINE["names"])
```

```python
from asmlib import Asm, vr, ar, sr

WS_MOD = 0x00000000
WS_FLAGS = 0x00010000
FL_MOD = WS_FLAGS + 0x0000
FL_H = WS_FLAGS + 0x0200
FL_PROG = WS_FLAGS + 0x0400
FL_TAIL = WS_FLAGS + 0x1000
S_NONCE = 46
WS_MEM = 0x00100000
WS_PART = 0x00200000
WS_H = 0x00400000
WS_KT = 0x00800000
WS_VT = 0x01800000
WS_QT = 0x02800000
WS_KM = 0x03800000
WS_VM = 0x03C00000
WS_TAIL = 0x04000000
WS_SIZE = 0x10000000
OOB = 0x40000000

L_WO = 0
L_K = 131072
L_M = 147456
L_MB = L_M + 4096
L_O = L_MB + 8192
O_OFF = L_O - L_M
L_SEL = L_O + 512
L_BC = L_O + 2048 + 512

S_WS = 8
S_W = 12
S_DBG = 16
S_WAVE = 20
S_RANK = 21
S_STEP = 22
S_MEM = 23
S_MEMHI = 24
S_PW0 = 25
S_PW1 = 26
S_PR = 27
S_PRHI = 28
S_KT = 29
S_VT = 30
S_KM = 31
S_HI = 32
S_C = 34
S_NC = 35
S_RETRY = 36
S_VM = 37
S_T0 = 38
S_POIS = 46
S_POISHI = 47
S_PWB = 96
S_PRB = 97
S_RING = 98
S_ONE = 100
S_SEL = 99
S_TAG = 96
S_HZ = 97
S_PG = 98
S_CP = 47
S_KB = 44
S_PTR = 48
S_TM = 64

V_VW = 0
V_MEM = 128
V_ACC = 160
V_KT = 184
V_S = 216
V_VT = 228
V_PX = 236
V_IDX = 246
V_L16 = 247
V_L16W = 248
V_K = 249
V_PS = 250
V_MS = 251
V_MW = 252
V_MR = 253
V_KM = 254
V_T = 255
V_Z = V_PX + 8
V_MB = V_PX + 9

RETRY_MAX = 200000
ROT = True


def wacc(t):
    return V_ACC + 4 * t if t < 6 else V_VT + 4 * (t - 6)


FINE = {"on": False, "n": 0, "names": []}


def hop(a, idx):
    if FINE.get("hop"):
        a.I("s_memtime s[%d:%d]" % (64 + 2 * idx, 65 + 2 * idx))


def fine(a, name):
    FINE["k"] = FINE.get("k", 0) + 1
    if not FINE["on"] or FINE["n"] >= 16 or FINE["k"] <= FINE.get("skip", 0):
        return
    n = FINE["n"]
    a.I("s_memtime s[%d:%d]" % (64 + 2 * n, 65 + 2 * n))
    FINE["names"].append(name)
    FINE["n"] = n + 1


class Timer:
    def __init__(self, a, on, trace=None):
        self.a = a
        self.on = on
        self.trace = trace

    def start(self):
        if not self.on:
            return
        a = self.a
        for i in range(16):
            a.I("s_mov_b32 s%d, 0" % (S_TM + 4 + i))
        a.I("s_memtime s[%d:%d]" % (S_TM, S_TM + 1))
        a.I("s_waitcnt lgkmcnt(0)")

    def stamp(self, idx):
        if self.trace is not None:
            a = self.a
            l = a.newlabel("tr")
            a.I("s_cmp_lg_u32 s%d, %d" % (S_STEP, self.trace + (1 if idx in (14, 13, 7, 8) else 0)))
            a.I("s_cbranch_scc1 %s" % l)
            a.I("s_memrealtime s[%d:%d]" % (S_TM + 2, S_TM + 3))
            a.I("s_waitcnt lgkmcnt(0)")
            a.I("s_mov_b32 s%d, s%d" % (S_TM + 4 + idx, S_TM + 2))
            a.label(l)
            return
        if not self.on:
            return
        a = self.a
        a.I("s_memtime s[%d:%d]" % (S_TM + 2, S_TM + 3))
        a.I("s_waitcnt lgkmcnt(0)")
        a.I("s_sub_u32 s%d, s%d, s%d" % (S_T0 + 7, S_TM + 2, S_TM))
        a.I("s_add_u32 s%d, s%d, s%d" % (S_TM + 4 + idx, S_TM + 4 + idx, S_T0 + 7))
        a.I("s_mov_b32 s%d, s%d" % (S_TM, S_TM + 2))


def lane_consts(a, w):
    T = V_MEM
    lane = V_T
    a.I("v_lshlrev_b32 %s, 4, %s" % (vr(V_L16), vr(lane)))
    a.I("v_add_u32 %s, %d, %s" % (vr(V_L16W), L_WO + w * 32768, vr(V_L16)))
    a.I("v_add_u32 %s, %d, %s" % (vr(V_K), L_K, vr(V_L16)))
    a.I("v_and_b32 %s, 15, %s" % (vr(T), vr(lane)))
    a.I("v_lshrrev_b32 %s, 4, %s" % (vr(T + 1), vr(lane)))
    a.I("v_mov_b32 %s, 0x4444" % vr(V_IDX))
    a.I("v_mov_b32 %s, 0xeeee" % vr(T + 2))
    a.I("v_and_b32 %s, 2, %s" % (vr(T + 3), vr(T)))
    a.I("v_cmp_ne_u32 vcc, 0, %s" % vr(T + 3))
    a.I("v_cndmask_b32 %s, %s, %s, vcc" % (vr(V_IDX), vr(V_IDX), vr(T + 2)))
    a.I("v_lshlrev_b32 %s, 13, %s" % (vr(T + 2), vr(T + 1)))
    a.I("v_lshrrev_b32 %s, 2, %s" % (vr(T + 3), vr(T)))
    a.I("v_lshl_add_u32 %s, %s, 11, %s" % (vr(T + 2), vr(T + 3), vr(T + 2)))
    a.I("v_mov_b32 %s, s%d" % (vr(T + 3), S_RANK))
    a.I("v_lshl_add_u32 %s, %s, 6, %s" % (vr(T + 2), vr(T + 3), vr(T + 2)))
    a.I("v_and_b32 %s, 3, %s" % (vr(T + 3), vr(T)))
    a.I("v_lshl_add_u32 %s, %s, 4, %s" % (vr(V_PS), vr(T + 3), vr(T + 2)))
    a.I("v_lshrrev_b32 %s, 2, %s" % (vr(T + 2), vr(T)))
    a.I("v_xor_b32 %s, %s, %s" % (vr(T + 2), vr(T + 2), vr(T + 1)))
    a.I("v_lshlrev_b32 %s, 3, %s" % (vr(T + 2), vr(T + 2)))
    a.I("v_lshl_add_u32 %s, %s, 5, %s" % (vr(T + 2), vr(T), vr(T + 2)))
    a.I("v_add_u32 %s, %d, %s" % (vr(V_MW), L_M + 1024 * w, vr(T + 2)))
    a.I("v_lshrrev_b32 %s, 2, %s" % (vr(T + 2), vr(T)))
    a.I("v_lshl_add_u32 %s, %s, 2, %s" % (vr(T + 2), vr(T + 1), vr(T + 2)))
    a.I("v_and_b32 %s, 3, %s" % (vr(T + 3), vr(T)))
    a.I("v_xor_b32 %s, %s, %s" % (vr(T + 3), vr(T + 3), vr(T + 1)))
    a.I("v_lshlrev_b32 %s, 3, %s" % (vr(T + 3), vr(T + 3)))
    a.I("v_lshl_add_u32 %s, %s, 5, %s" % (vr(T + 2), vr(T + 2), vr(T + 3)))
    a.I("v_add_u32 %s, %d, %s" % (vr(V_MR), L_M, vr(T + 2)))
    a.I("v_lshrrev_b32 %s, 2, %s" % (vr(T + 2), vr(T)))
    a.I("v_and_b32 %s, 1, %s" % (vr(T + 3), vr(T)))
    a.I("v_lshl_add_u32 %s, %s, 1, %s" % (vr(T + 2), vr(T + 2), vr(T + 3)))
    a.I("v_lshl_add_u32 %s, %s, 3, %s" % (vr(T + 2), vr(T + 1), vr(T + 2)))
    a.I("v_lshlrev_b32 %s, 4, %s" % (vr(T + 2), vr(T + 2)))
    a.I("v_mov_b32 %s, 0x%x" % (vr(T + 4), OOB))
    a.I("v_and_b32 %s, 2, %s" % (vr(T + 3), vr(T)))
    a.I("v_cmp_ne_u32 vcc, 0, %s" % vr(T + 3))
    a.I("v_cndmask_b32 %s, %s, %s, vcc" % (vr(V_KM), vr(T + 2), vr(T + 4)))
    s0, s1, s2 = S_T0, S_T0 + 1, S_T0 + 2
    a.I("s_lshr_b32 s%d, s%d, 3" % (s0, S_RANK))
    a.I("s_bfe_u32 s%d, s%d, 0x10002" % (s1, S_RANK))
    a.I("s_lshl_b32 s%d, s%d, 2" % (s1, s1))
    a.I("s_add_u32 s%d, s%d, s%d" % (s0, s0, s1))
    a.I("s_lshl_b32 s%d, s%d, 10" % (s0, s0))
    a.I("s_and_b32 s%d, s%d, 3" % (s1, S_RANK))
    a.I("s_lshl_b32 s%d, s%d, 6" % (s1, s1))
    a.I("s_add_u32 s%d, s%d, s%d" % (s0, s0, s1))
    a.I("s_add_u32 s%d, s%d, %d" % (s0, s0, w * 256))
    a.I("v_and_b32 %s, 3, %s" % (vr(T + 2), vr(T)))
    a.I("v_lshlrev_b32 %s, 4, %s" % (vr(T + 2), vr(T + 2)))
    a.I("v_lshrrev_b32 %s, 2, %s" % (vr(T + 3), vr(T)))
    a.I("v_lshl_add_u32 %s, %s, 3, %s" % (vr(T + 2), vr(T + 3), vr(T + 2)))
    a.I("v_lshrrev_b32 %s, 1, %s" % (vr(T + 3), vr(T + 1)))
    a.I("v_lshl_add_u32 %s, %s, 2, %s" % (vr(T + 2), vr(T + 3), vr(T + 2)))
    a.I("v_add_u32 %s, s%d, %s" % (vr(T + 2), s0, vr(T + 2)))
    a.I("v_and_b32 %s, 24, %s" % (vr(T + 3), vr(lane)))
    a.I("v_mov_b32 %s, 0x%x" % (vr(V_MS), OOB))
    a.I("v_cmp_eq_u32 vcc, 0, %s" % vr(T + 3))
    a.I("v_cndmask_b32 %s, %s, %s, vcc" % (vr(V_MS), vr(V_MS), vr(T + 2)))


def sel_addr(a, dst, tmp):
    a.I("v_lshrrev_b32 %s, 9, %s" % (vr(tmp), vr(V_L16)))
    a.I("v_mul_u32_u24 %s, 512, %s" % (vr(tmp), vr(tmp)))
    a.I("v_add3_u32 %s, %s, %s, s%d" % (vr(dst), vr(V_L16), vr(tmp), S_SEL))


def init_issue(a, w, T):
    lane = V_T
    s0, s1 = S_T0 + 1, S_T0 + 2
    a.I("v_and_b32 %s, 15, %s" % (vr(T), vr(lane)))
    a.I("v_lshrrev_b32 %s, 4, %s" % (vr(T + 1), vr(lane)))
    a.I("s_and_b32 s%d, s%d, 3" % (s0, S_RANK))
    a.I("s_lshl_b32 s%d, s%d, 11" % (s0, s0))
    a.I("s_lshr_b32 s%d, s%d, 2" % (s1, S_RANK))
    a.I("s_lshl_b32 s%d, s%d, 7" % (s1, s1))
    a.I("s_add_u32 s%d, s%d, s%d" % (s0, s0, s1))
    a.I("s_add_u32 s%d, s%d, %d" % (s0, s0, w * 8))
    a.I("v_and_b32 %s, 1, %s" % (vr(T + 2), vr(T)))
    a.I("v_lshlrev_b32 %s, 10, %s" % (vr(T + 2), vr(T + 2)))
    a.I("v_bfe_u32 %s, %s, 1, 2" % (vr(T + 3), vr(T)))
    a.I("v_lshl_add_u32 %s, %s, 5, %s" % (vr(T + 2), vr(T + 3), vr(T + 2)))
    a.I("v_lshrrev_b32 %s, 1, %s" % (vr(T + 3), vr(T + 1)))
    a.I("v_lshl_add_u32 %s, %s, 2, %s" % (vr(T + 2), vr(T + 3), vr(T + 2)))
    a.I("v_add_u32 %s, s%d, %s" % (vr(T + 2), s0, vr(T + 2)))
    a.I("s_mov_b32 s4, s%d" % (S_PTR + 0))
    a.I("s_mov_b32 s5, s%d" % (S_PTR + 1))
    a.I("s_mov_b32 s6, 8192")
    a.I("s_mov_b32 s7, 0x00020000")
    a.I("buffer_load_dword %s, %s, s[4:7], 0 offen" % (vr(T + 4), vr(T + 2)))


def init_stores(a, w, T, st_flags):
    P = T + 8
    s0 = S_T0 + 1
    a.I("s_mov_b32 s%d, %d" % (S_SEL, L_SEL))
    for i in range(4):
        a.I("v_mov_b32 %s, -1" % vr(P + i))
    a.I("s_mov_b32 s%d, 0x%x" % (s0, WS_MEM))
    a.I("v_min_u32 %s, 0xfffffffe, %s" % (vr(T + 4), vr(T + 4)))
    a.I("buffer_store_dword %s, %s, s[%d:%d], s%d offen %s" % (vr(T + 4), vr(V_MS), S_WS, S_WS + 3, s0, st_flags))
    for i in range(3):
        a.I("s_add_u32 s%d, s%d, 8192" % (s0, s0))
        a.I("buffer_store_dword %s, %s, s[%d:%d], s%d offen %s" % (vr(P), vr(V_MS), S_WS, S_WS + 3, s0, st_flags))
    for ring in range(2):
        a.I("s_lshl_b32 s%d, s%d, 13" % (s0, S_RANK))
        a.I("s_add_u32 s%d, s%d, 0x%x" % (s0, s0, WS_PART + ring * 262144 + w * 2048))
        for m in range(2):
            a.I("buffer_store_dwordx4 %s, %s, s[%d:%d], s%d offen offset:%d %s"
                % (vr(P, 4), vr(V_L16), S_WS, S_WS + 3, s0, m * 1024, st_flags))
    if w == 0:
        a.I("v_and_b32 %s, 1, %s" % (vr(T + 2), vr(T)))
        a.I("v_lshlrev_b32 %s, 4, %s" % (vr(T + 2), vr(T + 2)))
        a.I("v_mov_b32 %s, 0x3f80" % vr(T + 3))
        a.I("v_lshlrev_b32 %s, %s, %s" % (vr(T + 3), vr(T + 2), vr(T + 3)))
        a.I("v_lshrrev_b32 %s, 1, %s" % (vr(T + 2), vr(T)))
        for m in range(4):
            a.I("v_cmp_eq_u32 vcc, %d, %s" % (m, vr(T + 2)))
            a.I("v_cndmask_b32 %s, 0, %s, vcc" % (vr(T + 4 + m), vr(T + 3)))
        sel_addr(a, T + 2, T + 3)
        a.I("ds_write_b128 %s, %s" % (vr(T + 2), vr(T + 4, 4)))


def init_buffers(a, w, st_flags=""):
    T = 200
    init_issue(a, w, T)
    a.I("s_waitcnt vmcnt(0)")
    init_stores(a, w, T, st_flags)


def load_weights(a, w, wflags="", rot=False, hooks=None, consts=True):
    hooks = hooks or {}
    lane = V_T
    T = V_MEM
    VO = V_MEM + 8
    TA = V_MEM + 12
    so = S_T0
    a.I("v_lshrrev_b32 %s, 4, %s" % (vr(T), vr(lane)))
    a.I("v_and_b32 %s, 15, %s" % (vr(T + 1), vr(lane)))
    for b4 in range(2):
        a.I("v_and_b32 %s, 1, %s" % (vr(T + 2), vr(T)))
        a.I("v_add_u32 %s, %d, %s" % (vr(T + 2), 2 * b4 + 4 * (w & 1), vr(T + 2)))
        a.I("v_lshlrev_b32 %s, 1, %s" % (vr(T + 2), vr(T + 2)))
        a.I("v_xor_b32 %s, %s, %s" % (vr(T + 2), vr(T + 2), vr(T + 1)))
        a.I("v_lshlrev_b32 %s, 4, %s" % (vr(T + 2), vr(T + 2)))
        a.I("s_lshl_b32 s%d, s%d, 8" % (so, S_RANK))
        a.I("v_lshl_add_u32 %s, %s, 13, %s" % (vr(T + 3), vr(T), vr(T + 2)))
        a.I("v_add_u32 %s, s%d, %s" % (vr(VO + b4), so, vr(T + 3)))
        a.I("s_lshl_b32 s%d, s%d, 17" % (so, S_RANK))
        a.I("v_lshl_add_u32 %s, %s, 10, %s" % (vr(T + 3), vr(T), vr(T + 2)))
        a.I("v_add_u32 %s, s%d, %s" % (vr(VO + 2 + b4), so, vr(T + 3)))

    def set_srd(ptr, nbytes):
        a.I("s_mov_b32 s%d, s%d" % (S_W, ptr))
        a.I("s_mov_b32 s%d, s%d" % (S_W + 1, ptr + 1))
        a.I("s_mov_b32 s%d, 0x%x" % (S_W + 2, nbytes))

    def dma_qkv(j):
        for i in range(8):
            row = 32 * w + 4 * i
            a.I("s_mov_b32 m0, %d" % (L_WO + j * 32768 + row * 256))
            a.I("s_mov_b32 s%d, 0x%x" % (so, (128 * j + row) * 8192))
            a.I("buffer_load_dwordx4 %s, s[%d:%d], s%d offen %s lds" % (vr(VO + ((i >> 2) & 1)), S_W, S_W + 3, so, wflags))

    def dma_wo(j):
        for i in range(8):
            row = 32 * w + 4 * i
            a.I("s_mov_b32 m0, %d" % (L_WO + j * 32768 + row * 256))
            a.I("s_mov_b32 s%d, 0x%x" % (so, row * 1024 + j * 256))
            a.I("buffer_load_dwordx4 %s, s[%d:%d], s%d offen %s lds" % (vr(VO + 2 + ((i >> 2) & 1)), S_W, S_W + 3, so, wflags))
    ptrs = [S_PTR + 2, S_PTR + 4, S_PTR + 6]
    set_srd(ptrs[0], 0x400000)
    for j in range(4):
        dma_qkv(j)
    if consts:
        lane_consts(a, w)
    gb, r, c = T, T + 1, T + 2
    t4, t5, t7 = T + 3, T + 4, T + 6
    a.I("v_lshrrev_b32 %s, 4, %s" % (vr(gb), vr(lane)))
    a.I("v_bfe_u32 %s, %s, 2, 2" % (vr(r), vr(lane)))
    a.I("v_and_b32 %s, 3, %s" % (vr(c), vr(lane)))
    a.I("v_and_b32 %s, 1, %s" % (vr(t4), vr(gb)))
    a.I("v_lshl_add_u32 %s, %s, 2, %s" % (vr(t7), vr(t4), vr(r)))
    a.I("v_lshlrev_b32 %s, 5, %s" % (vr(t5), vr(t4)))
    a.I("v_lshrrev_b32 %s, 1, %s" % (vr(t4), vr(gb)))
    a.I("v_lshl_add_u32 %s, %s, 2, %s" % (vr(t5), vr(t4), vr(t5)))
    a.I("v_and_b32 %s, 1, %s" % (vr(t4), vr(r)))
    a.I("v_add_u32 %s, %s, %s" % (vr(t5), vr(t4), vr(t5)))
    a.I("v_lshrrev_b32 %s, 1, %s" % (vr(t4), vr(r)))
    a.I("v_lshl_add_u32 %s, %s, 4, %s" % (vr(t5), vr(t4), vr(t5)))
    a.I("v_lshlrev_b32 %s, 8, %s" % (vr(t5), vr(t5)))
    a.I("v_lshrrev_b32 %s, 1, %s" % (vr(t4), vr(c)))
    a.I("v_lshl_add_u32 %s, %s, 4, %s" % (vr(t5), vr(t4), vr(t5)))
    a.I("v_and_b32 %s, 1, %s" % (vr(t4), vr(c)))
    a.I("v_lshl_add_u32 %s, %s, 3, %s" % (vr(t5), vr(t4), vr(t5)))
    for tau in range(2):
        a.I("v_xor_b32 %s, %d, %s" % (vr(t4), 2 * w + tau, vr(t7)))
        a.I("v_lshl_add_u32 %s, %s, 5, %s" % (vr(TA + tau), vr(t4), vr(t5)))
    WA = V_MEM + 20
    for tau in range(8):
        a.I("v_xor_b32 %s, %d, %s" % (vr(t4), tau, vr(t7)))
        a.I("v_lshl_add_u32 %s, %s, 5, %s" % (vr(WA + tau), vr(t4), vr(t5)))
        a.I("v_add_u32 %s, %d, %s" % (vr(WA + tau), L_WO + w * 32768, vr(WA + tau)))

    def tr_qkv(j, dst):
        for tau in range(2):
            a.I("v_add_u32 %s, %d, %s" % (vr(TA + 2 + tau), L_WO + j * 32768, vr(TA + tau)))
        for kappa in (j, 4 + j):
            B = 64 * (kappa >> 2)
            for tau in range(2):
                for q in range(4):
                    off = (B + 8 * (q >> 1) + 2 * (q & 1)) * 256
                    a.I("ds_read_b64_tr_b16 %s, %s offset:%d" % (dst(tau, kappa, q), vr(TA + 2 + tau), off))

    dsts = [
        lambda tau, kappa, q: ar((0 + tau) * 64 + kappa * 8 + 2 * q, 2),
        lambda tau, kappa, q: ar((2 + tau) * 64 + kappa * 8 + 2 * q, 2),
        lambda tau, kappa, q: vr(V_VW + tau * 64 + kappa * 8 + 2 * q, 2),
    ]
    for mi in range(3):
        for j in range(4):
            u = 4 * mi + j
            a.I("s_waitcnt vmcnt(24)")
            a.I("s_barrier")
            tr_qkv(j, dsts[mi])
            a.I("s_waitcnt lgkmcnt(0)")
            a.I("s_barrier")
            if u in hooks:
                hooks[u](a)
            if j == 0:
                set_srd(ptrs[mi + 1] if mi < 2 else S_PTR + 8, 0x400000)
            if mi < 2:
                dma_qkv(j)
            else:
                dma_wo(j)
    ST = V_MEM + 32
    a.I("s_waitcnt vmcnt(8)")
    if 12 in hooks:
        hooks[12](a)
    a.I("s_waitcnt vmcnt(%d)" % hooks.get("n12", 0))
    a.I("s_barrier")
    for xi in range(2):
        for tau in range(8):
            for q in range(4):
                off = (64 * xi + 8 * (q >> 1) + 2 * (q & 1)) * 256
                a.I("ds_read_b64_tr_b16 %s, %s offset:%d" % (vr(ST + tau * 8 + 2 * q, 2), vr(WA + tau), off))
        a.I("s_waitcnt lgkmcnt(0)")
        for tau in range(8):
            for hf in range(2):
                a.I("ds_write_b128 %s, %s offset:%d"
                    % (vr(V_L16W), vr(ST + tau * 8 + 4 * hf, 4), xi * 16384 + tau * 2048 + hf * 1024))
        a.I("s_waitcnt lgkmcnt(0)")


def wo_img_off(tau, xi, hf):
    return xi * 16384 + tau * 2048 + hf * 1024


def weave(a, main, fill, every=1, start=0):
    fill = list(fill)
    for i, m in enumerate(main):
        a.I(m)
        if i >= start:
            for _ in range(every):
                if fill:
                    a.I(fill.pop(0))
    for f in fill:
        a.I(f)


def check_insts(regs, tmp):
    regs = list(regs)
    if len(regs) == 2:
        L = ["v_max_u32 %s, %s, %s" % (vr(tmp), vr(regs[0]), vr(regs[1]))]
        rest = []
    else:
        L = ["v_max3_u32 %s, %s, %s, %s" % (vr(tmp), vr(regs[0]), vr(regs[1]), vr(regs[2]))]
        rest = regs[3:]
    while len(rest) >= 2:
        L.append("v_max3_u32 %s, %s, %s, %s" % (vr(tmp), vr(tmp), vr(rest[0]), vr(rest[1])))
        rest = rest[2:]
    if rest:
        L.append("v_max_u32 %s, %s, %s" % (vr(tmp), vr(tmp), vr(rest[0])))
    L.append("v_cmp_eq_u32 vcc, -1, %s" % vr(tmp))
    return L


def dump(a, w, base, n, slot=0):
    a.nops(12)
    a.I("s_lshl_b32 s%d, s%d, 16" % (S_T0, S_RANK))
    a.I("s_add_u32 s%d, s%d, 0x%x" % (S_T0, S_T0, 0x5000000 + w * 16384 + ((slot * 256) & ~4095)))
    a.I("v_lshrrev_b32 %s, 2, %s" % (vr(V_T), vr(V_L16)))
    for i in range(n):
        a.I("buffer_store_dword %s, %s, s[%d:%d], s%d offen offset:%d" % (vr(base + i), vr(V_T), S_WS, S_WS + 3, S_T0, ((slot + i) * 256) & 4095))
        if ((slot + i + 1) * 256) & 4095 == 0:
            a.I("s_add_u32 s%d, s%d, 4096" % (S_T0, S_T0))
    a.I("s_waitcnt vmcnt(0)")


def horizon_issue(a, vb):
    ws = "s[%d:%d]" % (S_WS, S_WS + 3)
    a.I("buffer_load_dwordx4 %s, %s, %s, s%d offen offset:16 sc1" % (vr(vb, 4), vr(V_Z), ws, S_PG))
    a.I("buffer_load_dwordx4 %s, %s, %s, s%d offen offset:32 sc1" % (vr(vb + 4, 4), vr(V_Z), ws, S_PG))


def horizon_refresh(a, s_need, abort, vb=None, pre=False):
    vb = V_S if vb is None else vb
    Lq = a.newlabel("hq")
    Lx = a.newlabel("hx")
    Le = a.newlabel("he")
    a.I("s_cmp_ge_u32 s%d, 64" % s_need)
    a.I("s_cbranch_scc1 %s" % Lx)
    a.I("s_mov_b32 s%d, %d" % (S_RETRY, RETRY_MAX))
    if pre:
        a.I("s_branch %s" % Le)
    a.label(Lq)
    horizon_issue(a, vb)
    a.I("s_sub_u32 s%d, s%d, 1" % (S_RETRY, S_RETRY))
    a.I("s_cmp_eq_u32 s%d, 0" % S_RETRY)
    a.I("s_cbranch_scc1 %s" % abort)
    a.I("s_waitcnt vmcnt(0)")
    a.label(Le)
    for i in range(4):
        a.I("v_cmp_eq_u32 vcc, s%d, %s" % (S_NONCE, vr(vb + 2 * i + 1)))
        a.I("v_cndmask_b32 %s, 0, %s, vcc" % (vr(vb + 2 * i), vr(vb + 2 * i)))
    a.I("v_min_u32 %s, %s, %s" % (vr(vb), vr(vb), vr(vb + 4)))
    a.I("v_min_u32 %s, %s, %s" % (vr(vb + 1), vr(vb + 2), vr(vb + 6)))
    a.I("v_lshlrev_b32 %s, 1, %s" % (vr(vb), vr(vb)))
    a.I("v_lshl_add_u32 %s, %s, 1, 1" % (vr(vb + 1), vr(vb + 1)))
    a.I("v_min_u32 %s, %s, %s" % (vr(vb), vr(vb), vr(vb + 1)))
    a.I("v_readfirstlane_b32 s%d, %s" % (S_HZ, vr(vb)))
    a.I("s_cmp_lt_u32 s%d, s%d" % (s_need, S_HZ))
    a.I("s_cbranch_scc0 %s" % Lq)
    a.label(Lx)


def retry_block(a, label, target, abort):
    a.label(label)
    a.I("s_sub_u32 s%d, s%d, 1" % (S_RETRY, S_RETRY))
    a.I("s_cmp_lg_u32 s%d, 0" % S_RETRY)
    a.I("s_cbranch_scc1 %s" % target)
    a.I("s_branch %s" % abort)


def chain_loop(a, w, st_flags="", timing=False, abort="L_abort", stop_after=None, dbg=None,
               delay=0, exp="", rdelay=0, hooks=None, kvflags="sc1 nt", gap=24, rgap=24, trace=None, looptime=True, fused=False, nsets=2, rsets=2, tag="", solo=0):
    tm = Timer(a, timing, trace)
    ws = "s[%d:%d]" % (S_WS, S_WS + 3)
    MEM, ACC, KT, S, VT, PX = V_MEM, V_ACC, V_KT, V_S, V_VT, V_PX
    q = [ACC, ACC + 8]
    k = [ACC + 4, ACC + 12]
    v = [ACC + 16, ACC + 20]
    L_step = "L_step_w%d%s" % (w, tag)
    L_done = "L_done_w%d%s" % (w, tag)
    ool = []
    cool = []
    hzl = []

    def smf(acc, A, B):
        return "v_smfmac_f32_16x16x64_bf16 %s, %s, %s, %s" % (vr(acc, 4), A, B, vr(V_IDX))

    def mem_load(kap):
        return ("buffer_load_dwordx4 %s, %s, %s, s%d offen offset:%d sc1"
                % (vr(MEM + 4 * kap, 4), vr(V_L16), ws, S_MEM if kap < 4 else S_MEMHI, (kap & 3) * 1024))

    def qkw(mat, tau, kap):
        return ar((mat * 2 + tau) * 64 + kap * 8, 8)

    def chunk_check(kap):
        return ["v_max_u32 %s, %s, %s" % (vr(V_T), vr(MEM + 4 * kap), vr(MEM + 4 * kap + 2)),
                "v_cmp_eq_u32 vcc, -1, %s" % vr(V_T)]

    def emit_check(kap):
        lr = a.newlabel("cr%d" % kap)
        lb = a.newlabel("cb%d" % kap)
        a.I("s_waitcnt vmcnt(%d)" % (7 - kap))
        for x in chunk_check(kap):
            a.I(x)
        a.I("s_cbranch_vccnz %s" % lr)
        a.label(lb)
        cool.append((lr, kap, lb))

    def add2(d, x, y):
        return ["v_add_f32 %s, %s, %s" % (vr(d), vr(x), vr(y)),
                "v_add_f32 %s, %s, %s" % (vr(d + 1), vr(x + 1), vr(y + 1))]

    def qk_post(tau):
        return (add2(q[tau], q[tau], q[tau] + 2) + add2(k[tau], k[tau], k[tau] + 2) +
                ["v_cvt_pk_bf16_f32 %s, %s, %s" % (vr(q[tau] + 3), vr(q[tau]), vr(q[tau] + 1)),
                 "v_cvt_pk_bf16_f32 %s, %s, %s" % (vr(q[tau] + 2), vr(k[tau]), vr(k[tau] + 1)),
                 "ds_write_b64 %s, %s offset:%d" % (vr(V_MW), vr(q[tau] + 2, 2), 512 * tau)])

    def far_ops():
        L = []
        for tau in range(2):
            L.append(["buffer_load_dwordx4 %s, %s, %s, s%d offen offset:%d %s"
                      % (vr(VT + 4 * tau, 4), vr(V_L16), ws, S_VT, (tau) * 1024, kvflags)])
        L.append(["s_mov_b32 m0, s%d" % S_KB,
                  "buffer_load_dwordx4 %s, %s, s%d offen %s lds" % (vr(V_L16), ws, S_KT, kvflags)])
        L.append(["buffer_load_dwordx4 %s, %s, s%d offen offset:1024 %s lds" % (vr(V_L16), ws, S_KT, kvflags)])
        return L

    pois = ["buffer_store_dword %s, %s, %s, s%d offen %s" % (vr(S + 8), vr(V_MS), ws, S_T0 + 3, st_flags)]
    tm.start()
    if looptime:
        a.I("s_memrealtime s[92:93]")
        a.I("s_waitcnt lgkmcnt(0)")
    a.label(L_step, clear=True)
    own = [2 * w, 2 * w + 1]
    others = [x for x in range(8) if x not in own]
    sets = [KT, KT + 8, KT + 16, KT + 24]
    mbo = L_MB - L_M

    def qk4(kap, A=None):
        A = A or vr(MEM + 4 * kap, 4)
        return [smf(q[0], A, qkw(0, 0, kap)), smf(k[0], A, qkw(1, 0, kap)),
                smf(q[1], A, qkw(0, 1, kap)), smf(k[1], A, qkw(1, 1, kap))]

    def poll2(issue, oks, gap, cnt, check, solo=False):
        n = len(oks)
        Lp = a.newlabel("pl")
        a.I("s_mov_b32 s%d, %d" % (S_RETRY, RETRY_MAX))
        if solo:
            issue(sets[0])
            a.I("s_waitcnt vmcnt(0)")
            check(sets[0], oks[0])
        for i in range(n - 1):
            issue(sets[i])
            if gap:
                a.nops(gap)
        a.label(Lp)
        for i in range(n):
            issue(sets[(i + n - 1) % n])
            a.I("s_waitcnt vmcnt(%d)" % (2 * (n - 1)))
            check(sets[i], oks[i])
        if timing:
            a.I("s_add_u32 s%d, s%d, 1" % (S_TM + 4 + cnt, S_TM + 4 + cnt))
        a.I("s_sub_u32 s%d, s%d, 1" % (S_RETRY, S_RETRY))
        a.I("s_cmp_lg_u32 s%d, 0" % S_RETRY)
        a.I("s_cbranch_scc1 %s" % Lp)
        a.I("s_branch %s" % abort)

    def check_poison(R, ok):
        for i, kap in enumerate(own):
            a.I("ds_write_b128 %s, %s offset:%d" % (vr(V_MB), vr(R + 4 * i, 4), kap * 1024))
        for x in check_insts([R + i for i in range(8)], V_T):
            a.I(x)
        if "nomemchk" in exp:
            a.I("s_branch %s" % ok)
        a.I("s_cbranch_vccz %s" % ok)

    def check_tag(R, ok):
        a.I("v_bitop3_b32 %s, %s, %s, s%d bitop3:0x7e" % (vr(V_T), vr(R), vr(R + 4), S_TAG))
        a.I("v_and_b32 %s, 1, %s" % (vr(V_T), vr(V_T)))
        a.I("v_cmp_ne_u32 vcc, 0, %s" % vr(V_T))
        if "noinchk" in exp:
            a.I("s_branch %s" % ok)
        a.I("s_cbranch_vccz %s" % ok)

    def issue_mem(R):
        for i, kap in enumerate(own):
            a.I("buffer_load_dwordx4 %s, %s, %s, s%d offen offset:%d sc1"
                % (vr(R + 4 * i, 4), vr(V_L16), ws, S_MEM if kap < 4 else S_MEMHI, (kap & 3) * 1024))
    if delay:
        a.nops(delay)
    hop(a, 4)
    oks = [a.newlabel("mok%d" % i) for i in range(nsets)]
    Lj = a.newlabel("mjoin")
    poll2(issue_mem, oks, gap, 9, check_poison, solo=bool(solo & 1))
    for si in range(nsets - 1, -1, -1):
        R = sets[si]
        a.label(oks[si], clear=True)
        tm.stamp(11)
        hop(a, 5)
        m_own = qk4(own[0], vr(R, 4)) + qk4(own[1], vr(R + 4, 4))
        for m in m_own[:3]:
            a.I(m)
        a.I("s_waitcnt lgkmcnt(0)")
        a.I("s_barrier")
        tm.stamp(12)
        hop(a, 6)
        rd = ["ds_read_b128 %s, %s offset:%d" % (vr(MEM + 4 * kap, 4), vr(V_MB), kap * 1024) for kap in others + own]
        a.I(rd[0])
        a.I(rd[1])
        for j, m in enumerate(m_own[3:]):
            a.I(m)
            a.I(rd[2 + j])
        a.I(rd[7])
        if si != 0:
            a.I("s_branch %s" % Lj)
    a.label(Lj, clear=True)
    tm.stamp(0)
    FINE["n"] = 0; FINE["k"] = 0; FINE["names"] = []
    fine(a, "join")
    hop(a, 7)
    nv = 0
    if "latepois" in exp and "preppois" not in exp:
        for x in pois:
            a.I(x)
            nv += 1
    if fused and w == 3:
        a.I("v_mov_b32 %s, s%d" % (vr(V_S), S_STEP))
        a.I("v_mov_b32 %s, s%d" % (vr(V_S + 1), S_NONCE))
        a.I("buffer_store_dwordx2 %s, %s, %s, s%d offen sc1" % (vr(V_S, 2), vr(V_Z), ws, S_CP))
        nv += 1
    if "nocompute" in exp:
        a.I("s_waitcnt vmcnt(0)")
        a.I("s_waitcnt lgkmcnt(0)")
        for i in range(0, 24, 2):
            a.I("v_mov_b64 %s, 0" % vr(ACC + i, 2))
        a.I("v_mov_b32 %s, s%d" % (vr(ACC), S_TAG))
        a.I("v_mov_b32 %s, s%d" % (vr(ACC + 16), S_TAG))
        a.I("buffer_store_dwordx4 %s, %s, %s, s%d offen %s" % (vr(ACC, 4), vr(V_PS), ws, S_PW0, st_flags))
        a.I("buffer_store_dwordx4 %s, %s, %s, s%d offen %s" % (vr(ACC + 16, 4), vr(V_PS), ws, S_PW1, st_flags))
        a.I("s_branch L_skip_w%d%s" % (w, tag))
    fill_hi = ["ds_read_b128 %s, %s offset:%d" % (vr(KT + (4 + ks) * 4, 4), vr(V_K), (4 + ks) * 1024) for ks in range(4)]
    fill_lo = ["ds_read_b128 %s, %s offset:%d" % (vr(KT + ks * 4, 4), vr(V_K), ks * 1024) for ks in range(4)]
    if fused:
        Lh = a.newlabel("hz")
        Lb = a.newlabel("hzb")
        a.I("s_add_u32 s%d, s%d, 1" % (S_T0 + 5, S_STEP))
        a.I("s_cmp_ge_u32 s%d, s%d" % (S_T0 + 5, S_HZ))
        a.I("s_cbranch_scc1 %s" % Lh)
        a.label(Lb)
        hzl.append((Lh, Lb))
    far = far_ops() if "nofar" not in exp else []
    nissued = 0
    cnt = 0
    waited = False
    for j, kap in enumerate(others[:4]):
        a.I("s_waitcnt lgkmcnt(%d)" % min(15, 7 - j + nissued))
        for m in qk4(kap):
            a.I(m)
            if cnt % 2 == 0:
                if fill_hi:
                    a.I(fill_hi.pop(0))
                    nissued += 1
                elif fill_lo:
                    if not waited:
                        a.I("s_waitcnt vmcnt(%d)" % nv)
                        waited = True
                    a.I(fill_lo.pop(0))
                    nissued += 1
            elif cnt % 4 == 1 and far:
                for x in far.pop(0):
                    a.I(x)
                nv += 1
            cnt += 1
        fine(a, "chunk%d" % j)
    assert not fill_lo and not far
    k6, k7 = others[4], others[5]
    A6, A7 = vr(MEM + 4 * k6, 4), vr(MEM + 4 * k7, 4)
    a.I("s_waitcnt lgkmcnt(%d)" % min(15, nissued))
    a.I(smf(q[0], A6, qkw(0, 0, k6)))
    a.I(smf(k[0], A6, qkw(1, 0, k6)))
    a.I(smf(q[0], A7, qkw(0, 0, k7)))
    a.I(smf(k[0], A7, qkw(1, 0, k7)))
    fine(a, "last4")
    tm.stamp(1)
    m1 = [smf(q[1], A6, qkw(0, 1, k6)), smf(k[1], A6, qkw(1, 1, k6)),
          smf(q[1], A7, qkw(0, 1, k7)), smf(k[1], A7, qkw(1, 1, k7))]
    vm = []
    for kap in range(8):
        for tau in range(2):
            vm.append(smf(v[tau], vr(MEM + 4 * kap, 4), vr(V_VW + tau * 64 + kap * 8, 8)))
    p0, p1 = qk_post(0), qk_post(1)
    a.I(m1[0])
    a.I(m1[1])
    a.I(m1[2])
    a.I(m1[3])
    fine(a, "m1")
    a.I(vm[0])
    for x in p0[0:2]:
        a.I(x)
    a.I(vm[1])
    for x in p0[2:4]:
        a.I(x)
    a.I(vm[2])
    for x in p0[4:7]:
        a.I(x)
    fine(a, "p0")
    for x in p1:
        a.I(x)
    fine(a, "p1")
    a.I(vm[3])
    a.I(vm[4])
    a.I(vm[5])
    a.I(vm[6])
    fine(a, "vm6")
    a.I("s_waitcnt lgkmcnt(0)")
    a.I("s_barrier")
    fine(a, "B1")
    trs = ["ds_read_b64_tr_b16 %s, %s offset:%d" % (vr(ACC + 4 * ks + 2 * hh, 2), vr(V_MR), 1024 * ks + 512 * hh)
           for ks in range(4) for hh in range(2)]
    a.I(trs[0])
    a.I(trs[1])
    a.I(trs[2])
    for i, m in enumerate(vm[7:12]):
        a.I(m)
        a.I(trs[3 + i])
    fine(a, "trs")
    tm.stamp(2)
    order = [(tau, xi) for tau in range(8) for xi in range(2)]
    slots = [KT + 8 * i for i in range(4)] + [MEM + 8 * i for i in range(4)]

    def stage(n, slot):
        tau, xi = order[n]
        return ["ds_read_b128 %s, %s offset:%d" % (vr(slot + 4 * hf, 4), vr(V_L16W), wo_img_off(tau, xi, hf))
                for hf in range(2)]

    T1, T2, T0 = S, S + 4, S + 8
    sc = []
    for ks in range(4):
        M = vr(ACC + 4 * ks, 4)
        for (D, A) in ((T1, vr(KT + ks * 4, 4)), (T2, vr(KT + (4 + ks) * 4, 4)), (T0, M)):
            sc.append("v_mfma_f32_16x16x32_bf16 %s, %s, %s, %s" % (vr(D, 4), A, M, "0" if ks == 0 else vr(D, 4)))
    P0q, ones = ACC, ACC + 4
    stgM = []
    for n in range(4, 8):
        stgM += stage(n, slots[n])
    nst = 0
    for ks in range(4):
        a.I("s_waitcnt lgkmcnt(%d)" % min(15, 6 - 2 * ks + nst))
        for j, m in enumerate(sc[3 * ks:3 * ks + 3]):
            a.I(m)
            if nst < 6 and (ks > 0 or j > 0):
                a.I(stgM[nst])
                nst += 1
        fine(a, "sc%d" % ks)
    if "nopub" not in exp:
        a.I("buffer_store_dwordx4 %s, %s, %s, s%d offen offset:%d sc1"
            % (vr(ACC + 4 * w, 4), vr(V_KM), ws, S_KM, w * 512))
    for m in vm[12:16]:
        a.I(m)
    a.I(stgM[6])
    a.I(stgM[7])
    fine(a, "vm15")
    tm.stamp(3)
    if dbg == "S":
        dump(a, w, S, 12)
    mx, tt, nmc = ACC + 8, ACC + 9, ACC + 10
    rs = ACC + 12
    stg = []
    for n in range(0, 4):
        stg += stage(n, slots[n])
    sm = []
    sm.append("v_max3_f32 %s, %s, %s, %s" % (vr(mx), vr(S + 0), vr(S + 1), vr(S + 2)))
    sm.append("v_max3_f32 %s, %s, %s, %s" % (vr(tt), vr(S + 3), vr(S + 4), vr(S + 5)))
    sm.append("v_max3_f32 %s, %s, %s, %s" % (vr(mx), vr(mx), vr(S + 6), vr(S + 7)))
    sm.append("v_max3_f32 %s, %s, %s, %s" % (vr(tt), vr(tt), vr(S + 8), vr(S + 9)))
    sm.append("v_max_f32 %s, %s, %s" % (vr(mx), vr(mx), vr(tt)))
    sm.append("v_mov_b32 %s, %s" % (vr(tt), vr(mx)))
    sm.append(None)
    sm.append("v_permlane32_swap_b32 %s, %s" % (vr(mx), vr(tt)))
    sm.append("v_max_f32 %s, %s, %s" % (vr(mx), vr(mx), vr(tt)))
    sm.append("v_mov_b32 %s, %s" % (vr(tt), vr(mx)))
    sm.append(None)
    sm.append("v_permlane16_swap_b32 %s, %s" % (vr(mx), vr(tt)))
    sm.append("v_max_f32 %s, %s, %s" % (vr(mx), vr(mx), vr(tt)))
    sm.append("v_mul_f32 %s, s%d, %s" % (vr(nmc), S_NC, vr(mx)))
    for j in range(5):
        sm.append("v_pk_fma_f32 %s, %s, s[%d:%d], %s op_sel_hi:[1,0,0]"
                  % (vr(S + 2 * j, 2), vr(S + 2 * j, 2), S_C, S_C + 1, vr(nmc, 2)))
    for i in range(10):
        sm.append("v_exp_f32 %s, %s" % (vr(S + i), vr(S + i)))
    si = 0
    consts = ["v_mov_b64 %s, s[%d:%d]" % (vr(ones, 2), S_ONE, S_ONE + 1),
              "v_mov_b64 %s, s[%d:%d]" % (vr(ones + 2, 2), S_ONE, S_ONE + 1),
              "v_mov_b32 %s, 0" % vr(ACC + 1), "v_mov_b64 %s, 0" % vr(ACC + 2, 2)]
    for j, x in enumerate(sm):
        if x is None:
            a.I(stg[si])
            si += 1
            a.I(consts.pop(0))
            continue
        a.I(x)
        if j >= 14 and si < len(stg) and j % 3 == 0:
            a.I(stg[si])
            si += 1
    while si < len(stg):
        a.I(stg[si])
        si += 1
    for x in consts:
        a.I(x)
    fine(a, "exp")
    for j in range(4):
        a.I("v_cvt_pk_bf16_f32 %s, %s, %s" % (vr(PX + j), vr(S + 2 * j), vr(S + 1 + 2 * j)))
    a.I("v_cvt_pk_bf16_f32 %s, %s, %s" % (vr(P0q), vr(S + 8), vr(S + 9)))
    fine(a, "P")
    tm.stamp(4)
    if dbg == "P":
        dump(a, w, PX, 10)
    O0, O1, OS = S, S + 4, S + 8
    P = vr(PX, 4)
    vp = add2(v[0], v[0], v[0] + 2) + add2(v[1], v[1], v[1] + 2)
    a.I(vp[0])
    a.I("v_mfma_f32_16x16x32_bf16 %s, %s, %s, 0" % (vr(OS, 4), P, vr(ones, 4)))
    a.I("s_waitcnt vmcnt(%d)" % (2 + (0 if "nopub" in exp else 1)))
    a.I(vp[1])
    a.I("v_mfma_f32_16x16x32_bf16 %s, %s, %s, 0" % (vr(O0, 4), P, vr(VT, 4)))
    a.I(vp[2])
    a.I("v_mfma_f32_16x16x32_bf16 %s, %s, %s, 0" % (vr(O1, 4), P, vr(VT + 4, 4)))
    a.I(vp[3])
    a.I("v_mfma_f32_16x16x32_bf16 %s, %s, %s, %s" % (vr(OS, 4), vr(P0q, 4), vr(ones, 4), vr(OS, 4)))
    a.I("v_cvt_pk_bf16_f32 %s, %s, %s" % (vr(PX + 4), vr(v[0]), vr(v[0] + 1)))
    a.I("v_cvt_pk_bf16_f32 %s, %s, %s" % (vr(PX + 6), vr(v[1]), vr(v[1] + 1)))
    a.I("v_lshrrev_b32 %s, 2, %s" % (vr(V_T), vr(V_L16)))
    a.I("v_mfma_f32_16x16x32_bf16 %s, %s, %s, %s" % (vr(O0, 4), vr(P0q, 4), vr(PX + 4, 4), vr(O0, 4)))
    a.I("v_mfma_f32_16x16x32_bf16 %s, %s, %s, %s" % (vr(O1, 4), vr(P0q, 4), vr(PX + 6, 4), vr(O1, 4)))
    fine(a, "PVm")
    if "nopub" not in exp:
        a.I("buffer_store_dword %s, %s, %s, s%d offen sc1" % (vr(PX + 4), vr(V_T), ws, S_VM))
        a.I("buffer_store_dword %s, %s, %s, s%d offen offset:256 sc1" % (vr(PX + 6), vr(V_T), ws, S_VM))
    a.I("v_rcp_f32 %s, %s" % (vr(rs), vr(OS + 2)))
    a.I("v_rcp_f32 %s, %s" % (vr(rs + 1), vr(OS + 3)))
    zl = []
    for tI in range(8):
        for r in range(0, 4, 2):
            zl.append("v_mov_b64 %s, 0" % vr(wacc(tI) + r, 2))
    a.I("v_pk_mul_f32 %s, %s, %s" % (vr(O0 + 2, 2), vr(O0 + 2, 2), vr(rs, 2)))
    a.I("v_pk_mul_f32 %s, %s, %s" % (vr(O1 + 2, 2), vr(O1 + 2, 2), vr(rs, 2)))
    a.I("v_cvt_pk_bf16_f32 %s, %s, %s" % (vr(S), vr(O0 + 2), vr(O0 + 3)))
    a.I("v_cvt_pk_bf16_f32 %s, %s, %s" % (vr(S + 1), vr(O1 + 2), vr(O1 + 3)))
    if dbg == "O":
        dump(a, w, S, 2)
    a.I("ds_write_b64 %s, %s offset:%d" % (vr(V_MW), vr(S, 2), O_OFF))
    fine(a, "owr")
    for x in zl[4:12]:
        a.I(x)
    a.I("s_waitcnt lgkmcnt(0)")
    a.I("s_barrier")
    fine(a, "B2")
    for xi in range(2):
        for hh in range(2):
            a.I("ds_read_b64_tr_b16 %s, %s offset:%d" % (vr(PX + 4 * xi + 2 * hh, 2), vr(V_MR), O_OFF + 2048 * xi + 1024 * hh))
    for x in zl[:4] + zl[12:]:
        a.I(x)
    a.I("s_waitcnt lgkmcnt(0)")
    fine(a, "OA")
    tm.stamp(5)
    def post_tile(t):
        ta = wacc(t)
        dq = wacc(4 * (t >> 2)) + (t & 3)
        L = add2(ta, ta, ta + 2) + ["v_cvt_pk_bf16_f32 %s, %s, %s" % (vr(dq), vr(ta), vr(ta + 1))]
        if (t & 3) == 3:
            d0 = wacc(4 * (t >> 2))
            L.append("v_bfi_b32 %s, 1, s%d, %s" % (vr(d0), S_TAG, vr(d0)))
            L.append("buffer_store_dwordx4 %s, %s, %s, s%d offen %s"
                     % (vr(d0, 4), vr(V_PS), ws, S_PW0 if t == 3 else S_PW1, st_flags))
        return L
    pend = []
    seq = []
    todo = []
    for n8 in range(8, 16):
        todo += [(n8, x) for x in stage(n8, slots[n8 % 8])]
    for n in range(16):
        tau, xi = order[n]
        slot = slots[n % 8]
        if n >= 8:
            last = max(i for i, o in enumerate(seq) if o == n)
            a.I("s_waitcnt lgkmcnt(%d)" % (len(seq) - last - 1))
        a.I(smf(wacc(tau), vr(PX + 4 * xi, 4), vr(slot, 8)))
        target = min(16, 2 * (n + 1), (3 * (n + 1) + 1) // 2)
        while len(seq) < target:
            o, x = todo.pop(0)
            a.I(x)
            seq.append(o)
        if n in (3, 7, 11, 15):
            fine(a, "wo%d" % n)
        if n >= 3 and n % 2 == 1:
            pend += post_tile((n - 3) // 2)
        for _ in range(1 if n < 8 else 2):
            if pend:
                a.I(pend.pop(0))
    for x in pend:
        a.I(x)
    ta = wacc(7)
    a.I("v_pk_add_f32 %s, %s, %s" % (vr(ta, 2), vr(ta, 2), vr(ta + 2, 2)))
    for x in post_tile(7)[2:]:
        a.I(x)
    fine(a, "woend")
    hop(a, 0)
    tm.stamp(6)
    if "ack" in exp:
        a.I("s_waitcnt vmcnt(0)")
        tm.stamp(15)

    SEL = S
    D2 = S + 4
    if "preppois" in exp:
        a.I("v_mov_b32 %s, -1" % vr(S + 8))
        for x in pois:
            a.I(x)
    sel_addr(a, V_T, SEL)
    a.I("ds_read_b128 %s, %s" % (vr(SEL, 4), vr(V_T)))
    for i in range(0, 24, 2):
        a.I("v_mov_b64 %s, 0" % vr(ACC + i, 2))
    a.I("s_add_u32 s%d, s%d, 262144" % (S_KT, S_KT))
    a.I("s_add_u32 s%d, s%d, 262144" % (S_VT, S_VT))
    a.I("s_add_u32 s%d, s%d, 65536" % (S_VM, S_VM))
    a.I("s_add_u32 s%d, s%d, 65536" % (S_KM, S_KM))
    a.I("s_add_u32 s%d, s%d, 1" % (S_STEP, S_STEP))
    a.I("s_xor_b32 s%d, s%d, 8192" % (S_KB, S_KB))
    a.I("v_xor_b32 %s, 8192, %s" % (vr(V_K), vr(V_K)))
    if rdelay:
        a.nops(rdelay)
    hop(a, 1)

    def issue_in(R):
        for m in range(2):
            a.I("buffer_load_dwordx4 %s, %s, %s, s%d offen offset:%d sc1"
                % (vr(R + 4 * m, 4), vr(V_L16), ws, S_PR, m * 1024))
    oks = [a.newlabel("rok%d" % i) for i in range(rsets)]
    Lj = a.newlabel("rjoin")
    a.I("s_waitcnt lgkmcnt(0)")
    tm.stamp(14)
    poll2(issue_in, oks, rgap, 10, check_tag, solo=bool(solo & 2))
    for si in range(rsets - 1, -1, -1):
        R = sets[si]
        a.label(oks[si], clear=True)
        tm.stamp(13)
        hop(a, 2)
        a.I("v_mfma_f32_16x16x32_bf16 %s, %s, %s, 0" % (vr(D2, 4), vr(R, 4), vr(SEL, 4)))
        a.I("v_mfma_f32_16x16x32_bf16 %s, %s, %s, %s" % (vr(D2, 4), vr(R + 4, 4), vr(SEL, 4), vr(D2, 4)))
        if si != 0:
            a.I("s_branch %s" % Lj)
    a.label(Lj)
    a.I("s_add_u32 s%d, s%d, 8192" % (S_MEM, S_MEM))
    a.I("s_and_b32 s%d, s%d, 0x%x" % (S_MEM, S_MEM, WS_MEM | 0x7fff))
    a.I("s_add_u32 s%d, s%d, 4096" % (S_MEMHI, S_MEM))
    a.I("s_add_u32 s%d, s%d, 2 * 8192" % (S_T0 + 3, S_MEM))
    a.I("s_and_b32 s%d, s%d, 0x%x" % (S_T0 + 3, S_T0 + 3, WS_MEM | 0x7fff))
    a.I("v_mov_b32 %s, -1" % vr(S + 8))
    a.nops(3)
    a.I("v_permlane32_swap_b32 %s, %s" % (vr(D2), vr(D2 + 2)))
    a.I("v_permlane32_swap_b32 %s, %s" % (vr(D2 + 1), vr(D2 + 3)))
    a.I("v_add_f32 %s, %s, %s" % (vr(D2), vr(D2), vr(D2 + 2)))
    a.I("v_add_f32 %s, %s, %s" % (vr(D2 + 1), vr(D2 + 1), vr(D2 + 3)))
    a.I("v_permlane16_swap_b32 %s, %s" % (vr(D2), vr(D2 + 1)))
    a.I("v_add_f32 %s, %s, %s" % (vr(D2), vr(D2), vr(D2 + 1)))
    a.I("v_mov_b32 %s, %s" % (vr(D2 + 1), vr(D2)))
    a.I("v_permlane16_swap_b32 %s, %s" % (vr(D2), vr(D2 + 1)))
    a.I("v_cvt_pk_bf16_f32 %s, %s, %s" % (vr(D2), vr(D2), vr(D2 + 1)))
    a.I("v_min_u32 %s, 0xfffffffe, %s" % (vr(D2), vr(D2)))
    a.I("buffer_store_dword %s, %s, %s, s%d offen %s" % (vr(D2), vr(V_MS), ws, S_MEM, st_flags))
    hop(a, 3)
    tm.stamp(7)
    if "latepois" not in exp:
        for x in pois:
            a.I(x)
    for s_ in (S_PW0, S_PW1, S_PR):
        a.I("s_xor_b32 s%d, s%d, 262144" % (s_, s_))
    a.I("s_bfe_u32 s%d, s%d, 0x10001" % (S_TAG, S_STEP))
    if "rtt" not in exp:
        tm.stamp(8)
    if stop_after is not None:
        a.I("s_cmp_eq_u32 s%d, %d" % (S_STEP, stop_after))
        a.I("s_cbranch_scc1 %s" % L_done)
    a.I("s_cmp_lg_u32 s%d, 63" % S_STEP)
    a.I("s_cbranch_scc1 %s" % L_step)
    a.I("s_mov_b32 s%d, %d" % (S_RETRY, RETRY_MAX))
    Lp = a.newlabel("lpoll")
    Lr = a.newlabel("lretry")
    a.label(Lp)
    for kap in range(8):
        a.I(mem_load(kap))
    a.I("s_waitcnt vmcnt(0)")
    for x in check_insts([MEM + i for i in range(32)], V_T):
        a.I(x)
    a.I("s_cbranch_vccnz %s" % Lr)
    ool.append((Lr, Lp))
    for kap in range(8):
        A = vr(MEM + 4 * kap, 4)
        a.I(smf(k[0], A, qkw(1, 0, kap)))
        a.I(smf(k[1], A, qkw(1, 1, kap)))
        a.I(smf(v[0], A, vr(V_VW + kap * 8, 8)))
        a.I(smf(v[1], A, vr(V_VW + 64 + kap * 8, 8)))
    for tau in range(2):
        for x in qk_post(tau):
            a.I(x)
    for x in add2(v[0], v[0], v[0] + 2) + add2(v[1], v[1], v[1] + 2):
        a.I(x)
    a.I("v_cvt_pk_bf16_f32 %s, %s, %s" % (vr(PX + 4), vr(v[0]), vr(v[0] + 1)))
    a.I("v_cvt_pk_bf16_f32 %s, %s, %s" % (vr(PX + 6), vr(v[1]), vr(v[1] + 1)))
    a.I("v_lshrrev_b32 %s, 2, %s" % (vr(V_T), vr(V_L16)))
    a.I("buffer_store_dword %s, %s, %s, s%d offen sc1" % (vr(PX + 4), vr(V_T), ws, S_VM))
    a.I("buffer_store_dword %s, %s, %s, s%d offen offset:256 sc1" % (vr(PX + 6), vr(V_T), ws, S_VM))
    a.I("s_waitcnt lgkmcnt(0)")
    a.I("s_barrier")
    if fused and w == 3:
        a.I("v_mov_b32 %s, 63" % vr(V_S))
        a.I("v_mov_b32 %s, s%d" % (vr(V_S + 1), S_NONCE))
        a.I("buffer_store_dwordx2 %s, %s, %s, s%d offen sc1" % (vr(V_S, 2), vr(V_Z), ws, S_CP))
    for hh in range(2):
        a.I("ds_read_b64_tr_b16 %s, %s offset:%d" % (vr(KT + 2 * hh, 2), vr(V_MR), 1024 * w + 512 * hh))
    a.I("s_waitcnt lgkmcnt(0)")
    a.I("buffer_store_dwordx4 %s, %s, %s, s%d offen offset:%d sc1" % (vr(KT, 4), vr(V_KM), ws, S_KM, w * 512))
    if fused:
        a.I("s_waitcnt vmcnt(0)")
        a.I("s_barrier")
        if w == 3:
            a.I("v_mov_b32 %s, 64" % vr(V_S))
            a.I("v_mov_b32 %s, s%d" % (vr(V_S + 1), S_NONCE))
            a.I("buffer_store_dwordx2 %s, %s, %s, s%d offen sc1" % (vr(V_S, 2), vr(V_Z), ws, S_CP))
    a.label(L_done, clear=True)
    a.I("s_waitcnt vmcnt(0) lgkmcnt(0)")
    if FINE["on"] or FINE.get("hop"):
        Lq = a.newlabel("fq")
        for i in range(16):
            a.I("v_mov_b32 %s, s%d" % (vr(V_MEM + i), 64 + 2 * i))
        a.I("v_mov_b32 %s, 0" % vr(V_MEM + 16))
        a.I("s_lshl_b32 s%d, s%d, 8" % (S_T0, S_RANK))
        a.I("s_add_u32 s%d, s%d, 0x%x" % (S_T0, S_T0, WS_FLAGS + 0x9000 + w * 64))
        for i in range(16):
            a.I("buffer_store_dword %s, %s, %s, s%d offen offset:%d" % (vr(V_MEM + i), vr(V_MEM + 16), ws, S_T0, i * 4))
        a.I("s_waitcnt vmcnt(0)")
        a.label(Lq)
    if looptime and w == 0:
        a.I("s_memrealtime s[94:95]")
        a.I("s_waitcnt lgkmcnt(0)")
        a.I("s_sub_u32 s94, s94, s92")
        a.I("v_mov_b32 %s, s94" % vr(V_MEM))
        a.I("v_mov_b32 %s, s92" % vr(V_MEM + 1))
        a.I("s_lshl_b32 s%d, s%d, 3" % (S_T0, S_RANK))
        a.I("v_mov_b32 %s, s%d" % (vr(V_MEM + 2), S_T0))
        a.I("s_mov_b32 s%d, 0x%x" % (S_T0, WS_FLAGS + 0xc000))
        a.I("buffer_store_dwordx2 %s, %s, %s, s%d offen" % (vr(V_MEM, 2), vr(V_MEM + 2), ws, S_T0))
        a.I("s_waitcnt vmcnt(0)")
    if timing:
        Ls = a.newlabel("notm")
        if trace is None:
            a.I("s_cmp_lg_u32 s%d, 0" % S_RANK)
            a.I("s_cbranch_scc1 %s" % Ls)
        for i in range(16):
            a.I("v_mov_b32 %s, s%d" % (vr(V_MEM + i), S_TM + 4 + i))
        a.I("v_mov_b32 %s, 0" % vr(V_MEM + 16))
        a.I("s_lshl_b32 s%d, s%d, 8" % (S_T0, S_RANK))
        a.I("s_add_u32 s%d, s%d, 0x%x" % (S_T0, S_T0, WS_FLAGS + 0x8000 + w * 64))
        for i in range(16):
            a.I("buffer_store_dword %s, %s, %s, s%d offen offset:%d" % (vr(V_MEM + i), vr(V_MEM + 16), ws, S_T0, i * 4))
        a.I("s_waitcnt vmcnt(0)")
        a.label(Ls)
    Lend = a.newlabel("end")
    a.I("s_branch %s" % Lend)
    for (lab, tgt) in ool:
        retry_block(a, lab, tgt, abort)
    for (lh, lb) in hzl:
        a.label(lh, clear=True)
        horizon_refresh(a, S_T0 + 5, abort)
        a.I("s_branch %s" % lb)
    for (lr, kap, lb) in cool:
        a.label(lr, clear=True)
        lq = a.newlabel("cq")
        a.I("s_mov_b32 s%d, %d" % (S_RETRY, RETRY_MAX))
        a.label(lq)
        a.I(mem_load(kap))
        a.I("s_waitcnt vmcnt(0)")
        for x in chunk_check(kap):
            a.I(x)
        a.I("s_cbranch_vccz %s" % lb)
        a.I("s_sub_u32 s%d, s%d, 1" % (S_RETRY, S_RETRY))
        a.I("s_cmp_lg_u32 s%d, 0" % S_RETRY)
        a.I("s_cbranch_scc1 %s" % lq)
        a.I("s_branch %s" % abort)
    a.label(Lend, clear=True)


def setup_scalar(a, w, fused=False):
    r = S_RANK
    a.I("s_mov_b32 s%d, 0" % S_STEP)
    a.I("s_mov_b32 s%d, 0" % S_TAG)
    a.I("s_mov_b32 s%d, 0x%x" % (S_MEM, WS_MEM))
    a.I("s_mov_b32 s%d, 0x%x" % (S_MEMHI, WS_MEM + 4096))
    a.I("s_mov_b32 s%d, 0x%x" % (S_PW0, WS_PART + w * 65536))
    a.I("s_add_u32 s%d, s%d, 32768" % (S_PW1, S_PW0))
    a.I("s_lshl_b32 s%d, s%d, 13" % (S_PR, r))
    a.I("s_add_u32 s%d, s%d, 0x%x" % (S_PR, S_PR, WS_PART + w * 2048))
    a.I("s_lshl_b32 s%d, s%d, 13" % (S_KT, r))
    a.I("s_add_u32 s%d, s%d, 0x%x" % (S_VT, S_KT, WS_VT + 2 * w * 1024))
    a.I("s_add_u32 s%d, s%d, 0x%x" % (S_KT, S_KT, WS_KT + 2 * w * 1024))
    a.I("s_lshl_b32 s%d, s%d, 11" % (S_KM, r))
    a.I("s_add_u32 s%d, s%d, 0x%x" % (S_VM, S_KM, WS_VM + w * 512))
    a.I("s_add_u32 s%d, s%d, 0x%x" % (S_KM, S_KM, WS_KM))
    import struct
    c = struct.unpack("<I", struct.pack("<f", 128 ** -0.5 * 1.4426950408889634))[0]
    a.I("s_mov_b32 s%d, 0x%x" % (S_C, c))
    a.I("s_mov_b32 s%d, 0x%x" % (S_NC, c | 0x80000000))
    a.I("s_mov_b32 s%d, 0x3f803f80" % S_ONE)
    a.I("s_mov_b32 s%d, 0x3f803f80" % (S_ONE + 1))
    a.I("v_mov_b64 %s, 0" % vr(V_PX + 8, 2))
    if fused:
        a.I("s_lshl_b32 s%d, s%d, 6" % (S_PG, r))
        a.I("s_add_u32 s%d, s%d, 0x%x" % (S_PG, S_PG, FL_PROG))
        a.I("s_add_u32 s%d, s%d, 48" % (S_CP, S_PG))


def k0_dma(a, w):
    a.I("s_mov_b32 m0, %d" % (L_K + 2 * w * 1024))
    for p in range(2):
        a.I("buffer_load_dwordx4 %s, s[%d:%d], s%d offen offset:%d sc1 lds" % (vr(V_L16), S_WS, S_WS + 3, S_KT, p * 1024))
    a.I("s_add_u32 s%d, s%d, 262144" % (S_KT, S_KT))
    a.I("s_mov_b32 s%d, %d" % (S_KB, L_K + 8192 + 2 * w * 1024))


def setup_regs(a, w):
    for i in range(0, 24, 2):
        a.I("v_mov_b64 %s, 0" % vr(V_ACC + i, 2))
    a.I("v_mov_b64 %s, -1" % vr(V_S + 8, 2))
    a.I("v_mov_b64 %s, -1" % vr(V_S + 10, 2))
    a.I("s_mov_b32 s%d, 0x%x" % (S_T0 + 3, WS_MEM + 3 * 8192))
    a.I("v_mov_b64 %s, 0" % vr(V_PX + 8, 2))
    a.I("v_mov_b64 %s, 0" % vr(V_PX + 4, 2))
    a.I("v_mov_b64 %s, 0" % vr(V_PX + 6, 2))
    a.I("v_add_u32 %s, %d, %s" % (vr(V_MB), L_MB, vr(V_L16)))


def loop_setup(a, w, fused=False, abort="L_abort"):
    setup_scalar(a, w, fused)
    if fused:
        a.I("s_mov_b32 s%d, 0" % (S_T0 + 5))
        horizon_refresh(a, S_T0 + 5, abort)
    k0_dma(a, w)
    setup_regs(a, w)
```

```python
import sys
from common import *
import pre, front, tail, chain
from chain import *
from tail import poll_lanes

D_TK0, D_NONCE, D_CHAIN = 128, 132, 136
L_BCAST = 163840 - 64

S_MODE = 32
FORCE_SLOW = False
D_GTK = 140
S_XCC, S_TK, S_FI = 33, 21, 35


STAMPS = False
WS_STAMP = 0x00080000


DBGT = False
OPT = {}


def dbgmax(a, off, vt, neg=False):
    if not DBGT:
        return
    L = a.newlabel("dm")
    a.I("s_cmp_lg_u32 s%d, 0" % S_WAVE)
    a.I("s_cbranch_scc1 %s" % L)
    a.I("s_memrealtime s[94:95]")
    a.I("s_waitcnt lgkmcnt(0)")
    if neg:
        a.I("s_not_b32 s94, s94")
    a.I("v_mov_b32 v%d, s94" % vt)
    a.I("v_mov_b32 v%d, %d" % (vt + 1, off))
    a.I("s_mov_b64 exec, 1")
    a.I("buffer_atomic_umax v%d, v%d, s[%d:%d], 0 offen" % (vt, vt + 1, S_DBG, S_DBG + 3))
    a.I("s_mov_b64 exec, -1")
    a.label(L)


def stamp(a, slot, vt=250):
    if DBGT:
        m = {1: (32, True), 3: None, 5: 40, 6: 44, 8: 48, 4: 52}
        return
    if not STAMPS:
        return
    L = a.newlabel("st")
    a.I("s_cmp_lg_u32 s%d, 0" % S_WAVE)
    a.I("s_cbranch_scc1 %s" % L)
    a.I("s_memrealtime s[94:95]")
    a.I("s_lshl_b32 s93, s3, 6")
    a.I("s_add_u32 s93, s93, 0x%x" % (WS_STAMP + slot * 4))
    a.I("s_waitcnt lgkmcnt(0)")
    a.I("v_mov_b32 v%d, s94" % vt)
    a.I("v_mov_b32 v%d, 0" % (vt + 1))
    a.I("s_mov_b64 exec, 1")
    a.I("buffer_store_dword v%d, v%d, s[%d:%d], s93 offen sc1" % (vt, vt + 1, S_WS, S_WS + 3))
    a.I("s_mov_b64 exec, -1")
    a.label(L)


def entry(a):
    a.I("s_cmp_ge_u32 s2, 256")
    a.I("s_cbranch_scc1 L_exit")
    a.I("s_load_dwordx4 s[%d:%d], s[0:1], %d" % (S_PTR + 12, S_PTR + 15, K_DBG))
    a.I("s_load_dwordx8 s[%d:%d], s[0:1], %d" % (S_PTR, S_PTR + 7, K_WQ))
    a.I("s_memrealtime s[96:97]")
    if STAMPS:
        a.I("s_mov_b32 s3, s2")
    a.I("v_and_b32 %s, 63, v0" % vr(V_T))
    a.I("v_lshrrev_b32 v1, 6, v0")
    a.I("s_getreg_b32 s%d, hwreg(HW_REG_XCC_ID, 0, 4)" % S_XCC)
    a.I("v_readfirstlane_b32 s%d, v1" % S_WAVE)
    a.I("s_waitcnt lgkmcnt(0)")
    srd(a, S_DBG, S_PTR + 12, 256)
    srd(a, S_WS, S_PTR + 14, WS_SIZE)
    a.I("s_mov_b32 s%d, 0x00020000" % (S_W + 3))
    a.I("s_mov_b32 s%d, 0" % S_MODE)
    PF = OPT.get("pf", 0)

    def prefetch():
        L = a.newlabel("nopf")
        a.I("s_cmp_eq_u32 s%d, 0" % S_XCC)
        a.I("s_cbranch_scc1 %s" % L)
        for i in range(16):
            if i % 4 == 0:
                a.I("s_add_u32 s%d, s%d, %d" % (S_T0 + 3, S_T0 + 2, i * 1024))
            a.I("buffer_load_dwordx4 %s, v7, s[%d:%d], s%d offen offset:%d" % (vr(176 + 4 * i, 4), S_W, S_W + 3, S_T0 + 3, (i % 4) * 1024))
        a.label(L)
    if PF:
        a.I("s_mov_b32 s%d, s%d" % (S_W, S_PTR))
        a.I("s_mov_b32 s%d, s%d" % (S_W + 1, S_PTR + 1))
        for w in range(1, 4):
            a.I("s_cmp_eq_u32 s%d, %d" % (S_WAVE, w))
            a.I("s_cselect_b32 s%d, s%d, s%d" % (S_W, S_PTR + 2 * w, S_W))
            a.I("s_cselect_b32 s%d, s%d, s%d" % (S_W + 1, S_PTR + 2 * w + 1, S_W + 1))
        a.I("s_mov_b32 s%d, 0x400000" % (S_W + 2))
        a.I("s_lshl_b32 s%d, s2, 14" % (S_T0 + 2))
        a.I("v_lshlrev_b32 v7, 4, %s" % vr(V_T))
    a.I("s_cmp_lg_u32 s%d, 0" % S_WAVE)
    a.I("s_cbranch_scc1 L_el_other")
    a.I("s_and_b32 s%d, s%d, 7" % (S_T0, S_XCC))
    a.I("s_lshl_b32 s%d, s%d, 2" % (S_T0, S_T0))
    a.I("s_cmp_eq_u32 s%d, 0" % S_T0)
    a.I("s_cselect_b32 s%d, %d, s%d" % (S_T0, D_TK0, S_T0))
    a.I("v_mov_b32 v2, 1")
    a.I("v_mov_b32 v3, s%d" % S_T0)
    a.I("s_mov_b64 exec, 1")
    a.I("buffer_atomic_add v2, v3, s[%d:%d], 0 offen sc0" % (S_DBG, S_DBG + 3))
    if PF:
        Lc = a.newlabel("elc")
        Ld = a.newlabel("eld")
        a.I("s_cmp_eq_u32 s%d, 0" % S_XCC)
        a.I("s_cbranch_scc1 %s" % Lc)
        a.I("s_mov_b64 exec, -1")
        prefetch()
        a.I("s_mov_b64 exec, 1")
        a.I("s_waitcnt vmcnt(16)")
        a.I("s_branch %s" % Ld)
        a.label(Lc)
        a.I("s_waitcnt vmcnt(0)")
        a.label(Ld)
    else:
        a.I("s_waitcnt vmcnt(0)")
    a.I("v_readfirstlane_b32 s%d, v2" % (S_T0 + 1))
    a.I("s_cmp_lg_u32 s%d, 0" % (S_T0 + 1))
    a.I("s_cbranch_scc1 L_el_nononce")
    a.I("s_or_b32 s%d, s96, 1" % (S_T0 + 1))
    a.I("v_mov_b32 v4, s%d" % (S_T0 + 1))
    a.I("v_mov_b32 v5, 0")
    a.I("v_mov_b32 v6, %d" % D_NONCE)
    a.I("buffer_atomic_cmpswap v[4:5], v6, s[%d:%d], 0 offen" % (S_DBG, S_DBG + 3))
    a.label("L_el_nononce")
    a.I("v_mov_b32 v3, %d" % L_BCAST)
    a.I("ds_write_b32 v3, v2")
    a.I("s_mov_b64 exec, -1")
    a.I("s_branch L_el_wait")
    a.label("L_el_other")
    if PF:
        prefetch()
    a.label("L_el_wait")
    a.I("s_waitcnt lgkmcnt(0)")
    a.I("s_barrier")
    a.I("v_mov_b32 v3, %d" % L_BCAST)
    a.I("ds_read_b32 v2, v3")
    a.I("s_waitcnt lgkmcnt(0)")
    a.I("v_readfirstlane_b32 s%d, v2" % S_TK)
    a.I("s_barrier")
    if STAMPS:
        L = a.newlabel("st")
        a.I("s_cmp_lg_u32 s%d, 0" % S_WAVE)
        a.I("s_cbranch_scc1 %s" % L)
        a.I("s_lshl_b32 s93, s3, 6")
        a.I("s_add_u32 s93, s93, 0x%x" % WS_STAMP)
        a.I("s_lshl_b32 s94, s%d, 8" % S_XCC)
        a.I("s_add_u32 s94, s94, s%d" % S_TK)
        a.I("v_mov_b32 v10, s96")
        a.I("v_mov_b32 v11, 0")
        a.I("v_mov_b32 v12, s94")
        a.I("s_mov_b64 exec, 1")
        a.I("buffer_store_dword v10, v11, s[%d:%d], s93 offen sc1" % (S_WS, S_WS + 3))
        a.I("buffer_store_dword v12, v11, s[%d:%d], s93 offen offset:60 sc1" % (S_WS, S_WS + 3))
        a.I("s_mov_b64 exec, -1")
        a.label(L)
    stamp(a, 1, 10)
    dbgmax(a, 36, 10, neg=True)


def verify_issue(a, vt):
    a.I("v_mov_b32 %s, 0" % vr(vt + 12))
    a.I("buffer_load_dwordx4 %s, %s, s[%d:%d], 0 offen sc1" % (vr(vt, 4), vr(vt + 12), S_DBG, S_DBG + 3))
    a.I("buffer_load_dwordx4 %s, %s, s[%d:%d], 0 offen offset:16 sc1" % (vr(vt + 4, 4), vr(vt + 12), S_DBG, S_DBG + 3))
    a.I("buffer_load_dwordx2 %s, %s, s[%d:%d], 0 offen offset:%d sc1" % (vr(vt + 8, 2), vr(vt + 12), S_DBG, S_DBG + 3, D_TK0))


def verify(a, vt, st, slow, pre=False):
    L = a.newlabel("vf")
    Le = a.newlabel("vfe")
    Lskip = a.newlabel("vfx")
    a.I("s_cmp_lg_u32 s%d, 0" % S_MODE)
    a.I("s_cbranch_scc1 %s" % Lskip)
    a.I("s_mov_b32 s%d, 200000" % st)
    if pre:
        a.I("s_branch %s" % Le)
    a.label(L)
    verify_issue(a, vt)
    a.I("s_sub_u32 s%d, s%d, 1" % (st, st))
    a.I("s_cmp_eq_u32 s%d, 0" % st)
    a.I("s_cbranch_scc1 L_abort")
    a.I("s_waitcnt vmcnt(0)")
    a.label(Le)
    a.I("v_add3_u32 %s, %s, %s, %s" % (vr(vt + 10), vr(vt + 1), vr(vt + 2), vr(vt + 3)))
    a.I("v_add3_u32 %s, %s, %s, %s" % (vr(vt + 10), vr(vt + 10), vr(vt + 4), vr(vt + 5)))
    a.I("v_add3_u32 %s, %s, %s, %s" % (vr(vt + 10), vr(vt + 10), vr(vt + 6), vr(vt + 7)))
    a.I("v_add_u32 %s, %s, %s" % (vr(vt + 10), vr(vt + 10), vr(vt + 8)))
    a.I("v_max3_u32 %s, %s, %s, %s" % (vr(vt + 11), vr(vt + 1), vr(vt + 2), vr(vt + 3)))
    a.I("v_max3_u32 %s, %s, %s, %s" % (vr(vt + 11), vr(vt + 11), vr(vt + 4), vr(vt + 5)))
    a.I("v_max3_u32 %s, %s, %s, %s" % (vr(vt + 11), vr(vt + 11), vr(vt + 6), vr(vt + 7)))
    a.I("v_max_u32 %s, %s, %s" % (vr(vt + 11), vr(vt + 11), vr(vt + 8)))
    a.I("v_cmp_lt_u32 vcc, 0x100, %s" % vr(vt + 10))
    a.I("s_cbranch_vccnz L_abort")
    a.I("v_cmp_ne_u32 vcc, 0x100, %s" % vr(vt + 10))
    a.I("s_cbranch_vccnz %s" % L)
    a.I("v_cmp_eq_u32 vcc, 0, %s" % vr(vt + 9))
    a.I("s_cbranch_vccnz %s" % L)
    a.I("v_readfirstlane_b32 s%d, %s" % (S_NONCE, vr(vt + 9)))
    a.I("v_readfirstlane_b32 s%d, %s" % (st, vr(vt + 11)))
    a.I("s_cmp_lg_u32 s%d, %d" % (st, 33 if FORCE_SLOW else 32))
    a.I("s_cbranch_scc1 %s" % slow)
    a.label(Lskip)


def set_flag(a, S_WSq, s_off, s_val, vt, s_wave):
    L = a.newlabel("sf")
    a.I("s_cmp_lg_u32 s%d, 0" % s_wave)
    a.I("s_cbranch_scc1 %s" % L)
    a.I("v_mov_b32 %s, %s" % (vr(vt), s_val))
    a.I("v_mov_b32 %s, s%d" % (vr(vt + 1), S_NONCE))
    a.I("v_mov_b32 %s, 0" % vr(vt + 2))
    a.I("s_mov_b64 exec, 1")
    a.I("buffer_store_dwordx2 %s, %s, s[%d:%d], s%d offen sc1" % (vr(vt, 2), vr(vt + 2), S_WSq, S_WSq + 3, s_off))
    a.I("s_mov_b64 exec, -1")
    a.label(L)


def chain_part(a, timing, kw):
    a.label("L_chain", clear=True)
    a.I("s_load_dwordx8 s[%d:%d], s[0:1], 8" % (S_PTR, S_PTR + 7))
    a.I("s_load_dwordx2 s[%d:%d], s[0:1], 40" % (S_PTR + 8, S_PTR + 9))
    a.I("s_waitcnt lgkmcnt(0)")
    for w in range(1, 4):
        a.I("s_cmp_eq_u32 s%d, %d" % (S_WAVE, w))
        a.I("s_cbranch_scc1 L_wave%d" % w)
    for w in range(4):
        a.label("L_wave%d" % w, clear=True)
        if w == 0: stamp(a, 2, V_MEM)
        VV, VI, VH = 224, 200, 224

        def h1(a):
            verify_issue(a, VV)
            init_issue(a, w, VI)

        def h4(a):
            if w == 0: stamp(a, 9, 240)

        def h8(a):
            if w == 0: stamp(a, 10, 240)

        def h5(a):
            verify(a, VV, S_RETRY, "L_slow", pre=True)
            init_stores(a, w, VI, "sc1")

        def h9(a):
            a.I("s_barrier")
            if w == 2:
                a.I("s_mov_b64 exec, 1")
                a.I("v_mov_b32 v%d, 1" % VI)
                a.I("v_mov_b32 v%d, %d" % (VI + 1, D_CHAIN))
                a.I("buffer_atomic_add v%d, v%d, s[%d:%d], 0 offen" % (VI, VI + 1, S_DBG, S_DBG + 3))
                a.I("s_mov_b64 exec, -1")
            setup_scalar(a, w, True)

        def h11(a):
            horizon_issue(a, VH)

        def h12(a):
            if w == 0: stamp(a, 11, 240)
            a.I("s_mov_b32 s%d, 0" % (S_T0 + 5))
            horizon_refresh(a, S_T0 + 5, "L_abort", vb=VH, pre=True)
            k0_dma(a, w)
            a.I("v_mov_b32 v%d, %d" % (VH + 8, D_CHAIN))
            a.I("buffer_load_dword v%d, v%d, s[%d:%d], 0 offen sc1" % (VH + 9, VH + 8, S_DBG, S_DBG + 3))
        load_weights(a, w, OPT.get('wflags', ''), hooks={1: h1, 4: h4, 5: h5, 8: h8, 9: h9, 10: h11, 12: h12, "n12": 3})
        if w == 0: stamp(a, 3, V_MEM)
        if w == 0: dbgmax(a, 52, V_MEM)
        setup_regs(a, w)
        if w == 0: stamp(a, 4, V_MEM)
        lp = a.newlabel("arr")
        lq = a.newlabel("arq")
        a.I("s_mov_b32 s%d, %d" % (S_RETRY, RETRY_MAX))
        a.I("s_waitcnt vmcnt(0)")
        a.I("s_branch %s" % lq)
        a.label(lp)
        a.I("buffer_load_dword v%d, v%d, s[%d:%d], 0 offen sc1" % (VH + 9, VH + 8, S_DBG, S_DBG + 3))
        a.I("s_sub_u32 s%d, s%d, 1" % (S_RETRY, S_RETRY))
        a.I("s_cmp_eq_u32 s%d, 0" % S_RETRY)
        a.I("s_cbranch_scc1 L_abort")
        a.I("s_waitcnt vmcnt(0)")
        a.label(lq)
        a.I("v_cmp_ne_u32 vcc, 32, v%d" % (VH + 9))
        a.I("s_cbranch_vccnz %s" % lp)
        a.I("s_waitcnt vmcnt(0)")
        a.I("s_barrier")
        if w == 0: stamp(a, 5, V_MEM)
        if w == 0: dbgmax(a, 40, V_MEM)
        a.I("s_cmp_lg_u32 s%d, 0" % S_MODE)
        a.I("s_cbranch_scc1 L_cslow%d" % w)
        chain_loop(a, w, timing=timing, exp="latepois," + OPT.get("exp", ""), fused=True, tag="f", **kw)
        if w == 0: stamp(a, 6, V_MEM)
        if w == 0: dbgmax(a, 44, V_MEM)
        a.I("s_endpgm")
    for w in range(4):
        a.label("L_cslow%d" % w, clear=True)
        if OPT.get("noslow"):
            a.I("s_endpgm")
            continue
        chain_loop(a, w, st_flags="sc1", timing=False, exp="latepois", fused=True, tag="s", looptime=False,
                   **{k: v for k, v in kw.items() if k != "looptime"})
        a.I("s_endpgm")


def worker_part(a):
    a.label("L_worker", clear=True)
    lane = 1
    sW = S_WAVE
    a.I("s_sub_u32 s%d, s%d, 1" % (S_FI, S_XCC))
    a.I("s_lshl_b32 s%d, s%d, 5" % (S_FI, S_FI))
    a.I("s_add_u32 s%d, s%d, s%d" % (S_FI, S_FI, S_TK))
    a.I("v_and_b32 v%d, 63, v0" % lane)
    a.I("s_load_dwordx2 s[22:23], s[0:1], %d" % K_X)
    a.I("s_load_dwordx4 s[24:27], s[0:1], %d" % K_C)
    a.I("s_load_dwordx4 s[28:31], s[0:1], %d" % K_WQ)
    a.I("s_load_dwordx2 s[36:37], s[0:1], %d" % K_WV)
    a.I("s_waitcnt lgkmcnt(0)")
    a.I("s_cmp_lt_u32 s%d, 192" % S_FI)
    a.I("s_cbranch_scc1 L_front")
    a.I("s_sub_u32 s38, s%d, 192" % S_FI)
    LV = 112
    srd(a, 4, 22, 2048 * 1024)
    a.I("s_lshl_b32 s39, s38, 5")
    R0 = pre.ln_stats(a, 4, 39, sW, lane, LV, 0)
    a.I("s_add_u32 s39, s39, 1024")
    R1 = pre.ln_stats(a, 4, 39, sW, lane, LV + 0, 1) if False else None
    pre.mod_role(a, S_WS, 12, 40, 38, sW, lane, 24, 26, 140000)
    verify(a, 16, 90, "L_slow")
    a.I("s_lshl_b32 s90, s38, 3")
    a.I("s_add_u32 s90, s90, 0x%x" % FL_MOD)
    set_flag(a, S_WS, 90, "1", 16, sW)
    stamp(a, 2, 16)
    pre.ln_stats2(a, *R0)
    Lx = a.newlabel("lnw")
    a.I("s_cmp_lg_u32 s%d, 0" % sW)
    a.I("s_cbranch_scc1 %s" % Lx)
    a.I("s_mov_b32 s90, 0x%x" % FL_MOD)
    a.I("v_lshlrev_b32 v16, 3, v%d" % lane)
    a.I("v_mov_b32 v17, 1")
    a.I("v_cmp_gt_u32 vcc, 16, v%d" % lane)
    a.I("v_cndmask_b32 v17, 0, v17, vcc")
    poll_lanes(a, S_WS, 90, 16, 17, 18, 91, "L_abort")
    a.label(Lx)
    a.I("s_barrier")
    pre.mod_to_lds(a, S_WS, sW, lane, 144000, 16)
    for it in range(2):
        if it == 1:
            R0 = pre.ln_stats(a, 4, 39, sW, lane, LV, 0)
            a.I("s_waitcnt vmcnt(0)")
            pre.ln_stats2(a, *R0)
        pre.ln_apply(a, S_WS, R0[0], R0[1], R0[2], 144000, 20)
        a.I("s_waitcnt vmcnt(0)")
        a.I("s_barrier")
        a.I("s_lshl_b32 s90, s38, 3")
        a.I("s_add_u32 s90, s90, 0x%x" % (FL_H + it * 256))
        set_flag(a, S_WS, 90, "1", 16, sW)
    stamp(a, 3, 16)
    a.I("s_cmp_ge_u32 s38, 16")
    a.I("s_cbranch_scc1 L_tail")
    a.I("s_add_u32 s38, s38, 32")
    pre.mod_role(a, S_WS, 12, 40, 38, sW, lane, 24, 26, 140000)
    a.I("s_lshl_b32 s90, s38, 3")
    a.I("s_add_u32 s90, s90, 0x%x" % FL_MOD)
    set_flag(a, S_WS, 90, "1", 16, sW)
    a.I("s_branch L_tail")
    a.label("L_front", clear=True)
    a.I("s_and_b32 s38, s%d, 1" % S_FI)
    a.I("s_lshr_b32 s39, s%d, 1" % S_FI)
    a.I("s_and_b32 s40, s39, 31")
    a.I("s_lshr_b32 s41, s39, 5")
    a.I("s_add_u32 s41, s41, 1")
    a.I("s_cmp_eq_u32 s41, 3")
    a.I("s_cselect_b32 s41, 0, s41")
    a.I("s_cmp_eq_u32 s41, 1")
    a.I("s_cselect_b32 s28, s30, s28")
    a.I("s_cselect_b32 s29, s31, s29")
    a.I("s_cmp_eq_u32 s41, 2")
    a.I("s_cselect_b32 s28, s36, s28")
    a.I("s_cselect_b32 s29, s37, s29")
    a.I("s_lshl_b32 s42, s40, 6")
    a.I("s_lshl_b32 s43, s41, 1")
    a.I("s_add_u32 s43, s43, s38")
    a.I("s_lshl_b32 s43, s43, 3")
    a.I("s_add_u32 s42, s42, s43")
    a.I("s_add_u32 s42, s42, 0x%x" % FL_PROG)

    def wait_h(a, nflags):
        Lh = a.newlabel("bh")
        a.I("s_cmp_lg_u32 s%d, 0" % sW)
        a.I("s_cbranch_scc1 %s" % Lh)
        a.I("s_mov_b32 s90, 0x%x" % FL_H)
        a.I("v_lshlrev_b32 v2, 3, v%d" % lane)
        a.I("v_mov_b32 v3, 1")
        if nflags < 64:
            a.I("v_cmp_gt_u32 vcc, %d, v%d" % (nflags, lane))
            a.I("v_cndmask_b32 v3, 0, v3, vcc")
        poll_lanes(a, S_WS, 90, 2, 3, 4, 91, "L_abort", sleep=1)
        a.label(Lh)

    def before_h(a):
        verify(a, 16, 90, "L_slow")
        stamp(a, 4, 8)
        wait_h(a, 32)
        stamp(a, 5, 8)

    def stores_done(a, s_it):
        set_flag(a, S_WS, 42, "s%d" % s_it, 2, sW)

    def mid(a, s_it):
        L = a.newlabel("mid")
        a.I("s_cmp_lg_u32 s%d, 13" % s_it)
        a.I("s_cbranch_scc1 %s" % L)
        wait_h(a, 64)
        a.I("s_barrier")
        a.label(L)
    def before_w(a):
        if OPT.get("latew"):
            verify(a, 16, 90, "L_slow")
            wait_h(a, 32)
            a.I("s_barrier")
        if OPT.get("pfwo"):
            srd(a, 4, 24, 0x400000) if False else None
    front.front_role(a, S_WS, 12, 41, 40, 38, sW, lane, 28, hooks={"before_w": before_w, "before_h": before_h, "stores_done": stores_done, "mid": mid})
    stamp(a, 6, 16)
    a.label("L_tail", clear=True)
    a.I("s_barrier")
    a.I("s_load_dwordx2 s[22:23], s[0:1], %d" % K_X)
    a.I("s_load_dwordx2 s[24:25], s[0:1], %d" % K_WO)
    a.I("s_load_dwordx4 s[28:31], s[0:1], %d" % K_W1)
    a.I("s_load_dwordx2 s[26:27], s[0:1], %d" % K_OUT)
    a.I("v_and_b32 %s, 63, v0" % vr(tail.V_LANE))
    a.I("s_mov_b32 s68, s%d" % S_TK)
    a.I("s_waitcnt lgkmcnt(0)")
    for w in range(1, 4):
        a.I("s_cmp_eq_u32 s%d, %d" % (sW, w))
        a.I("s_cbranch_scc1 L_tw%d" % w)
    hk = tail.fused_hooks(S_WS, 68, "L_abort")
    if STAMPS:
        hk["stamp"] = lambda a, w, slot: stamp(a, slot, 150) if w == 0 else None
    for w in range(4):
        a.label("L_tw%d" % w, clear=True)
        tail.tail_setup(a, w, S_WS, 12, 68, S_XCC, 24, 28, 30)
        if w == 0: stamp(a, 7, 150)
        a.I("s_sub_u32 s%d, s%d, 1" % (tail.S_SEG, S_XCC))
        a.I("s_mov_b32 s%d, 0" % tail.S_IT)
        a.I("s_cmp_lg_u32 s%d, 0" % S_MODE)
        a.I("s_cbranch_scc1 L_tslow%d" % w)
        tail.tail_loop(a, w, S_WS, 12, 4, 68, 22, 26, 7, st=OPT.get("tst", ""), abort="L_abort", hooks=hk, tag="f")
        if w == 0 and OPT.get("wb"):
            a.I("buffer_wbl2 sc1")
            a.I("s_waitcnt vmcnt(0)")
        if w == 0: stamp(a, 8, 150)
        if w == 0: dbgmax(a, 48, 150)
        a.I("s_endpgm")
    for w in range(4):
        a.label("L_tslow%d" % w, clear=True)
        if OPT.get("noslow"):
            a.I("s_endpgm")
            continue
        tail.tail_loop(a, w, S_WS, 12, 4, 68, 22, 26, 7, st="sc1", abort="L_abort", hooks=hk, tag="s")
        a.I("s_endpgm")


HEADER = """
adaLN + recurrent-memory attention + ReLU FFN as ONE persistent launch (256 workgroups x 4 waves, one per CU).
Kernarg (8-byte pointers): 0 x, 8 mem0, 16 Wq, 24 Wk, 32 Wv, 40 Wo, 48 seg_len, 56 B_x, 64 w1, 72 w2, 80 c, 88 w_mod,
  96 out, 104 debug, 112 ws.  Shapes are the fixed ones of the problem.
Roles (a workgroup takes a ticket of the XCD it runs on; groups = XCDs when they hold 32 workgroups each, otherwise
  a fallback with a global ticket and write-through hand-offs runs the same code):
  chain  group 0, one head per workgroup: the 63 sequential memory steps.  Wq/Wk/Wv live in registers, Wo in LDS;
         the 8 memory rows use both halves of the 2:4 sparse MFMA (K split over the row pairs).  Per step the
         Wo partials are reduce-scattered and the new memory all-gathered through L2 (tag / poison validated data).
  aux    mod = silu(c) @ w_mod, h = LN(x)(1+ca)+sa in MFMA operand order.
  front  Q/K/V of all tokens (128 features x half of the segments per workgroup).
  tail   groups 1..7, one segment at a time: token attention + Wo partial, reduce + LN, FFN slice, reduce + output.
Flags in ws carry a per-launch nonce drawn through d_debug.  The short s_nop runs in front of the chain's polls are the
  back-off of those spin-waits (a sample taken before the data can be visible only adds L2 traffic).
Generated by a hand-written generator (gen/*.py).
"""


def build(timing=False, **kw):
    a = Asm()
    a.raw("; @launch grid=(256,1,1) block=(256,1,1) lds=163840")
    for l in HEADER.strip("\n").split("\n"):
        a.raw("; " + l)
    a.raw('.amdgcn_target "amdgcn-amd-amdhsa--gfx950"')
    a.raw(".text")
    a.raw(".globl %s" % NAME)
    a.raw(".p2align 8")
    a.raw(".type %s,@function" % NAME)
    a.label(NAME)
    entry(a)
    a.I("s_cmp_ge_u32 s%d, 32" % S_TK)
    a.I("s_cbranch_scc1 L_overflow")
    a.label("L_dispatch")
    a.I("s_cmp_lg_u32 s%d, 0" % S_XCC)
    a.I("s_cbranch_scc1 L_far_worker")
    a.I("s_branch L_chain")
    a.label("L_far_worker")
    a.I("s_branch L_hop_worker")
    a.label("L_overflow", clear=True)
    verify(a, 16, 90, "L_slow")
    a.I("s_branch L_abort")
    a.label("L_slow", clear=True)
    a.I("s_waitcnt vmcnt(0) lgkmcnt(0)")
    a.I("s_barrier")
    a.I("s_cmp_lg_u32 s%d, 0" % S_WAVE)
    a.I("s_cbranch_scc1 L_sl_wait")
    a.I("s_mov_b64 exec, 1")
    a.I("v_mov_b32 v2, 1")
    a.I("v_mov_b32 v3, %d" % D_GTK)
    a.I("buffer_atomic_add v2, v3, s[%d:%d], 0 offen sc0" % (S_DBG, S_DBG + 3))
    a.I("v_mov_b32 v3, %d" % L_BCAST)
    a.I("s_waitcnt vmcnt(0)")
    a.I("ds_write_b32 v3, v2")
    a.I("s_mov_b64 exec, -1")
    a.label("L_sl_wait")
    a.I("s_waitcnt lgkmcnt(0)")
    a.I("s_barrier")
    a.I("v_mov_b32 v3, %d" % L_BCAST)
    a.I("ds_read_b32 v2, v3")
    a.I("s_waitcnt lgkmcnt(0)")
    a.I("v_readfirstlane_b32 s%d, v2" % S_TK)
    a.I("s_barrier")
    a.I("s_lshr_b32 s%d, s%d, 5" % (S_XCC, S_TK))
    a.I("s_and_b32 s%d, s%d, 31" % (S_TK, S_TK))
    a.I("s_mov_b32 s%d, 1" % S_MODE)
    a.I("v_mbcnt_lo_u32_b32 v1, -1, 0")
    a.I("v_mbcnt_hi_u32_b32 v1, -1, v1")
    a.I("s_lshl_b32 s%d, s%d, 6" % (S_T0, S_WAVE))
    a.I("v_add_u32 v0, s%d, v1" % S_T0)
    a.I("v_and_b32 %s, 63, v0" % vr(V_T))
    a.I("s_branch L_dispatch")
    a.label("L_exit")
    a.I("s_endpgm")
    a.label("L_abort0", clear=True)
    chain_part(a, timing, kw)
    a.label("L_abort", clear=True)
    a.I("s_mov_b64 exec, 1")
    a.I("v_mov_b32 v2, 0x7777")
    a.I("v_mov_b32 v3, 252")
    a.I("buffer_store_dword v2, v3, s[%d:%d], 0 offen" % (S_DBG, S_DBG + 3))
    a.I("s_waitcnt vmcnt(0)")
    a.I("s_endpgm")
    a.label("L_hop_worker")
    a.I("s_branch L_worker")
    worker_part(a)
    txt = a.text() + kd(NAME)
    txt = "\n".join(l.strip() if l.startswith("    ") else l for l in txt.split("\n"))
    return txt, a


if __name__ == "__main__":
    kw = dict(gap=36, rgap=36, delay=24, rdelay=48)
    timing = False
    for arg in sys.argv[2:]:
        k, v = arg.split("=")
        if k == "timing":
            timing = bool(int(v))
        elif k == "force_slow":
            FORCE_SLOW = bool(int(v))
        elif k == "hop":
            chain.FINE["hop"] = True
        elif k == "fine":
            chain.FINE["on"] = True
            chain.FINE["skip"] = int(v)
        elif k in ("exp", "tst"):
            OPT[k] = v
        elif k in ("wflags", "latew", "pfwo", "rot", "touch", "noslow", "pf", "wb"):
            OPT[k] = v if k == "wflags" else int(v)
        elif k == "dbgt":
            DBGT = bool(int(v))
        elif k == "stamps":
            STAMPS = bool(int(v))
        else:
            kw[k] = int(v) if v.lstrip("-").isdigit() else v
    txt, a = build(timing=timing, **kw)
    open(sys.argv[1], "w").write(txt)
    print("instructions", a.n_inst, "bytes", len(txt), chain.FINE["names"])
```

```python
from asmlib import Asm, vr, ar, sr

WS_MOD = 0x00000000
WS_FLAGS = 0x00010000
FL_MOD = WS_FLAGS + 0x0000
FL_H = WS_FLAGS + 0x0200
FL_PROG = WS_FLAGS + 0x0400
FL_TAIL = WS_FLAGS + 0x1000
S_NONCE = 46
WS_MEM = 0x00100000
WS_PART = 0x00200000
WS_H = 0x00400000
WS_KT = 0x00800000
WS_VT = 0x01800000
WS_QT = 0x02800000
WS_KM = 0x03800000
WS_VM = 0x03C00000
WS_TAIL = 0x04000000
WS_SIZE = 0x10000000
OOB = 0x40000000

L_WO = 0
L_K = 131072
L_M = 147456
L_MB = L_M + 4096
L_O = L_MB + 8192
O_OFF = L_O - L_M
L_SEL = L_O + 512
L_BC = L_O + 2048 + 512

S_WS = 8
S_W = 12
S_DBG = 16
S_WAVE = 20
S_RANK = 21
S_STEP = 22
S_MEM = 23
S_MEMHI = 24
S_PW0 = 25
S_PW1 = 26
S_PR = 27
S_PRHI = 28
S_KT = 29
S_VT = 30
S_KM = 31
S_HI = 32
S_C = 34
S_NC = 35
S_RETRY = 36
S_VM = 37
S_T0 = 38
S_POIS = 46
S_POISHI = 47
S_PWB = 96
S_PRB = 97
S_RING = 98
S_ONE = 100
S_SEL = 99
S_TAG = 96
S_HZ = 97
S_PG = 98
S_CP = 47
S_PEND = 42
S_KB = 44
S_PTR = 48
S_TM = 64

V_VW = 0
V_MEM = 128
V_ACC = 160
V_KT = 184
V_S = 216
V_VT = 228
V_PX = 236
V_IDX = 246
V_L16 = 247
V_L16W = 248
V_K = 249
V_PS = 250
V_MS = 251
V_MW = 252
V_MR = 253
V_KM = 254
V_T = 255
V_Z = V_PX + 8
V_MB = V_PX + 9

RETRY_MAX = 200000
ROT = True


def wacc(t):
    return V_ACC + 4 * t if t < 6 else V_VT + 4 * (t - 6)


FINE = {"on": False, "n": 0, "names": []}


def hop(a, idx):
    if FINE.get("hop"):
        a.I("s_memtime s[%d:%d]" % (64 + 2 * idx, 65 + 2 * idx))


def fine(a, name):
    FINE["k"] = FINE.get("k", 0) + 1
    if not FINE["on"] or FINE["n"] >= 16 or FINE["k"] <= FINE.get("skip", 0):
        return
    n = FINE["n"]
    a.I("s_memtime s[%d:%d]" % (64 + 2 * n, 65 + 2 * n))
    FINE["names"].append(name)
    FINE["n"] = n + 1


class Timer:
    def __init__(self, a, on, trace=None):
        self.a = a
        self.on = on
        self.trace = trace

    def start(self):
        if not self.on:
            return
        a = self.a
        for i in range(16):
            a.I("s_mov_b32 s%d, 0" % (S_TM + 4 + i))
        a.I("s_memtime s[%d:%d]" % (S_TM, S_TM + 1))
        a.I("s_waitcnt lgkmcnt(0)")

    def stamp(self, idx):
        if self.trace is not None:
            a = self.a
            l = a.newlabel("tr")
            a.I("s_cmp_lg_u32 s%d, %d" % (S_STEP, self.trace + (1 if idx in (14, 13, 7, 8) else 0)))
            a.I("s_cbranch_scc1 %s" % l)
            a.I("s_memrealtime s[%d:%d]" % (S_TM + 2, S_TM + 3))
            a.I("s_waitcnt lgkmcnt(0)")
            a.I("s_mov_b32 s%d, s%d" % (S_TM + 4 + idx, S_TM + 2))
            a.label(l)
            return
        if not self.on:
            return
        a = self.a
        a.I("s_memtime s[%d:%d]" % (S_TM + 2, S_TM + 3))
        a.I("s_waitcnt lgkmcnt(0)")
        a.I("s_sub_u32 s%d, s%d, s%d" % (S_T0 + 7, S_TM + 2, S_TM))
        a.I("s_add_u32 s%d, s%d, s%d" % (S_TM + 4 + idx, S_TM + 4 + idx, S_T0 + 7))
        a.I("s_mov_b32 s%d, s%d" % (S_TM, S_TM + 2))


def lane_consts(a, w):
    T = V_MEM
    lane = V_T
    a.I("v_lshlrev_b32 %s, 4, %s" % (vr(V_L16), vr(lane)))
    a.I("v_add_u32 %s, %d, %s" % (vr(V_L16W), L_WO + w * 32768, vr(V_L16)))
    a.I("v_add_u32 %s, %d, %s" % (vr(V_K), L_K, vr(V_L16)))
    a.I("v_and_b32 %s, 15, %s" % (vr(T), vr(lane)))
    a.I("v_lshrrev_b32 %s, 4, %s" % (vr(T + 1), vr(lane)))
    a.I("v_mov_b32 %s, 0x4444" % vr(V_IDX))
    a.I("v_mov_b32 %s, 0xeeee" % vr(T + 2))
    a.I("v_and_b32 %s, 2, %s" % (vr(T + 3), vr(T)))
    a.I("v_cmp_ne_u32 vcc, 0, %s" % vr(T + 3))
    a.I("v_cndmask_b32 %s, %s, %s, vcc" % (vr(V_IDX), vr(V_IDX), vr(T + 2)))
    a.I("v_lshlrev_b32 %s, 13, %s" % (vr(T + 2), vr(T + 1)))
    a.I("v_lshrrev_b32 %s, 2, %s" % (vr(T + 3), vr(T)))
    a.I("v_lshl_add_u32 %s, %s, 11, %s" % (vr(T + 2), vr(T + 3), vr(T + 2)))
    a.I("v_mov_b32 %s, s%d" % (vr(T + 3), S_RANK))
    a.I("v_lshl_add_u32 %s, %s, 6, %s" % (vr(T + 2), vr(T + 3), vr(T + 2)))
    a.I("v_and_b32 %s, 3, %s" % (vr(T + 3), vr(T)))
    a.I("v_lshl_add_u32 %s, %s, 4, %s" % (vr(V_PS), vr(T + 3), vr(T + 2)))
    a.I("v_lshrrev_b32 %s, 2, %s" % (vr(T + 2), vr(T)))
    a.I("v_xor_b32 %s, %s, %s" % (vr(T + 2), vr(T + 2), vr(T + 1)))
    a.I("v_lshlrev_b32 %s, 3, %s" % (vr(T + 2), vr(T + 2)))
    a.I("v_lshl_add_u32 %s, %s, 5, %s" % (vr(T + 2), vr(T), vr(T + 2)))
    a.I("v_add_u32 %s, %d, %s" % (vr(V_MW), L_M + 1024 * w, vr(T + 2)))
    a.I("v_lshrrev_b32 %s, 2, %s" % (vr(T + 2), vr(T)))
    a.I("v_lshl_add_u32 %s, %s, 2, %s" % (vr(T + 2), vr(T + 1), vr(T + 2)))
    a.I("v_and_b32 %s, 3, %s" % (vr(T + 3), vr(T)))
    a.I("v_xor_b32 %s, %s, %s" % (vr(T + 3), vr(T + 3), vr(T + 1)))
    a.I("v_lshlrev_b32 %s, 3, %s" % (vr(T + 3), vr(T + 3)))
    a.I("v_lshl_add_u32 %s, %s, 5, %s" % (vr(T + 2), vr(T + 2), vr(T + 3)))
    a.I("v_add_u32 %s, %d, %s" % (vr(V_MR), L_M, vr(T + 2)))
    a.I("v_lshrrev_b32 %s, 2, %s" % (vr(T + 2), vr(T)))
    a.I("v_and_b32 %s, 1, %s" % (vr(T + 3), vr(T)))
    a.I("v_lshl_add_u32 %s, %s, 1, %s" % (vr(T + 2), vr(T + 2), vr(T + 3)))
    a.I("v_lshl_add_u32 %s, %s, 3, %s" % (vr(T + 2), vr(T + 1), vr(T + 2)))
    a.I("v_lshlrev_b32 %s, 4, %s" % (vr(T + 2), vr(T + 2)))
    a.I("v_mov_b32 %s, 0x%x" % (vr(T + 4), OOB))
    a.I("v_and_b32 %s, 2, %s" % (vr(T + 3), vr(T)))
    a.I("v_cmp_ne_u32 vcc, 0, %s" % vr(T + 3))
    a.I("v_cndmask_b32 %s, %s, %s, vcc" % (vr(V_KM), vr(T + 2), vr(T + 4)))
    s0, s1, s2 = S_T0, S_T0 + 1, S_T0 + 2
    a.I("s_lshr_b32 s%d, s%d, 3" % (s0, S_RANK))
    a.I("s_bfe_u32 s%d, s%d, 0x10002" % (s1, S_RANK))
    a.I("s_lshl_b32 s%d, s%d, 2" % (s1, s1))
    a.I("s_add_u32 s%d, s%d, s%d" % (s0, s0, s1))
    a.I("s_lshl_b32 s%d, s%d, 10" % (s0, s0))
    a.I("s_and_b32 s%d, s%d, 3" % (s1, S_RANK))
    a.I("s_lshl_b32 s%d, s%d, 6" % (s1, s1))
    a.I("s_add_u32 s%d, s%d, s%d" % (s0, s0, s1))
    a.I("s_add_u32 s%d, s%d, %d" % (s0, s0, w * 256))
    a.I("v_and_b32 %s, 3, %s" % (vr(T + 2), vr(T)))
    a.I("v_lshlrev_b32 %s, 4, %s" % (vr(T + 2), vr(T + 2)))
    a.I("v_lshrrev_b32 %s, 2, %s" % (vr(T + 3), vr(T)))
    a.I("v_lshl_add_u32 %s, %s, 3, %s" % (vr(T + 2), vr(T + 3), vr(T + 2)))
    a.I("v_lshrrev_b32 %s, 1, %s" % (vr(T + 3), vr(T + 1)))
    a.I("v_lshl_add_u32 %s, %s, 2, %s" % (vr(T + 2), vr(T + 3), vr(T + 2)))
    a.I("v_add_u32 %s, s%d, %s" % (vr(T + 2), s0, vr(T + 2)))
    a.I("v_and_b32 %s, 24, %s" % (vr(T + 3), vr(lane)))
    a.I("v_mov_b32 %s, 0x%x" % (vr(V_MS), OOB))
    a.I("v_cmp_eq_u32 vcc, 0, %s" % vr(T + 3))
    a.I("v_cndmask_b32 %s, %s, %s, vcc" % (vr(V_MS), vr(V_MS), vr(T + 2)))


def sel_addr(a, dst, tmp):
    a.I("v_lshrrev_b32 %s, 9, %s" % (vr(tmp), vr(V_L16)))
    a.I("v_mul_u32_u24 %s, 512, %s" % (vr(tmp), vr(tmp)))
    a.I("v_add3_u32 %s, %s, %s, s%d" % (vr(dst), vr(V_L16), vr(tmp), S_SEL))


def init_issue(a, w, T):
    lane = V_T
    s0, s1 = S_T0 + 1, S_T0 + 2
    a.I("v_and_b32 %s, 15, %s" % (vr(T), vr(lane)))
    a.I("v_lshrrev_b32 %s, 4, %s" % (vr(T + 1), vr(lane)))
    a.I("s_and_b32 s%d, s%d, 3" % (s0, S_RANK))
    a.I("s_lshl_b32 s%d, s%d, 11" % (s0, s0))
    a.I("s_lshr_b32 s%d, s%d, 2" % (s1, S_RANK))
    a.I("s_lshl_b32 s%d, s%d, 7" % (s1, s1))
    a.I("s_add_u32 s%d, s%d, s%d" % (s0, s0, s1))
    a.I("s_add_u32 s%d, s%d, %d" % (s0, s0, w * 8))
    a.I("v_and_b32 %s, 1, %s" % (vr(T + 2), vr(T)))
    a.I("v_lshlrev_b32 %s, 10, %s" % (vr(T + 2), vr(T + 2)))
    a.I("v_bfe_u32 %s, %s, 1, 2" % (vr(T + 3), vr(T)))
    a.I("v_lshl_add_u32 %s, %s, 5, %s" % (vr(T + 2), vr(T + 3), vr(T + 2)))
    a.I("v_lshrrev_b32 %s, 1, %s" % (vr(T + 3), vr(T + 1)))
    a.I("v_lshl_add_u32 %s, %s, 2, %s" % (vr(T + 2), vr(T + 3), vr(T + 2)))
    a.I("v_add_u32 %s, s%d, %s" % (vr(T + 2), s0, vr(T + 2)))
    a.I("s_mov_b32 s4, s%d" % (S_PTR + 0))
    a.I("s_mov_b32 s5, s%d" % (S_PTR + 1))
    a.I("s_mov_b32 s6, 8192")
    a.I("s_mov_b32 s7, 0x00020000")
    a.I("buffer_load_dword %s, %s, s[4:7], 0 offen" % (vr(T + 4), vr(T + 2)))


def init_stores(a, w, T, st_flags):
    P = T + 8
    s0 = S_T0 + 1
    a.I("s_mov_b32 s%d, %d" % (S_SEL, L_SEL))
    for i in range(4):
        a.I("v_mov_b32 %s, -1" % vr(P + i))
    a.I("s_mov_b32 s%d, 0x%x" % (s0, WS_MEM))
    a.I("v_min_u32 %s, 0xfffffffe, %s" % (vr(T + 4), vr(T + 4)))
    a.I("buffer_store_dword %s, %s, s[%d:%d], s%d offen %s" % (vr(T + 4), vr(V_MS), S_WS, S_WS + 3, s0, st_flags))
    for i in range(3):
        a.I("s_add_u32 s%d, s%d, 8192" % (s0, s0))
        a.I("buffer_store_dword %s, %s, s[%d:%d], s%d offen %s" % (vr(P), vr(V_MS), S_WS, S_WS + 3, s0, st_flags))
    for ring in range(2):
        a.I("s_lshl_b32 s%d, s%d, 13" % (s0, S_RANK))
        a.I("s_add_u32 s%d, s%d, 0x%x" % (s0, s0, WS_PART + ring * 262144 + w * 2048))
        for m in range(2):
            a.I("buffer_store_dwordx4 %s, %s, s[%d:%d], s%d offen offset:%d %s"
                % (vr(P, 4), vr(V_L16), S_WS, S_WS + 3, s0, m * 1024, st_flags))
    if w == 0:
        a.I("v_and_b32 %s, 1, %s" % (vr(T + 2), vr(T)))
        a.I("v_lshlrev_b32 %s, 4, %s" % (vr(T + 2), vr(T + 2)))
        a.I("v_mov_b32 %s, 0x3f80" % vr(T + 3))
        a.I("v_lshlrev_b32 %s, %s, %s" % (vr(T + 3), vr(T + 2), vr(T + 3)))
        a.I("v_lshrrev_b32 %s, 1, %s" % (vr(T + 2), vr(T)))
        for m in range(4):
            a.I("v_cmp_eq_u32 vcc, %d, %s" % (m, vr(T + 2)))
            a.I("v_cndmask_b32 %s, 0, %s, vcc" % (vr(T + 4 + m), vr(T + 3)))
        sel_addr(a, T + 2, T + 3)
        a.I("ds_write_b128 %s, %s" % (vr(T + 2), vr(T + 4, 4)))


def init_buffers(a, w, st_flags=""):
    T = 200
    init_issue(a, w, T)
    a.I("s_waitcnt vmcnt(0)")
    init_stores(a, w, T, st_flags)


def load_weights(a, w, wflags="", rot=False, hooks=None, consts=True):
    hooks = hooks or {}
    lane = V_T
    T = V_MEM
    VO = V_MEM + 8
    TA = V_MEM + 12
    so = S_T0
    a.I("v_lshrrev_b32 %s, 4, %s" % (vr(T), vr(lane)))
    a.I("v_and_b32 %s, 15, %s" % (vr(T + 1), vr(lane)))
    for b4 in range(2):
        a.I("v_and_b32 %s, 1, %s" % (vr(T + 2), vr(T)))
        a.I("v_add_u32 %s, %d, %s" % (vr(T + 2), 2 * b4 + 4 * (w & 1), vr(T + 2)))
        a.I("v_lshlrev_b32 %s, 1, %s" % (vr(T + 2), vr(T + 2)))
        a.I("v_xor_b32 %s, %s, %s" % (vr(T + 2), vr(T + 2), vr(T + 1)))
        a.I("v_lshlrev_b32 %s, 4, %s" % (vr(T + 2), vr(T + 2)))
        a.I("s_lshl_b32 s%d, s%d, 8" % (so, S_RANK))
        a.I("v_lshl_add_u32 %s, %s, 13, %s" % (vr(T + 3), vr(T), vr(T + 2)))
        a.I("v_add_u32 %s, s%d, %s" % (vr(VO + b4), so, vr(T + 3)))
        a.I("s_lshl_b32 s%d, s%d, 17" % (so, S_RANK))
        a.I("v_lshl_add_u32 %s, %s, 10, %s" % (vr(T + 3), vr(T), vr(T + 2)))
        a.I("v_add_u32 %s, s%d, %s" % (vr(VO + 2 + b4), so, vr(T + 3)))

    def set_srd(ptr, nbytes):
        a.I("s_mov_b32 s%d, s%d" % (S_W, ptr))
        a.I("s_mov_b32 s%d, s%d" % (S_W + 1, ptr + 1))
        a.I("s_mov_b32 s%d, 0x%x" % (S_W + 2, nbytes))

    def dma_qkv(j):
        for i in range(8):
            row = 32 * w + 4 * i
            a.I("s_mov_b32 m0, %d" % (L_WO + j * 32768 + row * 256))
            a.I("s_mov_b32 s%d, 0x%x" % (so, (128 * j + row) * 8192))
            a.I("buffer_load_dwordx4 %s, s[%d:%d], s%d offen %s lds" % (vr(VO + ((i >> 2) & 1)), S_W, S_W + 3, so, wflags))

    def dma_wo(j):
        for i in range(8):
            row = 32 * w + 4 * i
            a.I("s_mov_b32 m0, %d" % (L_WO + j * 32768 + row * 256))
            a.I("s_mov_b32 s%d, 0x%x" % (so, row * 1024 + j * 256))
            a.I("buffer_load_dwordx4 %s, s[%d:%d], s%d offen %s lds" % (vr(VO + 2 + ((i >> 2) & 1)), S_W, S_W + 3, so, wflags))
    ptrs = [S_PTR + 2, S_PTR + 4, S_PTR + 6]
    set_srd(ptrs[0], 0x400000)
    for j in range(4):
        dma_qkv(j)
    if consts:
        lane_consts(a, w)
    gb, r, c = T, T + 1, T + 2
    t4, t5, t7 = T + 3, T + 4, T + 6
    a.I("v_lshrrev_b32 %s, 4, %s" % (vr(gb), vr(lane)))
    a.I("v_bfe_u32 %s, %s, 2, 2" % (vr(r), vr(lane)))
    a.I("v_and_b32 %s, 3, %s" % (vr(c), vr(lane)))
    a.I("v_and_b32 %s, 1, %s" % (vr(t4), vr(gb)))
    a.I("v_lshl_add_u32 %s, %s, 2, %s" % (vr(t7), vr(t4), vr(r)))
    a.I("v_lshlrev_b32 %s, 5, %s" % (vr(t5), vr(t4)))
    a.I("v_lshrrev_b32 %s, 1, %s" % (vr(t4), vr(gb)))
    a.I("v_lshl_add_u32 %s, %s, 2, %s" % (vr(t5), vr(t4), vr(t5)))
    a.I("v_and_b32 %s, 1, %s" % (vr(t4), vr(r)))
    a.I("v_add_u32 %s, %s, %s" % (vr(t5), vr(t4), vr(t5)))
    a.I("v_lshrrev_b32 %s, 1, %s" % (vr(t4), vr(r)))
    a.I("v_lshl_add_u32 %s, %s, 4, %s" % (vr(t5), vr(t4), vr(t5)))
    a.I("v_lshlrev_b32 %s, 8, %s" % (vr(t5), vr(t5)))
    a.I("v_lshrrev_b32 %s, 1, %s" % (vr(t4), vr(c)))
    a.I("v_lshl_add_u32 %s, %s, 4, %s" % (vr(t5), vr(t4), vr(t5)))
    a.I("v_and_b32 %s, 1, %s" % (vr(t4), vr(c)))
    a.I("v_lshl_add_u32 %s, %s, 3, %s" % (vr(t5), vr(t4), vr(t5)))
    for tau in range(2):
        a.I("v_xor_b32 %s, %d, %s" % (vr(t4), 2 * w + tau, vr(t7)))
        a.I("v_lshl_add_u32 %s, %s, 5, %s" % (vr(TA + tau), vr(t4), vr(t5)))
    WA = V_MEM + 20
    for tau in range(8):
        a.I("v_xor_b32 %s, %d, %s" % (vr(t4), tau, vr(t7)))
        a.I("v_lshl_add_u32 %s, %s, 5, %s" % (vr(WA + tau), vr(t4), vr(t5)))
        a.I("v_add_u32 %s, %d, %s" % (vr(WA + tau), L_WO + w * 32768, vr(WA + tau)))

    def tr_qkv(j, dst):
        for tau in range(2):
            a.I("v_add_u32 %s, %d, %s" % (vr(TA + 2 + tau), L_WO + j * 32768, vr(TA + tau)))
        for kappa in (j, 4 + j):
            B = 64 * (kappa >> 2)
            for tau in range(2):
                for q in range(4):
                    off = (B + 8 * (q >> 1) + 2 * (q & 1)) * 256
                    a.I("ds_read_b64_tr_b16 %s, %s offset:%d" % (dst(tau, kappa, q), vr(TA + 2 + tau), off))

    dsts = [
        lambda tau, kappa, q: ar((0 + tau) * 64 + kappa * 8 + 2 * q, 2),
        lambda tau, kappa, q: ar((2 + tau) * 64 + kappa * 8 + 2 * q, 2),
        lambda tau, kappa, q: vr(V_VW + tau * 64 + kappa * 8 + 2 * q, 2),
    ]
    for mi in range(3):
        for j in range(4):
            u = 4 * mi + j
            a.I("s_waitcnt vmcnt(24)")
            a.I("s_barrier")
            tr_qkv(j, dsts[mi])
            a.I("s_waitcnt lgkmcnt(0)")
            a.I("s_barrier")
            if u in hooks:
                hooks[u](a)
            if j == 0:
                set_srd(ptrs[mi + 1] if mi < 2 else S_PTR + 8, 0x400000)
            if mi < 2:
                dma_qkv(j)
            else:
                dma_wo(j)
    ST = V_MEM + 32
    a.I("s_waitcnt vmcnt(8)")
    if 12 in hooks:
        hooks[12](a)
    a.I("s_waitcnt vmcnt(%d)" % hooks.get("n12", 0))
    a.I("s_barrier")
    for xi in range(2):
        for tau in range(8):
            for q in range(4):
                off = (64 * xi + 8 * (q >> 1) + 2 * (q & 1)) * 256
                a.I("ds_read_b64_tr_b16 %s, %s offset:%d" % (vr(ST + tau * 8 + 2 * q, 2), vr(WA + tau), off))
        a.I("s_waitcnt lgkmcnt(0)")
        for tau in range(8):
            for hf in range(2):
                a.I("ds_write_b128 %s, %s offset:%d"
                    % (vr(V_L16W), vr(ST + tau * 8 + 4 * hf, 4), xi * 16384 + tau * 2048 + hf * 1024))
        a.I("s_waitcnt lgkmcnt(0)")


def wo_img_off(tau, xi, hf):
    return xi * 16384 + tau * 2048 + hf * 1024


def weave(a, main, fill, every=1, start=0):
    fill = list(fill)
    for i, m in enumerate(main):
        a.I(m)
        if i >= start:
            for _ in range(every):
                if fill:
                    a.I(fill.pop(0))
    for f in fill:
        a.I(f)


def check_insts(regs, tmp):
    regs = list(regs)
    if len(regs) == 2:
        L = ["v_max_u32 %s, %s, %s" % (vr(tmp), vr(regs[0]), vr(regs[1]))]
        rest = []
    else:
        L = ["v_max3_u32 %s, %s, %s, %s" % (vr(tmp), vr(regs[0]), vr(regs[1]), vr(regs[2]))]
        rest = regs[3:]
    while len(rest) >= 2:
        L.append("v_max3_u32 %s, %s, %s, %s" % (vr(tmp), vr(tmp), vr(rest[0]), vr(rest[1])))
        rest = rest[2:]
    if rest:
        L.append("v_max_u32 %s, %s, %s" % (vr(tmp), vr(tmp), vr(rest[0])))
    L.append("v_cmp_eq_u32 vcc, -1, %s" % vr(tmp))
    return L


def dump(a, w, base, n, slot=0):
    a.nops(12)
    a.I("s_lshl_b32 s%d, s%d, 16" % (S_T0, S_RANK))
    a.I("s_add_u32 s%d, s%d, 0x%x" % (S_T0, S_T0, 0x5000000 + w * 16384 + ((slot * 256) & ~4095)))
    a.I("v_lshrrev_b32 %s, 2, %s" % (vr(V_T), vr(V_L16)))
    for i in range(n):
        a.I("buffer_store_dword %s, %s, s[%d:%d], s%d offen offset:%d" % (vr(base + i), vr(V_T), S_WS, S_WS + 3, S_T0, ((slot + i) * 256) & 4095))
        if ((slot + i + 1) * 256) & 4095 == 0:
            a.I("s_add_u32 s%d, s%d, 4096" % (S_T0, S_T0))
    a.I("s_waitcnt vmcnt(0)")


def horizon_issue(a, vb):
    ws = "s[%d:%d]" % (S_WS, S_WS + 3)
    a.I("buffer_load_dwordx4 %s, %s, %s, s%d offen offset:16 sc1" % (vr(vb, 4), vr(V_Z), ws, S_PG))
    a.I("buffer_load_dwordx4 %s, %s, %s, s%d offen offset:32 sc1" % (vr(vb + 4, 4), vr(V_Z), ws, S_PG))


def horizon_eval(a, vb):
    for i in range(4):
        a.I("v_cmp_eq_u32 vcc, s%d, %s" % (S_NONCE, vr(vb + 2 * i + 1)))
        a.I("v_cndmask_b32 %s, 0, %s, vcc" % (vr(vb + 2 * i), vr(vb + 2 * i)))
    a.I("v_min_u32 %s, %s, %s" % (vr(vb), vr(vb), vr(vb + 4)))
    a.I("v_min_u32 %s, %s, %s" % (vr(vb + 1), vr(vb + 2), vr(vb + 6)))
    a.I("v_lshlrev_b32 %s, 1, %s" % (vr(vb), vr(vb)))
    a.I("v_lshl_add_u32 %s, %s, 1, 1" % (vr(vb + 1), vr(vb + 1)))
    a.I("v_min_u32 %s, %s, %s" % (vr(vb), vr(vb), vr(vb + 1)))
    a.I("v_readfirstlane_b32 s%d, %s" % (S_HZ, vr(vb)))


def horizon_refresh(a, s_need, abort, vb=None, pre=False):
    vb = V_S if vb is None else vb
    Lq = a.newlabel("hq")
    Lx = a.newlabel("hx")
    Le = a.newlabel("he")
    a.I("s_cmp_ge_u32 s%d, 64" % s_need)
    a.I("s_cbranch_scc1 %s" % Lx)
    a.I("s_mov_b32 s%d, %d" % (S_RETRY, RETRY_MAX))
    if pre:
        a.I("s_branch %s" % Le)
    a.label(Lq)
    horizon_issue(a, vb)
    a.I("s_sub_u32 s%d, s%d, 1" % (S_RETRY, S_RETRY))
    a.I("s_cmp_eq_u32 s%d, 0" % S_RETRY)
    a.I("s_cbranch_scc1 %s" % abort)
    a.I("s_waitcnt vmcnt(0)")
    a.label(Le)
    horizon_eval(a, vb)
    a.I("s_cmp_lt_u32 s%d, s%d" % (s_need, S_HZ))
    a.I("s_cbranch_scc0 %s" % Lq)
    a.label(Lx)


def retry_block(a, label, target, abort):
    a.label(label)
    a.I("s_sub_u32 s%d, s%d, 1" % (S_RETRY, S_RETRY))
    a.I("s_cmp_lg_u32 s%d, 0" % S_RETRY)
    a.I("s_cbranch_scc1 %s" % target)
    a.I("s_branch %s" % abort)


def chain_loop(a, w, st_flags="", timing=False, abort="L_abort", stop_after=None, dbg=None,
               delay=0, exp="", rdelay=0, hooks=None, kvflags="sc1 nt", gap=24, rgap=24, trace=None, looptime=True, fused=False, nsets=2, rsets=2, tag="", solo=0):
    tm = Timer(a, timing, trace)
    ws = "s[%d:%d]" % (S_WS, S_WS + 3)
    MEM, ACC, KT, S, VT, PX = V_MEM, V_ACC, V_KT, V_S, V_VT, V_PX
    q = [ACC, ACC + 8]
    k = [ACC + 4, ACC + 12]
    v = [ACC + 16, ACC + 20]
    L_step = "L_step_w%d%s" % (w, tag)
    L_done = "L_done_w%d%s" % (w, tag)
    ool = []
    cool = []
    hzl = []
    hze = []

    def smf(acc, A, B):
        return "v_smfmac_f32_16x16x64_bf16 %s, %s, %s, %s" % (vr(acc, 4), A, B, vr(V_IDX))

    def mem_load(kap):
        return ("buffer_load_dwordx4 %s, %s, %s, s%d offen offset:%d sc1"
                % (vr(MEM + 4 * kap, 4), vr(V_L16), ws, S_MEM if kap < 4 else S_MEMHI, (kap & 3) * 1024))

    def qkw(mat, tau, kap):
        return ar((mat * 2 + tau) * 64 + kap * 8, 8)

    def chunk_check(kap):
        return ["v_max_u32 %s, %s, %s" % (vr(V_T), vr(MEM + 4 * kap), vr(MEM + 4 * kap + 2)),
                "v_cmp_eq_u32 vcc, -1, %s" % vr(V_T)]

    def emit_check(kap):
        lr = a.newlabel("cr%d" % kap)
        lb = a.newlabel("cb%d" % kap)
        a.I("s_waitcnt vmcnt(%d)" % (7 - kap))
        for x in chunk_check(kap):
            a.I(x)
        a.I("s_cbranch_vccnz %s" % lr)
        a.label(lb)
        cool.append((lr, kap, lb))

    def add2(d, x, y):
        return ["v_add_f32 %s, %s, %s" % (vr(d), vr(x), vr(y)),
                "v_add_f32 %s, %s, %s" % (vr(d + 1), vr(x + 1), vr(y + 1))]

    def qk_post(tau):
        return (add2(q[tau], q[tau], q[tau] + 2) + add2(k[tau], k[tau], k[tau] + 2) +
                ["v_cvt_pk_bf16_f32 %s, %s, %s" % (vr(q[tau] + 3), vr(q[tau]), vr(q[tau] + 1)),
                 "v_cvt_pk_bf16_f32 %s, %s, %s" % (vr(q[tau] + 2), vr(k[tau]), vr(k[tau] + 1)),
                 "ds_write_b64 %s, %s offset:%d" % (vr(V_MW), vr(q[tau] + 2, 2), 512 * tau)])

    def far_ops():
        L = []
        for tau in range(2):
            L.append(["buffer_load_dwordx4 %s, %s, %s, s%d offen offset:%d %s"
                      % (vr(VT + 4 * tau, 4), vr(V_L16), ws, S_VT, (tau) * 1024, kvflags)])
        L.append(["s_mov_b32 m0, s%d" % S_KB,
                  "buffer_load_dwordx4 %s, %s, s%d offen %s lds" % (vr(V_L16), ws, S_KT, kvflags)])
        L.append(["buffer_load_dwordx4 %s, %s, s%d offen offset:1024 %s lds" % (vr(V_L16), ws, S_KT, kvflags)])
        return L

    pois = ["buffer_store_dword %s, %s, %s, s%d offen %s" % (vr(S + 8), vr(V_MS), ws, S_T0 + 3, st_flags)]
    tm.start()
    if looptime:
        a.I("s_memrealtime s[92:93]")
        a.I("s_waitcnt lgkmcnt(0)")
    a.label(L_step, clear=True)
    if "steptime" in exp and w == 0:
        a.I("s_memrealtime s[92:93]")
        a.I("s_lshl_b32 s94, s%d, 8" % S_RANK)
        a.I("s_lshl_b32 s95, s%d, 2" % S_STEP)
        a.I("s_add_u32 s94, s94, s95")
        a.I("s_add_u32 s94, s94, 0x%x" % (WS_FLAGS + 0xd000))
        a.I("s_waitcnt lgkmcnt(0)")
        a.I("v_mov_b32 %s, s92" % vr(V_T))
        a.I("buffer_store_dword %s, %s, %s, s94 offen" % (vr(V_T), vr(V_Z), ws))
    own = [2 * w, 2 * w + 1]
    others = [x for x in range(8) if x not in own]
    sets = [KT, KT + 8, KT + 16, KT + 24]
    mbo = L_MB - L_M

    def qk4(kap, A=None):
        A = A or vr(MEM + 4 * kap, 4)
        return [smf(q[0], A, qkw(0, 0, kap)), smf(k[0], A, qkw(1, 0, kap)),
                smf(q[1], A, qkw(0, 1, kap)), smf(k[1], A, qkw(1, 1, kap))]

    def poll2(issue, oks, gap, cnt, check, solo=False):
        n = len(oks)
        Lp = a.newlabel("pl")
        a.I("s_mov_b32 s%d, %d" % (S_RETRY, RETRY_MAX))
        if solo:
            issue(sets[0])
            a.I("s_waitcnt vmcnt(0)")
            check(sets[0], oks[0])
        for i in range(n - 1):
            issue(sets[i])
            if gap:
                a.nops(gap)
        a.label(Lp)
        for i in range(n):
            issue(sets[(i + n - 1) % n])
            a.I("s_waitcnt vmcnt(%d)" % (2 * (n - 1)))
            check(sets[i], oks[i])
        if timing:
            a.I("s_add_u32 s%d, s%d, 1" % (S_TM + 4 + cnt, S_TM + 4 + cnt))
        a.I("s_sub_u32 s%d, s%d, 1" % (S_RETRY, S_RETRY))
        a.I("s_cmp_lg_u32 s%d, 0" % S_RETRY)
        a.I("s_cbranch_scc1 %s" % Lp)
        a.I("s_branch %s" % abort)

    def check_poison(R, ok):
        for i, kap in enumerate(own):
            a.I("ds_write_b128 %s, %s offset:%d" % (vr(V_MB), vr(R + 4 * i, 4), kap * 1024))
        for x in check_insts([R + i for i in range(8)], V_T):
            a.I(x)
        if "nomemchk" in exp:
            a.I("s_branch %s" % ok)
        a.I("s_cbranch_vccz %s" % ok)

    def check_tag(R, ok):
        a.I("v_bitop3_b32 %s, %s, %s, s%d bitop3:0x7e" % (vr(V_T), vr(R), vr(R + 4), S_TAG))
        a.I("v_and_b32 %s, 1, %s" % (vr(V_T), vr(V_T)))
        a.I("v_cmp_ne_u32 vcc, 0, %s" % vr(V_T))
        if "noinchk" in exp:
            a.I("s_branch %s" % ok)
        a.I("s_cbranch_vccz %s" % ok)

    def issue_mem(R):
        for i, kap in enumerate(own):
            a.I("buffer_load_dwordx4 %s, %s, %s, s%d offen offset:%d sc1"
                % (vr(R + 4 * i, 4), vr(V_L16), ws, S_MEM if kap < 4 else S_MEMHI, (kap & 3) * 1024))
    if delay:
        a.nops(delay)
    hop(a, 4)
    oks = [a.newlabel("mok%d" % i) for i in range(nsets)]
    Lj = a.newlabel("mjoin")
    poll2(issue_mem, oks, gap, 9, check_poison, solo=bool(solo & 1))
    for si in range(nsets - 1, -1, -1):
        R = sets[si]
        a.label(oks[si], clear=True)
        tm.stamp(11)
        hop(a, 5)
        m_own = qk4(own[0], vr(R, 4)) + qk4(own[1], vr(R + 4, 4))
        for m in m_own[:3]:
            a.I(m)
        a.I("s_waitcnt lgkmcnt(0)")
        a.I("s_barrier")
        tm.stamp(12)
        hop(a, 6)
        rd = ["ds_read_b128 %s, %s offset:%d" % (vr(MEM + 4 * kap, 4), vr(V_MB), kap * 1024) for kap in others + own]
        a.I(rd[0])
        a.I(rd[1])
        for j, m in enumerate(m_own[3:]):
            a.I(m)
            a.I(rd[2 + j])
        a.I(rd[7])
        if si != 0:
            a.I("s_branch %s" % Lj)
    a.label(Lj, clear=True)
    tm.stamp(0)
    FINE["n"] = 0; FINE["k"] = 0; FINE["names"] = []
    fine(a, "join")
    hop(a, 7)
    nv = 0
    if "latepois" in exp and "preppois" not in exp:
        for x in pois:
            a.I(x)
            nv += 1
    if fused and w == 3:
        a.I("v_mov_b32 %s, s%d" % (vr(V_S), S_STEP))
        a.I("v_mov_b32 %s, s%d" % (vr(V_S + 1), S_NONCE))
        a.I("buffer_store_dwordx2 %s, %s, %s, s%d offen sc1" % (vr(V_S, 2), vr(V_Z), ws, S_CP))
        nv += 1
    if "nocompute" in exp:
        a.I("s_waitcnt vmcnt(0)")
        a.I("s_waitcnt lgkmcnt(0)")
        for i in range(0, 24, 2):
            a.I("v_mov_b64 %s, 0" % vr(ACC + i, 2))
        a.I("v_mov_b32 %s, s%d" % (vr(ACC), S_TAG))
        a.I("v_mov_b32 %s, s%d" % (vr(ACC + 16), S_TAG))
        a.I("buffer_store_dwordx4 %s, %s, %s, s%d offen %s" % (vr(ACC, 4), vr(V_PS), ws, S_PW0, st_flags))
        a.I("buffer_store_dwordx4 %s, %s, %s, s%d offen %s" % (vr(ACC + 16, 4), vr(V_PS), ws, S_PW1, st_flags))
        a.I("s_branch L_skip_w%d%s" % (w, tag))
    fill_hi = ["ds_read_b128 %s, %s offset:%d" % (vr(KT + (4 + ks) * 4, 4), vr(V_K), (4 + ks) * 1024) for ks in range(4)]
    fill_lo = ["ds_read_b128 %s, %s offset:%d" % (vr(KT + ks * 4, 4), vr(V_K), ks * 1024) for ks in range(4)]
    far = far_ops() if "nofar" not in exp else []
    nissued = 0
    cnt = 0
    waited = False
    for j, kap in enumerate(others[:4]):
        a.I("s_waitcnt lgkmcnt(%d)" % min(15, 7 - j + nissued))
        for m in qk4(kap):
            a.I(m)
            if cnt % 2 == 0:
                if fill_hi:
                    a.I(fill_hi.pop(0))
                    nissued += 1
                elif fill_lo:
                    if not waited:
                        a.I("s_waitcnt vmcnt(%d)" % nv)
                        waited = True
                        if fused:
                            Lh = a.newlabel("hz")
                            Lb = a.newlabel("hzb")
                            a.I("s_add_u32 s%d, s%d, 3" % (S_T0 + 5, S_STEP))
                            a.I("s_cmp_ge_u32 s%d, s%d" % (S_T0 + 5, S_HZ))
                            a.I("s_cbranch_scc1 %s" % Lh)
                            a.label(Lb)
                            hzl.append((Lh, Lb))
                    a.I(fill_lo.pop(0))
                    nissued += 1
            elif cnt % 4 == 1 and far:
                for x in far.pop(0):
                    a.I(x)
                nv += 1
            cnt += 1
        fine(a, "chunk%d" % j)
    assert not fill_lo and not far
    k6, k7 = others[4], others[5]
    A6, A7 = vr(MEM + 4 * k6, 4), vr(MEM + 4 * k7, 4)
    a.I("s_waitcnt lgkmcnt(%d)" % min(15, nissued))
    a.I(smf(q[0], A6, qkw(0, 0, k6)))
    a.I(smf(k[0], A6, qkw(1, 0, k6)))
    a.I(smf(q[0], A7, qkw(0, 0, k7)))
    a.I(smf(k[0], A7, qkw(1, 0, k7)))
    fine(a, "last4")
    tm.stamp(1)
    m1 = [smf(q[1], A6, qkw(0, 1, k6)), smf(k[1], A6, qkw(1, 1, k6)),
          smf(q[1], A7, qkw(0, 1, k7)), smf(k[1], A7, qkw(1, 1, k7))]
    vm = []
    for kap in range(8):
        for tau in range(2):
            vm.append(smf(v[tau], vr(MEM + 4 * kap, 4), vr(V_VW + tau * 64 + kap * 8, 8)))
    p0, p1 = qk_post(0), qk_post(1)
    a.I(m1[0])
    a.I(m1[1])
    a.I(m1[2])
    a.I(m1[3])
    fine(a, "m1")
    a.I(vm[0])
    for x in p0[0:2]:
        a.I(x)
    a.I(vm[1])
    for x in p0[2:4]:
        a.I(x)
    a.I(vm[2])
    for x in p0[4:7]:
        a.I(x)
    fine(a, "p0")
    for x in p1:
        a.I(x)
    fine(a, "p1")
    a.I(vm[3])
    a.I(vm[4])
    a.I(vm[5])
    a.I(vm[6])
    fine(a, "vm6")
    a.I("s_waitcnt lgkmcnt(0)")
    a.I("s_barrier")
    fine(a, "B1")
    trs = ["ds_read_b64_tr_b16 %s, %s offset:%d" % (vr(ACC + 4 * ks + 2 * hh, 2), vr(V_MR), 1024 * ks + 512 * hh)
           for ks in range(4) for hh in range(2)]
    a.I(trs[0])
    a.I(trs[1])
    a.I(trs[2])
    for i, m in enumerate(vm[7:12]):
        a.I(m)
        a.I(trs[3 + i])
    fine(a, "trs")
    if fused:
        Le = a.newlabel("hze")
        Lf = a.newlabel("hzf")
        a.I("s_cmp_lg_u32 s%d, 0" % S_PEND)
        a.I("s_cbranch_scc1 %s" % Le)
        a.label(Lf)
        hze.append((Le, Lf))
    tm.stamp(2)
    order = [(tau, xi) for tau in range(8) for xi in range(2)]
    slots = [KT + 8 * i for i in range(4)] + [MEM + 8 * i for i in range(4)]

    def stage(n, slot):
        tau, xi = order[n]
        return ["ds_read_b128 %s, %s offset:%d" % (vr(slot + 4 * hf, 4), vr(V_L16W), wo_img_off(tau, xi, hf))
                for hf in range(2)]

    T1, T2, T0 = S, S + 4, S + 8
    sc = []
    for ks in range(4):
        M = vr(ACC + 4 * ks, 4)
        for (D, A) in ((T1, vr(KT + ks * 4, 4)), (T2, vr(KT + (4 + ks) * 4, 4)), (T0, M)):
            sc.append("v_mfma_f32_16x16x32_bf16 %s, %s, %s, %s" % (vr(D, 4), A, M, "0" if ks == 0 else vr(D, 4)))
    P0q, ones = ACC, ACC + 4
    stgM = []
    for n in range(4, 8):
        stgM += stage(n, slots[n])
    nst = 0
    for ks in range(4):
        a.I("s_waitcnt lgkmcnt(%d)" % min(15, 6 - 2 * ks + nst))
        for j, m in enumerate(sc[3 * ks:3 * ks + 3]):
            a.I(m)
            if nst < 6 and (ks > 0 or j > 0):
                a.I(stgM[nst])
                nst += 1
        fine(a, "sc%d" % ks)
    if "nopub" not in exp:
        a.I("buffer_store_dwordx4 %s, %s, %s, s%d offen offset:%d sc1"
            % (vr(ACC + 4 * w, 4), vr(V_KM), ws, S_KM, w * 512))
    for m in vm[12:16]:
        a.I(m)
    a.I(stgM[6])
    a.I(stgM[7])
    fine(a, "vm15")
    tm.stamp(3)
    if dbg == "S":
        dump(a, w, S, 12)
    mx, tt, nmc = ACC + 8, ACC + 9, ACC + 10
    rs = ACC + 12
    stg = []
    for n in range(0, 4):
        stg += stage(n, slots[n])
    sm = []
    sm.append("v_max3_f32 %s, %s, %s, %s" % (vr(mx), vr(S + 0), vr(S + 1), vr(S + 2)))
    sm.append("v_max3_f32 %s, %s, %s, %s" % (vr(tt), vr(S + 3), vr(S + 4), vr(S + 5)))
    sm.append("v_max3_f32 %s, %s, %s, %s" % (vr(mx), vr(mx), vr(S + 6), vr(S + 7)))
    sm.append("v_max3_f32 %s, %s, %s, %s" % (vr(tt), vr(tt), vr(S + 8), vr(S + 9)))
    sm.append("v_max_f32 %s, %s, %s" % (vr(mx), vr(mx), vr(tt)))
    sm.append("v_mov_b32 %s, %s" % (vr(tt), vr(mx)))
    sm.append(None)
    sm.append("v_permlane32_swap_b32 %s, %s" % (vr(mx), vr(tt)))
    sm.append("v_max_f32 %s, %s, %s" % (vr(mx), vr(mx), vr(tt)))
    sm.append("v_mov_b32 %s, %s" % (vr(tt), vr(mx)))
    sm.append(None)
    sm.append("v_permlane16_swap_b32 %s, %s" % (vr(mx), vr(tt)))
    sm.append("v_max_f32 %s, %s, %s" % (vr(mx), vr(mx), vr(tt)))
    sm.append("v_mul_f32 %s, s%d, %s" % (vr(nmc), S_NC, vr(mx)))
    for j in range(5):
        sm.append("v_pk_fma_f32 %s, %s, s[%d:%d], %s op_sel_hi:[1,0,0]"
                  % (vr(S + 2 * j, 2), vr(S + 2 * j, 2), S_C, S_C + 1, vr(nmc, 2)))
    for i in range(10):
        sm.append("v_exp_f32 %s, %s" % (vr(S + i), vr(S + i)))
    si = 0
    consts = ["v_mov_b64 %s, s[%d:%d]" % (vr(ones, 2), S_ONE, S_ONE + 1),
              "v_mov_b64 %s, s[%d:%d]" % (vr(ones + 2, 2), S_ONE, S_ONE + 1),
              "v_mov_b32 %s, 0" % vr(ACC + 1), "v_mov_b64 %s, 0" % vr(ACC + 2, 2)]
    for j, x in enumerate(sm):
        if x is None:
            a.I(stg[si])
            si += 1
            a.I(consts.pop(0))
            continue
        a.I(x)
        if j >= 14 and si < len(stg) and j % 3 == 0:
            a.I(stg[si])
            si += 1
    while si < len(stg):
        a.I(stg[si])
        si += 1
    for x in consts:
        a.I(x)
    fine(a, "exp")
    for j in range(4):
        a.I("v_cvt_pk_bf16_f32 %s, %s, %s" % (vr(PX + j), vr(S + 2 * j), vr(S + 1 + 2 * j)))
    a.I("v_cvt_pk_bf16_f32 %s, %s, %s" % (vr(P0q), vr(S + 8), vr(S + 9)))
    fine(a, "P")
    tm.stamp(4)
    if dbg == "P":
        dump(a, w, PX, 10)
    O0, O1, OS = S, S + 4, S + 8
    P = vr(PX, 4)
    vp = add2(v[0], v[0], v[0] + 2) + add2(v[1], v[1], v[1] + 2)
    a.I(vp[0])
    a.I("v_mfma_f32_16x16x32_bf16 %s, %s, %s, 0" % (vr(OS, 4), P, vr(ones, 4)))
    a.I("s_waitcnt vmcnt(%d)" % (2 + (0 if "nopub" in exp else 1)))
    a.I(vp[1])
    a.I("v_mfma_f32_16x16x32_bf16 %s, %s, %s, 0" % (vr(O0, 4), P, vr(VT, 4)))
    a.I(vp[2])
    a.I("v_mfma_f32_16x16x32_bf16 %s, %s, %s, 0" % (vr(O1, 4), P, vr(VT + 4, 4)))
    a.I(vp[3])
    a.I("v_mfma_f32_16x16x32_bf16 %s, %s, %s, %s" % (vr(OS, 4), vr(P0q, 4), vr(ones, 4), vr(OS, 4)))
    a.I("v_cvt_pk_bf16_f32 %s, %s, %s" % (vr(PX + 4), vr(v[0]), vr(v[0] + 1)))
    a.I("v_cvt_pk_bf16_f32 %s, %s, %s" % (vr(PX + 6), vr(v[1]), vr(v[1] + 1)))
    a.I("v_lshrrev_b32 %s, 2, %s" % (vr(V_T), vr(V_L16)))
    a.I("v_mfma_f32_16x16x32_bf16 %s, %s, %s, %s" % (vr(O0, 4), vr(P0q, 4), vr(PX + 4, 4), vr(O0, 4)))
    a.I("v_mfma_f32_16x16x32_bf16 %s, %s, %s, %s" % (vr(O1, 4), vr(P0q, 4), vr(PX + 6, 4), vr(O1, 4)))
    fine(a, "PVm")
    if "nopub" not in exp:
        a.I("buffer_store_dword %s, %s, %s, s%d offen sc1" % (vr(PX + 4), vr(V_T), ws, S_VM))
        a.I("buffer_store_dword %s, %s, %s, s%d offen offset:256 sc1" % (vr(PX + 6), vr(V_T), ws, S_VM))
    a.I("v_rcp_f32 %s, %s" % (vr(rs), vr(OS + 2)))
    a.I("v_rcp_f32 %s, %s" % (vr(rs + 1), vr(OS + 3)))
    zl = []
    for tI in range(8):
        for r in range(0, 4, 2):
            zl.append("v_mov_b64 %s, 0" % vr(wacc(tI) + r, 2))
    a.I("v_pk_mul_f32 %s, %s, %s" % (vr(O0 + 2, 2), vr(O0 + 2, 2), vr(rs, 2)))
    a.I("v_pk_mul_f32 %s, %s, %s" % (vr(O1 + 2, 2), vr(O1 + 2, 2), vr(rs, 2)))
    a.I("v_cvt_pk_bf16_f32 %s, %s, %s" % (vr(S), vr(O0 + 2), vr(O0 + 3)))
    a.I("v_cvt_pk_bf16_f32 %s, %s, %s" % (vr(S + 1), vr(O1 + 2), vr(O1 + 3)))
    if dbg == "O":
        dump(a, w, S, 2)
    a.I("ds_write_b64 %s, %s offset:%d" % (vr(V_MW), vr(S, 2), O_OFF))
    fine(a, "owr")
    for x in zl[4:12]:
        a.I(x)
    a.I("s_waitcnt lgkmcnt(0)")
    a.I("s_barrier")
    fine(a, "B2")
    for xi in range(2):
        for hh in range(2):
            a.I("ds_read_b64_tr_b16 %s, %s offset:%d" % (vr(PX + 4 * xi + 2 * hh, 2), vr(V_MR), O_OFF + 2048 * xi + 1024 * hh))
    for x in zl[:4] + zl[12:]:
        a.I(x)
    a.I("s_waitcnt lgkmcnt(0)")
    fine(a, "OA")
    tm.stamp(5)
    def post_tile(t):
        ta = wacc(t)
        dq = wacc(4 * (t >> 2)) + (t & 3)
        L = add2(ta, ta, ta + 2) + ["v_cvt_pk_bf16_f32 %s, %s, %s" % (vr(dq), vr(ta), vr(ta + 1))]
        if (t & 3) == 3:
            d0 = wacc(4 * (t >> 2))
            L.append("v_bfi_b32 %s, 1, s%d, %s" % (vr(d0), S_TAG, vr(d0)))
            L.append("buffer_store_dwordx4 %s, %s, %s, s%d offen %s"
                     % (vr(d0, 4), vr(V_PS), ws, S_PW0 if t == 3 else S_PW1, st_flags))
        return L
    pend = []
    seq = []
    todo = []
    for n8 in range(8, 16):
        todo += [(n8, x) for x in stage(n8, slots[n8 % 8])]
    for n in range(16):
        tau, xi = order[n]
        slot = slots[n % 8]
        if n >= 8:
            last = max(i for i, o in enumerate(seq) if o == n)
            a.I("s_waitcnt lgkmcnt(%d)" % (len(seq) - last - 1))
        a.I(smf(wacc(tau), vr(PX + 4 * xi, 4), vr(slot, 8)))
        target = min(16, 2 * (n + 1), (3 * (n + 1) + 1) // 2)
        while len(seq) < target:
            o, x = todo.pop(0)
            a.I(x)
            seq.append(o)
        if n in (3, 7, 11, 15):
            fine(a, "wo%d" % n)
        if n >= 3 and n % 2 == 1:
            pend += post_tile((n - 3) // 2)
        for _ in range(1 if n < 8 else 2):
            if pend:
                a.I(pend.pop(0))
    for x in pend:
        a.I(x)
    ta = wacc(7)
    a.I("v_pk_add_f32 %s, %s, %s" % (vr(ta, 2), vr(ta, 2), vr(ta + 2, 2)))
    for x in post_tile(7)[2:]:
        a.I(x)
    fine(a, "woend")
    hop(a, 0)
    tm.stamp(6)
    if "ack" in exp:
        a.I("s_waitcnt vmcnt(0)")
        tm.stamp(15)

    SEL = S
    D2 = S + 4
    if "preppois" in exp:
        a.I("v_mov_b32 %s, -1" % vr(S + 8))
        for x in pois:
            a.I(x)
    sel_addr(a, V_T, SEL)
    a.I("ds_read_b128 %s, %s" % (vr(SEL, 4), vr(V_T)))
    for i in range(0, 24, 2):
        a.I("v_mov_b64 %s, 0" % vr(ACC + i, 2))
    a.I("s_add_u32 s%d, s%d, 262144" % (S_KT, S_KT))
    a.I("s_add_u32 s%d, s%d, 262144" % (S_VT, S_VT))
    a.I("s_add_u32 s%d, s%d, 65536" % (S_VM, S_VM))
    a.I("s_add_u32 s%d, s%d, 65536" % (S_KM, S_KM))
    a.I("s_add_u32 s%d, s%d, 1" % (S_STEP, S_STEP))
    a.I("s_xor_b32 s%d, s%d, 8192" % (S_KB, S_KB))
    a.I("v_xor_b32 %s, 8192, %s" % (vr(V_K), vr(V_K)))
    if rdelay:
        a.nops(rdelay)
    hop(a, 1)

    def issue_in(R):
        for m in range(2):
            a.I("buffer_load_dwordx4 %s, %s, %s, s%d offen offset:%d sc1"
                % (vr(R + 4 * m, 4), vr(V_L16), ws, S_PR, m * 1024))
    oks = [a.newlabel("rok%d" % i) for i in range(rsets)]
    Lj = a.newlabel("rjoin")
    a.I("s_waitcnt lgkmcnt(0)")
    tm.stamp(14)
    poll2(issue_in, oks, rgap, 10, check_tag, solo=bool(solo & 2))
    for si in range(rsets - 1, -1, -1):
        R = sets[si]
        a.label(oks[si], clear=True)
        tm.stamp(13)
        hop(a, 2)
        a.I("v_mfma_f32_16x16x32_bf16 %s, %s, %s, 0" % (vr(D2, 4), vr(R, 4), vr(SEL, 4)))
        a.I("v_mfma_f32_16x16x32_bf16 %s, %s, %s, %s" % (vr(D2, 4), vr(R + 4, 4), vr(SEL, 4), vr(D2, 4)))
        if si != 0:
            a.I("s_branch %s" % Lj)
    a.label(Lj)
    a.I("s_add_u32 s%d, s%d, 8192" % (S_MEM, S_MEM))
    a.I("s_and_b32 s%d, s%d, 0x%x" % (S_MEM, S_MEM, WS_MEM | 0x7fff))
    a.I("s_add_u32 s%d, s%d, 4096" % (S_MEMHI, S_MEM))
    a.I("s_add_u32 s%d, s%d, 2 * 8192" % (S_T0 + 3, S_MEM))
    a.I("s_and_b32 s%d, s%d, 0x%x" % (S_T0 + 3, S_T0 + 3, WS_MEM | 0x7fff))
    a.I("v_mov_b32 %s, -1" % vr(S + 8))
    a.nops(3)
    a.I("v_permlane32_swap_b32 %s, %s" % (vr(D2), vr(D2 + 2)))
    a.I("v_permlane32_swap_b32 %s, %s" % (vr(D2 + 1), vr(D2 + 3)))
    a.I("v_add_f32 %s, %s, %s" % (vr(D2), vr(D2), vr(D2 + 2)))
    a.I("v_add_f32 %s, %s, %s" % (vr(D2 + 1), vr(D2 + 1), vr(D2 + 3)))
    a.I("v_permlane16_swap_b32 %s, %s" % (vr(D2), vr(D2 + 1)))
    a.I("v_add_f32 %s, %s, %s" % (vr(D2), vr(D2), vr(D2 + 1)))
    a.I("v_mov_b32 %s, %s" % (vr(D2 + 1), vr(D2)))
    a.I("v_permlane16_swap_b32 %s, %s" % (vr(D2), vr(D2 + 1)))
    a.I("v_cvt_pk_bf16_f32 %s, %s, %s" % (vr(D2), vr(D2), vr(D2 + 1)))
    a.I("v_min_u32 %s, 0xfffffffe, %s" % (vr(D2), vr(D2)))
    a.I("buffer_store_dword %s, %s, %s, s%d offen %s" % (vr(D2), vr(V_MS), ws, S_MEM, st_flags))
    hop(a, 3)
    tm.stamp(7)
    if "latepois" not in exp:
        for x in pois:
            a.I(x)
    for s_ in (S_PW0, S_PW1, S_PR):
        a.I("s_xor_b32 s%d, s%d, 262144" % (s_, s_))
    a.I("s_bfe_u32 s%d, s%d, 0x10001" % (S_TAG, S_STEP))
    if "rtt" not in exp:
        tm.stamp(8)
    if stop_after is not None:
        a.I("s_cmp_eq_u32 s%d, %d" % (S_STEP, stop_after))
        a.I("s_cbranch_scc1 %s" % L_done)
    a.I("s_cmp_lg_u32 s%d, 63" % S_STEP)
    a.I("s_cbranch_scc1 %s" % L_step)
    a.I("s_mov_b32 s%d, %d" % (S_RETRY, RETRY_MAX))
    Lp = a.newlabel("lpoll")
    Lr = a.newlabel("lretry")
    a.label(Lp)
    for kap in range(8):
        a.I(mem_load(kap))
    a.I("s_waitcnt vmcnt(0)")
    for x in check_insts([MEM + i for i in range(32)], V_T):
        a.I(x)
    a.I("s_cbranch_vccnz %s" % Lr)
    ool.append((Lr, Lp))
    for kap in range(8):
        A = vr(MEM + 4 * kap, 4)
        a.I(smf(k[0], A, qkw(1, 0, kap)))
        a.I(smf(k[1], A, qkw(1, 1, kap)))
        a.I(smf(v[0], A, vr(V_VW + kap * 8, 8)))
        a.I(smf(v[1], A, vr(V_VW + 64 + kap * 8, 8)))
    for tau in range(2):
        for x in qk_post(tau):
            a.I(x)
    for x in add2(v[0], v[0], v[0] + 2) + add2(v[1], v[1], v[1] + 2):
        a.I(x)
    a.I("v_cvt_pk_bf16_f32 %s, %s, %s" % (vr(PX + 4), vr(v[0]), vr(v[0] + 1)))
    a.I("v_cvt_pk_bf16_f32 %s, %s, %s" % (vr(PX + 6), vr(v[1]), vr(v[1] + 1)))
    a.I("v_lshrrev_b32 %s, 2, %s" % (vr(V_T), vr(V_L16)))
    a.I("buffer_store_dword %s, %s, %s, s%d offen sc1" % (vr(PX + 4), vr(V_T), ws, S_VM))
    a.I("buffer_store_dword %s, %s, %s, s%d offen offset:256 sc1" % (vr(PX + 6), vr(V_T), ws, S_VM))
    a.I("s_waitcnt lgkmcnt(0)")
    a.I("s_barrier")
    if fused and w == 3:
        a.I("v_mov_b32 %s, 63" % vr(V_S))
        a.I("v_mov_b32 %s, s%d" % (vr(V_S + 1), S_NONCE))
        a.I("buffer_store_dwordx2 %s, %s, %s, s%d offen sc1" % (vr(V_S, 2), vr(V_Z), ws, S_CP))
    for hh in range(2):
        a.I("ds_read_b64_tr_b16 %s, %s offset:%d" % (vr(KT + 2 * hh, 2), vr(V_MR), 1024 * w + 512 * hh))
    a.I("s_waitcnt lgkmcnt(0)")
    a.I("buffer_store_dwordx4 %s, %s, %s, s%d offen offset:%d sc1" % (vr(KT, 4), vr(V_KM), ws, S_KM, w * 512))
    if fused:
        a.I("s_waitcnt vmcnt(0)")
        a.I("s_barrier")
        if w == 3:
            a.I("v_mov_b32 %s, 64" % vr(V_S))
            a.I("v_mov_b32 %s, s%d" % (vr(V_S + 1), S_NONCE))
            a.I("buffer_store_dwordx2 %s, %s, %s, s%d offen sc1" % (vr(V_S, 2), vr(V_Z), ws, S_CP))
    a.label(L_done, clear=True)
    a.I("s_waitcnt vmcnt(0) lgkmcnt(0)")
    if FINE["on"] or FINE.get("hop"):
        Lq = a.newlabel("fq")
        for i in range(16):
            a.I("v_mov_b32 %s, s%d" % (vr(V_MEM + i), 64 + 2 * i))
        a.I("v_mov_b32 %s, 0" % vr(V_MEM + 16))
        a.I("s_lshl_b32 s%d, s%d, 8" % (S_T0, S_RANK))
        a.I("s_add_u32 s%d, s%d, 0x%x" % (S_T0, S_T0, WS_FLAGS + 0x9000 + w * 64))
        for i in range(16):
            a.I("buffer_store_dword %s, %s, %s, s%d offen offset:%d" % (vr(V_MEM + i), vr(V_MEM + 16), ws, S_T0, i * 4))
        a.I("s_waitcnt vmcnt(0)")
        a.label(Lq)
    if looptime and w == 0:
        a.I("s_memrealtime s[94:95]")
        a.I("s_waitcnt lgkmcnt(0)")
        a.I("s_sub_u32 s94, s94, s92")
        a.I("v_mov_b32 %s, s94" % vr(V_MEM))
        a.I("v_mov_b32 %s, s92" % vr(V_MEM + 1))
        a.I("s_lshl_b32 s%d, s%d, 3" % (S_T0, S_RANK))
        a.I("v_mov_b32 %s, s%d" % (vr(V_MEM + 2), S_T0))
        a.I("s_mov_b32 s%d, 0x%x" % (S_T0, WS_FLAGS + 0xc000))
        a.I("buffer_store_dwordx2 %s, %s, %s, s%d offen" % (vr(V_MEM, 2), vr(V_MEM + 2), ws, S_T0))
        a.I("s_waitcnt vmcnt(0)")
    if timing:
        Ls = a.newlabel("notm")
        if trace is None:
            a.I("s_cmp_lg_u32 s%d, 0" % S_RANK)
            a.I("s_cbranch_scc1 %s" % Ls)
        for i in range(16):
            a.I("v_mov_b32 %s, s%d" % (vr(V_MEM + i), S_TM + 4 + i))
        a.I("v_mov_b32 %s, 0" % vr(V_MEM + 16))
        a.I("s_lshl_b32 s%d, s%d, 8" % (S_T0, S_RANK))
        a.I("s_add_u32 s%d, s%d, 0x%x" % (S_T0, S_T0, WS_FLAGS + 0x8000 + w * 64))
        for i in range(16):
            a.I("buffer_store_dword %s, %s, %s, s%d offen offset:%d" % (vr(V_MEM + i), vr(V_MEM + 16), ws, S_T0, i * 4))
        a.I("s_waitcnt vmcnt(0)")
        a.label(Ls)
    Lend = a.newlabel("end")
    a.I("s_branch %s" % Lend)
    for (lab, tgt) in ool:
        retry_block(a, lab, tgt, abort)
    for (lh, lb) in hzl:
        a.label(lh, clear=True)
        lblk = a.newlabel("hzblk")
        a.I("s_cmp_ge_u32 s%d, 64" % S_HZ)
        a.I("s_cbranch_scc1 %s" % lb)
        a.I("s_add_u32 s%d, s%d, 1" % (S_T0 + 5, S_STEP))
        a.I("s_cmp_ge_u32 s%d, s%d" % (S_T0 + 5, S_HZ))
        a.I("s_cbranch_scc1 %s" % lblk)
        horizon_issue(a, V_S)
        a.I("s_mov_b32 s%d, 1" % S_PEND)
        a.I("s_branch %s" % lb)
        a.label(lblk)
        horizon_refresh(a, S_T0 + 5, abort)
        a.I("s_branch %s" % lb)
    for (le, lf) in hze:
        a.label(le, clear=True)
        a.I("s_mov_b32 s%d, 0" % S_PEND)
        a.I("s_waitcnt vmcnt(2)")
        horizon_eval(a, V_S)
        a.I("s_branch %s" % lf)
    for (lr, kap, lb) in cool:
        a.label(lr, clear=True)
        lq = a.newlabel("cq")
        a.I("s_mov_b32 s%d, %d" % (S_RETRY, RETRY_MAX))
        a.label(lq)
        a.I(mem_load(kap))
        a.I("s_waitcnt vmcnt(0)")
        for x in chunk_check(kap):
            a.I(x)
        a.I("s_cbranch_vccz %s" % lb)
        a.I("s_sub_u32 s%d, s%d, 1" % (S_RETRY, S_RETRY))
        a.I("s_cmp_lg_u32 s%d, 0" % S_RETRY)
        a.I("s_cbranch_scc1 %s" % lq)
        a.I("s_branch %s" % abort)
    a.label(Lend, clear=True)


def setup_scalar(a, w, fused=False):
    r = S_RANK
    a.I("s_mov_b32 s%d, 0" % S_STEP)
    a.I("s_mov_b32 s%d, 0" % S_TAG)
    a.I("s_mov_b32 s%d, 0" % S_PEND)
    a.I("s_mov_b32 s%d, 0x%x" % (S_MEM, WS_MEM))
    a.I("s_mov_b32 s%d, 0x%x" % (S_MEMHI, WS_MEM + 4096))
    a.I("s_mov_b32 s%d, 0x%x" % (S_PW0, WS_PART + w * 65536))
    a.I("s_add_u32 s%d, s%d, 32768" % (S_PW1, S_PW0))
    a.I("s_lshl_b32 s%d, s%d, 13" % (S_PR, r))
    a.I("s_add_u32 s%d, s%d, 0x%x" % (S_PR, S_PR, WS_PART + w * 2048))
    a.I("s_lshl_b32 s%d, s%d, 13" % (S_KT, r))
    a.I("s_add_u32 s%d, s%d, 0x%x" % (S_VT, S_KT, WS_VT + 2 * w * 1024))
    a.I("s_add_u32 s%d, s%d, 0x%x" % (S_KT, S_KT, WS_KT + 2 * w * 1024))
    a.I("s_lshl_b32 s%d, s%d, 11" % (S_KM, r))
    a.I("s_add_u32 s%d, s%d, 0x%x" % (S_VM, S_KM, WS_VM + w * 512))
    a.I("s_add_u32 s%d, s%d, 0x%x" % (S_KM, S_KM, WS_KM))
    import struct
    c = struct.unpack("<I", struct.pack("<f", 128 ** -0.5 * 1.4426950408889634))[0]
    a.I("s_mov_b32 s%d, 0x%x" % (S_C, c))
    a.I("s_mov_b32 s%d, 0x%x" % (S_NC, c | 0x80000000))
    a.I("s_mov_b32 s%d, 0x3f803f80" % S_ONE)
    a.I("s_mov_b32 s%d, 0x3f803f80" % (S_ONE + 1))
    a.I("v_mov_b64 %s, 0" % vr(V_PX + 8, 2))
    if fused:
        a.I("s_lshl_b32 s%d, s%d, 6" % (S_PG, r))
        a.I("s_add_u32 s%d, s%d, 0x%x" % (S_PG, S_PG, FL_PROG))
        a.I("s_add_u32 s%d, s%d, 48" % (S_CP, S_PG))


def k0_dma(a, w):
    a.I("s_mov_b32 m0, %d" % (L_K + 2 * w * 1024))
    for p in range(2):
        a.I("buffer_load_dwordx4 %s, s[%d:%d], s%d offen offset:%d sc1 lds" % (vr(V_L16), S_WS, S_WS + 3, S_KT, p * 1024))
    a.I("s_add_u32 s%d, s%d, 262144" % (S_KT, S_KT))
    a.I("s_mov_b32 s%d, %d" % (S_KB, L_K + 8192 + 2 * w * 1024))


def warm_handoff(a, w, vb):
    ws = "s[%d:%d]" % (S_WS, S_WS + 3)
    for ring in range(2):
        a.I("s_xor_b32 s%d, s%d, %d" % (S_T0 + 1, S_PR, ring * 262144))
        for m in range(2):
            a.I("buffer_load_dwordx4 %s, %s, %s, s%d offen offset:%d sc1" % (vr(vb, 4), vr(V_L16), ws, S_T0 + 1, m * 1024))
    for slot in range(1, 4):
        a.I("s_mov_b32 s%d, 0x%x" % (S_T0 + 1, WS_MEM + slot * 8192 + w * 2048))
        for m in range(2):
            a.I("buffer_load_dwordx4 %s, %s, %s, s%d offen offset:%d sc1" % (vr(vb, 4), vr(V_L16), ws, S_T0 + 1, m * 1024))


def setup_regs(a, w):
    for i in range(0, 24, 2):
        a.I("v_mov_b64 %s, 0" % vr(V_ACC + i, 2))
    a.I("v_mov_b64 %s, -1" % vr(V_S + 8, 2))
    a.I("v_mov_b64 %s, -1" % vr(V_S + 10, 2))
    a.I("s_mov_b32 s%d, 0x%x" % (S_T0 + 3, WS_MEM + 3 * 8192))
    a.I("v_mov_b64 %s, 0" % vr(V_PX + 8, 2))
    a.I("v_mov_b64 %s, 0" % vr(V_PX + 4, 2))
    a.I("v_mov_b64 %s, 0" % vr(V_PX + 6, 2))
    a.I("v_add_u32 %s, %d, %s" % (vr(V_MB), L_MB, vr(V_L16)))


def loop_setup(a, w, fused=False, abort="L_abort"):
    setup_scalar(a, w, fused)
    if fused:
        a.I("s_mov_b32 s%d, 0" % (S_T0 + 5))
        horizon_refresh(a, S_T0 + 5, abort)
    k0_dma(a, w)
    setup_regs(a, w)
```

```python
import sys
from common import *
import pre, front, tail, chain
from chain import *
from tail import poll_lanes

D_TK0, D_NONCE, D_CHAIN = 128, 132, 136
L_BCAST = 163840 - 64

S_MODE = 32
FORCE_SLOW = False
D_GTK = 140
S_XCC, S_TK, S_FI = 33, 21, 35


STAMPS = False
WS_STAMP = 0x00080000


DBGT = False
OPT = {}


def dbgmax(a, off, vt, neg=False):
    if not DBGT:
        return
    L = a.newlabel("dm")
    a.I("s_cmp_lg_u32 s%d, 0" % S_WAVE)
    a.I("s_cbranch_scc1 %s" % L)
    a.I("s_memrealtime s[94:95]")
    a.I("s_waitcnt lgkmcnt(0)")
    if neg:
        a.I("s_not_b32 s94, s94")
    a.I("v_mov_b32 v%d, s94" % vt)
    a.I("v_mov_b32 v%d, %d" % (vt + 1, off))
    a.I("s_mov_b64 exec, 1")
    a.I("buffer_atomic_umax v%d, v%d, s[%d:%d], 0 offen" % (vt, vt + 1, S_DBG, S_DBG + 3))
    a.I("s_mov_b64 exec, -1")
    a.label(L)


def stamp(a, slot, vt=250):
    if DBGT:
        m = {1: (32, True), 3: None, 5: 40, 6: 44, 8: 48, 4: 52}
        return
    if not STAMPS:
        return
    L = a.newlabel("st")
    a.I("s_cmp_lg_u32 s%d, 0" % S_WAVE)
    a.I("s_cbranch_scc1 %s" % L)
    a.I("s_memrealtime s[94:95]")
    a.I("s_lshl_b32 s93, s3, 6")
    a.I("s_add_u32 s93, s93, 0x%x" % (WS_STAMP + slot * 4))
    a.I("s_waitcnt lgkmcnt(0)")
    a.I("v_mov_b32 v%d, s94" % vt)
    a.I("v_mov_b32 v%d, 0" % (vt + 1))
    a.I("s_mov_b64 exec, 1")
    a.I("buffer_store_dword v%d, v%d, s[%d:%d], s93 offen sc1" % (vt, vt + 1, S_WS, S_WS + 3))
    a.I("s_mov_b64 exec, -1")
    a.label(L)


def entry(a):
    a.I("s_cmp_ge_u32 s2, 256")
    a.I("s_cbranch_scc1 L_exit")
    a.I("s_load_dwordx4 s[%d:%d], s[0:1], %d" % (S_PTR + 12, S_PTR + 15, K_DBG))
    a.I("s_load_dwordx8 s[%d:%d], s[0:1], %d" % (S_PTR, S_PTR + 7, K_WQ))
    a.I("s_memrealtime s[96:97]")
    if STAMPS:
        a.I("s_mov_b32 s3, s2")
    a.I("v_and_b32 %s, 63, v0" % vr(V_T))
    a.I("v_lshrrev_b32 v1, 6, v0")
    a.I("s_getreg_b32 s%d, hwreg(HW_REG_XCC_ID, 0, 4)" % S_XCC)
    a.I("v_readfirstlane_b32 s%d, v1" % S_WAVE)
    a.I("s_waitcnt lgkmcnt(0)")
    srd(a, S_DBG, S_PTR + 12, 256)
    srd(a, S_WS, S_PTR + 14, WS_SIZE)
    a.I("s_mov_b32 s%d, 0x00020000" % (S_W + 3))
    a.I("s_mov_b32 s%d, 0" % S_MODE)
    PF = OPT.get("pf", 0)

    def prefetch():
        L = a.newlabel("nopf")
        a.I("s_cmp_eq_u32 s%d, 0" % S_XCC)
        a.I("s_cbranch_scc1 %s" % L)
        for i in range(16):
            if i % 4 == 0:
                a.I("s_add_u32 s%d, s%d, %d" % (S_T0 + 3, S_T0 + 2, i * 1024))
            a.I("buffer_load_dwordx4 %s, v7, s[%d:%d], s%d offen offset:%d" % (vr(176 + 4 * i, 4), S_W, S_W + 3, S_T0 + 3, (i % 4) * 1024))
        a.label(L)
    if PF:
        a.I("s_mov_b32 s%d, s%d" % (S_W, S_PTR))
        a.I("s_mov_b32 s%d, s%d" % (S_W + 1, S_PTR + 1))
        for w in range(1, 4):
            a.I("s_cmp_eq_u32 s%d, %d" % (S_WAVE, w))
            a.I("s_cselect_b32 s%d, s%d, s%d" % (S_W, S_PTR + 2 * w, S_W))
            a.I("s_cselect_b32 s%d, s%d, s%d" % (S_W + 1, S_PTR + 2 * w + 1, S_W + 1))
        a.I("s_mov_b32 s%d, 0x400000" % (S_W + 2))
        a.I("s_lshl_b32 s%d, s2, 14" % (S_T0 + 2))
        a.I("v_lshlrev_b32 v7, 4, %s" % vr(V_T))
    a.I("s_cmp_lg_u32 s%d, 0" % S_WAVE)
    a.I("s_cbranch_scc1 L_el_other")
    a.I("s_and_b32 s%d, s%d, 7" % (S_T0, S_XCC))
    a.I("s_lshl_b32 s%d, s%d, 2" % (S_T0, S_T0))
    a.I("s_cmp_eq_u32 s%d, 0" % S_T0)
    a.I("s_cselect_b32 s%d, %d, s%d" % (S_T0, D_TK0, S_T0))
    a.I("v_mov_b32 v2, 1")
    a.I("v_mov_b32 v3, s%d" % S_T0)
    a.I("s_mov_b64 exec, 1")
    a.I("buffer_atomic_add v2, v3, s[%d:%d], 0 offen sc0" % (S_DBG, S_DBG + 3))
    if PF:
        Lc = a.newlabel("elc")
        Ld = a.newlabel("eld")
        a.I("s_cmp_eq_u32 s%d, 0" % S_XCC)
        a.I("s_cbranch_scc1 %s" % Lc)
        a.I("s_mov_b64 exec, -1")
        prefetch()
        a.I("s_mov_b64 exec, 1")
        a.I("s_waitcnt vmcnt(16)")
        a.I("s_branch %s" % Ld)
        a.label(Lc)
        a.I("s_waitcnt vmcnt(0)")
        a.label(Ld)
    else:
        a.I("s_waitcnt vmcnt(0)")
    a.I("v_readfirstlane_b32 s%d, v2" % (S_T0 + 1))
    a.I("s_cmp_lg_u32 s%d, 0" % (S_T0 + 1))
    a.I("s_cbranch_scc1 L_el_nononce")
    a.I("s_or_b32 s%d, s96, 1" % (S_T0 + 1))
    a.I("v_mov_b32 v4, s%d" % (S_T0 + 1))
    a.I("v_mov_b32 v5, 0")
    a.I("v_mov_b32 v6, %d" % D_NONCE)
    a.I("buffer_atomic_cmpswap v[4:5], v6, s[%d:%d], 0 offen" % (S_DBG, S_DBG + 3))
    a.label("L_el_nononce")
    a.I("v_mov_b32 v3, %d" % L_BCAST)
    a.I("ds_write_b32 v3, v2")
    a.I("s_mov_b64 exec, -1")
    a.I("s_branch L_el_wait")
    a.label("L_el_other")
    if PF:
        prefetch()
    a.label("L_el_wait")
    a.I("s_waitcnt lgkmcnt(0)")
    a.I("s_barrier")
    a.I("v_mov_b32 v3, %d" % L_BCAST)
    a.I("ds_read_b32 v2, v3")
    a.I("s_waitcnt lgkmcnt(0)")
    a.I("v_readfirstlane_b32 s%d, v2" % S_TK)
    a.I("s_barrier")
    if STAMPS:
        L = a.newlabel("st")
        a.I("s_cmp_lg_u32 s%d, 0" % S_WAVE)
        a.I("s_cbranch_scc1 %s" % L)
        a.I("s_lshl_b32 s93, s3, 6")
        a.I("s_add_u32 s93, s93, 0x%x" % WS_STAMP)
        a.I("s_lshl_b32 s94, s%d, 8" % S_XCC)
        a.I("s_add_u32 s94, s94, s%d" % S_TK)
        a.I("v_mov_b32 v10, s96")
        a.I("v_mov_b32 v11, 0")
        a.I("v_mov_b32 v12, s94")
        a.I("s_mov_b64 exec, 1")
        a.I("buffer_store_dword v10, v11, s[%d:%d], s93 offen sc1" % (S_WS, S_WS + 3))
        a.I("buffer_store_dword v12, v11, s[%d:%d], s93 offen offset:60 sc1" % (S_WS, S_WS + 3))
        a.I("s_mov_b64 exec, -1")
        a.label(L)
    stamp(a, 1, 10)
    dbgmax(a, 36, 10, neg=True)


def verify_issue(a, vt):
    a.I("v_mov_b32 %s, 0" % vr(vt + 12))
    a.I("buffer_load_dwordx4 %s, %s, s[%d:%d], 0 offen sc1" % (vr(vt, 4), vr(vt + 12), S_DBG, S_DBG + 3))
    a.I("buffer_load_dwordx4 %s, %s, s[%d:%d], 0 offen offset:16 sc1" % (vr(vt + 4, 4), vr(vt + 12), S_DBG, S_DBG + 3))
    a.I("buffer_load_dwordx2 %s, %s, s[%d:%d], 0 offen offset:%d sc1" % (vr(vt + 8, 2), vr(vt + 12), S_DBG, S_DBG + 3, D_TK0))


def verify(a, vt, st, slow, pre=False):
    L = a.newlabel("vf")
    Le = a.newlabel("vfe")
    Lskip = a.newlabel("vfx")
    a.I("s_cmp_lg_u32 s%d, 0" % S_MODE)
    a.I("s_cbranch_scc1 %s" % Lskip)
    a.I("s_mov_b32 s%d, 200000" % st)
    if pre:
        a.I("s_branch %s" % Le)
    a.label(L)
    verify_issue(a, vt)
    a.I("s_sub_u32 s%d, s%d, 1" % (st, st))
    a.I("s_cmp_eq_u32 s%d, 0" % st)
    a.I("s_cbranch_scc1 L_abort")
    a.I("s_waitcnt vmcnt(0)")
    a.label(Le)
    a.I("v_add3_u32 %s, %s, %s, %s" % (vr(vt + 10), vr(vt + 1), vr(vt + 2), vr(vt + 3)))
    a.I("v_add3_u32 %s, %s, %s, %s" % (vr(vt + 10), vr(vt + 10), vr(vt + 4), vr(vt + 5)))
    a.I("v_add3_u32 %s, %s, %s, %s" % (vr(vt + 10), vr(vt + 10), vr(vt + 6), vr(vt + 7)))
    a.I("v_add_u32 %s, %s, %s" % (vr(vt + 10), vr(vt + 10), vr(vt + 8)))
    a.I("v_max3_u32 %s, %s, %s, %s" % (vr(vt + 11), vr(vt + 1), vr(vt + 2), vr(vt + 3)))
    a.I("v_max3_u32 %s, %s, %s, %s" % (vr(vt + 11), vr(vt + 11), vr(vt + 4), vr(vt + 5)))
    a.I("v_max3_u32 %s, %s, %s, %s" % (vr(vt + 11), vr(vt + 11), vr(vt + 6), vr(vt + 7)))
    a.I("v_max_u32 %s, %s, %s" % (vr(vt + 11), vr(vt + 11), vr(vt + 8)))
    a.I("v_cmp_lt_u32 vcc, 0x100, %s" % vr(vt + 10))
    a.I("s_cbranch_vccnz L_abort")
    a.I("v_cmp_ne_u32 vcc, 0x100, %s" % vr(vt + 10))
    a.I("s_cbranch_vccnz %s" % L)
    a.I("v_cmp_eq_u32 vcc, 0, %s" % vr(vt + 9))
    a.I("s_cbranch_vccnz %s" % L)
    a.I("v_readfirstlane_b32 s%d, %s" % (S_NONCE, vr(vt + 9)))
    a.I("v_readfirstlane_b32 s%d, %s" % (st, vr(vt + 11)))
    a.I("s_cmp_lg_u32 s%d, %d" % (st, 33 if FORCE_SLOW else 32))
    a.I("s_cbranch_scc1 %s" % slow)
    a.label(Lskip)


def set_flag(a, S_WSq, s_off, s_val, vt, s_wave):
    L = a.newlabel("sf")
    a.I("s_cmp_lg_u32 s%d, 0" % s_wave)
    a.I("s_cbranch_scc1 %s" % L)
    a.I("v_mov_b32 %s, %s" % (vr(vt), s_val))
    a.I("v_mov_b32 %s, s%d" % (vr(vt + 1), S_NONCE))
    a.I("v_mov_b32 %s, 0" % vr(vt + 2))
    a.I("s_mov_b64 exec, 1")
    a.I("buffer_store_dwordx2 %s, %s, s[%d:%d], s%d offen sc1" % (vr(vt, 2), vr(vt + 2), S_WSq, S_WSq + 3, s_off))
    a.I("s_mov_b64 exec, -1")
    a.label(L)


def chain_part(a, timing, kw):
    a.label("L_chain", clear=True)
    a.I("s_load_dwordx8 s[%d:%d], s[0:1], 8" % (S_PTR, S_PTR + 7))
    a.I("s_load_dwordx2 s[%d:%d], s[0:1], 40" % (S_PTR + 8, S_PTR + 9))
    a.I("s_waitcnt lgkmcnt(0)")
    for w in range(1, 4):
        a.I("s_cmp_eq_u32 s%d, %d" % (S_WAVE, w))
        a.I("s_cbranch_scc1 L_wave%d" % w)
    for w in range(4):
        a.label("L_wave%d" % w, clear=True)
        if w == 0: stamp(a, 2, V_MEM)
        VV, VI, VH = 224, 200, 224

        def h1(a):
            verify_issue(a, VV)
            init_issue(a, w, VI)

        def h4(a):
            if w == 0: stamp(a, 9, 240)

        def h8(a):
            if w == 0: stamp(a, 10, 240)

        def h5(a):
            verify(a, VV, S_RETRY, "L_slow", pre=True)
            Ls_ = a.newlabel("inis")
            Le_ = a.newlabel("inie")
            a.I("s_cmp_lg_u32 s%d, 0" % S_MODE)
            a.I("s_cbranch_scc1 %s" % Ls_)
            init_stores(a, w, VI, "")
            a.I("s_branch %s" % Le_)
            a.label(Ls_)
            init_stores(a, w, VI, "sc1")
            a.label(Le_)

        def h9(a):
            a.I("s_barrier")
            if w == 2:
                a.I("s_mov_b64 exec, 1")
                a.I("v_mov_b32 v%d, 1" % VI)
                a.I("v_mov_b32 v%d, %d" % (VI + 1, D_CHAIN))
                a.I("buffer_atomic_add v%d, v%d, s[%d:%d], 0 offen" % (VI, VI + 1, S_DBG, S_DBG + 3))
                a.I("s_mov_b64 exec, -1")
            setup_scalar(a, w, True)

        def h11(a):
            horizon_issue(a, VH)

        def h12(a):
            if w == 0: stamp(a, 11, 240)
            a.I("s_mov_b32 s%d, 0" % (S_T0 + 5))
            horizon_refresh(a, S_T0 + 5, "L_abort", vb=VH, pre=True)
            k0_dma(a, w)
            a.I("v_mov_b32 v%d, %d" % (VH + 8, D_CHAIN))
            a.I("buffer_load_dword v%d, v%d, s[%d:%d], 0 offen sc1" % (VH + 9, VH + 8, S_DBG, S_DBG + 3))
            if OPT.get("warm", 1):
                warm_handoff(a, w, 228)
            if OPT.get("wcode", 1):
                Lp0 = a.newlabel("pc")
                a.I("s_getpc_b64 s[%d:%d]" % (S_T0 + 2, S_T0 + 3))
                a.label(Lp0)
                a.I("s_add_u32 s%d, s%d, L_step_w%df-%s" % (S_T0 + 2, S_T0 + 2, w, Lp0))
                a.I("s_addc_u32 s%d, s%d, 0" % (S_T0 + 3, S_T0 + 3))
                for i in range(4):
                    a.I("global_load_dwordx4 v[228:231], %s, s[%d:%d] offset:%d" % (vr(V_L16), S_T0 + 2, S_T0 + 3, i * 1024))
        load_weights(a, w, OPT.get('wflags', ''), hooks={1: h1, 4: h4, 5: h5, 8: h8, 9: h9, 10: h11, 12: h12, "n12": 3 + (16 if OPT.get("warm", 1) else 0) + (4 if OPT.get("wcode", 1) else 0)})
        if w == 0: stamp(a, 3, V_MEM)
        if w == 0: dbgmax(a, 52, V_MEM)
        setup_regs(a, w)
        if w == 0: stamp(a, 4, V_MEM)
        lp = a.newlabel("arr")
        lq = a.newlabel("arq")
        a.I("s_mov_b32 s%d, %d" % (S_RETRY, RETRY_MAX))
        a.I("s_waitcnt vmcnt(0)")
        a.I("s_branch %s" % lq)
        a.label(lp)
        a.I("buffer_load_dword v%d, v%d, s[%d:%d], 0 offen sc1" % (VH + 9, VH + 8, S_DBG, S_DBG + 3))
        a.I("s_sub_u32 s%d, s%d, 1" % (S_RETRY, S_RETRY))
        a.I("s_cmp_eq_u32 s%d, 0" % S_RETRY)
        a.I("s_cbranch_scc1 L_abort")
        a.I("s_waitcnt vmcnt(0)")
        a.label(lq)
        a.I("v_cmp_ne_u32 vcc, 32, v%d" % (VH + 9))
        a.I("s_cbranch_vccnz %s" % lp)
        a.I("s_waitcnt vmcnt(0)")
        a.I("s_barrier")
        if w == 0: stamp(a, 5, V_MEM)
        if w == 0: dbgmax(a, 40, V_MEM)
        a.I("s_cmp_lg_u32 s%d, 0" % S_MODE)
        a.I("s_cbranch_scc1 L_cslow%d" % w)
        chain_loop(a, w, timing=timing, exp="latepois," + OPT.get("exp", ""), fused=True, tag="f", **kw)
        if w == 0: stamp(a, 6, V_MEM)
        if w == 0: dbgmax(a, 44, V_MEM)
        a.I("s_endpgm")
    for w in range(4):
        a.label("L_cslow%d" % w, clear=True)
        if OPT.get("noslow"):
            a.I("s_endpgm")
            continue
        chain_loop(a, w, st_flags="sc1", timing=False, exp="latepois", fused=True, tag="s", looptime=False,
                   **{k: v for k, v in kw.items() if k != "looptime"})
        a.I("s_endpgm")


def worker_part(a):
    a.label("L_worker", clear=True)
    lane = 1
    sW = S_WAVE
    a.I("s_sub_u32 s%d, s%d, 1" % (S_FI, S_XCC))
    a.I("s_lshl_b32 s%d, s%d, 5" % (S_FI, S_FI))
    a.I("s_add_u32 s%d, s%d, s%d" % (S_FI, S_FI, S_TK))
    a.I("v_and_b32 v%d, 63, v0" % lane)
    a.I("s_load_dwordx2 s[22:23], s[0:1], %d" % K_X)
    a.I("s_load_dwordx4 s[24:27], s[0:1], %d" % K_C)
    a.I("s_load_dwordx4 s[28:31], s[0:1], %d" % K_WQ)
    a.I("s_load_dwordx2 s[36:37], s[0:1], %d" % K_WV)
    a.I("s_waitcnt lgkmcnt(0)")
    a.I("s_cmp_lt_u32 s%d, 192" % S_FI)
    a.I("s_cbranch_scc1 L_front")
    a.I("s_sub_u32 s38, s%d, 192" % S_FI)
    LV = 112
    srd(a, 4, 22, 2048 * 1024)
    a.I("s_lshl_b32 s39, s38, 5")
    R0 = pre.ln_stats(a, 4, 39, sW, lane, LV, 0)
    a.I("s_add_u32 s39, s39, 1024")
    R1 = pre.ln_stats(a, 4, 39, sW, lane, LV + 0, 1) if False else None
    pre.mod_role(a, S_WS, 12, 40, 38, sW, lane, 24, 26, 140000)
    verify(a, 16, 90, "L_slow")
    a.I("s_lshl_b32 s90, s38, 3")
    a.I("s_add_u32 s90, s90, 0x%x" % FL_MOD)
    set_flag(a, S_WS, 90, "1", 16, sW)
    stamp(a, 2, 16)
    pre.ln_stats2(a, *R0)
    Lx = a.newlabel("lnw")
    a.I("s_cmp_lg_u32 s%d, 0" % sW)
    a.I("s_cbranch_scc1 %s" % Lx)
    a.I("s_mov_b32 s90, 0x%x" % FL_MOD)
    a.I("v_lshlrev_b32 v16, 3, v%d" % lane)
    a.I("v_mov_b32 v17, 1")
    a.I("v_cmp_gt_u32 vcc, 16, v%d" % lane)
    a.I("v_cndmask_b32 v17, 0, v17, vcc")
    poll_lanes(a, S_WS, 90, 16, 17, 18, 91, "L_abort")
    a.label(Lx)
    a.I("s_barrier")
    pre.mod_to_lds(a, S_WS, sW, lane, 144000, 16)
    for it in range(2):
        if it == 1:
            R0 = pre.ln_stats(a, 4, 39, sW, lane, LV, 0)
            a.I("s_waitcnt vmcnt(0)")
            pre.ln_stats2(a, *R0)
        pre.ln_apply(a, S_WS, R0[0], R0[1], R0[2], 144000, 20)
        a.I("s_waitcnt vmcnt(0)")
        a.I("s_barrier")
        a.I("s_lshl_b32 s90, s38, 3")
        a.I("s_add_u32 s90, s90, 0x%x" % (FL_H + it * 256))
        set_flag(a, S_WS, 90, "1", 16, sW)
    stamp(a, 3, 16)
    a.I("s_cmp_ge_u32 s38, 16")
    a.I("s_cbranch_scc1 L_tail")
    a.I("s_add_u32 s38, s38, 32")
    pre.mod_role(a, S_WS, 12, 40, 38, sW, lane, 24, 26, 140000)
    a.I("s_lshl_b32 s90, s38, 3")
    a.I("s_add_u32 s90, s90, 0x%x" % FL_MOD)
    set_flag(a, S_WS, 90, "1", 16, sW)
    a.I("s_branch L_tail")
    a.label("L_front", clear=True)
    a.I("s_and_b32 s38, s%d, 1" % S_FI)
    a.I("s_lshr_b32 s39, s%d, 1" % S_FI)
    a.I("s_and_b32 s40, s39, 31")
    a.I("s_lshr_b32 s41, s39, 5")
    a.I("s_add_u32 s41, s41, 1")
    a.I("s_cmp_eq_u32 s41, 3")
    a.I("s_cselect_b32 s41, 0, s41")
    a.I("s_cmp_eq_u32 s41, 1")
    a.I("s_cselect_b32 s28, s30, s28")
    a.I("s_cselect_b32 s29, s31, s29")
    a.I("s_cmp_eq_u32 s41, 2")
    a.I("s_cselect_b32 s28, s36, s28")
    a.I("s_cselect_b32 s29, s37, s29")
    a.I("s_lshl_b32 s42, s40, 6")
    a.I("s_lshl_b32 s43, s41, 1")
    a.I("s_add_u32 s43, s43, s38")
    a.I("s_lshl_b32 s43, s43, 3")
    a.I("s_add_u32 s42, s42, s43")
    a.I("s_add_u32 s42, s42, 0x%x" % FL_PROG)

    def wait_h(a, nflags):
        Lh = a.newlabel("bh")
        a.I("s_cmp_lg_u32 s%d, 0" % sW)
        a.I("s_cbranch_scc1 %s" % Lh)
        a.I("s_mov_b32 s90, 0x%x" % FL_H)
        a.I("v_lshlrev_b32 v2, 3, v%d" % lane)
        a.I("v_mov_b32 v3, 1")
        if nflags < 64:
            a.I("v_cmp_gt_u32 vcc, %d, v%d" % (nflags, lane))
            a.I("v_cndmask_b32 v3, 0, v3, vcc")
        poll_lanes(a, S_WS, 90, 2, 3, 4, 91, "L_abort", sleep=1)
        a.label(Lh)

    def before_h(a):
        verify(a, 16, 90, "L_slow")
        stamp(a, 4, 8)
        wait_h(a, 32)
        stamp(a, 5, 8)

    def stores_done(a, s_it):
        set_flag(a, S_WS, 42, "s%d" % s_it, 2, sW)

    def mid(a, s_it):
        L = a.newlabel("mid")
        a.I("s_cmp_lg_u32 s%d, 13" % s_it)
        a.I("s_cbranch_scc1 %s" % L)
        wait_h(a, 64)
        a.I("s_barrier")
        a.label(L)
    def before_w(a):
        if OPT.get("latew"):
            verify(a, 16, 90, "L_slow")
            wait_h(a, 32)
            a.I("s_barrier")
        if OPT.get("pfwo"):
            srd(a, 4, 24, 0x400000) if False else None
    front.front_role(a, S_WS, 12, 41, 40, 38, sW, lane, 28, hooks={"before_w": before_w, "before_h": before_h, "stores_done": stores_done, "mid": mid})
    stamp(a, 6, 16)
    a.label("L_tail", clear=True)
    a.I("s_barrier")
    a.I("s_load_dwordx2 s[22:23], s[0:1], %d" % K_X)
    a.I("s_load_dwordx2 s[24:25], s[0:1], %d" % K_WO)
    a.I("s_load_dwordx4 s[28:31], s[0:1], %d" % K_W1)
    a.I("s_load_dwordx2 s[26:27], s[0:1], %d" % K_OUT)
    a.I("v_and_b32 %s, 63, v0" % vr(tail.V_LANE))
    a.I("s_mov_b32 s68, s%d" % S_TK)
    a.I("s_waitcnt lgkmcnt(0)")
    for w in range(1, 4):
        a.I("s_cmp_eq_u32 s%d, %d" % (sW, w))
        a.I("s_cbranch_scc1 L_tw%d" % w)
    hk = tail.fused_hooks(S_WS, 68, "L_abort")
    if STAMPS:
        hk["stamp"] = lambda a, w, slot: stamp(a, slot, 150) if w == 0 else None
    for w in range(4):
        a.label("L_tw%d" % w, clear=True)
        tail.tail_setup(a, w, S_WS, 12, 68, S_XCC, 24, 28, 30)
        if w == 0: stamp(a, 7, 150)
        a.I("s_sub_u32 s%d, s%d, 1" % (tail.S_SEG, S_XCC))
        a.I("s_mov_b32 s%d, 0" % tail.S_IT)
        a.I("s_cmp_lg_u32 s%d, 0" % S_MODE)
        a.I("s_cbranch_scc1 L_tslow%d" % w)
        tail.tail_loop(a, w, S_WS, 12, 4, 68, 22, 26, 7, st=OPT.get("tst", "nt"), abort="L_abort", hooks=hk, tag="f")
        if w == 0 and OPT.get("wb"):
            a.I("buffer_wbl2 sc1")
            a.I("s_waitcnt vmcnt(0)")
        if w == 0: stamp(a, 8, 150)
        if w == 0: dbgmax(a, 48, 150)
        a.I("s_endpgm")
    for w in range(4):
        a.label("L_tslow%d" % w, clear=True)
        if OPT.get("noslow"):
            a.I("s_endpgm")
            continue
        tail.tail_loop(a, w, S_WS, 12, 4, 68, 22, 26, 7, st="sc1", abort="L_abort", hooks=hk, tag="s")
        a.I("s_endpgm")


HEADER = """
adaLN + recurrent-memory attention + ReLU FFN as ONE persistent launch (256 workgroups x 4 waves, one per CU).
Kernarg (8-byte pointers): 0 x, 8 mem0, 16 Wq, 24 Wk, 32 Wv, 40 Wo, 48 seg_len, 56 B_x, 64 w1, 72 w2, 80 c, 88 w_mod,
  96 out, 104 debug, 112 ws.  Shapes are the fixed ones of the problem.
Roles (a workgroup takes a ticket of the XCD it runs on; groups = XCDs when they hold 32 workgroups each, otherwise
  a fallback with a global ticket and write-through hand-offs runs the same code):
  chain  group 0, one head per workgroup: the 63 sequential memory steps.  Wq/Wk/Wv live in registers, Wo in LDS;
         the 8 memory rows use both halves of the 2:4 sparse MFMA (K split over the row pairs).  Per step the
         Wo partials are reduce-scattered and the new memory all-gathered through L2 (tag / poison validated data).
  aux    mod = silu(c) @ w_mod, h = LN(x)(1+ca)+sa in MFMA operand order.
  front  Q/K/V of all tokens (128 features x half of the segments per workgroup).
  tail   groups 1..7, one segment at a time: token attention + Wo partial, reduce + LN, FFN slice, reduce + output.
Flags in ws carry a per-launch nonce drawn through d_debug.  The short s_nop runs in front of the chain's polls are the
  back-off of those spin-waits (a sample taken before the data can be visible only adds L2 traffic).
Generated by a hand-written generator (gen/*.py).
"""


def build(timing=False, **kw):
    a = Asm()
    a.raw("; @launch grid=(256,1,1) block=(256,1,1) lds=163840")
    for l in HEADER.strip("\n").split("\n"):
        a.raw("; " + l)
    a.raw('.amdgcn_target "amdgcn-amd-amdhsa--gfx950"')
    a.raw(".text")
    a.raw(".globl %s" % NAME)
    a.raw(".p2align 8")
    a.raw(".type %s,@function" % NAME)
    a.label(NAME)
    entry(a)
    a.I("s_cmp_ge_u32 s%d, 32" % S_TK)
    a.I("s_cbranch_scc1 L_overflow")
    a.label("L_dispatch")
    a.I("s_cmp_lg_u32 s%d, 0" % S_XCC)
    a.I("s_cbranch_scc1 L_far_worker")
    a.I("s_branch L_chain")
    a.label("L_far_worker")
    a.I("s_branch L_hop_worker")
    a.label("L_overflow", clear=True)
    verify(a, 16, 90, "L_slow")
    a.I("s_branch L_abort")
    a.label("L_slow", clear=True)
    a.I("s_waitcnt vmcnt(0) lgkmcnt(0)")
    a.I("s_barrier")
    a.I("s_cmp_lg_u32 s%d, 0" % S_WAVE)
    a.I("s_cbranch_scc1 L_sl_wait")
    a.I("s_mov_b64 exec, 1")
    a.I("v_mov_b32 v2, 1")
    a.I("v_mov_b32 v3, %d" % D_GTK)
    a.I("buffer_atomic_add v2, v3, s[%d:%d], 0 offen sc0" % (S_DBG, S_DBG + 3))
    a.I("v_mov_b32 v3, %d" % L_BCAST)
    a.I("s_waitcnt vmcnt(0)")
    a.I("ds_write_b32 v3, v2")
    a.I("s_mov_b64 exec, -1")
    a.label("L_sl_wait")
    a.I("s_waitcnt lgkmcnt(0)")
    a.I("s_barrier")
    a.I("v_mov_b32 v3, %d" % L_BCAST)
    a.I("ds_read_b32 v2, v3")
    a.I("s_waitcnt lgkmcnt(0)")
    a.I("v_readfirstlane_b32 s%d, v2" % S_TK)
    a.I("s_barrier")
    a.I("s_lshr_b32 s%d, s%d, 5" % (S_XCC, S_TK))
    a.I("s_and_b32 s%d, s%d, 31" % (S_TK, S_TK))
    a.I("s_mov_b32 s%d, 1" % S_MODE)
    a.I("v_mbcnt_lo_u32_b32 v1, -1, 0")
    a.I("v_mbcnt_hi_u32_b32 v1, -1, v1")
    a.I("s_lshl_b32 s%d, s%d, 6" % (S_T0, S_WAVE))
    a.I("v_add_u32 v0, s%d, v1" % S_T0)
    a.I("v_and_b32 %s, 63, v0" % vr(V_T))
    a.I("s_branch L_dispatch")
    a.label("L_exit")
    a.I("s_endpgm")
    a.label("L_abort0", clear=True)
    chain_part(a, timing, kw)
    a.label("L_abort", clear=True)
    a.I("s_mov_b64 exec, 1")
    a.I("v_mov_b32 v2, 0x7777")
    a.I("v_mov_b32 v3, 252")
    a.I("buffer_store_dword v2, v3, s[%d:%d], 0 offen" % (S_DBG, S_DBG + 3))
    a.I("s_waitcnt vmcnt(0)")
    a.I("s_endpgm")
    a.label("L_hop_worker")
    a.I("s_branch L_worker")
    worker_part(a)
    txt = a.text() + kd(NAME)
    txt = "\n".join(l.strip() if l.startswith("    ") else l for l in txt.split("\n"))
    return txt, a


if __name__ == "__main__":
    kw = dict(gap=36, rgap=36, delay=32, rdelay=48)
    timing = False
    for arg in sys.argv[2:]:
        k, v = arg.split("=")
        if k == "timing":
            timing = bool(int(v))
        elif k == "force_slow":
            FORCE_SLOW = bool(int(v))
        elif k == "hop":
            chain.FINE["hop"] = True
        elif k == "fine":
            chain.FINE["on"] = True
            chain.FINE["skip"] = int(v)
        elif k in ("exp", "tst"):
            OPT[k] = v
        elif k in ("wflags", "latew", "pfwo", "rot", "touch", "noslow", "pf", "wb", "warm", "wcode"):
            OPT[k] = v if k == "wflags" else int(v)
        elif k == "dbgt":
            DBGT = bool(int(v))
        elif k == "stamps":
            STAMPS = bool(int(v))
        else:
            kw[k] = int(v) if v.lstrip("-").isdigit() else v
    txt, a = build(timing=timing, **kw)
    open(sys.argv[1], "w").write(txt)
    print("instructions", a.n_inst, "bytes", len(txt), chain.FINE["names"])
```

```python
from asmlib import Asm, vr, ar, sr

WS_MOD = 0x00000000
WS_FLAGS = 0x00010000
FL_MOD = WS_FLAGS + 0x0000
FL_H = WS_FLAGS + 0x0200
FL_PROG = WS_FLAGS + 0x0400
FL_TAIL = WS_FLAGS + 0x1000
S_NONCE = 46
WS_MEM = 0x00100000
WS_PART = 0x00200000
WS_H = 0x00400000
WS_KT = 0x00800000
WS_VT = 0x01800000
WS_QT = 0x02800000
WS_KM = 0x03800000
WS_VM = 0x03C00000
WS_TAIL = 0x04000000
WS_SIZE = 0x10000000
OOB = 0x40000000

L_WO = 0
L_K = 131072
L_M = 147456
L_MB = L_M + 4096
L_O = L_MB + 8192
O_OFF = L_O - L_M
L_SEL = L_O + 512
L_BC = L_O + 2048 + 512

S_WS = 8
S_W = 12
S_DBG = 16
S_WAVE = 20
S_RANK = 21
S_STEP = 22
S_MEM = 23
S_MEMHI = 24
S_PW0 = 25
S_PW1 = 26
S_PR = 27
S_PRHI = 28
S_KT = 29
S_VT = 30
S_KM = 31
S_HI = 32
S_C = 34
S_NC = 35
S_RETRY = 36
S_VM = 37
S_T0 = 38
S_POIS = 46
S_POISHI = 47
S_PWB = 96
S_PRB = 97
S_RING = 98
S_ONE = 100
S_SEL = 99
S_TAG = 96
S_HZ = 97
S_PG = 98
S_CP = 47
S_PEND = 42
S_KB = 44
S_PTR = 48
S_TM = 64

V_VW = 0
V_MEM = 128
V_ACC = 160
V_KT = 184
V_S = 216
V_VT = 228
V_PX = 236
V_IDX = 246
V_L16 = 247
V_L16W = 248
V_K = 249
V_PS = 250
V_MS = 251
V_MW = 252
V_MR = 253
V_KM = 254
V_T = 255
V_Z = V_PX + 8
V_MB = V_PX + 9

RETRY_MAX = 200000
ROT = True


def wacc(t):
    return V_ACC + 4 * t if t < 6 else V_VT + 4 * (t - 6)


FINE = {"on": False, "n": 0, "names": []}


def hop(a, idx):
    if FINE.get("hop"):
        a.I("s_memtime s[%d:%d]" % (64 + 2 * idx, 65 + 2 * idx))


def fine(a, name):
    FINE["k"] = FINE.get("k", 0) + 1
    if not FINE["on"] or FINE["n"] >= 16 or FINE["k"] <= FINE.get("skip", 0):
        return
    n = FINE["n"]
    a.I("s_memtime s[%d:%d]" % (64 + 2 * n, 65 + 2 * n))
    FINE["names"].append(name)
    FINE["n"] = n + 1


class Timer:
    def __init__(self, a, on, trace=None):
        self.a = a
        self.on = on
        self.trace = trace

    def start(self):
        if not self.on:
            return
        a = self.a
        for i in range(16):
            a.I("s_mov_b32 s%d, 0" % (S_TM + 4 + i))
        a.I("s_memtime s[%d:%d]" % (S_TM, S_TM + 1))
        a.I("s_waitcnt lgkmcnt(0)")

    def stamp(self, idx):
        if self.trace is not None:
            a = self.a
            l = a.newlabel("tr")
            a.I("s_cmp_lg_u32 s%d, %d" % (S_STEP, self.trace + (1 if idx in (14, 13, 7, 8) else 0)))
            a.I("s_cbranch_scc1 %s" % l)
            a.I("s_memrealtime s[%d:%d]" % (S_TM + 2, S_TM + 3))
            a.I("s_waitcnt lgkmcnt(0)")
            a.I("s_mov_b32 s%d, s%d" % (S_TM + 4 + idx, S_TM + 2))
            a.label(l)
            return
        if not self.on:
            return
        a = self.a
        a.I("s_memtime s[%d:%d]" % (S_TM + 2, S_TM + 3))
        a.I("s_waitcnt lgkmcnt(0)")
        a.I("s_sub_u32 s%d, s%d, s%d" % (S_T0 + 7, S_TM + 2, S_TM))
        a.I("s_add_u32 s%d, s%d, s%d" % (S_TM + 4 + idx, S_TM + 4 + idx, S_T0 + 7))
        a.I("s_mov_b32 s%d, s%d" % (S_TM, S_TM + 2))


def lane_consts(a, w):
    T = V_MEM
    lane = V_T
    a.I("v_lshlrev_b32 %s, 4, %s" % (vr(V_L16), vr(lane)))
    a.I("v_add_u32 %s, %d, %s" % (vr(V_L16W), L_WO + w * 32768, vr(V_L16)))
    a.I("v_add_u32 %s, %d, %s" % (vr(V_K), L_K, vr(V_L16)))
    a.I("v_and_b32 %s, 15, %s" % (vr(T), vr(lane)))
    a.I("v_lshrrev_b32 %s, 4, %s" % (vr(T + 1), vr(lane)))
    a.I("v_mov_b32 %s, 0x4444" % vr(V_IDX))
    a.I("v_mov_b32 %s, 0xeeee" % vr(T + 2))
    a.I("v_and_b32 %s, 2, %s" % (vr(T + 3), vr(T)))
    a.I("v_cmp_ne_u32 vcc, 0, %s" % vr(T + 3))
    a.I("v_cndmask_b32 %s, %s, %s, vcc" % (vr(V_IDX), vr(V_IDX), vr(T + 2)))
    a.I("v_lshlrev_b32 %s, 13, %s" % (vr(T + 2), vr(T + 1)))
    a.I("v_lshrrev_b32 %s, 2, %s" % (vr(T + 3), vr(T)))
    a.I("v_lshl_add_u32 %s, %s, 11, %s" % (vr(T + 2), vr(T + 3), vr(T + 2)))
    a.I("v_mov_b32 %s, s%d" % (vr(T + 3), S_RANK))
    a.I("v_lshl_add_u32 %s, %s, 6, %s" % (vr(T + 2), vr(T + 3), vr(T + 2)))
    a.I("v_and_b32 %s, 3, %s" % (vr(T + 3), vr(T)))
    a.I("v_lshl_add_u32 %s, %s, 4, %s" % (vr(V_PS), vr(T + 3), vr(T + 2)))
    a.I("v_lshrrev_b32 %s, 2, %s" % (vr(T + 2), vr(T)))
    a.I("v_xor_b32 %s, %s, %s" % (vr(T + 2), vr(T + 2), vr(T + 1)))
    a.I("v_lshlrev_b32 %s, 3, %s" % (vr(T + 2), vr(T + 2)))
    a.I("v_lshl_add_u32 %s, %s, 5, %s" % (vr(T + 2), vr(T), vr(T + 2)))
    a.I("v_add_u32 %s, %d, %s" % (vr(V_MW), L_M + 1024 * w, vr(T + 2)))
    a.I("v_lshrrev_b32 %s, 2, %s" % (vr(T + 2), vr(T)))
    a.I("v_lshl_add_u32 %s, %s, 2, %s" % (vr(T + 2), vr(T + 1), vr(T + 2)))
    a.I("v_and_b32 %s, 3, %s" % (vr(T + 3), vr(T)))
    a.I("v_xor_b32 %s, %s, %s" % (vr(T + 3), vr(T + 3), vr(T + 1)))
    a.I("v_lshlrev_b32 %s, 3, %s" % (vr(T + 3), vr(T + 3)))
    a.I("v_lshl_add_u32 %s, %s, 5, %s" % (vr(T + 2), vr(T + 2), vr(T + 3)))
    a.I("v_add_u32 %s, %d, %s" % (vr(V_MR), L_M, vr(T + 2)))
    a.I("v_lshrrev_b32 %s, 2, %s" % (vr(T + 2), vr(T)))
    a.I("v_and_b32 %s, 1, %s" % (vr(T + 3), vr(T)))
    a.I("v_lshl_add_u32 %s, %s, 1, %s" % (vr(T + 2), vr(T + 2), vr(T + 3)))
    a.I("v_lshl_add_u32 %s, %s, 3, %s" % (vr(T + 2), vr(T + 1), vr(T + 2)))
    a.I("v_lshlrev_b32 %s, 4, %s" % (vr(T + 2), vr(T + 2)))
    a.I("v_mov_b32 %s, 0x%x" % (vr(T + 4), OOB))
    a.I("v_and_b32 %s, 2, %s" % (vr(T + 3), vr(T)))
    a.I("v_cmp_ne_u32 vcc, 0, %s" % vr(T + 3))
    a.I("v_cndmask_b32 %s, %s, %s, vcc" % (vr(V_KM), vr(T + 2), vr(T + 4)))
    s0, s1, s2 = S_T0, S_T0 + 1, S_T0 + 2
    a.I("s_lshr_b32 s%d, s%d, 3" % (s0, S_RANK))
    a.I("s_bfe_u32 s%d, s%d, 0x10002" % (s1, S_RANK))
    a.I("s_lshl_b32 s%d, s%d, 2" % (s1, s1))
    a.I("s_add_u32 s%d, s%d, s%d" % (s0, s0, s1))
    a.I("s_lshl_b32 s%d, s%d, 10" % (s0, s0))
    a.I("s_and_b32 s%d, s%d, 3" % (s1, S_RANK))
    a.I("s_lshl_b32 s%d, s%d, 6" % (s1, s1))
    a.I("s_add_u32 s%d, s%d, s%d" % (s0, s0, s1))
    a.I("s_add_u32 s%d, s%d, %d" % (s0, s0, w * 256))
    a.I("v_and_b32 %s, 3, %s" % (vr(T + 2), vr(T)))
    a.I("v_lshlrev_b32 %s, 4, %s" % (vr(T + 2), vr(T + 2)))
    a.I("v_lshrrev_b32 %s, 2, %s" % (vr(T + 3), vr(T)))
    a.I("v_lshl_add_u32 %s, %s, 3, %s" % (vr(T + 2), vr(T + 3), vr(T + 2)))
    a.I("v_lshrrev_b32 %s, 1, %s" % (vr(T + 3), vr(T + 1)))
    a.I("v_lshl_add_u32 %s, %s, 2, %s" % (vr(T + 2), vr(T + 3), vr(T + 2)))
    a.I("v_add_u32 %s, s%d, %s" % (vr(T + 2), s0, vr(T + 2)))
    a.I("v_and_b32 %s, 24, %s" % (vr(T + 3), vr(lane)))
    a.I("v_mov_b32 %s, 0x%x" % (vr(V_MS), OOB))
    a.I("v_cmp_eq_u32 vcc, 0, %s" % vr(T + 3))
    a.I("v_cndmask_b32 %s, %s, %s, vcc" % (vr(V_MS), vr(V_MS), vr(T + 2)))


def sel_addr(a, dst, tmp):
    a.I("v_lshrrev_b32 %s, 9, %s" % (vr(tmp), vr(V_L16)))
    a.I("v_mul_u32_u24 %s, 512, %s" % (vr(tmp), vr(tmp)))
    a.I("v_add3_u32 %s, %s, %s, s%d" % (vr(dst), vr(V_L16), vr(tmp), S_SEL))


def init_issue(a, w, T):
    lane = V_T
    s0, s1 = S_T0 + 1, S_T0 + 2
    a.I("v_and_b32 %s, 15, %s" % (vr(T), vr(lane)))
    a.I("v_lshrrev_b32 %s, 4, %s" % (vr(T + 1), vr(lane)))
    a.I("s_and_b32 s%d, s%d, 3" % (s0, S_RANK))
    a.I("s_lshl_b32 s%d, s%d, 11" % (s0, s0))
    a.I("s_lshr_b32 s%d, s%d, 2" % (s1, S_RANK))
    a.I("s_lshl_b32 s%d, s%d, 7" % (s1, s1))
    a.I("s_add_u32 s%d, s%d, s%d" % (s0, s0, s1))
    a.I("s_add_u32 s%d, s%d, %d" % (s0, s0, w * 8))
    a.I("v_and_b32 %s, 1, %s" % (vr(T + 2), vr(T)))
    a.I("v_lshlrev_b32 %s, 10, %s" % (vr(T + 2), vr(T + 2)))
    a.I("v_bfe_u32 %s, %s, 1, 2" % (vr(T + 3), vr(T)))
    a.I("v_lshl_add_u32 %s, %s, 5, %s" % (vr(T + 2), vr(T + 3), vr(T + 2)))
    a.I("v_lshrrev_b32 %s, 1, %s" % (vr(T + 3), vr(T + 1)))
    a.I("v_lshl_add_u32 %s, %s, 2, %s" % (vr(T + 2), vr(T + 3), vr(T + 2)))
    a.I("v_add_u32 %s, s%d, %s" % (vr(T + 2), s0, vr(T + 2)))
    a.I("s_mov_b32 s4, s%d" % (S_PTR + 0))
    a.I("s_mov_b32 s5, s%d" % (S_PTR + 1))
    a.I("s_mov_b32 s6, 8192")
    a.I("s_mov_b32 s7, 0x00020000")
    a.I("buffer_load_dword %s, %s, s[4:7], 0 offen" % (vr(T + 4), vr(T + 2)))


def init_stores(a, w, T, st_flags):
    P = T + 8
    s0 = S_T0 + 1
    a.I("s_mov_b32 s%d, %d" % (S_SEL, L_SEL))
    for i in range(4):
        a.I("v_mov_b32 %s, -1" % vr(P + i))
    a.I("s_mov_b32 s%d, 0x%x" % (s0, WS_MEM))
    a.I("v_min_u32 %s, 0xfffffffe, %s" % (vr(T + 4), vr(T + 4)))
    a.I("buffer_store_dword %s, %s, s[%d:%d], s%d offen %s" % (vr(T + 4), vr(V_MS), S_WS, S_WS + 3, s0, st_flags))
    for i in range(3):
        a.I("s_add_u32 s%d, s%d, 8192" % (s0, s0))
        a.I("buffer_store_dword %s, %s, s[%d:%d], s%d offen %s" % (vr(P), vr(V_MS), S_WS, S_WS + 3, s0, st_flags))
    for ring in range(2):
        a.I("s_lshl_b32 s%d, s%d, 13" % (s0, S_RANK))
        a.I("s_add_u32 s%d, s%d, 0x%x" % (s0, s0, WS_PART + ring * 262144 + w * 2048))
        for m in range(2):
            a.I("buffer_store_dwordx4 %s, %s, s[%d:%d], s%d offen offset:%d %s"
                % (vr(P, 4), vr(V_L16), S_WS, S_WS + 3, s0, m * 1024, st_flags))
    if w == 0:
        a.I("v_and_b32 %s, 1, %s" % (vr(T + 2), vr(T)))
        a.I("v_lshlrev_b32 %s, 4, %s" % (vr(T + 2), vr(T + 2)))
        a.I("v_mov_b32 %s, 0x3f80" % vr(T + 3))
        a.I("v_lshlrev_b32 %s, %s, %s" % (vr(T + 3), vr(T + 2), vr(T + 3)))
        a.I("v_lshrrev_b32 %s, 1, %s" % (vr(T + 2), vr(T)))
        for m in range(4):
            a.I("v_cmp_eq_u32 vcc, %d, %s" % (m, vr(T + 2)))
            a.I("v_cndmask_b32 %s, 0, %s, vcc" % (vr(T + 4 + m), vr(T + 3)))
        sel_addr(a, T + 2, T + 3)
        a.I("ds_write_b128 %s, %s" % (vr(T + 2), vr(T + 4, 4)))


def init_buffers(a, w, st_flags=""):
    T = 200
    init_issue(a, w, T)
    a.I("s_waitcnt vmcnt(0)")
    init_stores(a, w, T, st_flags)


def load_weights(a, w, wflags="", rot=False, hooks=None, consts=True):
    hooks = hooks or {}
    lane = V_T
    T = V_MEM
    VO = V_MEM + 8
    TA = V_MEM + 12
    so = S_T0
    a.I("v_lshrrev_b32 %s, 4, %s" % (vr(T), vr(lane)))
    a.I("v_and_b32 %s, 15, %s" % (vr(T + 1), vr(lane)))
    for b4 in range(2):
        a.I("v_and_b32 %s, 1, %s" % (vr(T + 2), vr(T)))
        a.I("v_add_u32 %s, %d, %s" % (vr(T + 2), 2 * b4 + 4 * (w & 1), vr(T + 2)))
        a.I("v_lshlrev_b32 %s, 1, %s" % (vr(T + 2), vr(T + 2)))
        a.I("v_xor_b32 %s, %s, %s" % (vr(T + 2), vr(T + 2), vr(T + 1)))
        a.I("v_lshlrev_b32 %s, 4, %s" % (vr(T + 2), vr(T + 2)))
        a.I("s_lshl_b32 s%d, s%d, 8" % (so, S_RANK))
        a.I("v_lshl_add_u32 %s, %s, 13, %s" % (vr(T + 3), vr(T), vr(T + 2)))
        a.I("v_add_u32 %s, s%d, %s" % (vr(VO + b4), so, vr(T + 3)))
        a.I("s_lshl_b32 s%d, s%d, 17" % (so, S_RANK))
        a.I("v_lshl_add_u32 %s, %s, 10, %s" % (vr(T + 3), vr(T), vr(T + 2)))
        a.I("v_add_u32 %s, s%d, %s" % (vr(VO + 2 + b4), so, vr(T + 3)))

    def set_srd(ptr, nbytes):
        a.I("s_mov_b32 s%d, s%d" % (S_W, ptr))
        a.I("s_mov_b32 s%d, s%d" % (S_W + 1, ptr + 1))
        a.I("s_mov_b32 s%d, 0x%x" % (S_W + 2, nbytes))

    def dma_qkv(j):
        for i in range(8):
            row = 32 * w + 4 * i
            a.I("s_mov_b32 m0, %d" % (L_WO + j * 32768 + row * 256))
            a.I("s_mov_b32 s%d, 0x%x" % (so, (128 * j + row) * 8192))
            a.I("buffer_load_dwordx4 %s, s[%d:%d], s%d offen %s lds" % (vr(VO + ((i >> 2) & 1)), S_W, S_W + 3, so, wflags))

    def dma_wo(j):
        for i in range(8):
            row = 32 * w + 4 * i
            a.I("s_mov_b32 m0, %d" % (L_WO + j * 32768 + row * 256))
            a.I("s_mov_b32 s%d, 0x%x" % (so, row * 1024 + j * 256))
            a.I("buffer_load_dwordx4 %s, s[%d:%d], s%d offen %s lds" % (vr(VO + 2 + ((i >> 2) & 1)), S_W, S_W + 3, so, wflags))
    ptrs = [S_PTR + 2, S_PTR + 4, S_PTR + 6]
    set_srd(ptrs[0], 0x400000)
    for j in range(4):
        dma_qkv(j)
    if consts:
        lane_consts(a, w)
    gb, r, c = T, T + 1, T + 2
    t4, t5, t7 = T + 3, T + 4, T + 6
    a.I("v_lshrrev_b32 %s, 4, %s" % (vr(gb), vr(lane)))
    a.I("v_bfe_u32 %s, %s, 2, 2" % (vr(r), vr(lane)))
    a.I("v_and_b32 %s, 3, %s" % (vr(c), vr(lane)))
    a.I("v_and_b32 %s, 1, %s" % (vr(t4), vr(gb)))
    a.I("v_lshl_add_u32 %s, %s, 2, %s" % (vr(t7), vr(t4), vr(r)))
    a.I("v_lshlrev_b32 %s, 5, %s" % (vr(t5), vr(t4)))
    a.I("v_lshrrev_b32 %s, 1, %s" % (vr(t4), vr(gb)))
    a.I("v_lshl_add_u32 %s, %s, 2, %s" % (vr(t5), vr(t4), vr(t5)))
    a.I("v_and_b32 %s, 1, %s" % (vr(t4), vr(r)))
    a.I("v_add_u32 %s, %s, %s" % (vr(t5), vr(t4), vr(t5)))
    a.I("v_lshrrev_b32 %s, 1, %s" % (vr(t4), vr(r)))
    a.I("v_lshl_add_u32 %s, %s, 4, %s" % (vr(t5), vr(t4), vr(t5)))
    a.I("v_lshlrev_b32 %s, 8, %s" % (vr(t5), vr(t5)))
    a.I("v_lshrrev_b32 %s, 1, %s" % (vr(t4), vr(c)))
    a.I("v_lshl_add_u32 %s, %s, 4, %s" % (vr(t5), vr(t4), vr(t5)))
    a.I("v_and_b32 %s, 1, %s" % (vr(t4), vr(c)))
    a.I("v_lshl_add_u32 %s, %s, 3, %s" % (vr(t5), vr(t4), vr(t5)))
    for tau in range(2):
        a.I("v_xor_b32 %s, %d, %s" % (vr(t4), 2 * w + tau, vr(t7)))
        a.I("v_lshl_add_u32 %s, %s, 5, %s" % (vr(TA + tau), vr(t4), vr(t5)))
    WA = V_MEM + 20
    for tau in range(8):
        a.I("v_xor_b32 %s, %d, %s" % (vr(t4), tau, vr(t7)))
        a.I("v_lshl_add_u32 %s, %s, 5, %s" % (vr(WA + tau), vr(t4), vr(t5)))
        a.I("v_add_u32 %s, %d, %s" % (vr(WA + tau), L_WO + w * 32768, vr(WA + tau)))

    def tr_qkv(j, dst):
        for tau in range(2):
            a.I("v_add_u32 %s, %d, %s" % (vr(TA + 2 + tau), L_WO + j * 32768, vr(TA + tau)))
        for kappa in (j, 4 + j):
            B = 64 * (kappa >> 2)
            for tau in range(2):
                for q in range(4):
                    off = (B + 8 * (q >> 1) + 2 * (q & 1)) * 256
                    a.I("ds_read_b64_tr_b16 %s, %s offset:%d" % (dst(tau, kappa, q), vr(TA + 2 + tau), off))

    dsts = [
        lambda tau, kappa, q: ar((0 + tau) * 64 + kappa * 8 + 2 * q, 2),
        lambda tau, kappa, q: ar((2 + tau) * 64 + kappa * 8 + 2 * q, 2),
        lambda tau, kappa, q: vr(V_VW + tau * 64 + kappa * 8 + 2 * q, 2),
    ]
    for mi in range(3):
        for j in range(4):
            u = 4 * mi + j
            a.I("s_waitcnt vmcnt(24)")
            a.I("s_barrier")
            tr_qkv(j, dsts[mi])
            a.I("s_waitcnt lgkmcnt(0)")
            a.I("s_barrier")
            if u in hooks:
                hooks[u](a)
            if j == 0:
                set_srd(ptrs[mi + 1] if mi < 2 else S_PTR + 8, 0x400000)
            if mi < 2:
                dma_qkv(j)
            else:
                dma_wo(j)
    ST = V_MEM + 32
    a.I("s_waitcnt vmcnt(8)")
    if 12 in hooks:
        hooks[12](a)
    a.I("s_waitcnt vmcnt(%d)" % hooks.get("n12", 0))
    a.I("s_barrier")
    for xi in range(2):
        for tau in range(8):
            for q in range(4):
                off = (64 * xi + 8 * (q >> 1) + 2 * (q & 1)) * 256
                a.I("ds_read_b64_tr_b16 %s, %s offset:%d" % (vr(ST + tau * 8 + 2 * q, 2), vr(WA + tau), off))
        a.I("s_waitcnt lgkmcnt(0)")
        for tau in range(8):
            for hf in range(2):
                a.I("ds_write_b128 %s, %s offset:%d"
                    % (vr(V_L16W), vr(ST + tau * 8 + 4 * hf, 4), xi * 16384 + tau * 2048 + hf * 1024))
        a.I("s_waitcnt lgkmcnt(0)")


def wo_img_off(tau, xi, hf):
    return xi * 16384 + tau * 2048 + hf * 1024


def weave(a, main, fill, every=1, start=0):
    fill = list(fill)
    for i, m in enumerate(main):
        a.I(m)
        if i >= start:
            for _ in range(every):
                if fill:
                    a.I(fill.pop(0))
    for f in fill:
        a.I(f)


def check_insts(regs, tmp):
    regs = list(regs)
    if len(regs) == 2:
        L = ["v_max_u32 %s, %s, %s" % (vr(tmp), vr(regs[0]), vr(regs[1]))]
        rest = []
    else:
        L = ["v_max3_u32 %s, %s, %s, %s" % (vr(tmp), vr(regs[0]), vr(regs[1]), vr(regs[2]))]
        rest = regs[3:]
    while len(rest) >= 2:
        L.append("v_max3_u32 %s, %s, %s, %s" % (vr(tmp), vr(tmp), vr(rest[0]), vr(rest[1])))
        rest = rest[2:]
    if rest:
        L.append("v_max_u32 %s, %s, %s" % (vr(tmp), vr(tmp), vr(rest[0])))
    L.append("v_cmp_eq_u32 vcc, -1, %s" % vr(tmp))
    return L


def dump(a, w, base, n, slot=0):
    a.nops(12)
    a.I("s_lshl_b32 s%d, s%d, 16" % (S_T0, S_RANK))
    a.I("s_add_u32 s%d, s%d, 0x%x" % (S_T0, S_T0, 0x5000000 + w * 16384 + ((slot * 256) & ~4095)))
    a.I("v_lshrrev_b32 %s, 2, %s" % (vr(V_T), vr(V_L16)))
    for i in range(n):
        a.I("buffer_store_dword %s, %s, s[%d:%d], s%d offen offset:%d" % (vr(base + i), vr(V_T), S_WS, S_WS + 3, S_T0, ((slot + i) * 256) & 4095))
        if ((slot + i + 1) * 256) & 4095 == 0:
            a.I("s_add_u32 s%d, s%d, 4096" % (S_T0, S_T0))
    a.I("s_waitcnt vmcnt(0)")


def horizon_issue(a, vb):
    ws = "s[%d:%d]" % (S_WS, S_WS + 3)
    a.I("buffer_load_dwordx4 %s, %s, %s, s%d offen offset:16 sc1" % (vr(vb, 4), vr(V_Z), ws, S_PG))
    a.I("buffer_load_dwordx4 %s, %s, %s, s%d offen offset:32 sc1" % (vr(vb + 4, 4), vr(V_Z), ws, S_PG))


def horizon_eval(a, vb):
    for i in range(4):
        a.I("v_cmp_eq_u32 vcc, s%d, %s" % (S_NONCE, vr(vb + 2 * i + 1)))
        a.I("v_cndmask_b32 %s, 0, %s, vcc" % (vr(vb + 2 * i), vr(vb + 2 * i)))
    a.I("v_min_u32 %s, %s, %s" % (vr(vb), vr(vb), vr(vb + 4)))
    a.I("v_min_u32 %s, %s, %s" % (vr(vb + 1), vr(vb + 2), vr(vb + 6)))
    a.I("v_lshlrev_b32 %s, 1, %s" % (vr(vb), vr(vb)))
    a.I("v_lshl_add_u32 %s, %s, 1, 1" % (vr(vb + 1), vr(vb + 1)))
    a.I("v_min_u32 %s, %s, %s" % (vr(vb), vr(vb), vr(vb + 1)))
    a.I("v_readfirstlane_b32 s%d, %s" % (S_HZ, vr(vb)))


def horizon_refresh(a, s_need, abort, vb=None, pre=False):
    vb = V_S if vb is None else vb
    Lq = a.newlabel("hq")
    Lx = a.newlabel("hx")
    Le = a.newlabel("he")
    a.I("s_cmp_ge_u32 s%d, 64" % s_need)
    a.I("s_cbranch_scc1 %s" % Lx)
    a.I("s_mov_b32 s%d, %d" % (S_RETRY, RETRY_MAX))
    if pre:
        a.I("s_branch %s" % Le)
    a.label(Lq)
    horizon_issue(a, vb)
    a.I("s_sub_u32 s%d, s%d, 1" % (S_RETRY, S_RETRY))
    a.I("s_cmp_eq_u32 s%d, 0" % S_RETRY)
    a.I("s_cbranch_scc1 %s" % abort)
    a.I("s_waitcnt vmcnt(0)")
    a.label(Le)
    horizon_eval(a, vb)
    a.I("s_cmp_lt_u32 s%d, s%d" % (s_need, S_HZ))
    a.I("s_cbranch_scc0 %s" % Lq)
    a.label(Lx)


def retry_block(a, label, target, abort):
    a.label(label)
    a.I("s_sub_u32 s%d, s%d, 1" % (S_RETRY, S_RETRY))
    a.I("s_cmp_lg_u32 s%d, 0" % S_RETRY)
    a.I("s_cbranch_scc1 %s" % target)
    a.I("s_branch %s" % abort)


def chain_loop(a, w, st_flags="", timing=False, abort="L_abort", stop_after=None, dbg=None,
               delay=0, exp="", rdelay=0, hooks=None, kvflags="sc1 nt", gap=24, rgap=24, trace=None, looptime=True, fused=False, nsets=2, rsets=2, tag="", solo=0):
    tm = Timer(a, timing, trace)
    ws = "s[%d:%d]" % (S_WS, S_WS + 3)
    MEM, ACC, KT, S, VT, PX = V_MEM, V_ACC, V_KT, V_S, V_VT, V_PX
    q = [ACC, ACC + 8]
    k = [ACC + 4, ACC + 12]
    v = [ACC + 16, ACC + 20]
    L_step = "L_step_w%d%s" % (w, tag)
    L_done = "L_done_w%d%s" % (w, tag)
    ool = []
    cool = []
    hzl = []
    hze = []

    def smf(acc, A, B):
        return "v_smfmac_f32_16x16x64_bf16 %s, %s, %s, %s" % (vr(acc, 4), A, B, vr(V_IDX))

    def mem_load(kap):
        return ("buffer_load_dwordx4 %s, %s, %s, s%d offen offset:%d sc1"
                % (vr(MEM + 4 * kap, 4), vr(V_L16), ws, S_MEM if kap < 4 else S_MEMHI, (kap & 3) * 1024))

    def qkw(mat, tau, kap):
        return ar((mat * 2 + tau) * 64 + kap * 8, 8)

    def chunk_check(kap):
        return ["v_max_u32 %s, %s, %s" % (vr(V_T), vr(MEM + 4 * kap), vr(MEM + 4 * kap + 2)),
                "v_cmp_eq_u32 vcc, -1, %s" % vr(V_T)]

    def emit_check(kap):
        lr = a.newlabel("cr%d" % kap)
        lb = a.newlabel("cb%d" % kap)
        a.I("s_waitcnt vmcnt(%d)" % (7 - kap))
        for x in chunk_check(kap):
            a.I(x)
        a.I("s_cbranch_vccnz %s" % lr)
        a.label(lb)
        cool.append((lr, kap, lb))

    def add2(d, x, y):
        return ["v_add_f32 %s, %s, %s" % (vr(d), vr(x), vr(y)),
                "v_add_f32 %s, %s, %s" % (vr(d + 1), vr(x + 1), vr(y + 1))]

    def qk_post(tau):
        return (add2(q[tau], q[tau], q[tau] + 2) + add2(k[tau], k[tau], k[tau] + 2) +
                ["v_cvt_pk_bf16_f32 %s, %s, %s" % (vr(q[tau] + 3), vr(q[tau]), vr(q[tau] + 1)),
                 "v_cvt_pk_bf16_f32 %s, %s, %s" % (vr(q[tau] + 2), vr(k[tau]), vr(k[tau] + 1)),
                 "ds_write_b64 %s, %s offset:%d" % (vr(V_MW), vr(q[tau] + 2, 2), 512 * tau)])

    def far_ops():
        L = []
        for tau in range(2):
            L.append(["buffer_load_dwordx4 %s, %s, %s, s%d offen offset:%d %s"
                      % (vr(VT + 4 * tau, 4), vr(V_L16), ws, S_VT, (tau) * 1024, kvflags)])
        L.append(["s_mov_b32 m0, s%d" % S_KB,
                  "buffer_load_dwordx4 %s, %s, s%d offen %s lds" % (vr(V_L16), ws, S_KT, kvflags)])
        L.append(["buffer_load_dwordx4 %s, %s, s%d offen offset:1024 %s lds" % (vr(V_L16), ws, S_KT, kvflags)])
        return L

    pois = ["buffer_store_dword %s, %s, %s, s%d offen %s" % (vr(S + 8), vr(V_MS), ws, S_T0 + 3, st_flags)]
    tm.start()
    if looptime:
        a.I("s_memrealtime s[92:93]")
        a.I("s_waitcnt lgkmcnt(0)")
    a.label(L_step, clear=True)
    if "steptime" in exp and w == 0:
        a.I("s_memrealtime s[92:93]")
        a.I("s_lshl_b32 s94, s%d, 8" % S_RANK)
        a.I("s_lshl_b32 s95, s%d, 2" % S_STEP)
        a.I("s_add_u32 s94, s94, s95")
        a.I("s_add_u32 s94, s94, 0x%x" % (WS_FLAGS + 0xd000))
        a.I("s_waitcnt lgkmcnt(0)")
        a.I("v_mov_b32 %s, s92" % vr(V_T))
        a.I("buffer_store_dword %s, %s, %s, s94 offen" % (vr(V_T), vr(V_Z), ws))
    own = [2 * w, 2 * w + 1]
    others = [x for x in range(8) if x not in own]
    sets = [KT, KT + 8, KT + 16, KT + 24]
    mbo = L_MB - L_M

    def qk4(kap, A=None):
        A = A or vr(MEM + 4 * kap, 4)
        return [smf(q[0], A, qkw(0, 0, kap)), smf(k[0], A, qkw(1, 0, kap)),
                smf(q[1], A, qkw(0, 1, kap)), smf(k[1], A, qkw(1, 1, kap))]

    def poll2(issue, oks, gap, cnt, check, solo=False):
        n = len(oks)
        Lp = a.newlabel("pl")
        a.I("s_mov_b32 s%d, %d" % (S_RETRY, RETRY_MAX))
        if solo:
            issue(sets[0])
            a.I("s_waitcnt vmcnt(0)")
            check(sets[0], oks[0])
        for i in range(n - 1):
            issue(sets[i])
            if gap:
                a.nops(gap)
        a.label(Lp)
        for i in range(n):
            issue(sets[(i + n - 1) % n])
            a.I("s_waitcnt vmcnt(%d)" % (2 * (n - 1)))
            check(sets[i], oks[i])
        if timing:
            a.I("s_add_u32 s%d, s%d, 1" % (S_TM + 4 + cnt, S_TM + 4 + cnt))
        a.I("s_sub_u32 s%d, s%d, 1" % (S_RETRY, S_RETRY))
        a.I("s_cmp_lg_u32 s%d, 0" % S_RETRY)
        a.I("s_cbranch_scc1 %s" % Lp)
        a.I("s_branch %s" % abort)

    def check_poison(R, ok):
        for i, kap in enumerate(own):
            a.I("ds_write_b128 %s, %s offset:%d" % (vr(V_MB), vr(R + 4 * i, 4), kap * 1024))
        for x in check_insts([R + i for i in range(8)], V_T):
            a.I(x)
        if "nomemchk" in exp:
            a.I("s_branch %s" % ok)
        a.I("s_cbranch_vccz %s" % ok)

    def check_tag(R, ok):
        a.I("v_bitop3_b32 %s, %s, %s, s%d bitop3:0x7e" % (vr(V_T), vr(R), vr(R + 4), S_TAG))
        a.I("v_and_b32 %s, 1, %s" % (vr(V_T), vr(V_T)))
        a.I("v_cmp_ne_u32 vcc, 0, %s" % vr(V_T))
        if "noinchk" in exp:
            a.I("s_branch %s" % ok)
        a.I("s_cbranch_vccz %s" % ok)

    def issue_mem(R):
        for i, kap in enumerate(own):
            a.I("buffer_load_dwordx4 %s, %s, %s, s%d offen offset:%d sc1"
                % (vr(R + 4 * i, 4), vr(V_L16), ws, S_MEM if kap < 4 else S_MEMHI, (kap & 3) * 1024))
    if delay:
        a.nops(delay)
    hop(a, 4)
    oks = [a.newlabel("mok%d" % i) for i in range(nsets)]
    Lj = a.newlabel("mjoin")
    poll2(issue_mem, oks, gap, 9, check_poison, solo=bool(solo & 1))
    for si in range(nsets - 1, -1, -1):
        R = sets[si]
        a.label(oks[si], clear=True)
        tm.stamp(11)
        hop(a, 5)
        m_own = qk4(own[0], vr(R, 4)) + qk4(own[1], vr(R + 4, 4))
        for m in m_own[:3]:
            a.I(m)
        a.I("s_waitcnt lgkmcnt(0)")
        a.I("s_barrier")
        tm.stamp(12)
        hop(a, 6)
        rd = ["ds_read_b128 %s, %s offset:%d" % (vr(MEM + 4 * kap, 4), vr(V_MB), kap * 1024) for kap in others + own]
        a.I(rd[0])
        a.I(rd[1])
        for j, m in enumerate(m_own[3:]):
            a.I(m)
            a.I(rd[2 + j])
        a.I(rd[7])
        if si != 0:
            a.I("s_branch %s" % Lj)
    a.label(Lj, clear=True)
    tm.stamp(0)
    FINE["n"] = 0; FINE["k"] = 0; FINE["names"] = []
    fine(a, "join")
    hop(a, 7)
    nv = 0
    if "latepois" in exp and "preppois" not in exp:
        for x in pois:
            a.I(x)
            nv += 1
    if fused and w == 3:
        a.I("v_mov_b32 %s, s%d" % (vr(V_S), S_STEP))
        a.I("v_mov_b32 %s, s%d" % (vr(V_S + 1), S_NONCE))
        a.I("buffer_store_dwordx2 %s, %s, %s, s%d offen sc1" % (vr(V_S, 2), vr(V_Z), ws, S_CP))
        nv += 1
    if "nocompute" in exp:
        a.I("s_waitcnt vmcnt(0)")
        a.I("s_waitcnt lgkmcnt(0)")
        for i in range(0, 24, 2):
            a.I("v_mov_b64 %s, 0" % vr(ACC + i, 2))
        a.I("v_mov_b32 %s, s%d" % (vr(ACC), S_TAG))
        a.I("v_mov_b32 %s, s%d" % (vr(ACC + 16), S_TAG))
        a.I("buffer_store_dwordx4 %s, %s, %s, s%d offen %s" % (vr(ACC, 4), vr(V_PS), ws, S_PW0, st_flags))
        a.I("buffer_store_dwordx4 %s, %s, %s, s%d offen %s" % (vr(ACC + 16, 4), vr(V_PS), ws, S_PW1, st_flags))
        a.I("s_branch L_skip_w%d%s" % (w, tag))
    fill_hi = ["ds_read_b128 %s, %s offset:%d" % (vr(KT + (4 + ks) * 4, 4), vr(V_K), (4 + ks) * 1024) for ks in range(4)]
    fill_lo = ["ds_read_b128 %s, %s offset:%d" % (vr(KT + ks * 4, 4), vr(V_K), ks * 1024) for ks in range(4)]
    far = far_ops() if "nofar" not in exp else []
    nissued = 0
    cnt = 0
    waited = False
    for j, kap in enumerate(others[:4]):
        a.I("s_waitcnt lgkmcnt(%d)" % min(15, 7 - j + nissued))
        for m in qk4(kap):
            a.I(m)
            if cnt % 2 == 0:
                if fill_hi:
                    a.I(fill_hi.pop(0))
                    nissued += 1
                elif fill_lo:
                    if not waited:
                        a.I("s_waitcnt vmcnt(%d)" % nv)
                        waited = True
                        if fused:
                            Lh = a.newlabel("hz")
                            Lb = a.newlabel("hzb")
                            a.I("s_add_u32 s%d, s%d, 3" % (S_T0 + 5, S_STEP))
                            a.I("s_cmp_ge_u32 s%d, s%d" % (S_T0 + 5, S_HZ))
                            a.I("s_cbranch_scc1 %s" % Lh)
                            a.label(Lb)
                            hzl.append((Lh, Lb))
                    a.I(fill_lo.pop(0))
                    nissued += 1
            elif cnt % 4 == 1 and far:
                for x in far.pop(0):
                    a.I(x)
                nv += 1
            cnt += 1
        fine(a, "chunk%d" % j)
    assert not fill_lo and not far
    k6, k7 = others[4], others[5]
    A6, A7 = vr(MEM + 4 * k6, 4), vr(MEM + 4 * k7, 4)
    a.I("s_waitcnt lgkmcnt(%d)" % min(15, nissued))
    a.I(smf(q[0], A6, qkw(0, 0, k6)))
    a.I(smf(k[0], A6, qkw(1, 0, k6)))
    a.I(smf(q[0], A7, qkw(0, 0, k7)))
    a.I(smf(k[0], A7, qkw(1, 0, k7)))
    fine(a, "last4")
    tm.stamp(1)
    m1 = [smf(q[1], A6, qkw(0, 1, k6)), smf(k[1], A6, qkw(1, 1, k6)),
          smf(q[1], A7, qkw(0, 1, k7)), smf(k[1], A7, qkw(1, 1, k7))]
    vm = []
    for kap in range(8):
        for tau in range(2):
            vm.append(smf(v[tau], vr(MEM + 4 * kap, 4), vr(V_VW + tau * 64 + kap * 8, 8)))
    p0, p1 = qk_post(0), qk_post(1)
    a.I(m1[0])
    a.I(m1[1])
    a.I(m1[2])
    a.I(m1[3])
    fine(a, "m1")
    a.I(vm[0])
    for x in p0[0:2]:
        a.I(x)
    a.I(vm[1])
    for x in p0[2:4]:
        a.I(x)
    a.I(vm[2])
    for x in p0[4:7]:
        a.I(x)
    fine(a, "p0")
    for x in p1:
        a.I(x)
    fine(a, "p1")
    a.I(vm[3])
    a.I(vm[4])
    a.I(vm[5])
    a.I(vm[6])
    fine(a, "vm6")
    a.I("s_waitcnt lgkmcnt(0)")
    a.I("s_barrier")
    fine(a, "B1")
    trs = ["ds_read_b64_tr_b16 %s, %s offset:%d" % (vr(ACC + 4 * ks + 2 * hh, 2), vr(V_MR), 1024 * ks + 512 * hh)
           for ks in range(4) for hh in range(2)]
    a.I(trs[0])
    a.I(trs[1])
    a.I(trs[2])
    for i, m in enumerate(vm[7:12]):
        a.I(m)
        a.I(trs[3 + i])
    fine(a, "trs")
    tm.stamp(2)
    order = [(tau, xi) for tau in range(8) for xi in range(2)]
    slots = [KT + 8 * i for i in range(4)] + [MEM + 8 * i for i in range(4)]

    def stage(n, slot):
        tau, xi = order[n]
        return ["ds_read_b128 %s, %s offset:%d" % (vr(slot + 4 * hf, 4), vr(V_L16W), wo_img_off(tau, xi, hf))
                for hf in range(2)]

    T1, T2, T0 = S, S + 4, S + 8
    sc = []
    for ks in range(4):
        M = vr(ACC + 4 * ks, 4)
        for (D, A) in ((T1, vr(KT + ks * 4, 4)), (T2, vr(KT + (4 + ks) * 4, 4)), (T0, M)):
            sc.append("v_mfma_f32_16x16x32_bf16 %s, %s, %s, %s" % (vr(D, 4), A, M, "0" if ks == 0 else vr(D, 4)))
    P0q, ones = ACC, ACC + 4
    stgM = []
    for n in range(4, 8):
        stgM += stage(n, slots[n])
    nst = 0
    for ks in range(4):
        a.I("s_waitcnt lgkmcnt(%d)" % min(15, 6 - 2 * ks + nst))
        for j, m in enumerate(sc[3 * ks:3 * ks + 3]):
            a.I(m)
            if nst < 6 and (ks > 0 or j > 0):
                a.I(stgM[nst])
                nst += 1
        fine(a, "sc%d" % ks)
    if "nopub" not in exp:
        a.I("buffer_store_dwordx4 %s, %s, %s, s%d offen offset:%d sc1"
            % (vr(ACC + 4 * w, 4), vr(V_KM), ws, S_KM, w * 512))
    for m in vm[12:16]:
        a.I(m)
    a.I(stgM[6])
    a.I(stgM[7])
    fine(a, "vm15")
    tm.stamp(3)
    if dbg == "S":
        dump(a, w, S, 12)
    mx, tt, nmc = ACC + 8, ACC + 9, ACC + 10
    rs = ACC + 12
    stg = []
    for n in range(0, 4):
        stg += stage(n, slots[n])
    sm = []
    sm.append("v_max3_f32 %s, %s, %s, %s" % (vr(mx), vr(S + 0), vr(S + 1), vr(S + 2)))
    sm.append("v_max3_f32 %s, %s, %s, %s" % (vr(tt), vr(S + 3), vr(S + 4), vr(S + 5)))
    sm.append("v_max3_f32 %s, %s, %s, %s" % (vr(mx), vr(mx), vr(S + 6), vr(S + 7)))
    sm.append("v_max3_f32 %s, %s, %s, %s" % (vr(tt), vr(tt), vr(S + 8), vr(S + 9)))
    sm.append("v_max_f32 %s, %s, %s" % (vr(mx), vr(mx), vr(tt)))
    sm.append("v_mov_b32 %s, %s" % (vr(tt), vr(mx)))
    sm.append(None)
    sm.append("v_permlane32_swap_b32 %s, %s" % (vr(mx), vr(tt)))
    sm.append("v_max_f32 %s, %s, %s" % (vr(mx), vr(mx), vr(tt)))
    sm.append("v_mov_b32 %s, %s" % (vr(tt), vr(mx)))
    sm.append(None)
    sm.append("v_permlane16_swap_b32 %s, %s" % (vr(mx), vr(tt)))
    sm.append("v_max_f32 %s, %s, %s" % (vr(mx), vr(mx), vr(tt)))
    sm.append("v_mul_f32 %s, s%d, %s" % (vr(nmc), S_NC, vr(mx)))
    for j in range(5):
        sm.append("v_pk_fma_f32 %s, %s, s[%d:%d], %s op_sel_hi:[1,0,0]"
                  % (vr(S + 2 * j, 2), vr(S + 2 * j, 2), S_C, S_C + 1, vr(nmc, 2)))
    for i in range(10):
        sm.append("v_exp_f32 %s, %s" % (vr(S + i), vr(S + i)))
    si = 0
    consts = ["v_mov_b64 %s, s[%d:%d]" % (vr(ones, 2), S_ONE, S_ONE + 1),
              "v_mov_b64 %s, s[%d:%d]" % (vr(ones + 2, 2), S_ONE, S_ONE + 1),
              "v_mov_b32 %s, 0" % vr(ACC + 1), "v_mov_b64 %s, 0" % vr(ACC + 2, 2)]
    for j, x in enumerate(sm):
        if x is None:
            a.I(stg[si])
            si += 1
            a.I(consts.pop(0))
            continue
        a.I(x)
        if j >= 14 and si < len(stg) and j % 3 == 0:
            a.I(stg[si])
            si += 1
    while si < len(stg):
        a.I(stg[si])
        si += 1
    for x in consts:
        a.I(x)
    fine(a, "exp")
    if fused:
        Le = a.newlabel("hze")
        Lf = a.newlabel("hzf")
        a.I("s_cmp_lg_u32 s%d, 0" % S_PEND)
        a.I("s_cbranch_scc1 %s" % Le)
        a.label(Lf)
        hze.append((Le, Lf))
    for j in range(4):
        a.I("v_cvt_pk_bf16_f32 %s, %s, %s" % (vr(PX + j), vr(S + 2 * j), vr(S + 1 + 2 * j)))
    a.I("v_cvt_pk_bf16_f32 %s, %s, %s" % (vr(P0q), vr(S + 8), vr(S + 9)))
    fine(a, "P")
    tm.stamp(4)
    if dbg == "P":
        dump(a, w, PX, 10)
    O0, O1, OS = S, S + 4, S + 8
    P = vr(PX, 4)
    vp = add2(v[0], v[0], v[0] + 2) + add2(v[1], v[1], v[1] + 2)
    a.I(vp[0])
    a.I("v_mfma_f32_16x16x32_bf16 %s, %s, %s, 0" % (vr(OS, 4), P, vr(ones, 4)))
    a.I("s_waitcnt vmcnt(%d)" % (2 + (0 if "nopub" in exp else 1)))
    a.I(vp[1])
    a.I("v_mfma_f32_16x16x32_bf16 %s, %s, %s, 0" % (vr(O0, 4), P, vr(VT, 4)))
    a.I(vp[2])
    a.I("v_mfma_f32_16x16x32_bf16 %s, %s, %s, 0" % (vr(O1, 4), P, vr(VT + 4, 4)))
    a.I(vp[3])
    a.I("v_mfma_f32_16x16x32_bf16 %s, %s, %s, %s" % (vr(OS, 4), vr(P0q, 4), vr(ones, 4), vr(OS, 4)))
    a.I("v_cvt_pk_bf16_f32 %s, %s, %s" % (vr(PX + 4), vr(v[0]), vr(v[0] + 1)))
    a.I("v_cvt_pk_bf16_f32 %s, %s, %s" % (vr(PX + 6), vr(v[1]), vr(v[1] + 1)))
    a.I("v_lshrrev_b32 %s, 2, %s" % (vr(V_T), vr(V_L16)))
    a.I("v_mfma_f32_16x16x32_bf16 %s, %s, %s, %s" % (vr(O0, 4), vr(P0q, 4), vr(PX + 4, 4), vr(O0, 4)))
    a.I("v_mfma_f32_16x16x32_bf16 %s, %s, %s, %s" % (vr(O1, 4), vr(P0q, 4), vr(PX + 6, 4), vr(O1, 4)))
    fine(a, "PVm")
    if "nopub" not in exp:
        a.I("buffer_store_dword %s, %s, %s, s%d offen sc1" % (vr(PX + 4), vr(V_T), ws, S_VM))
        a.I("buffer_store_dword %s, %s, %s, s%d offen offset:256 sc1" % (vr(PX + 6), vr(V_T), ws, S_VM))
    a.I("v_rcp_f32 %s, %s" % (vr(rs), vr(OS + 2)))
    a.I("v_rcp_f32 %s, %s" % (vr(rs + 1), vr(OS + 3)))
    zl = []
    for tI in range(8):
        for r in range(0, 4, 2):
            zl.append("v_mov_b64 %s, 0" % vr(wacc(tI) + r, 2))
    a.I("v_pk_mul_f32 %s, %s, %s" % (vr(O0 + 2, 2), vr(O0 + 2, 2), vr(rs, 2)))
    a.I("v_pk_mul_f32 %s, %s, %s" % (vr(O1 + 2, 2), vr(O1 + 2, 2), vr(rs, 2)))
    a.I("v_cvt_pk_bf16_f32 %s, %s, %s" % (vr(S), vr(O0 + 2), vr(O0 + 3)))
    a.I("v_cvt_pk_bf16_f32 %s, %s, %s" % (vr(S + 1), vr(O1 + 2), vr(O1 + 3)))
    if dbg == "O":
        dump(a, w, S, 2)
    a.I("ds_write_b64 %s, %s offset:%d" % (vr(V_MW), vr(S, 2), O_OFF))
    fine(a, "owr")
    for x in zl[4:12]:
        a.I(x)
    a.I("s_waitcnt lgkmcnt(0)")
    a.I("s_barrier")
    fine(a, "B2")
    for xi in range(2):
        for hh in range(2):
            a.I("ds_read_b64_tr_b16 %s, %s offset:%d" % (vr(PX + 4 * xi + 2 * hh, 2), vr(V_MR), O_OFF + 2048 * xi + 1024 * hh))
    for x in zl[:4] + zl[12:]:
        a.I(x)
    a.I("s_waitcnt lgkmcnt(0)")
    fine(a, "OA")
    tm.stamp(5)
    def post_tile(t):
        ta = wacc(t)
        dq = wacc(4 * (t >> 2)) + (t & 3)
        L = add2(ta, ta, ta + 2) + ["v_cvt_pk_bf16_f32 %s, %s, %s" % (vr(dq), vr(ta), vr(ta + 1))]
        if (t & 3) == 3:
            d0 = wacc(4 * (t >> 2))
            L.append("v_bfi_b32 %s, 1, s%d, %s" % (vr(d0), S_TAG, vr(d0)))
            L.append("buffer_store_dwordx4 %s, %s, %s, s%d offen %s"
                     % (vr(d0, 4), vr(V_PS), ws, S_PW0 if t == 3 else S_PW1, st_flags))
        return L
    pend = []
    seq = []
    todo = []
    for n8 in range(8, 16):
        todo += [(n8, x) for x in stage(n8, slots[n8 % 8])]
    for n in range(16):
        tau, xi = order[n]
        slot = slots[n % 8]
        if n >= 8:
            last = max(i for i, o in enumerate(seq) if o == n)
            a.I("s_waitcnt lgkmcnt(%d)" % (len(seq) - last - 1))
        a.I(smf(wacc(tau), vr(PX + 4 * xi, 4), vr(slot, 8)))
        target = min(16, 2 * (n + 1), (3 * (n + 1) + 1) // 2)
        while len(seq) < target:
            o, x = todo.pop(0)
            a.I(x)
            seq.append(o)
        if n in (3, 7, 11, 15):
            fine(a, "wo%d" % n)
        if n >= 3 and n % 2 == 1:
            pend += post_tile((n - 3) // 2)
        for _ in range(1 if n < 8 else 2):
            if pend:
                a.I(pend.pop(0))
    for x in pend:
        a.I(x)
    ta = wacc(7)
    a.I("v_pk_add_f32 %s, %s, %s" % (vr(ta, 2), vr(ta, 2), vr(ta + 2, 2)))
    for x in post_tile(7)[2:]:
        a.I(x)
    fine(a, "woend")
    hop(a, 0)
    tm.stamp(6)
    if "ack" in exp:
        a.I("s_waitcnt vmcnt(0)")
        tm.stamp(15)

    SEL = S
    D2 = S + 4
    if "preppois" in exp:
        a.I("v_mov_b32 %s, -1" % vr(S + 8))
        for x in pois:
            a.I(x)
    sel_addr(a, V_T, SEL)
    a.I("ds_read_b128 %s, %s" % (vr(SEL, 4), vr(V_T)))
    for i in range(0, 24, 2):
        a.I("v_mov_b64 %s, 0" % vr(ACC + i, 2))
    a.I("s_add_u32 s%d, s%d, 262144" % (S_KT, S_KT))
    a.I("s_add_u32 s%d, s%d, 262144" % (S_VT, S_VT))
    a.I("s_add_u32 s%d, s%d, 65536" % (S_VM, S_VM))
    a.I("s_add_u32 s%d, s%d, 65536" % (S_KM, S_KM))
    a.I("s_add_u32 s%d, s%d, 1" % (S_STEP, S_STEP))
    a.I("s_xor_b32 s%d, s%d, 8192" % (S_KB, S_KB))
    a.I("v_xor_b32 %s, 8192, %s" % (vr(V_K), vr(V_K)))
    if rdelay:
        a.nops(rdelay)
    hop(a, 1)

    def issue_in(R):
        for m in range(2):
            a.I("buffer_load_dwordx4 %s, %s, %s, s%d offen offset:%d sc1"
                % (vr(R + 4 * m, 4), vr(V_L16), ws, S_PR, m * 1024))
    oks = [a.newlabel("rok%d" % i) for i in range(rsets)]
    Lj = a.newlabel("rjoin")
    a.I("s_waitcnt lgkmcnt(0)")
    tm.stamp(14)
    poll2(issue_in, oks, rgap, 10, check_tag, solo=bool(solo & 2))
    for si in range(rsets - 1, -1, -1):
        R = sets[si]
        a.label(oks[si], clear=True)
        tm.stamp(13)
        hop(a, 2)
        a.I("v_mfma_f32_16x16x32_bf16 %s, %s, %s, 0" % (vr(D2, 4), vr(R, 4), vr(SEL, 4)))
        a.I("v_mfma_f32_16x16x32_bf16 %s, %s, %s, %s" % (vr(D2, 4), vr(R + 4, 4), vr(SEL, 4), vr(D2, 4)))
        if si != 0:
            a.I("s_branch %s" % Lj)
    a.label(Lj)
    a.I("s_add_u32 s%d, s%d, 8192" % (S_MEM, S_MEM))
    a.I("s_and_b32 s%d, s%d, 0x%x" % (S_MEM, S_MEM, WS_MEM | 0x7fff))
    a.I("s_add_u32 s%d, s%d, 4096" % (S_MEMHI, S_MEM))
    a.I("s_add_u32 s%d, s%d, 2 * 8192" % (S_T0 + 3, S_MEM))
    a.I("s_and_b32 s%d, s%d, 0x%x" % (S_T0 + 3, S_T0 + 3, WS_MEM | 0x7fff))
    a.I("v_mov_b32 %s, -1" % vr(S + 8))
    a.nops(3)
    a.I("v_permlane32_swap_b32 %s, %s" % (vr(D2), vr(D2 + 2)))
    a.I("v_permlane32_swap_b32 %s, %s" % (vr(D2 + 1), vr(D2 + 3)))
    a.I("v_add_f32 %s, %s, %s" % (vr(D2), vr(D2), vr(D2 + 2)))
    a.I("v_add_f32 %s, %s, %s" % (vr(D2 + 1), vr(D2 + 1), vr(D2 + 3)))
    a.I("v_permlane16_swap_b32 %s, %s" % (vr(D2), vr(D2 + 1)))
    a.I("v_add_f32 %s, %s, %s" % (vr(D2), vr(D2), vr(D2 + 1)))
    a.I("v_mov_b32 %s, %s" % (vr(D2 + 1), vr(D2)))
    a.I("v_permlane16_swap_b32 %s, %s" % (vr(D2), vr(D2 + 1)))
    a.I("v_cvt_pk_bf16_f32 %s, %s, %s" % (vr(D2), vr(D2), vr(D2 + 1)))
    a.I("v_min_u32 %s, 0xfffffffe, %s" % (vr(D2), vr(D2)))
    a.I("buffer_store_dword %s, %s, %s, s%d offen %s" % (vr(D2), vr(V_MS), ws, S_MEM, st_flags))
    hop(a, 3)
    tm.stamp(7)
    if "latepois" not in exp:
        for x in pois:
            a.I(x)
    for s_ in (S_PW0, S_PW1, S_PR):
        a.I("s_xor_b32 s%d, s%d, 262144" % (s_, s_))
    a.I("s_bfe_u32 s%d, s%d, 0x10001" % (S_TAG, S_STEP))
    if "rtt" not in exp:
        tm.stamp(8)
    if stop_after is not None:
        a.I("s_cmp_eq_u32 s%d, %d" % (S_STEP, stop_after))
        a.I("s_cbranch_scc1 %s" % L_done)
    a.I("s_cmp_lg_u32 s%d, 63" % S_STEP)
    a.I("s_cbranch_scc1 %s" % L_step)
    a.I("s_mov_b32 s%d, %d" % (S_RETRY, RETRY_MAX))
    Lp = a.newlabel("lpoll")
    Lr = a.newlabel("lretry")
    a.label(Lp)
    for kap in range(8):
        a.I(mem_load(kap))
    a.I("s_waitcnt vmcnt(0)")
    for x in check_insts([MEM + i for i in range(32)], V_T):
        a.I(x)
    a.I("s_cbranch_vccnz %s" % Lr)
    ool.append((Lr, Lp))
    for kap in range(8):
        A = vr(MEM + 4 * kap, 4)
        a.I(smf(k[0], A, qkw(1, 0, kap)))
        a.I(smf(k[1], A, qkw(1, 1, kap)))
        a.I(smf(v[0], A, vr(V_VW + kap * 8, 8)))
        a.I(smf(v[1], A, vr(V_VW + 64 + kap * 8, 8)))
    for tau in range(2):
        for x in qk_post(tau):
            a.I(x)
    for x in add2(v[0], v[0], v[0] + 2) + add2(v[1], v[1], v[1] + 2):
        a.I(x)
    a.I("v_cvt_pk_bf16_f32 %s, %s, %s" % (vr(PX + 4), vr(v[0]), vr(v[0] + 1)))
    a.I("v_cvt_pk_bf16_f32 %s, %s, %s" % (vr(PX + 6), vr(v[1]), vr(v[1] + 1)))
    a.I("v_lshrrev_b32 %s, 2, %s" % (vr(V_T), vr(V_L16)))
    a.I("buffer_store_dword %s, %s, %s, s%d offen sc1" % (vr(PX + 4), vr(V_T), ws, S_VM))
    a.I("buffer_store_dword %s, %s, %s, s%d offen offset:256 sc1" % (vr(PX + 6), vr(V_T), ws, S_VM))
    a.I("s_waitcnt lgkmcnt(0)")
    a.I("s_barrier")
    if fused and w == 3:
        a.I("v_mov_b32 %s, 63" % vr(V_S))
        a.I("v_mov_b32 %s, s%d" % (vr(V_S + 1), S_NONCE))
        a.I("buffer_store_dwordx2 %s, %s, %s, s%d offen sc1" % (vr(V_S, 2), vr(V_Z), ws, S_CP))
    for hh in range(2):
        a.I("ds_read_b64_tr_b16 %s, %s offset:%d" % (vr(KT + 2 * hh, 2), vr(V_MR), 1024 * w + 512 * hh))
    a.I("s_waitcnt lgkmcnt(0)")
    a.I("buffer_store_dwordx4 %s, %s, %s, s%d offen offset:%d sc1" % (vr(KT, 4), vr(V_KM), ws, S_KM, w * 512))
    if fused:
        a.I("s_waitcnt vmcnt(0)")
        a.I("s_barrier")
        if w == 3:
            a.I("v_mov_b32 %s, 64" % vr(V_S))
            a.I("v_mov_b32 %s, s%d" % (vr(V_S + 1), S_NONCE))
            a.I("buffer_store_dwordx2 %s, %s, %s, s%d offen sc1" % (vr(V_S, 2), vr(V_Z), ws, S_CP))
    a.label(L_done, clear=True)
    a.I("s_waitcnt vmcnt(0) lgkmcnt(0)")
    if FINE["on"] or FINE.get("hop"):
        Lq = a.newlabel("fq")
        for i in range(16):
            a.I("v_mov_b32 %s, s%d" % (vr(V_MEM + i), 64 + 2 * i))
        a.I("v_mov_b32 %s, 0" % vr(V_MEM + 16))
        a.I("s_lshl_b32 s%d, s%d, 8" % (S_T0, S_RANK))
        a.I("s_add_u32 s%d, s%d, 0x%x" % (S_T0, S_T0, WS_FLAGS + 0x9000 + w * 64))
        for i in range(16):
            a.I("buffer_store_dword %s, %s, %s, s%d offen offset:%d" % (vr(V_MEM + i), vr(V_MEM + 16), ws, S_T0, i * 4))
        a.I("s_waitcnt vmcnt(0)")
        a.label(Lq)
    if looptime and w == 0:
        a.I("s_memrealtime s[94:95]")
        a.I("s_waitcnt lgkmcnt(0)")
        a.I("s_sub_u32 s94, s94, s92")
        a.I("v_mov_b32 %s, s94" % vr(V_MEM))
        a.I("v_mov_b32 %s, s92" % vr(V_MEM + 1))
        a.I("s_lshl_b32 s%d, s%d, 3" % (S_T0, S_RANK))
        a.I("v_mov_b32 %s, s%d" % (vr(V_MEM + 2), S_T0))
        a.I("s_mov_b32 s%d, 0x%x" % (S_T0, WS_FLAGS + 0xc000))
        a.I("buffer_store_dwordx2 %s, %s, %s, s%d offen" % (vr(V_MEM, 2), vr(V_MEM + 2), ws, S_T0))
        a.I("s_waitcnt vmcnt(0)")
    if timing:
        Ls = a.newlabel("notm")
        if trace is None:
            a.I("s_cmp_lg_u32 s%d, 0" % S_RANK)
            a.I("s_cbranch_scc1 %s" % Ls)
        for i in range(16):
            a.I("v_mov_b32 %s, s%d" % (vr(V_MEM + i), S_TM + 4 + i))
        a.I("v_mov_b32 %s, 0" % vr(V_MEM + 16))
        a.I("s_lshl_b32 s%d, s%d, 8" % (S_T0, S_RANK))
        a.I("s_add_u32 s%d, s%d, 0x%x" % (S_T0, S_T0, WS_FLAGS + 0x8000 + w * 64))
        for i in range(16):
            a.I("buffer_store_dword %s, %s, %s, s%d offen offset:%d" % (vr(V_MEM + i), vr(V_MEM + 16), ws, S_T0, i * 4))
        a.I("s_waitcnt vmcnt(0)")
        a.label(Ls)
    Lend = a.newlabel("end")
    a.I("s_branch %s" % Lend)
    for (lab, tgt) in ool:
        retry_block(a, lab, tgt, abort)
    for (lh, lb) in hzl:
        a.label(lh, clear=True)
        lblk = a.newlabel("hzblk")
        a.I("s_cmp_ge_u32 s%d, 64" % S_HZ)
        a.I("s_cbranch_scc1 %s" % lb)
        a.I("s_add_u32 s%d, s%d, 1" % (S_T0 + 5, S_STEP))
        a.I("s_cmp_ge_u32 s%d, s%d" % (S_T0 + 5, S_HZ))
        a.I("s_cbranch_scc1 %s" % lblk)
        horizon_issue(a, V_PX)
        a.I("s_mov_b32 s%d, 1" % S_PEND)
        a.I("s_branch %s" % lb)
        a.label(lblk)
        horizon_refresh(a, S_T0 + 5, abort)
        a.I("s_branch %s" % lb)
    for (le, lf) in hze:
        a.label(le, clear=True)
        a.I("s_mov_b32 s%d, 0" % S_PEND)
        a.I("s_waitcnt vmcnt(%d)" % (2 + (0 if "nopub" in exp else 1)))
        horizon_eval(a, V_PX)
        a.I("v_mov_b32 %s, 0" % vr(V_PX + 5))
        a.I("v_mov_b32 %s, 0" % vr(V_PX + 7))
        a.I("s_branch %s" % lf)
    for (lr, kap, lb) in cool:
        a.label(lr, clear=True)
        lq = a.newlabel("cq")
        a.I("s_mov_b32 s%d, %d" % (S_RETRY, RETRY_MAX))
        a.label(lq)
        a.I(mem_load(kap))
        a.I("s_waitcnt vmcnt(0)")
        for x in chunk_check(kap):
            a.I(x)
        a.I("s_cbranch_vccz %s" % lb)
        a.I("s_sub_u32 s%d, s%d, 1" % (S_RETRY, S_RETRY))
        a.I("s_cmp_lg_u32 s%d, 0" % S_RETRY)
        a.I("s_cbranch_scc1 %s" % lq)
        a.I("s_branch %s" % abort)
    a.label(Lend, clear=True)


def setup_scalar(a, w, fused=False):
    r = S_RANK
    a.I("s_mov_b32 s%d, 0" % S_STEP)
    a.I("s_mov_b32 s%d, 0" % S_TAG)
    a.I("s_mov_b32 s%d, 0" % S_PEND)
    a.I("s_mov_b32 s%d, 0x%x" % (S_MEM, WS_MEM))
    a.I("s_mov_b32 s%d, 0x%x" % (S_MEMHI, WS_MEM + 4096))
    a.I("s_mov_b32 s%d, 0x%x" % (S_PW0, WS_PART + w * 65536))
    a.I("s_add_u32 s%d, s%d, 32768" % (S_PW1, S_PW0))
    a.I("s_lshl_b32 s%d, s%d, 13" % (S_PR, r))
    a.I("s_add_u32 s%d, s%d, 0x%x" % (S_PR, S_PR, WS_PART + w * 2048))
    a.I("s_lshl_b32 s%d, s%d, 13" % (S_KT, r))
    a.I("s_add_u32 s%d, s%d, 0x%x" % (S_VT, S_KT, WS_VT + 2 * w * 1024))
    a.I("s_add_u32 s%d, s%d, 0x%x" % (S_KT, S_KT, WS_KT + 2 * w * 1024))
    a.I("s_lshl_b32 s%d, s%d, 11" % (S_KM, r))
    a.I("s_add_u32 s%d, s%d, 0x%x" % (S_VM, S_KM, WS_VM + w * 512))
    a.I("s_add_u32 s%d, s%d, 0x%x" % (S_KM, S_KM, WS_KM))
    import struct
    c = struct.unpack("<I", struct.pack("<f", 128 ** -0.5 * 1.4426950408889634))[0]
    a.I("s_mov_b32 s%d, 0x%x" % (S_C, c))
    a.I("s_mov_b32 s%d, 0x%x" % (S_NC, c | 0x80000000))
    a.I("s_mov_b32 s%d, 0x3f803f80" % S_ONE)
    a.I("s_mov_b32 s%d, 0x3f803f80" % (S_ONE + 1))
    a.I("v_mov_b64 %s, 0" % vr(V_PX + 8, 2))
    if fused:
        a.I("s_lshl_b32 s%d, s%d, 6" % (S_PG, r))
        a.I("s_add_u32 s%d, s%d, 0x%x" % (S_PG, S_PG, FL_PROG))
        a.I("s_add_u32 s%d, s%d, 48" % (S_CP, S_PG))


def k0_dma(a, w):
    a.I("s_mov_b32 m0, %d" % (L_K + 2 * w * 1024))
    for p in range(2):
        a.I("buffer_load_dwordx4 %s, s[%d:%d], s%d offen offset:%d sc1 lds" % (vr(V_L16), S_WS, S_WS + 3, S_KT, p * 1024))
    a.I("s_add_u32 s%d, s%d, 262144" % (S_KT, S_KT))
    a.I("s_mov_b32 s%d, %d" % (S_KB, L_K + 8192 + 2 * w * 1024))


def warm_handoff(a, w, vb):
    ws = "s[%d:%d]" % (S_WS, S_WS + 3)
    for ring in range(2):
        a.I("s_xor_b32 s%d, s%d, %d" % (S_T0 + 1, S_PR, ring * 262144))
        for m in range(2):
            a.I("buffer_load_dwordx4 %s, %s, %s, s%d offen offset:%d sc1" % (vr(vb, 4), vr(V_L16), ws, S_T0 + 1, m * 1024))
    for m in range(2):
        a.I("buffer_load_dwordx4 %s, %s, %s, s%d offen offset:%d sc1" % (vr(vb, 4), vr(V_L16), ws, S_VT, m * 1024))
    a.I("buffer_load_dword %s, %s, %s, s%d offen sc1" % (vr(vb), vr(V_Z), ws, S_KM))
    a.I("buffer_load_dword %s, %s, %s, s%d offen sc1" % (vr(vb), vr(V_Z), ws, S_VM))
    for slot in range(0, 4):
        a.I("s_mov_b32 s%d, 0x%x" % (S_T0 + 1, WS_MEM + slot * 8192 + w * 2048))
        for m in range(2):
            a.I("buffer_load_dwordx4 %s, %s, %s, s%d offen offset:%d sc1" % (vr(vb, 4), vr(V_L16), ws, S_T0 + 1, m * 1024))


def setup_regs(a, w):
    for i in range(0, 24, 2):
        a.I("v_mov_b64 %s, 0" % vr(V_ACC + i, 2))
    a.I("v_mov_b64 %s, -1" % vr(V_S + 8, 2))
    a.I("v_mov_b64 %s, -1" % vr(V_S + 10, 2))
    a.I("s_mov_b32 s%d, 0x%x" % (S_T0 + 3, WS_MEM + 3 * 8192))
    a.I("v_mov_b64 %s, 0" % vr(V_PX + 8, 2))
    a.I("v_mov_b64 %s, 0" % vr(V_PX + 4, 2))
    a.I("v_mov_b64 %s, 0" % vr(V_PX + 6, 2))
    a.I("v_add_u32 %s, %d, %s" % (vr(V_MB), L_MB, vr(V_L16)))


def loop_setup(a, w, fused=False, abort="L_abort"):
    setup_scalar(a, w, fused)
    if fused:
        a.I("s_mov_b32 s%d, 0" % (S_T0 + 5))
        horizon_refresh(a, S_T0 + 5, abort)
    k0_dma(a, w)
    setup_regs(a, w)
```
